```python
import torch

def _softmax(x, axis=-1):
    return torch.softmax(x, dim=axis)
def _gelu(x):
    return torch.nn.functional.gelu(x, approximate="tanh")
def _silu(x):
    return torch.nn.functional.silu(x)
def _sigmoid(x):
    return torch.sigmoid(x)
def _layernorm(x, axis=-1, eps=1e-5):
    m = x.mean(dim=axis, keepdim=True)
    v = x.var(dim=axis, keepdim=True, unbiased=False)
    return (x - m) / torch.sqrt(v + eps)
def _scatter_add(tgt, idx, src, axis=0):
    return tgt.clone().index_add_(axis, idx, src)
def _segment_sum(src, seg, n):
    out = torch.zeros((n,) + src.shape[1:], dtype=src.dtype)
    return out.index_add_(0, seg, src)
def _pad(x, pw):
    flat = tuple(v for pair in reversed(pw) for v in pair)
    return torch.nn.functional.pad(x, flat)

kernel_name = 'gather_scatter__mpnn_edge_mlp__graph'

def setup_inputs():

    _w = (lambda a: (lambda t: t.to(torch.bfloat16) if t.is_floating_point() else t)(torch.as_tensor(a)))
    N, deg, D, De = 12500, 64, 64, max(0, 1)
    E = N * deg
    return {
        "x": _w((lambda *s: torch.randn(*s, dtype=torch.bfloat16) * 0.05)(N, D)),
        "e_attr": _w((lambda *s: torch.randn(*s, dtype=torch.bfloat16) * 0.4)(E, De)),
        "src": _w((lambda lo, hi, *s: torch.randint(lo, hi, s))(0, N, E).to(torch.int64)),
        "dst": _w((lambda lo, hi, *s: torch.randint(lo, hi, s))(0, N, E).to(torch.int64)),
        "w_msg": _w((lambda *s: torch.randn(*s, dtype=torch.bfloat16) * 0.4)(2 * D + De, D)),
        "w_upd": _w((lambda *s: torch.randn(*s, dtype=torch.bfloat16) * 0.05)(2 * D, D)),
    }

def reference(x, e_attr, src, dst, w_msg, w_upd):
    N, D = x.shape
    m_in = torch.concatenate([x[src], x[dst], e_attr], axis=-1)
    msg = _silu(m_in @ w_msg)
    agg = _segment_sum(msg, dst, N)
    return _silu(torch.concatenate([x, agg], axis=-1) @ w_upd)
```

```python
import sys, struct
NAME = "gather_scatter__mpnn_edge_mlp__graph"
N, E = 12500, 800000
CH, NCH, NB, NPB = 3200, 250, 256, 49
ATAB, OFFS, WFRAG, REC = 0, 0x190000, 0x1D0000, 0x200000
WS_END = REC + NCH * CH * 8
STAMP = WS_END + 0x10000
LOG2E = 1.4426950408889634
def f2u(x): return struct.unpack("<I", struct.pack("<f", x))[0]
NLOG2E = f2u(-LOG2E); NLN2 = f2u(-0.6931471805599453)
DIAG = "--diag" in sys.argv

L = []
def A(s): L.append("    " + s)
def LB(s): L.append(s + ":")
def C(s): L.append("    ; " + s)
def vr(b, n=1): return f"v{b}" if n == 1 else f"v[{b}:{b+n-1}]"
def sr(b, n=1): return f"s{b}" if n == 1 else f"s[{b}:{b+n-1}]"
def srd(d, base, nbytes, off=0, stride=0):
    if off:
        A(f"s_add_u32 s{d}, s{base}, {off:#x}")
        A(f"s_addc_u32 s{d+1}, s{base+1}, 0")
    else:
        A(f"s_mov_b32 s{d}, s{base}")
        A(f"s_mov_b32 s{d+1}, s{base+1}")
    if stride:
        A(f"s_or_b32 s{d+1}, s{d+1}, {stride << 16:#x}")
    A(f"s_mov_b32 s{d+2}, {nbytes:#x}")
    A(f"s_mov_b32 s{d+3}, 0x20000")
def scan(v):
    for m in ["row_shr:1 row_mask:0xf bank_mask:0xf bound_ctrl:1", "row_shr:2 row_mask:0xf bank_mask:0xf bound_ctrl:1",
              "row_shr:4 row_mask:0xf bank_mask:0xf bound_ctrl:1", "row_shr:8 row_mask:0xf bank_mask:0xf bound_ctrl:1",
              "row_bcast:15 row_mask:0xa bank_mask:0xf", "row_bcast:31 row_mask:0xc bank_mask:0xf"]:
        A("s_nop 1")
        A(f"v_add_u32_dpp v{v}, v{v}, v{v} {m}")

def stamp(k, sws, region):
    if not DIAG: return
    A("s_memtime s[90:91]")
    A("s_waitcnt lgkmcnt(0)")
    A(f"v_mov_b32 v127, s90")
    A(f"s_lshl_b32 s92, s2, 4")
    A(f"s_add_u32 s92, s92, s3")
    A(f"s_lshl_b32 s92, s92, 6")
    A(f"s_add_u32 s92, s92, {STAMP + region*0x40000 + 4*k:#x}")
    A("s_mov_b64 s[94:95], exec")
    A("s_mov_b64 exec, 1")
    A(f"buffer_store_dword v127, off, {sr(sws,4)}, s92")
    A("s_mov_b64 exec, s[94:95]")
WS_REC = (STAMP + 0x100000) if DIAG else WS_END

def k1():
    HIST, BASE = 25600, 26624
    sDST, sSRC, sE, sWS, sX, sWM = 20, 24, 28, 32, 36, 40
    L.append(".globl part_kernel\n.p2align 8\n.type part_kernel,@function")
    LB("part_kernel")
    A("s_cmp_ge_u32 s2, 253")
    A("s_cbranch_scc1 K1_END")
    A("s_load_dwordx8 s[4:11], s[0:1], 0")
    A("s_load_dwordx4 s[12:15], s[0:1], 32")
    A("s_load_dwordx2 s[16:17], s[0:1], 64")
    A("v_lshrrev_b32 v1, 6, v0")
    A("v_and_b32 v2, 63, v0")
    A("v_lshlrev_b32 v3, 4, v0")
    A("v_readfirstlane_b32 s3, v1")
    A("v_lshlrev_b32 v4, 3, v0")
    A("v_lshlrev_b32 v5, 2, v0")
    A("v_mov_b32 v6, 0")
    A("s_mul_i32 s18, s2, 12800")
    A("s_mul_i32 s19, s2, 6400")
    A("s_cmp_ge_u32 s3, 4")
    A("s_cbranch_scc1 K1_NOZ")
    A(f"ds_write_b32 v5, v6 offset:{HIST}")
    LB("K1_NOZ")
    A("s_waitcnt lgkmcnt(0)")
    srd(sDST, 10, E*4); srd(sSRC, 8, E*4); srd(sE, 6, E*2); srd(sWS, 16, WS_REC)
    A("s_cmp_ge_u32 s2, 250")
    A("s_cbranch_scc1 K1_WPREP")
    A("s_cmp_ge_u32 s3, 13")
    A("s_cbranch_scc1 K1_SIDE")
    C("---- partition waves 0..12")
    A("v_cmp_gt_u32 vcc, 800, v0")
    A("s_and_saveexec_b64 s[44:45], vcc")
    A(f"buffer_load_dwordx4 v[8:11], v3, {sr(sDST,4)}, s18 offen")
    A(f"buffer_load_dwordx4 v[12:15], v3, {sr(sSRC,4)}, s18 offen")
    A(f"buffer_load_dwordx2 v[16:17], v4, {sr(sE,4)}, s19 offen")
    A("s_mov_b64 s[46:47], exec")
    A(f"s_mov_b32 s48, {(2**32 + 48)//49}")
    A("s_mov_b32 s49, 0xffff0000")
    A("v_mov_b32 v7, 8")
    stamp(0, sWS, 0)
    A("s_barrier")
    A("s_waitcnt vmcnt(%d)" % (0 if DIAG else 2))
    stamp(1, sWS, 0)
    for i in range(4):
        A(f"v_mul_hi_u32 v{20+i}, v{8+i}, s48")
    for i in range(4):
        A(f"v_lshlrev_b32 v{20+i}, 2, v{20+i}")
        A(f"ds_add_rtn_u32 v{24+i}, v{20+i}, v7 offset:{HIST}")
    A("s_waitcnt vmcnt(0)")
    A("v_lshl_or_b32 v12, v16, 16, v12")
    A("v_and_or_b32 v13, v16, s49, v13")
    A("v_lshl_or_b32 v14, v17, 16, v14")
    A("v_and_or_b32 v15, v17, s49, v15")
    A("s_mov_b64 exec, -1")
    A("v_lshlrev_b32 v18, 4, v2")
    A("s_waitcnt lgkmcnt(0)")
    A("s_barrier")
    stamp(2, sWS, 0)
    def k1scan():
        A(f"ds_read_b128 v[32:35], v18 offset:{HIST}")
        A("s_waitcnt lgkmcnt(0)")
        A("v_add3_u32 v36, v32, v33, v34")
        A("v_add_u32 v37, v36, v35")
        A("v_mov_b32 v38, v37")
        scan(38)
        A("v_sub_u32 v40, v38, v37")
        A("v_add_u32 v41, v40, v32")
        A("v_add_u32 v42, v41, v33")
        A("v_add_u32 v43, v40, v36")
    k1scan()
    A(f"ds_write_b128 v18, v[40:43] offset:{BASE}")
    A("s_mov_b64 exec, s[46:47]")
    A("s_waitcnt lgkmcnt(0)")
    for i in range(4):
        A(f"ds_read_b32 v{28+i}, v{20+i} offset:{BASE}")
    for i in range(4):
        A(f"s_waitcnt lgkmcnt({3})")
        A(f"v_add_u32 v{28+i}, v{28+i}, v{24+i}")
        A(f"ds_write2_b32 v{28+i}, v{12+i}, v{8+i} offset0:0 offset1:1")
    A("s_mul_i32 s18, s2, 25600")
    A(f"s_add_u32 s18, s18, {REC:#x}")
    A("s_add_u32 s19, s18, 12800")
    A("s_waitcnt lgkmcnt(0)")
    A("s_barrier")
    stamp(3, sWS, 0)
    A("ds_read_b128 v[8:11], v3")
    A("ds_read_b128 v[12:15], v3 offset:12800")
    A("s_waitcnt lgkmcnt(1)")
    A(f"buffer_store_dwordx4 v[8:11], v3, {sr(sWS,4)}, s18 offen")
    A("s_waitcnt lgkmcnt(0)")
    A(f"buffer_store_dwordx4 v[12:15], v3, {sr(sWS,4)}, s19 offen")
    stamp(4, sWS, 0)
    if DIAG:
        A("s_waitcnt vmcnt(0)")
        stamp(5, sWS, 0)
    A("s_endpgm")
    LB("K1_SIDE")
    A("s_cmp_eq_u32 s3, 13")
    A("s_cbranch_scc0 K1_ATAB")
    C("---- wave 13: offsets table")
    A("v_lshlrev_b32 v18, 4, v2")
    A("s_lshl_b32 s18, s2, 10")
    A(f"s_add_u32 s18, s18, {OFFS:#x}")
    A("s_barrier")
    A("s_barrier")
    k1scan()
    for i in range(4):
        A(f"v_lshl_or_b32 v{40+i}, v{32+i}, 16, v{40+i}")
    A(f"buffer_store_dwordx4 v[40:43], v18, {sr(sWS,4)}, s18 offen")
    A("s_barrier")
    A("s_endpgm")
    LB("K1_ATAB")
    C("---- waves 14,15: A' = -log2e * x @ W1 for 32 rows each")
    srd(sX, 4, N*128); srd(sWM, 12, 129*128)
    A("v_and_b32 v8, 31, v2")
    A("v_lshrrev_b32 v9, 5, v2")
    A("s_sub_u32 s18, s3, 14")
    A("s_lshl_b32 s18, s18, 5")
    A("v_add_u32 v10, s18, v8")
    A("s_mul_i32 s19, s2, 50")
    A("v_add_u32 v11, s19, v10")
    A("v_lshlrev_b32 v11, 7, v11")
    A("v_lshl_add_u32 v12, v9, 4, v11")
    for ks in range(4):
        A(f"buffer_load_dwordx4 {vr(16+4*ks,4)}, v12, {sr(sX,4)}, 0 offen offset:{32*ks}")
    A("v_and_b32 v13, 3, v8")
    A("v_lshrrev_b32 v14, 3, v8")
    A("v_lshl_add_u32 v13, v14, 2, v13")
    A("v_bfe_u32 v14, v8, 2, 1")
    A("v_lshl_add_u32 v13, v14, 4, v13")
    A("v_lshlrev_b32 v13, 2, v13")
    A("v_lshl_add_u32 v13, v9, 10, v13")
    A("s_movk_i32 s50, 0x1000")
    for ks in range(4):
        for jj in range(8):
            o = (16*ks + jj) * 128
            so = "s50" if o >= 4096 else "0"
            A(f"buffer_load_dword v{32+8*ks+jj}, v13, {sr(sWM,4)}, {so} offen offset:{o % 4096}")
    A("s_mov_b32 s52, 0x05040100")
    A("s_mov_b32 s53, 0x07060302")
    A(f"s_mov_b32 s54, {NLOG2E:#x}")
    A(f"s_mov_b32 s55, {NLOG2E:#x}")
    A("v_lshl_add_u32 v12, v9, 6, v11")
    A("v_cmp_gt_u32 s[46:47], 50, v10")
    A("s_barrier")
    A("s_barrier")
    A("s_waitcnt vmcnt(0)")
    for ks in range(4):
        for u in range(2):
            for p in range(4):
                A(f"v_perm_b32 v{64+16*u+4*ks+p}, v{32+8*ks+2*p+1}, v{32+8*ks+2*p}, s{52+u}")
    A("s_nop 1")
    for ks in range(4):
        for u in range(2):
            c = "0" if ks == 0 else vr(96+16*u,16)
            A(f"v_mfma_f32_32x32x16_bf16 {vr(96+16*u,16)}, {vr(64+16*u+4*ks,4)}, {vr(16+4*ks,4)}, {c}")
    A("s_nop 15")
    for r in range(0, 32, 2):
        A(f"v_pk_mul_f32 {vr(96+r,2)}, {vr(96+r,2)}, s[54:55]")
    for d in range(16):
        c, j = d >> 2, 2*(d & 3)
        r, u = 2*j + (c >> 1), c & 1
        A(f"v_cvt_pk_bf16_f32 v{32+d}, v{96+16*u+r}, v{96+16*u+r+2}")
    A("s_mov_b64 exec, s[46:47]")
    for q in range(4):
        A(f"buffer_store_dwordx4 {vr(32+4*q,4)}, v12, {sr(sWS,4)}, 0 offen offset:{16*q}")
    A("s_barrier")
    A("s_endpgm")
    LB("K1_WPREP")
    C("---- WGs 250..252: weight fragments (W2, Wu1, Wu2) + zero row")
    A("s_cmp_ge_u32 s3, 9")
    A("s_cbranch_scc1 K1_END")
    A("s_cmp_eq_u32 s3, 8")
    A("s_cbranch_scc0 K1_WP2")
    A("v_lshlrev_b32 v5, 2, v2")
    A("v_cmp_gt_u32 vcc, 32, v2")
    A("s_and_saveexec_b64 s[44:45], vcc")
    A(f"s_mov_b32 s18, {N*128}")
    A(f"buffer_store_dword v6, v5, {sr(sWS,4)}, s18 offen")
    A("s_endpgm")
    LB("K1_WP2")
    A("s_cmp_eq_u32 s2, 250")
    A("s_cselect_b32 s40, s12, s14")
    A("s_cselect_b32 s41, s13, s15")
    A("s_mov_b32 s42, 16384")
    A("s_mov_b32 s43, 0x20000")
    A("s_cmp_eq_u32 s2, 251")
    A("s_cselect_b32 s18, 0, 8192")
    A("s_and_b32 s19, s3, 1")
    A("s_lshl_b32 s19, s19, 12")
    A("s_add_u32 s18, s18, s19")
    A("s_lshr_b32 s19, s3, 1")
    A("s_lshl_b32 s19, s19, 5")
    A("s_add_u32 s18, s18, s19")
    A("v_and_b32 v8, 15, v2")
    A("v_lshrrev_b32 v9, 4, v2")
    A("v_lshlrev_b32 v8, 1, v8")
    A("v_lshl_add_u32 v8, v9, 10, v8")
    for jj in range(8):
        A(f"buffer_load_ushort v{16+jj}, v8, s[40:43], s18 offen offset:{128*jj}")
    A("s_sub_u32 s19, s2, 250")
    A("s_lshl_b32 s19, s19, 13")
    A(f"s_add_u32 s19, s19, {WFRAG:#x}")
    A("s_waitcnt vmcnt(0)")
    for p in range(4):
        A(f"v_lshl_or_b32 v{24+p}, v{16+2*p+1}, 16, v{16+2*p}")
    A(f"buffer_store_dwordx4 v[24:27], v3, {sr(sWS,4)}, s19 offen")
    LB("K1_END")
    A("s_endpgm")

LIST, QD, HIST2, FLAGS, ROWS = 0, 16384, 20512, 20768, 20784
RP = 912
TOT = ROWS + 64*RP; TP = 272
XST = TOT + 128*TP; XP = 144
AGS = XST + 64*XP
LDS2 = AGS + 64*XP
def k2():
    sA, sW, sO, sX, sOUT, sWM = 8, 12, 16, 20, 24, 28
    MK = 32
    sLO, sWID, sHI, sSAFE, sT, sREDO, sSTART, sMORE = 48, 49, 50, 51, 52, 53, 54, 55
    AGG = 2
    LP, SID, DSC = 6, 7, 1
    ROWA = [8, 9]
    AI = 10
    AE = 12
    IP = [14, 16]
    EA = 18
    Bv = 22
    S = 30
    W = 38
    Nn = 46
    Dd = 54
    G = 64
    T = [80, 96]
    EX = 112
    L.append(".globl main_kernel\n.p2align 8\n.type main_kernel,@function")
    LB("main_kernel")
    A("s_cmp_ge_u32 s2, 256")
    A("s_cbranch_scc1 K2_END")
    A("s_load_dwordx2 s[60:61], s[0:1], 64")
    A("s_load_dwordx2 s[62:63], s[0:1], 0")
    A("s_load_dwordx2 s[64:65], s[0:1], 32")
    A("s_load_dwordx2 s[66:67], s[0:1], 48")
    A("v_lshrrev_b32 v62, 6, v0")
    A("s_and_b32 s4, s2, 7")
    A("s_lshl_b32 s4, s4, 5")
    A("v_readfirstlane_b32 s3, v62")
    A("s_lshr_b32 s5, s2, 3")
    A("s_add_u32 s4, s4, s5")
    A(f"s_mul_i32 s5, s4, {NPB}")
    A(f"s_sub_u32 s6, {N}, s5")
    A(f"s_min_u32 s6, s6, {NPB}")
    A(f"s_mov_b32 s{sLO}, 0")
    A(f"s_movk_i32 s{sWID}, 256")
    A(f"s_mov_b32 s{sSAFE}, 0")
    for i in range(4): A(f"v_mov_b32 v{AGG+i}, 0")
    A("s_waitcnt lgkmcnt(0)")
    srd(sO, 60, NCH*1024, off=OFFS)
    srd(sW, 60, WS_REC)
    srd(sX, 62, N*128)
    srd(sWM, 64, 129*128)
    srd(sA, 60, (N+1)*128, stride=128)
    srd(sOUT, 66, N*128)
    LB("K2_PASS")
    stamp(0, sW, 1)
    LANE, SEG, K8, OF, RA = 80, 81, 82, 84, 88
    A(f"v_and_b32 v{LANE}, 63, v0")
    A(f"v_lshrrev_b32 v{SEG}, 4, v{LANE}")
    A(f"s_lshl_b32 s56, s3, 4")
    A(f"v_add_u32 v{SEG}, s56, v{SEG}")
    A(f"v_lshlrev_b32 v83, 10, v{SEG}")
    A("s_lshl_b32 s56, s4, 2")
    for i in range(4):
        A(f"buffer_load_dword v{OF+i}, v83, {sr(sO,4)}, s56 offen")
        if i < 3: A("v_add_u32 v83, 4096, v83")
    XR = 92
    A("v_lshlrev_b32 v83, 4, v0")
    A("s_lshl_b32 s56, s5, 7")
    A("v_and_b32 v104, 0x1ff0, v83")
    A("v_add_u32 v104, s56, v104")
    A(f"buffer_load_dwordx4 {vr(XR,4)}, v104, {sr(sX,4)}, 0 offen")
    WF = 96
    A("s_and_b32 s56, s3, 3")
    A("s_lshl_b32 s56, s56, 11")
    A(f"s_add_u32 s56, s56, {WFRAG:#x}")
    A(f"v_lshlrev_b32 v104, 4, v{LANE}")
    A(f"buffer_load_dwordx4 {vr(WF,4)}, v104, {sr(sW,4)}, s56 offen")
    A(f"buffer_load_dwordx4 {vr(WF+4,4)}, v104, {sr(sW,4)}, s56 offen offset:1024")
    A(f"v_and_b32 v105, 7, v0")
    A(f"v_lshlrev_b32 v106, 3, v105")
    A("s_movk_i32 s56, 0x4000")
    A(f"buffer_load_dwordx2 v[108:109], v106, {sr(sWM,4)}, s56 offen")
    A(f"buffer_load_dwordx2 v[110:111], v106, {sr(sWM,4)}, s56 offen offset:64")
    A("s_lshr_b32 s56, s2, 3")
    A("s_mul_i32 s56, s56, 391*128")
    A("v_min_u32 v107, 390, v0")
    A("v_lshlrev_b32 v107, 7, v107")
    A("s_cmp_ge_u32 s3, 7")
    A("s_cbranch_scc1 K2_NOPF")
    A(f"buffer_load_dword v63, v107, {sr(sW,4)}, s56 offen")
    LB("K2_NOPF")
    A(f"v_mov_b32 v112, {N}")
    for i in range(1,4): A(f"v_mov_b32 v{112+i}, v112")
    A(f"ds_write_b128 v83, v[112:115] offset:{LIST}")
    A(f"v_lshlrev_b32 v116, 2, v0")
    A(f"v_mov_b32 v117, {ROWS + 63*RP}")
    A(f"ds_write_b32 v116, v117 offset:{QD}")
    A("s_cmp_lg_u32 s3, 0")
    A("s_cbranch_scc1 K2_NOH")
    A("v_mov_b32 v118, 0")
    A(f"ds_write_b32 v116, v118 offset:{HIST2}")
    A(f"ds_write_b32 v116, v118 offset:{HIST2+16}")
    A(f"ds_write_b32 v116, v117 offset:{QD+4096-256+32}")
    LB("K2_NOH")
    A(f"v_lshlrev_b32 v{LP}, 4, v105")
    A(f"v_and_b32 v116, 1, v105")
    A(f"v_lshlrev_b32 v116, 4, v116")
    A("v_mov_b32 v117, 0x3f80")
    A(f"v_lshlrev_b32 v116, v116, v117")
    A(f"v_bfe_u32 v117, v0, 3, 2")
    A(f"v_bfe_u32 v118, v0, 5, 1")
    A(f"v_sub_u32 v117, v117, v118")
    A(f"v_lshlrev_b32 v117, 1, v117")
    A(f"v_lshrrev_b32 v118, 1, v105")
    A(f"v_add_u32 v118, v117, v118")
    A(f"v_and_b32 v117, 2, v117")
    A(f"v_lshl_add_u32 v118, v117, 5, v118")
    for r in range(8):
        A(f"v_cmp_eq_u32 vcc, {r}, v118")
        A("s_nop 1")
        A(f"v_cndmask_b32 v{S+r}, 0, v116, vcc")
    A(f"v_and_b32 v{K8}, 15, v0")
    A(f"v_lshlrev_b32 v{K8}, 3, v{K8}")
    A(f"v_add_u32 v{K8}, s{sLO}, v{K8}")
    A(f"s_add_u32 s{sHI}, s{sLO}, s{sWID}")
    A(f"s_movk_i32 s56, 25600")
    A(f"v_mad_u32_u24 v83, v{SEG}, s56, v{K8}")
    A(f"v_add_u32 v119, 128, v{K8}")
    RW = G
    A(f"s_mov_b32 s57, {REC:#x}")
    A(f"s_mov_b64 s[58:59], 0")
    A("s_waitcnt vmcnt(5)")
    stamp(1, sW, 1)
    for i in range(4):
        A(f"v_add_u32_sdwa v{RA+i}, v{OF+i}, v83 dst_sel:DWORD dst_unused:UNUSED_PAD src0_sel:WORD_0 src1_sel:DWORD")
        A(f"v_lshrrev_b32 v{OF+i}, 16, v{OF+i}")
        A(f"v_cmp_lt_u32 vcc, s{sHI}, v{OF+i}")
        A(f"v_min_u32 v{OF+i}, s{sHI}, v{OF+i}")
        A(f"s_or_b64 s[58:59], s[58:59], vcc")
        A(f"v_cmp_lt_u32 {sr(MK+2*i,2)}, v{K8}, v{OF+i}")
        A(f"v_cmp_lt_u32 {sr(MK+8+2*i,2)}, v119, v{OF+i}")
        A(f"s_mov_b64 exec, {sr(MK+2*i,2)}")
        A(f"buffer_load_dwordx2 {vr(RW+2*i,2)}, v{RA+i}, {sr(sW,4)}, s57 offen")
        A(f"s_mov_b64 exec, {sr(MK+8+2*i,2)}")
        A(f"buffer_load_dwordx2 {vr(RW+8+2*i,2)}, v{RA+i}, {sr(sW,4)}, s57 offen offset:128")
        A("s_mov_b64 exec, -1")
        if i < 3: A("s_add_u32 s57, s57, 102400")
    A(f"s_cmp_lg_u64 s[58:59], 0")
    A(f"s_cselect_b32 s{sMORE}, 1, 0")
    A("v_lshrrev_b32 v116, 3, v0")
    A(f"v_mul_u32_u24 v116, {XP}, v116")
    A(f"v_add_u32 v116, v116, v{LP}")
    A(f"v_add_u32 v116, {XST}, v116")
    A("s_waitcnt vmcnt(8)")
    A("s_cmp_ge_u32 s3, 8")
    A("s_cbranch_scc1 K2_NOX")
    A(f"ds_write_b128 v116, {vr(XR,4)}")
    LB("K2_NOX")
    A(f"s_mov_b32 s56, {NLOG2E:#x}")
    A("s_mov_b32 s57, 0xffff0000")
    for q in range(4):
        A(f"v_lshlrev_b32 v{W+2*q}, 16, v{108+q}")
        A(f"v_and_b32 v{W+2*q+1}, s57, v{108+q}")
    for q in range(8):
        A(f"v_mul_f32 v{W+q}, s56, v{W+q}")
    A("s_lshr_b32 s57, s3, 2")
    A("s_lshl_b32 s57, s57, 4")
    A(f"v_and_b32 v116, 15, v0")
    A(f"v_add_u32 v116, s57, v116")
    A(f"v_bfe_u32 v117, v0, 4, 2")
    A(f"v_lshlrev_b32 v117, 4, v117")
    A(f"v_mul_u32_u24 v118, {XP}, v116")
    A(f"v_add_u32 v118, v118, v117")
    A(f"v_add_u32 v118, {XST}, v118")
    A(f"v_mul_u32_u24 v120, {RP}, v116")
    A(f"v_add_u32 v120, v120, v117")
    A("s_and_b32 s57, s3, 3")
    A("s_lshl_b32 s57, s57, 6")
    A(f"v_add_u32 v120, s57, v120")
    A("s_waitcnt lgkmcnt(0)")
    A("s_barrier")
    stamp(2, sW, 1)
    A("ds_read_b128 v[108:111], v118")
    A("ds_read_b128 v[112:115], v118 offset:64")
    A(f"s_cmp_eq_u32 s{sMORE}, 0")
    A("s_cbranch_scc1 K2_NOMORE")
    A("v_mov_b32 v121, 0")
    A("v_mov_b32 v122, 1")
    A(f"ds_write_b32 v121, v122 offset:{FLAGS}")
    LB("K2_NOMORE")
    A("s_waitcnt lgkmcnt(0)")
    A(f"v_mfma_f32_16x16x32_bf16 v[124:127], {vr(WF,4)}, v[108:111], 0")
    A(f"v_mfma_f32_16x16x32_bf16 v[124:127], {vr(WF+4,4)}, v[112:115], v[124:127]")
    A("s_lshl_b32 s57, s5, 2")
    A("s_sub_u32 s57, 0, s57")
    A("v_mov_b32 v121, 4")
    A("s_nop 5")
    for q in range(4):
        A(f"v_mul_f32 v{124+q}, s56, v{124+q}")
    A(f"ds_write_b128 v120, v[124:127] offset:{ROWS}")
    RK = 96
    for i in range(4):
        A(f"s_waitcnt vmcnt({0 if DIAG else 6-2*i})")
        if i == 0: stamp(3, sW, 1)
        for r in range(2):
            k = 4*r + i
            A(f"s_mov_b64 exec, {sr(MK+2*k,2)}")
            if r: A(f"s_cbranch_execz K2_H{k}")
            A(f"v_lshl_add_u32 v{RW+2*k+1}, v{RW+2*k+1}, 2, s57")
            A(f"ds_add_rtn_u32 v{RK+k}, v{RW+2*k+1}, v121 offset:{HIST2}")
            if r: LB(f"K2_H{k}")
    A("s_mov_b64 exec, -1")
    A(f"v_lshlrev_b32 v104, 2, v{LANE}")
    A("s_waitcnt lgkmcnt(0)")
    A("s_barrier")
    stamp(4, sW, 1)
    CNT, PB, INC, BS = 105, 106, 107, 108
    A(f"ds_read_b32 v{CNT}, v104 offset:{HIST2}")
    A(f"v_cmp_gt_u32 vcc, s6, v{LANE}")
    A(f"v_mul_u32_u24 v109, {RP}, v{LANE}")
    A(f"v_add_u32 v109, {ROWS}, v109")
    A("s_waitcnt lgkmcnt(0)")
    A(f"v_add_u32 v{PB}, 12, v{CNT}")
    A(f"v_and_b32 v{PB}, -16, v{PB}")
    A(f"v_max_u32 v{PB}, 16, v{PB}")
    A(f"v_cndmask_b32 v{PB}, 0, v{PB}, vcc")
    A(f"v_mov_b32 v{INC}, v{PB}")
    scan(INC)
    A(f"v_sub_u32 v{BS}, v{INC}, v{PB}")
    A(f"v_readlane_b32 s56, v{INC}, 63")
    for i in range(4):
        A(f"ds_bpermute_b32 v{112+i}, v{RW+2*i+1}, v{BS}")
    A("s_cmpk_gt_u32 s56, 16384")
    A("s_cbranch_scc1 K2_TOOBIG")
    A("s_add_u32 s56, s56, 127")
    A("s_lshr_b32 s56, s56, 7")
    A("s_lshr_b32 s57, s56, 4")
    A("s_and_b32 s56, s56, 15")
    A("s_mul_i32 s58, s57, s3")
    A("s_min_u32 s59, s56, s3")
    A(f"s_add_u32 s{sSTART}, s58, s59")
    A("s_cmp_lt_u32 s3, s56")
    A(f"s_addc_u32 s{sT}, s57, 0")
    for i in range(4):
        k = 4 + i
        A(f"s_cmp_eq_u64 {sr(MK+2*k,2)}, 0")
        A(f"s_cbranch_scc1 K2_S{k}")
        A(f"ds_bpermute_b32 v116, v{RW+2*k+1}, v{BS}")
        A(f"s_mov_b64 exec, {sr(MK+2*k,2)}")
        A("s_waitcnt lgkmcnt(0)")
        A(f"v_add_u32 v116, v116, v{RK+k}")
        A(f"ds_write_b32 v116, v{RW+2*k} offset:{LIST}")
        A("s_mov_b64 exec, -1")
        LB(f"K2_S{k}")
    A("s_waitcnt lgkmcnt(0)")
    for i in range(4):
        A(f"s_mov_b64 exec, {sr(MK+2*i,2)}")
        A(f"v_add_u32 v{112+i}, v{112+i}, v{RK+i}")
        A(f"ds_write_b32 v{112+i}, v{RW+2*i} offset:{LIST}")
    A("s_mov_b64 exec, -1")
    A("s_lshl_b32 s56, s3, 4")
    A(f"v_add_u32 v116, s56, v{BS}")
    A(f"v_lshrrev_b32 v116, 2, v116")
    LB("K2_QD")
    A(f"v_cmp_lt_u32 vcc, s56, v{PB}")
    A("s_and_b64 exec, exec, vcc")
    A("s_cbranch_execz K2_QDE")
    A(f"ds_write_b32 v116, v109 offset:{QD}")
    A("v_add_u32 v116, 64, v116")
    A("s_add_u32 s56, s56, 256")
    A("s_branch K2_QD")
    LB("K2_QDE")
    A("s_mov_b64 exec, -1")
    A(f"v_sub_u32 v62, v{PB}, v{CNT}")
    A(f"s_mov_b32 s{sREDO}, 0")
    A("s_waitcnt lgkmcnt(0)")
    A("s_barrier")
    LB("K2_MAIN")
    stamp(5, sW, 1)
    A(f"s_lshl_b32 s56, s{sT}, 4")
    A(f"s_lshl_b32 s57, s{sSTART}, 7")
    A("v_bfe_u32 v80, v0, 5, 1")
    A("v_bfe_u32 v81, v0, 2, 1")
    A("v_lshl_add_u32 v81, v80, 1, v81")
    A("v_bfe_u32 v82, v0, 3, 2")
    A("v_lshl_add_u32 v83, v82, 2, s57")
    A(f"v_mad_u32_u24 v{AI}, v81, s56, v83")
    A("s_lshl_b32 s58, s56, 2")
    A(f"v_add_u32 v{AI+1}, s58, v{AI}")
    A("v_lshl_add_u32 v84, v82, 1, v80")
    A(f"v_mul_u32_u24 v{AE}, s56, v84")
    A(f"v_add_u32 v{AE}, s57, v{AE}")
    A(f"v_lshrrev_b32 v{AE+1}, 2, v{AE}")
    A(f"ds_read_u16 v{IP[0]}, v{AI} offset:{LIST}")
    A(f"ds_read_u16 v{IP[1]}, v{AI+1} offset:{LIST}")
    A(f"ds_read_b32 v{ROWA[0]}, v{AE+1} offset:{QD}")
    A(f"ds_read_b32 v{DSC}, v{AE+1} offset:{QD+4}")
    A("s_lshl_b32 s58, s3, 3")
    A(f"v_add_u32 v{SID}, s58, v84")
    A(f"v_and_b32 v{IP[0]+1}, 3, v0")
    A(f"v_lshlrev_b32 v{IP[0]+1}, 4, v{IP[0]+1}")
    A(f"v_mov_b32 v{IP[1]+1}, v{IP[0]+1}")
    for q in range(4): A(f"v_mov_b32 v{EA+q}, 0")
    for q in range(4):
        A(f"ds_read_u16_d16_hi v{EA+q}, v{AE} offset:{LIST+4*q+2}")
    def gathers():
        for u in range(2):
            for s in range(2):
                A(f"buffer_load_dwordx4 {vr(G+8*u+4*s,4)}, {vr(IP[s],2)}, {sr(sA,4)}, 0 idxen offen offset:{64*u}")
    A("s_waitcnt lgkmcnt(6)")
    gathers()
    A("s_waitcnt lgkmcnt(5)")
    A(f"v_add_u32 v{ROWA[0]}, v{ROWA[0]}, v{LP}")
    A(f"ds_read_b128 {vr(Bv,4)}, v{ROWA[0]}")
    A(f"ds_read_b128 {vr(Bv+4,4)}, v{ROWA[0]} offset:128")
    A(f"ds_read_u16 v{IP[0]}, v{AI} offset:{LIST+16}")
    A(f"ds_read_u16 v{IP[1]}, v{AI+1} offset:{LIST+16}")
    for q in range(8):
        A(f"v_mov_b32 v{Nn+q}, 0")
        A(f"v_mov_b32 v{Dd+q}, 1.0")
    A("s_mov_b32 s68, 32")
    A("s_mov_b32 s69, 32")
    A("s_mov_b32 s70, 32")
    A("s_mov_b32 s71, 8")
    A(f"s_cmp_lg_u32 s{sREDO}, 0")
    A("s_cbranch_scc1 K2_NOSH")
    A(f"v_and_b32 v96, 63, v0")
    A(f"v_mul_u32_u24 v96, {RP}, v96")
    A("s_lshl_b32 s58, s3, 4")
    A(f"v_add_u32 v96, s58, v96")
    A(f"ds_read_b128 v[100:103], v96 offset:{ROWS}")
    A("v_cvt_f32_u32 v62, v62")
    A("v_mul_f32 v62, -0.5, v62")
    A("v_mul_f32 v62, 0.5, v62")
    A("s_waitcnt lgkmcnt(0)")
    for q in range(4): A(f"v_exp_f32 v{104+q}, v{100+q}")
    for q in range(4): A(f"v_add_f32 v{104+q}, 1.0, v{104+q}")
    for q in range(4): A(f"v_rcp_f32 v{104+q}, v{104+q}")
    for q in range(4): A(f"v_mul_f32 v{100+q}, v62, v{100+q}")
    for q in range(4): A(f"v_fmac_f32 v{AGG+q}, v{100+q}, v{104+q}")
    LB("K2_NOSH")
    A(f"s_cmp_eq_u32 s{sT}, 0")
    A("s_cbranch_scc1 K2_WEND")
    A(f"s_mov_b32 s72, s{sT}")
    def cblock(u):
        for q in range(4):
            for p in range(2):
                e = vr(EA + (q & 2), 2)
                sel = "op_sel:[1,0,0] op_sel_hi:[1,1,1]" if q & 1 else "op_sel_hi:[0,1,1]"
                A(f"v_pk_fma_f32 {vr(T[u]+4*q+2*p,2)}, {e}, {vr(W+4*u+2*p,2)}, {vr(Bv+4*u+2*p,2)} {sel}")
    def mfma(u, s):
        A(f"v_mfma_f32_32x32x16_bf16 {vr(T[u],16)}, {vr(G+8*u+4*s,4)}, {vr(S+4*s,4)}, {vr(T[u],16)}")
    def exps(u, a, b):
        for r in range(a, b): A(f"v_exp_f32 v{EX+r}, v{T[u]+r}")
    def chain(u, safe):
        if safe:
            for r in range(0,16,2): A(f"v_pk_add_f32 {vr(EX+r,2)}, {vr(EX+r,2)}, 1.0 op_sel_hi:[1,0]")
            for r in range(16): A(f"v_rcp_f32 v{EX+r}, v{EX+r}")
            for q in range(4):
                for p in range(2):
                    n = vr(Nn+4*u+2*p,2)
                    A(f"v_pk_fma_f32 {n}, {vr(T[u]+4*q+2*p,2)}, {vr(EX+4*q+2*p,2)}, {n}")
            return
        for q in range(4):
            for p in range(2):
                n = vr(Nn+4*u+2*p,2); A(f"v_pk_fma_f32 {n}, {n}, {vr(EX+4*q+2*p,2)}, {n}")
            for p in range(2):
                n = vr(Nn+4*u+2*p,2); A(f"v_pk_fma_f32 {n}, {vr(T[u]+4*q+2*p,2)}, {vr(Dd+4*u+2*p,2)}, {n}")
            for p in range(2):
                d = vr(Dd+4*u+2*p,2); A(f"v_pk_fma_f32 {d}, {d}, {vr(EX+4*q+2*p,2)}, {d}")
    A("s_waitcnt lgkmcnt(2)")
    cblock(0)
    A("s_waitcnt vmcnt(2)")
    stamp(6, sW, 1)
    A("s_nop 0")
    mfma(0,0); mfma(0,1)
    A(f"s_cmp_lg_u32 s{sSAFE}, 0")
    A("s_cbranch_scc1 K2_LOOPS")
    def loop(tag, safe):
        LB(f"K2_LOOP{tag}")
        for ph in range(2):
            ra, rb = ROWA[ph], ROWA[1-ph]
            o = 16*ph
            cblock(1)
            A(f"v_add_u32 v{rb}, v{DSC}, v{LP}")
            A(f"ds_read_b128 {vr(Bv,4)}, v{rb}")
            A(f"ds_read_b128 {vr(Bv+4,4)}, v{rb} offset:128")
            for q in range(4):
                A(f"ds_read_u16_d16_hi v{EA+q}, v{AE} offset:{LIST+o+16+4*q+2}")
            A(f"ds_read_b32 v{DSC}, v{AE+1} offset:{QD+4*ph+8}")
            A("s_sub_u32 s72, s72, 1")
            A("s_waitcnt vmcnt(0)")
            mfma(1,0)
            exps(0,0,4)
            mfma(1,1)
            A("s_cmp_eq_u32 s72, 0")
            A(f"s_cbranch_scc1 K2_A{tag}{ph}")
            A("s_waitcnt lgkmcnt(7)")
            gathers()
            A(f"ds_read_u16 v{IP[0]}, v{AI} offset:{LIST+o+32}")
            A(f"ds_read_u16 v{IP[1]}, v{AI+1} offset:{LIST+o+32}")
            LB(f"K2_A{tag}{ph}")
            exps(0,4,16)
            if ph == 1:
                A(f"v_lshl_add_u64 {vr(AI,2)}, {vr(AI,2)}, 0, s[68:69]")
                A(f"v_lshl_add_u64 {vr(AE,2)}, {vr(AE,2)}, 0, s[70:71]")
            chain(0, safe)
            A(f"s_cbranch_scc1 K2_B{tag}{ph}")
            A("s_waitcnt lgkmcnt(2)")
            cblock(0)
            LB(f"K2_B{tag}{ph}")
            exps(1,0,8)
            A(f"s_cbranch_scc1 K2_C{tag}{ph}")
            A("s_waitcnt vmcnt(2)")
            mfma(0,0)
            LB(f"K2_C{tag}{ph}")
            exps(1,8,12)
            A(f"s_cbranch_scc1 K2_D{tag}{ph}")
            mfma(0,1)
            LB(f"K2_D{tag}{ph}")
            exps(1,12,16)
            A(f"v_cmp_ne_u32 vcc, v{ra}, v{rb}")
            chain(1, safe)
            A("s_mov_b64 exec, vcc")
            A(f"s_cbranch_execz K2_E{tag}{ph}")
            A(f"ds_write_b128 v{ra}, {vr(Nn,4)} offset:256")
            A(f"ds_write_b128 v{ra}, {vr(Nn+4,4)} offset:384")
            A(f"ds_write_b128 v{ra}, {vr(Dd,4)} offset:512")
            A(f"ds_write_b128 v{ra}, {vr(Dd+4,4)} offset:640")
            A(f"ds_write_b32 v{ra}, v{SID} offset:768")
            LB(f"K2_E{tag}{ph}")
            A("s_mov_b64 exec, -1")
            if ph == 0: A("s_cbranch_scc1 K2_SEND")
            else: A(f"s_cbranch_scc0 K2_LOOP{tag}")
    loop("F", False)
    LB("K2_SEND")
    stamp(7, sW, 1)
    for q in range(8): A(f"v_rcp_f32 v{EX+q}, v{Dd+q}")
    A(f"v_mul_u32_u24 v80, {TP}, v{SID}")
    A(f"v_add_u32 v80, v80, v{LP}")
    A(f"v_add_u32 v80, {TOT}, v80")
    for q in range(0,8,2): A(f"v_pk_mul_f32 {vr(EX+q,2)}, {vr(Nn+q,2)}, {vr(EX+q,2)}")
    A(f"ds_write_b128 v80, {vr(EX,4)}")
    A(f"ds_write_b128 v80, {vr(EX+4,4)} offset:128")
    A(f"v_pk_add_f32 v[82:83], {vr(Dd,2)}, {vr(Dd+2,2)}")
    A(f"v_pk_add_f32 v[84:85], {vr(Dd+4,2)}, {vr(Dd+6,2)}")
    A(f"v_pk_add_f32 v[86:87], {vr(EX,2)}, {vr(EX+2,2)}")
    A(f"v_pk_add_f32 v[88:89], {vr(EX+4,2)}, {vr(EX+6,2)}")
    A("v_pk_add_f32 v[82:83], v[82:83], v[84:85]")
    A("v_pk_add_f32 v[86:87], v[86:87], v[88:89]")
    A("v_pk_fma_f32 v[82:83], v[86:87], 0, v[82:83] op_sel_hi:[1,0,1]")
    A("v_add_f32 v82, v82, v83")
    A(f"v_cmp_ngt_f32 vcc, {f2u(2.0**100):#x}, v82")
    A("s_cbranch_vccz K2_WEND")
    A("v_mov_b32 v82, 0")
    A("v_mov_b32 v83, 1")
    A(f"ds_write_b32 v82, v83 offset:{FLAGS+4}")
    LB("K2_WEND")
    A("s_and_b32 s56, s3, 3")
    A("s_lshl_b32 s56, s56, 11")
    A(f"s_add_u32 s56, s56, {WFRAG+8192:#x}")
    A("s_add_u32 s57, s56, 8192")
    A("v_and_b32 v80, 63, v0")
    A("v_lshlrev_b32 v81, 4, v80")
    A("s_waitcnt vmcnt(0)")
    A(f"buffer_load_dwordx4 {vr(G,4)}, v81, {sr(sW,4)}, s56 offen")
    A(f"buffer_load_dwordx4 {vr(G+4,4)}, v81, {sr(sW,4)}, s56 offen offset:1024")
    A(f"buffer_load_dwordx4 {vr(G+8,4)}, v81, {sr(sW,4)}, s57 offen")
    A(f"buffer_load_dwordx4 {vr(G+12,4)}, v81, {sr(sW,4)}, s57 offen offset:1024")
    A(f"v_mul_u32_u24 v82, {RP}, v80")
    A("s_lshl_b32 s58, s3, 4")
    A(f"v_add_u32 v83, s58, v82")
    A("v_mov_b32 v84, 0")
    A("s_waitcnt lgkmcnt(0)")
    A("s_barrier")
    stamp(8, sW, 1)
    A(f"ds_read_b64 v[86:87], v84 offset:{FLAGS}")
    A(f"ds_read_b32 v85, v82 offset:{ROWS+768}")
    A(f"ds_read_b128 v[92:95], v83 offset:{ROWS+512}")
    A(f"ds_read_b128 v[88:91], v83 offset:{ROWS+256}")
    for r in range(96, 112): A(f"v_mov_b32 v{r}, 0")
    A("s_waitcnt lgkmcnt(3)")
    A(f"v_readfirstlane_b32 s{sMORE}, v86")
    A("v_readfirstlane_b32 s56, v87")
    A(f"s_andn2_b32 s56, s56, s{sSAFE}")
    A("s_cbranch_scc1 K2_RETRY")
    A("s_waitcnt lgkmcnt(2)")
    A("v_mov_b32_dpp v86, v85 wave_shr:1 row_mask:0xf bank_mask:0xf bound_ctrl:1")
    A(f"v_cmp_gt_u32 vcc, s6, v80")
    A("v_sub_u32 v85, v85, v86")
    A(f"v_mul_u32_u24 v86, {TP}, v86")
    A("v_cndmask_b32 v85, 0, v85, vcc")
    A("v_min_i32 v85, 0x80, v85")
    A(f"s_add_u32 s58, s58, {TOT}")
    A("v_add_u32 v86, s58, v86")
    LB("K2_TL")
    for k in range(4):
        A(f"v_cmpx_lt_i32 vcc, {k}, v85")
        A(f"ds_read_b128 {vr(96+4*k,4)}, v86 offset:{TP*k}")
    A("s_mov_b64 exec, -1")
    A("v_cmp_lt_i32 vcc, 4, v85")
    A("s_waitcnt lgkmcnt(0)")
    A("v_pk_add_f32 v[96:97], v[96:97], v[100:101]")
    A("v_pk_add_f32 v[98:99], v[98:99], v[102:103]")
    A("v_pk_add_f32 v[104:105], v[104:105], v[108:109]")
    A("v_pk_add_f32 v[106:107], v[106:107], v[110:111]")
    A(f"v_pk_add_f32 {vr(AGG,2)}, {vr(AGG,2)}, v[96:97]")
    A(f"v_pk_add_f32 {vr(AGG+2,2)}, {vr(AGG+2,2)}, v[98:99]")
    A(f"v_pk_add_f32 {vr(AGG,2)}, {vr(AGG,2)}, v[104:105]")
    A(f"v_pk_add_f32 {vr(AGG+2,2)}, {vr(AGG+2,2)}, v[106:107]")
    A("s_cbranch_vccz K2_TLE")
    for r in range(96, 112): A(f"v_mov_b32 v{r}, 0")
    A("v_add_u32 v85, -4, v85")
    A(f"v_add_u32 v86, {4*TP}, v86")
    A("s_branch K2_TL")
    LB("K2_TLE")
    for q in range(4): A(f"v_rcp_f32 v{92+q}, v{92+q}")
    A("s_nop 0")
    A("v_pk_mul_f32 v[88:89], v[88:89], v[92:93]")
    A("v_pk_mul_f32 v[90:91], v[90:91], v[94:95]")
    A(f"v_pk_add_f32 {vr(AGG,2)}, {vr(AGG,2)}, v[88:89]")
    A(f"v_pk_add_f32 {vr(AGG+2,2)}, {vr(AGG+2,2)}, v[90:91]")
    A("s_nop 0")
    for q in range(4):
        A(f"v_subrev_f32_dpp v{AGG+q}, v{88+q}, v{AGG+q} wave_shr:1 row_mask:0xf bank_mask:0xf bound_ctrl:1")
    A(f"s_cmp_lg_u32 s{sMORE}, 0")
    A("s_cbranch_scc1 K2_NEXT")
    A(f"s_mov_b32 s56, {NLN2:#x}")
    for q in range(4): A(f"v_mul_f32 v{88+q}, s56, v{AGG+q}")
    A("v_cvt_pk_bf16_f32 v88, v88, v89")
    A("v_cvt_pk_bf16_f32 v89, v90, v91")
    A(f"v_mul_u32_u24 v90, {XP}, v80")
    A("s_lshl_b32 s58, s3, 3")
    A(f"s_add_u32 s58, s58, {AGS}")
    A("v_add_u32 v90, s58, v90")
    A("ds_write_b64 v90, v[88:89]")
    A("s_lshr_b32 s57, s3, 2")
    A("s_lshl_b32 s57, s57, 4")
    A("v_and_b32 v91, 15, v0")
    A("v_add_u32 v91, s57, v91")
    A("v_bfe_u32 v92, v0, 4, 2")
    A(f"v_mul_u32_u24 v93, {XP}, v91")
    A("v_lshl_add_u32 v93, v92, 4, v93")
    A(f"v_add_u32 v93, {XST}, v93")
    A("ds_read_b128 v[96:99], v93")
    A("ds_read_b128 v[100:103], v93 offset:64")
    A("v_lshlrev_b32 v94, 7, v91")
    A("v_lshl_add_u32 v94, v92, 3, v94")
    A("s_and_b32 s57, s3, 3")
    A("s_lshl_b32 s57, s57, 5")
    A("s_lshl_b32 s58, s5, 7")
    A("s_add_u32 s57, s57, s58")
    A("v_cmp_gt_u32 s[58:59], s6, v91")
    A("s_waitcnt vmcnt(0) lgkmcnt(0)")
    A(f"v_mfma_f32_16x16x32_bf16 v[112:115], {vr(G,4)}, v[96:99], 0")
    A(f"v_mfma_f32_16x16x32_bf16 v[112:115], {vr(G+4,4)}, v[100:103], v[112:115]")
    A("s_barrier")
    stamp(9, sW, 1)
    A(f"ds_read_b128 v[104:107], v93 offset:{AGS-XST}")
    A(f"ds_read_b128 v[108:111], v93 offset:{AGS-XST+64}")
    A(f"s_mov_b32 s56, {NLOG2E:#x}")
    A("s_waitcnt lgkmcnt(1)")
    A(f"v_mfma_f32_16x16x32_bf16 v[112:115], {vr(G+8,4)}, v[104:107], v[112:115]")
    A("s_waitcnt lgkmcnt(0)")
    A(f"v_mfma_f32_16x16x32_bf16 v[112:115], {vr(G+12,4)}, v[108:111], v[112:115]")
    A("s_nop 7")
    for q in range(4): A(f"v_mul_f32 v{116+q}, s56, v{112+q}")
    for q in range(4): A(f"v_exp_f32 v{116+q}, v{116+q}")
    for q in range(4): A(f"v_add_f32 v{116+q}, 1.0, v{116+q}")
    for q in range(4): A(f"v_rcp_f32 v{116+q}, v{116+q}")
    for q in range(4): A(f"v_mul_f32 v{116+q}, v{112+q}, v{116+q}")
    A("v_cvt_pk_bf16_f32 v116, v116, v117")
    A("v_cvt_pk_bf16_f32 v117, v118, v119")
    A("s_mov_b64 exec, s[58:59]")
    A(f"buffer_store_dwordx2 v[116:117], v94, {sr(sOUT,4)}, s57 offen")
    if DIAG:
        A("s_mov_b64 exec, -1")
        stamp(10, sW, 1)
    LB("K2_END")
    A("s_endpgm")
    LB("K2_RETRY")
    A(f"s_mov_b32 s{sSAFE}, 1")
    A(f"s_mov_b32 s{sREDO}, 1")
    A("s_waitcnt vmcnt(0) lgkmcnt(0)")
    A("s_barrier")
    A("s_branch K2_MAIN")
    LB("K2_NEXT")
    A(f"s_add_u32 s{sLO}, s{sLO}, s{sWID}")
    A("s_waitcnt vmcnt(0) lgkmcnt(0)")
    A("s_barrier")
    A("s_branch K2_PASS")
    LB("K2_TOOBIG")
    A(f"s_mov_b32 s{sWID}, 64")
    A("s_waitcnt vmcnt(0) lgkmcnt(0)")
    A("s_barrier")
    A("s_branch K2_PASS")
    loop("S", True)
    A("s_branch K2_SEND")

def desc(name, vg, sg):
    return f""".amdhsa_kernel {name}
  .amdhsa_next_free_vgpr {vg}
  .amdhsa_next_free_sgpr {sg}
  .amdhsa_accum_offset {vg}
  .amdhsa_group_segment_fixed_size 0
  .amdhsa_kernarg_size 72
  .amdhsa_user_sgpr_count 2
  .amdhsa_user_sgpr_kernarg_segment_ptr 1
  .amdhsa_system_sgpr_workgroup_id_x 1
.end_amdhsa_kernel
"""
hdr = open("cdna_kernels/%s.s.ref" % NAME).read().split("; Override")[0]
out = hdr + f"; @launch kernel=part_kernel grid=(253,1,1) block=(1024,1,1) lds=27648\n; @launch kernel=main_kernel grid=(256,1,1) block=(1024,1,1) lds={LDS2}\n"
out += '.amdgcn_target "amdgcn-amd-amdhsa--gfx950"\n.text\n'
k1(); k2()
out += "\n".join(L) + "\n"
out += '.section .rodata,"a"\n.p2align 6\n' + desc("part_kernel", 128, 96) + ".p2align 6\n" + desc("main_kernel", 128, 96)
dst = [a for a in sys.argv[1:] if not a.startswith("--")]
open(dst[0] if dst else f"cdna_kernels/{NAME}.s", "w").write(out)
```

```python
import sys, struct
NAME = "gather_scatter__mpnn_edge_mlp__graph"
N, E = 12500, 800000
CH, NCH, NB, NPB = 3200, 250, 256, 49
ATAB, OFFS, WFRAG, REC = 0, 0x190000, 0x1D0000, 0x200000
WS_END = REC + NCH * CH * 8
STAMP = WS_END + 0x10000
LOG2E = 1.4426950408889634
def f2u(x): return struct.unpack("<I", struct.pack("<f", x))[0]
NLOG2E = f2u(-LOG2E); NLN2 = f2u(-0.6931471805599453)
DIAG = "--diag" in sys.argv

L = []
def A(s): L.append("    " + s)
def LB(s): L.append(s + ":")
def C(s): L.append("    ; " + s)
def vr(b, n=1): return f"v{b}" if n == 1 else f"v[{b}:{b+n-1}]"
def sr(b, n=1): return f"s{b}" if n == 1 else f"s[{b}:{b+n-1}]"
def srd(d, base, nbytes, off=0, stride=0):
    if off:
        A(f"s_add_u32 s{d}, s{base}, {off:#x}")
        A(f"s_addc_u32 s{d+1}, s{base+1}, 0")
    else:
        A(f"s_mov_b32 s{d}, s{base}")
        A(f"s_mov_b32 s{d+1}, s{base+1}")
    if stride:
        A(f"s_or_b32 s{d+1}, s{d+1}, {stride << 16:#x}")
    A(f"s_mov_b32 s{d+2}, {nbytes:#x}")
    A(f"s_mov_b32 s{d+3}, 0x20000")
def scan(v):
    for m in ["row_shr:1 row_mask:0xf bank_mask:0xf bound_ctrl:1", "row_shr:2 row_mask:0xf bank_mask:0xf bound_ctrl:1",
              "row_shr:4 row_mask:0xf bank_mask:0xf bound_ctrl:1", "row_shr:8 row_mask:0xf bank_mask:0xf bound_ctrl:1",
              "row_bcast:15 row_mask:0xa bank_mask:0xf", "row_bcast:31 row_mask:0xc bank_mask:0xf"]:
        A("s_nop 1")
        A(f"v_add_u32_dpp v{v}, v{v}, v{v} {m}")

def stamp(k, sws=None, region=None, real=False):
    if not DIAG: return
    A("s_memrealtime s[74:75]" if real else "s_memtime s[74:75]")
    A("s_waitcnt lgkmcnt(0)")
    A(f"s_mov_b32 s{76+k}, s74")
DBG = "--dbg" in sys.argv
def dump(sws, region):
    if not DIAG: return
    A("s_mov_b64 exec, -1")
    stamp(15, real=True)
    if DBG:
        A("s_load_dwordx2 s[92:93], s[0:1], 56")
        A("s_waitcnt lgkmcnt(0)")
        if not region:
            A("s_add_u32 s92, s92, 512")
            A("s_addc_u32 s93, s93, 0")
        A("s_mov_b32 s94, 256")
        A("s_mov_b32 s95, 0x20000")
        A("s_not_b32 s90, s90")
        A("v_mov_b32 v126, s90")
        A("v_mov_b32 v127, s91")
        A("s_mov_b64 exec, 1")
        A("s_cmp_lg_u32 s3, 0")
        A(f"s_cbranch_scc1 DBGE{region}")
        A(f"buffer_atomic_umax v126, off, s[92:95], 0 offset:{8*region}")
        A(f"buffer_atomic_umax v127, off, s[92:95], 0 offset:{8*region+4}")
        A("s_cmp_lg_u32 s2, 37")
        A(f"s_cbranch_scc1 DBGE{region}")
        ks = [0,1,3,5] if region == 0 else [0,1,2,4,5,8,9,11]
        for n,k in enumerate(ks):
            A(f"s_sub_u32 s{76+k}, s{76+k}, s89")
            A(f"v_mov_b32 v126, s{76+k}")
            A(f"buffer_store_dword v126, off, s[92:95], 0 offset:{16+4*n+16*region}")
        LB(f"DBGE{region}")
        return
    for k in range(16): A(f"v_writelane_b32 v127, s{76+k}, {k}")
    A(f"s_lshl_b32 s92, s2, 4")
    A(f"s_add_u32 s92, s92, s3")
    A(f"s_lshl_b32 s92, s92, 6")
    A(f"s_add_u32 s92, s92, {STAMP + region*0x40000:#x}")
    A("v_mbcnt_lo_u32_b32 v126, -1, 0")
    A("v_lshlrev_b32 v126, 2, v126")
    A("s_mov_b64 exec, 0xffff")
    A(f"buffer_store_dword v127, v126, {sr(sws,4)}, s92 offen")
WS_REC = (STAMP + 0x100000) if DIAG else WS_END

def k1():
    HIST, BASE = 25600, 26624
    sDST, sSRC, sE, sWS, sX, sWM = 20, 24, 28, 32, 36, 40
    L.append(".globl part_kernel\n.p2align 8\n.type part_kernel,@function")
    LB("part_kernel")
    A("s_cmp_ge_u32 s2, 253")
    A("s_cbranch_scc1 K1_END")
    stamp(14, real=True)
    stamp(13)
    A("s_load_dwordx8 s[4:11], s[0:1], 0")
    A("s_load_dwordx4 s[12:15], s[0:1], 32")
    A("s_load_dwordx2 s[16:17], s[0:1], 64")
    A("v_lshrrev_b32 v1, 6, v0")
    A("v_and_b32 v2, 63, v0")
    A("v_lshlrev_b32 v3, 4, v0")
    A("v_readfirstlane_b32 s3, v1")
    A("v_lshlrev_b32 v4, 3, v0")
    A("v_lshlrev_b32 v5, 2, v0")
    A("v_mov_b32 v6, 0")
    A("s_mul_i32 s18, s2, 12800")
    A("s_mul_i32 s19, s2, 6400")
    A("s_cmp_ge_u32 s3, 4")
    A("s_cbranch_scc1 K1_NOZ")
    A(f"ds_write_b32 v5, v6 offset:{HIST}")
    LB("K1_NOZ")
    A("s_waitcnt lgkmcnt(0)")
    srd(sDST, 10, E*4); srd(sSRC, 8, E*4); srd(sE, 6, E*2); srd(sWS, 16, WS_REC)
    A("s_cmp_ge_u32 s2, 250")
    A("s_cbranch_scc1 K1_WPREP")
    A("s_cmp_ge_u32 s3, 13")
    A("s_cbranch_scc1 K1_SIDE")
    C("---- partition waves 0..12")
    A("v_cmp_gt_u32 vcc, 800, v0")
    A("s_and_saveexec_b64 s[44:45], vcc")
    A(f"buffer_load_dwordx4 v[8:11], v3, {sr(sDST,4)}, s18 offen")
    A(f"buffer_load_dwordx4 v[12:15], v3, {sr(sSRC,4)}, s18 offen")
    A(f"buffer_load_dwordx2 v[16:17], v4, {sr(sE,4)}, s19 offen")
    A("s_mov_b64 s[46:47], exec")
    A(f"s_mov_b32 s48, {(2**32 + 48)//49}")
    A("s_mov_b32 s49, 0xffff0000")
    A("v_mov_b32 v7, 8")
    stamp(0, sWS, 0)
    A("s_barrier")
    A("s_waitcnt vmcnt(2)")
    stamp(1, sWS, 0)
    for i in range(4):
        A(f"v_mul_hi_u32 v{20+i}, v{8+i}, s48")
    for i in range(4):
        A(f"v_lshlrev_b32 v{20+i}, 2, v{20+i}")
        A(f"ds_add_rtn_u32 v{24+i}, v{20+i}, v7 offset:{HIST}")
    A("s_waitcnt vmcnt(0)")
    A("v_lshl_or_b32 v12, v16, 16, v12")
    A("v_and_or_b32 v13, v16, s49, v13")
    A("v_lshl_or_b32 v14, v17, 16, v14")
    A("v_and_or_b32 v15, v17, s49, v15")
    A("s_mov_b64 exec, -1")
    A("v_lshlrev_b32 v18, 4, v2")
    A("s_waitcnt lgkmcnt(0)")
    A("s_barrier")
    stamp(2, sWS, 0)
    def k1scan():
        A(f"ds_read_b128 v[32:35], v18 offset:{HIST}")
        A("s_waitcnt lgkmcnt(0)")
        A("v_add3_u32 v36, v32, v33, v34")
        A("v_add_u32 v37, v36, v35")
        A("v_mov_b32 v38, v37")
        scan(38)
        A("v_sub_u32 v40, v38, v37")
        A("v_add_u32 v41, v40, v32")
        A("v_add_u32 v42, v41, v33")
        A("v_add_u32 v43, v40, v36")
    k1scan()
    A(f"ds_write_b128 v18, v[40:43] offset:{BASE}")
    A("s_mov_b64 exec, s[46:47]")
    A("s_waitcnt lgkmcnt(0)")
    for i in range(4):
        A(f"ds_read_b32 v{28+i}, v{20+i} offset:{BASE}")
    for i in range(4):
        A(f"s_waitcnt lgkmcnt({3})")
        A(f"v_add_u32 v{28+i}, v{28+i}, v{24+i}")
        A(f"ds_write2_b32 v{28+i}, v{12+i}, v{8+i} offset0:0 offset1:1")
    A("s_mul_i32 s18, s2, 25600")
    A(f"s_add_u32 s18, s18, {REC:#x}")
    A("s_add_u32 s19, s18, 12800")
    A("s_waitcnt lgkmcnt(0)")
    A("s_barrier")
    stamp(3, sWS, 0)
    A("ds_read_b128 v[8:11], v3")
    A("ds_read_b128 v[12:15], v3 offset:12800")
    A("s_waitcnt lgkmcnt(1)")
    A(f"buffer_store_dwordx4 v[8:11], v3, {sr(sWS,4)}, s18 offen")
    A("s_waitcnt lgkmcnt(0)")
    A(f"buffer_store_dwordx4 v[12:15], v3, {sr(sWS,4)}, s19 offen")
    stamp(4, sWS, 0)
    if DIAG:
        A("s_waitcnt vmcnt(0)")
        stamp(5, sWS, 0)
        dump(sWS, 0)
    A("s_endpgm")
    LB("K1_SIDE")
    A("s_cmp_eq_u32 s3, 13")
    A("s_cbranch_scc0 K1_ATAB")
    C("---- wave 13: offsets table")
    A("v_lshlrev_b32 v18, 4, v2")
    A("s_lshl_b32 s18, s2, 10")
    A(f"s_add_u32 s18, s18, {OFFS:#x}")
    A("s_barrier")
    A("s_barrier")
    k1scan()
    for i in range(4):
        A(f"v_lshl_or_b32 v{40+i}, v{32+i}, 16, v{40+i}")
    A(f"buffer_store_dwordx4 v[40:43], v18, {sr(sWS,4)}, s18 offen")
    A("s_barrier")
    A("s_endpgm")
    LB("K1_ATAB")
    C("---- waves 14,15: A' = -log2e * x @ W1 for 32 rows each")
    srd(sX, 4, N*128); srd(sWM, 12, 129*128)
    A("v_and_b32 v8, 31, v2")
    A("v_lshrrev_b32 v9, 5, v2")
    A("s_sub_u32 s18, s3, 14")
    A("s_lshl_b32 s18, s18, 5")
    A("v_add_u32 v10, s18, v8")
    A("s_mul_i32 s19, s2, 50")
    A("v_add_u32 v11, s19, v10")
    A("v_lshlrev_b32 v11, 7, v11")
    A("v_lshl_add_u32 v12, v9, 4, v11")
    for ks in range(4):
        A(f"buffer_load_dwordx4 {vr(16+4*ks,4)}, v12, {sr(sX,4)}, 0 offen offset:{32*ks}")
    A("v_and_b32 v13, 3, v8")
    A("v_lshrrev_b32 v14, 3, v8")
    A("v_lshl_add_u32 v13, v14, 2, v13")
    A("v_bfe_u32 v14, v8, 2, 1")
    A("v_lshl_add_u32 v13, v14, 4, v13")
    A("v_lshlrev_b32 v13, 2, v13")
    A("v_lshl_add_u32 v13, v9, 10, v13")
    A("s_movk_i32 s50, 0x1000")
    for ks in range(4):
        for jj in range(8):
            o = (16*ks + jj) * 128
            so = "s50" if o >= 4096 else "0"
            A(f"buffer_load_dword v{32+8*ks+jj}, v13, {sr(sWM,4)}, {so} offen offset:{o % 4096}")
    A("s_mov_b32 s52, 0x05040100")
    A("s_mov_b32 s53, 0x07060302")
    A(f"s_mov_b32 s54, {NLOG2E:#x}")
    A(f"s_mov_b32 s55, {NLOG2E:#x}")
    A("v_lshl_add_u32 v12, v9, 6, v11")
    A("v_cmp_gt_u32 s[46:47], 50, v10")
    A("s_barrier")
    A("s_barrier")
    A("s_waitcnt vmcnt(0)")
    for ks in range(4):
        for u in range(2):
            for p in range(4):
                A(f"v_perm_b32 v{64+16*u+4*ks+p}, v{32+8*ks+2*p+1}, v{32+8*ks+2*p}, s{52+u}")
    A("s_nop 1")
    for ks in range(4):
        for u in range(2):
            c = "0" if ks == 0 else vr(96+16*u,16)
            A(f"v_mfma_f32_32x32x16_bf16 {vr(96+16*u,16)}, {vr(64+16*u+4*ks,4)}, {vr(16+4*ks,4)}, {c}")
    A("s_nop 15")
    for r in range(0, 32, 2):
        A(f"v_pk_mul_f32 {vr(96+r,2)}, {vr(96+r,2)}, s[54:55]")
    for d in range(16):
        c, j = d >> 2, 2*(d & 3)
        r, u = 2*j + (c >> 1), c & 1
        A(f"v_cvt_pk_bf16_f32 v{32+d}, v{96+16*u+r}, v{96+16*u+r+2}")
    A("s_mov_b64 exec, s[46:47]")
    for q in range(4):
        A(f"buffer_store_dwordx4 {vr(32+4*q,4)}, v12, {sr(sWS,4)}, 0 offen offset:{16*q}")
    A("s_barrier")
    A("s_endpgm")
    LB("K1_WPREP")
    C("---- WGs 250..252: weight fragments (W2, Wu1, Wu2) + zero row")
    A("s_cmp_ge_u32 s3, 9")
    A("s_cbranch_scc1 K1_END")
    A("s_cmp_eq_u32 s3, 8")
    A("s_cbranch_scc0 K1_WP2")
    A("v_lshlrev_b32 v5, 2, v2")
    A("v_cmp_gt_u32 vcc, 32, v2")
    A("s_and_saveexec_b64 s[44:45], vcc")
    A(f"s_mov_b32 s18, {N*128}")
    A(f"buffer_store_dword v6, v5, {sr(sWS,4)}, s18 offen")
    A("s_endpgm")
    LB("K1_WP2")
    A("s_cmp_eq_u32 s2, 250")
    A("s_cselect_b32 s40, s12, s14")
    A("s_cselect_b32 s41, s13, s15")
    A("s_mov_b32 s42, 16384")
    A("s_mov_b32 s43, 0x20000")
    A("s_cmp_eq_u32 s2, 251")
    A("s_cselect_b32 s18, 0, 8192")
    A("s_and_b32 s19, s3, 1")
    A("s_lshl_b32 s19, s19, 12")
    A("s_add_u32 s18, s18, s19")
    A("s_lshr_b32 s19, s3, 1")
    A("s_lshl_b32 s19, s19, 5")
    A("s_add_u32 s18, s18, s19")
    A("v_and_b32 v8, 15, v2")
    A("v_lshrrev_b32 v9, 4, v2")
    A("v_lshlrev_b32 v8, 1, v8")
    A("v_lshl_add_u32 v8, v9, 10, v8")
    for jj in range(8):
        A(f"buffer_load_ushort v{16+jj}, v8, s[40:43], s18 offen offset:{128*jj}")
    A("s_sub_u32 s19, s2, 250")
    A("s_lshl_b32 s19, s19, 13")
    A(f"s_add_u32 s19, s19, {WFRAG:#x}")
    A("s_waitcnt vmcnt(0)")
    for p in range(4):
        A(f"v_lshl_or_b32 v{24+p}, v{16+2*p+1}, 16, v{16+2*p}")
    A(f"buffer_store_dwordx4 v[24:27], v3, {sr(sWS,4)}, s19 offen")
    LB("K1_END")
    A("s_endpgm")

LIST, QD, HIST2, FLAGS, ROWS = 0, 16384, 20512, 20768, 20784
RP = 912
TOT = ROWS + 64*RP; TP = 272
XST = TOT + 128*TP; XP = 144
AGS = XST + 64*XP
LDS2 = AGS + 64*XP
def k2():
    sA, sW, sO, sX, sOUT, sWM = 8, 12, 16, 20, 24, 28
    MK = 32
    sLO, sWID, sHI, sSAFE, sT, sREDO, sSTART, sMORE = 48, 49, 50, 51, 52, 53, 54, 55
    AGG = 2
    LP, SID, DSC = 6, 7, 1
    ROWA = [8, 9]
    AI = 10
    AE = 12
    IP = [14, 16]
    EA = 18
    Bv = 22
    S = 30
    W = 38
    Nn = 46
    Dd = 54
    G = 64
    T = [80, 96]
    EX = 112
    L.append(".globl main_kernel\n.p2align 8\n.type main_kernel,@function")
    LB("main_kernel")
    A("s_cmp_ge_u32 s2, 256")
    A("s_cbranch_scc1 K2_END")
    stamp(14, real=True)
    stamp(13)
    A("s_load_dwordx2 s[60:61], s[0:1], 64")
    A("s_load_dwordx2 s[62:63], s[0:1], 0")
    A("s_load_dwordx2 s[64:65], s[0:1], 32")
    A("s_load_dwordx2 s[66:67], s[0:1], 48")
    A("v_lshrrev_b32 v62, 6, v0")
    A("s_and_b32 s4, s2, 7")
    A("s_lshl_b32 s4, s4, 5")
    A("v_readfirstlane_b32 s3, v62")
    A("s_lshr_b32 s5, s2, 3")
    A("s_add_u32 s4, s4, s5")
    A(f"s_mul_i32 s5, s4, {NPB}")
    A(f"s_sub_u32 s6, {N}, s5")
    A(f"s_min_u32 s6, s6, {NPB}")
    A(f"s_mov_b32 s{sLO}, 0")
    A(f"s_movk_i32 s{sWID}, 256")
    A(f"s_mov_b32 s{sSAFE}, 0")
    for i in range(4): A(f"v_mov_b32 v{AGG+i}, 0")
    A("s_waitcnt lgkmcnt(0)")
    srd(sO, 60, NCH*1024, off=OFFS)
    srd(sW, 60, WS_REC)
    srd(sX, 62, N*128)
    srd(sWM, 64, 129*128)
    srd(sA, 60, (N+1)*128, stride=128)
    srd(sOUT, 66, N*128)
    LB("K2_PASS")
    stamp(0, sW, 1)
    LANE, SEG, K8, OF, RA = 80, 81, 82, 84, 88
    A(f"v_and_b32 v{LANE}, 63, v0")
    A(f"v_lshrrev_b32 v{SEG}, 4, v{LANE}")
    A(f"s_lshl_b32 s56, s3, 4")
    A(f"v_add_u32 v{SEG}, s56, v{SEG}")
    A(f"v_lshlrev_b32 v83, 10, v{SEG}")
    A("s_lshl_b32 s56, s4, 2")
    for i in range(4):
        A(f"buffer_load_dword v{OF+i}, v83, {sr(sO,4)}, s56 offen")
        if i < 3: A("v_add_u32 v83, 4096, v83")
    XR = 92
    A("v_lshlrev_b32 v83, 4, v0")
    A("s_lshl_b32 s56, s5, 7")
    A("v_and_b32 v104, 0x1ff0, v83")
    A("v_add_u32 v104, s56, v104")
    A(f"buffer_load_dwordx4 {vr(XR,4)}, v104, {sr(sX,4)}, 0 offen")
    WF = 96
    A("s_and_b32 s56, s3, 3")
    A("s_lshl_b32 s56, s56, 11")
    A(f"s_add_u32 s56, s56, {WFRAG:#x}")
    A(f"v_lshlrev_b32 v104, 4, v{LANE}")
    A(f"buffer_load_dwordx4 {vr(WF,4)}, v104, {sr(sW,4)}, s56 offen")
    A(f"buffer_load_dwordx4 {vr(WF+4,4)}, v104, {sr(sW,4)}, s56 offen offset:1024")
    A(f"v_and_b32 v105, 7, v0")
    A(f"v_lshlrev_b32 v106, 3, v105")
    A("s_movk_i32 s56, 0x4000")
    A(f"buffer_load_dwordx2 v[108:109], v106, {sr(sWM,4)}, s56 offen")
    A(f"buffer_load_dwordx2 v[110:111], v106, {sr(sWM,4)}, s56 offen offset:64")
    A("s_lshr_b32 s56, s2, 3")
    A("s_mul_i32 s56, s56, 391*128")
    A("v_min_u32 v107, 390, v0")
    A("v_lshlrev_b32 v107, 7, v107")
    A("s_cmp_ge_u32 s3, 7")
    A("s_cbranch_scc1 K2_NOPF")
    A(f"buffer_load_dword v63, v107, {sr(sW,4)}, s56 offen")
    LB("K2_NOPF")
    A(f"v_mov_b32 v112, {N}")
    for i in range(1,4): A(f"v_mov_b32 v{112+i}, v112")
    A(f"ds_write_b128 v83, v[112:115] offset:{LIST}")
    A(f"v_lshlrev_b32 v116, 2, v0")
    A(f"v_mov_b32 v117, {ROWS + 63*RP}")
    A(f"ds_write_b32 v116, v117 offset:{QD}")
    A("s_cmp_lg_u32 s3, 0")
    A("s_cbranch_scc1 K2_NOH")
    A("v_mov_b32 v118, 0")
    A(f"ds_write_b32 v116, v118 offset:{HIST2}")
    A(f"ds_write_b32 v116, v118 offset:{HIST2+16}")
    A(f"ds_write_b32 v116, v117 offset:{QD+4096-256+32}")
    LB("K2_NOH")
    A(f"v_lshlrev_b32 v{LP}, 4, v105")
    A(f"v_and_b32 v116, 1, v105")
    A(f"v_lshlrev_b32 v116, 4, v116")
    A("v_mov_b32 v117, 0x3f80")
    A(f"v_lshlrev_b32 v116, v116, v117")
    A(f"v_bfe_u32 v117, v0, 3, 2")
    A(f"v_bfe_u32 v118, v0, 5, 1")
    A(f"v_sub_u32 v117, v117, v118")
    A(f"v_lshlrev_b32 v117, 1, v117")
    A(f"v_lshrrev_b32 v118, 1, v105")
    A(f"v_add_u32 v118, v117, v118")
    A(f"v_and_b32 v117, 2, v117")
    A(f"v_lshl_add_u32 v118, v117, 5, v118")
    for r in range(8):
        A(f"v_cmp_eq_u32 vcc, {r}, v118")
        A("s_nop 1")
        A(f"v_cndmask_b32 v{S+r}, 0, v116, vcc")
    A(f"v_and_b32 v{K8}, 15, v0")
    A(f"v_lshlrev_b32 v{K8}, 3, v{K8}")
    A(f"v_add_u32 v{K8}, s{sLO}, v{K8}")
    A(f"s_add_u32 s{sHI}, s{sLO}, s{sWID}")
    A(f"s_movk_i32 s56, 25600")
    A(f"v_mad_u32_u24 v83, v{SEG}, s56, v{K8}")
    A(f"v_add_u32 v119, 128, v{K8}")
    RW = G
    A(f"s_mov_b32 s57, {REC:#x}")
    A(f"s_mov_b64 s[58:59], 0")
    A("s_waitcnt vmcnt(5)")
    stamp(1, sW, 1)
    for i in range(4):
        A(f"v_add_u32_sdwa v{RA+i}, v{OF+i}, v83 dst_sel:DWORD dst_unused:UNUSED_PAD src0_sel:WORD_0 src1_sel:DWORD")
        A(f"v_lshrrev_b32 v{OF+i}, 16, v{OF+i}")
        A(f"v_cmp_lt_u32 vcc, s{sHI}, v{OF+i}")
        A(f"v_min_u32 v{OF+i}, s{sHI}, v{OF+i}")
        A(f"s_or_b64 s[58:59], s[58:59], vcc")
        A(f"v_cmp_lt_u32 {sr(MK+2*i,2)}, v{K8}, v{OF+i}")
        A(f"v_cmp_lt_u32 {sr(MK+8+2*i,2)}, v119, v{OF+i}")
        A(f"s_mov_b64 exec, {sr(MK+2*i,2)}")
        A(f"buffer_load_dwordx2 {vr(RW+2*i,2)}, v{RA+i}, {sr(sW,4)}, s57 offen")
        A(f"s_mov_b64 exec, {sr(MK+8+2*i,2)}")
        A(f"buffer_load_dwordx2 {vr(RW+8+2*i,2)}, v{RA+i}, {sr(sW,4)}, s57 offen offset:128")
        A("s_mov_b64 exec, -1")
        if i < 3: A("s_add_u32 s57, s57, 102400")
    A(f"s_cmp_lg_u64 s[58:59], 0")
    A(f"s_cselect_b32 s{sMORE}, 1, 0")
    A("v_lshrrev_b32 v116, 3, v0")
    A(f"v_mul_u32_u24 v116, {XP}, v116")
    A(f"v_add_u32 v116, v116, v{LP}")
    A(f"v_add_u32 v116, {XST}, v116")
    A("s_waitcnt vmcnt(8)")
    A("s_cmp_ge_u32 s3, 8")
    A("s_cbranch_scc1 K2_NOX")
    A(f"ds_write_b128 v116, {vr(XR,4)}")
    LB("K2_NOX")
    A(f"s_mov_b32 s56, {NLOG2E:#x}")
    A("s_mov_b32 s57, 0xffff0000")
    for q in range(4):
        A(f"v_lshlrev_b32 v{W+2*q}, 16, v{108+q}")
        A(f"v_and_b32 v{W+2*q+1}, s57, v{108+q}")
    for q in range(8):
        A(f"v_mul_f32 v{W+q}, s56, v{W+q}")
    A("s_lshr_b32 s57, s3, 2")
    A("s_lshl_b32 s57, s57, 4")
    A(f"v_and_b32 v116, 15, v0")
    A(f"v_add_u32 v116, s57, v116")
    A(f"v_bfe_u32 v117, v0, 4, 2")
    A(f"v_lshlrev_b32 v117, 4, v117")
    A(f"v_mul_u32_u24 v118, {XP}, v116")
    A(f"v_add_u32 v118, v118, v117")
    A(f"v_add_u32 v118, {XST}, v118")
    A(f"v_mul_u32_u24 v120, {RP}, v116")
    A(f"v_add_u32 v120, v120, v117")
    A("s_and_b32 s57, s3, 3")
    A("s_lshl_b32 s57, s57, 6")
    A(f"v_add_u32 v120, s57, v120")
    A("s_waitcnt lgkmcnt(0)")
    A("s_barrier")
    stamp(2, sW, 1)
    A("ds_read_b128 v[108:111], v118")
    A("ds_read_b128 v[112:115], v118 offset:64")
    A(f"s_cmp_eq_u32 s{sMORE}, 0")
    A("s_cbranch_scc1 K2_NOMORE")
    A("v_mov_b32 v121, 0")
    A("v_mov_b32 v122, 1")
    A(f"ds_write_b32 v121, v122 offset:{FLAGS}")
    LB("K2_NOMORE")
    A("s_waitcnt lgkmcnt(0)")
    A(f"v_mfma_f32_16x16x32_bf16 v[124:127], {vr(WF,4)}, v[108:111], 0")
    A(f"v_mfma_f32_16x16x32_bf16 v[124:127], {vr(WF+4,4)}, v[112:115], v[124:127]")
    A("s_lshl_b32 s57, s5, 2")
    A("s_sub_u32 s57, 0, s57")
    A("v_mov_b32 v121, 4")
    A("s_nop 5")
    for q in range(4):
        A(f"v_mul_f32 v{124+q}, s56, v{124+q}")
    A(f"ds_write_b128 v120, v[124:127] offset:{ROWS}")
    RK = 96
    for i in range(4):
        A(f"s_waitcnt vmcnt({6-2*i})")
        if i == 0: stamp(3, sW, 1)
        for r in range(2):
            k = 4*r + i
            A(f"s_mov_b64 exec, {sr(MK+2*k,2)}")
            if r: A(f"s_cbranch_execz K2_H{k}")
            A(f"v_lshl_add_u32 v{RW+2*k+1}, v{RW+2*k+1}, 2, s57")
            A(f"ds_add_rtn_u32 v{RK+k}, v{RW+2*k+1}, v121 offset:{HIST2}")
            if r: LB(f"K2_H{k}")
    A("s_mov_b64 exec, -1")
    A(f"v_lshlrev_b32 v104, 2, v{LANE}")
    A("s_waitcnt lgkmcnt(0)")
    A("s_barrier")
    stamp(4, sW, 1)
    CNT, PB, INC, BS = 105, 106, 107, 108
    A(f"ds_read_b32 v{CNT}, v104 offset:{HIST2}")
    A(f"v_cmp_gt_u32 vcc, s6, v{LANE}")
    A(f"v_mul_u32_u24 v109, {RP}, v{LANE}")
    A(f"v_add_u32 v109, {ROWS}, v109")
    A("s_waitcnt lgkmcnt(0)")
    A(f"v_add_u32 v{PB}, 12, v{CNT}")
    A(f"v_and_b32 v{PB}, -16, v{PB}")
    A(f"v_max_u32 v{PB}, 16, v{PB}")
    A(f"v_cndmask_b32 v{PB}, 0, v{PB}, vcc")
    A(f"v_mov_b32 v{INC}, v{PB}")
    scan(INC)
    A(f"v_sub_u32 v{BS}, v{INC}, v{PB}")
    A(f"v_readlane_b32 s56, v{INC}, 63")
    for i in range(4):
        A(f"ds_bpermute_b32 v{112+i}, v{RW+2*i+1}, v{BS}")
    A("s_cmpk_gt_u32 s56, 16384")
    A("s_cbranch_scc1 K2_TOOBIG")
    A("s_add_u32 s56, s56, 127")
    A("s_lshr_b32 s56, s56, 7")
    A("s_lshr_b32 s57, s56, 4")
    A("s_and_b32 s56, s56, 15")
    A("s_mul_i32 s58, s57, s3")
    A("s_min_u32 s59, s56, s3")
    A(f"s_add_u32 s{sSTART}, s58, s59")
    A("s_cmp_lt_u32 s3, s56")
    A(f"s_addc_u32 s{sT}, s57, 0")
    for i in range(4):
        k = 4 + i
        A(f"s_cmp_eq_u64 {sr(MK+2*k,2)}, 0")
        A(f"s_cbranch_scc1 K2_S{k}")
        A(f"ds_bpermute_b32 v116, v{RW+2*k+1}, v{BS}")
        A(f"s_mov_b64 exec, {sr(MK+2*k,2)}")
        A("s_waitcnt lgkmcnt(0)")
        A(f"v_add_u32 v116, v116, v{RK+k}")
        A(f"ds_write_b32 v116, v{RW+2*k} offset:{LIST}")
        A("s_mov_b64 exec, -1")
        LB(f"K2_S{k}")
    A("s_waitcnt lgkmcnt(0)")
    for i in range(4):
        A(f"s_mov_b64 exec, {sr(MK+2*i,2)}")
        A(f"v_add_u32 v{112+i}, v{112+i}, v{RK+i}")
        A(f"ds_write_b32 v{112+i}, v{RW+2*i} offset:{LIST}")
    A("s_mov_b64 exec, -1")
    A("s_lshl_b32 s56, s3, 4")
    A(f"v_add_u32 v116, s56, v{BS}")
    A(f"v_lshrrev_b32 v116, 2, v116")
    LB("K2_QD")
    A(f"v_cmp_lt_u32 vcc, s56, v{PB}")
    A("s_and_b64 exec, exec, vcc")
    A("s_cbranch_execz K2_QDE")
    A(f"ds_write_b32 v116, v109 offset:{QD}")
    A("v_add_u32 v116, 64, v116")
    A("s_add_u32 s56, s56, 256")
    A("s_branch K2_QD")
    LB("K2_QDE")
    A("s_mov_b64 exec, -1")
    A(f"v_sub_u32 v62, v{PB}, v{CNT}")
    A(f"s_mov_b32 s{sREDO}, 0")
    A("s_waitcnt lgkmcnt(0)")
    A("s_barrier")
    LB("K2_MAIN")
    stamp(5, sW, 1)
    A(f"s_lshl_b32 s56, s{sT}, 4")
    A(f"s_lshl_b32 s57, s{sSTART}, 7")
    A("v_bfe_u32 v80, v0, 5, 1")
    A("v_bfe_u32 v81, v0, 2, 1")
    A("v_lshl_add_u32 v81, v80, 1, v81")
    A("v_bfe_u32 v82, v0, 3, 2")
    A("v_lshl_add_u32 v83, v82, 2, s57")
    A(f"v_mad_u32_u24 v{AI}, v81, s56, v83")
    A("s_lshl_b32 s58, s56, 2")
    A(f"v_add_u32 v{AI+1}, s58, v{AI}")
    A("v_lshl_add_u32 v84, v82, 1, v80")
    A(f"v_mul_u32_u24 v{AE}, s56, v84")
    A(f"v_add_u32 v{AE}, s57, v{AE}")
    A(f"v_lshrrev_b32 v{AE+1}, 2, v{AE}")
    A(f"ds_read_u16 v{IP[0]}, v{AI} offset:{LIST}")
    A(f"ds_read_u16 v{IP[1]}, v{AI+1} offset:{LIST}")
    A(f"ds_read_b32 v{ROWA[0]}, v{AE+1} offset:{QD}")
    A(f"ds_read_b32 v{DSC}, v{AE+1} offset:{QD+4}")
    A("s_lshl_b32 s58, s3, 3")
    A(f"v_add_u32 v{SID}, s58, v84")
    A(f"v_and_b32 v{IP[0]+1}, 3, v0")
    A(f"v_lshlrev_b32 v{IP[0]+1}, 4, v{IP[0]+1}")
    A(f"v_mov_b32 v{IP[1]+1}, v{IP[0]+1}")
    for q in range(4): A(f"v_mov_b32 v{EA+q}, 0")
    for q in range(4):
        A(f"ds_read_u16_d16_hi v{EA+q}, v{AE} offset:{LIST+4*q+2}")
    def gathers():
        for u in range(2):
            for s in range(2):
                A(f"buffer_load_dwordx4 {vr(G+8*u+4*s,4)}, {vr(IP[s],2)}, {sr(sA,4)}, 0 idxen offen offset:{64*u}")
    A("s_waitcnt lgkmcnt(6)")
    gathers()
    A("s_waitcnt lgkmcnt(5)")
    A(f"v_add_u32 v{ROWA[0]}, v{ROWA[0]}, v{LP}")
    A(f"ds_read_b128 {vr(Bv,4)}, v{ROWA[0]}")
    A(f"ds_read_b128 {vr(Bv+4,4)}, v{ROWA[0]} offset:128")
    A(f"ds_read_u16 v{IP[0]}, v{AI} offset:{LIST+16}")
    A(f"ds_read_u16 v{IP[1]}, v{AI+1} offset:{LIST+16}")
    for q in range(8):
        A(f"v_mov_b32 v{Nn+q}, 0")
        A(f"v_mov_b32 v{Dd+q}, 1.0")
    A("s_mov_b32 s68, 32")
    A("s_mov_b32 s69, 32")
    A("s_mov_b32 s70, 32")
    A("s_mov_b32 s71, 8")
    A(f"s_cmp_lg_u32 s{sREDO}, 0")
    A("s_cbranch_scc1 K2_NOSH")
    A(f"v_and_b32 v96, 63, v0")
    A(f"v_mul_u32_u24 v96, {RP}, v96")
    A("s_lshl_b32 s58, s3, 4")
    A(f"v_add_u32 v96, s58, v96")
    A(f"ds_read_b128 v[100:103], v96 offset:{ROWS}")
    A("v_cvt_f32_u32 v62, v62")
    A("v_mul_f32 v62, -0.5, v62")
    A("v_mul_f32 v62, 0.5, v62")
    A("s_waitcnt lgkmcnt(0)")
    for q in range(4): A(f"v_exp_f32 v{104+q}, v{100+q}")
    for q in range(4): A(f"v_add_f32 v{104+q}, 1.0, v{104+q}")
    for q in range(4): A(f"v_rcp_f32 v{104+q}, v{104+q}")
    for q in range(4): A(f"v_mul_f32 v{100+q}, v62, v{100+q}")
    for q in range(4): A(f"v_fmac_f32 v{AGG+q}, v{100+q}, v{104+q}")
    LB("K2_NOSH")
    A(f"s_cmp_eq_u32 s{sT}, 0")
    A("s_cbranch_scc1 K2_WEND")
    A(f"s_mov_b32 s72, s{sT}")
    def cblock(u):
        for q in range(4):
            for p in range(2):
                e = vr(EA + (q & 2), 2)
                sel = "op_sel:[1,0,0] op_sel_hi:[1,1,1]" if q & 1 else "op_sel_hi:[0,1,1]"
                A(f"v_pk_fma_f32 {vr(T[u]+4*q+2*p,2)}, {e}, {vr(W+4*u+2*p,2)}, {vr(Bv+4*u+2*p,2)} {sel}")
    def mfma(u, s):
        A(f"v_mfma_f32_32x32x16_bf16 {vr(T[u],16)}, {vr(G+8*u+4*s,4)}, {vr(S+4*s,4)}, {vr(T[u],16)}")
    def exps(u, a, b):
        for r in range(a, b): A(f"v_exp_f32 v{EX+r}, v{T[u]+r}")
    def chain(u, safe):
        if safe:
            for r in range(0,16,2): A(f"v_pk_add_f32 {vr(EX+r,2)}, {vr(EX+r,2)}, 1.0 op_sel_hi:[1,0]")
            for r in range(16): A(f"v_rcp_f32 v{EX+r}, v{EX+r}")
            for q in range(4):
                for p in range(2):
                    n = vr(Nn+4*u+2*p,2)
                    A(f"v_pk_fma_f32 {n}, {vr(T[u]+4*q+2*p,2)}, {vr(EX+4*q+2*p,2)}, {n}")
            return
        for q in range(4):
            for p in range(2):
                n = vr(Nn+4*u+2*p,2); A(f"v_pk_fma_f32 {n}, {n}, {vr(EX+4*q+2*p,2)}, {n}")
            for p in range(2):
                n = vr(Nn+4*u+2*p,2); A(f"v_pk_fma_f32 {n}, {vr(T[u]+4*q+2*p,2)}, {vr(Dd+4*u+2*p,2)}, {n}")
            for p in range(2):
                d = vr(Dd+4*u+2*p,2); A(f"v_pk_fma_f32 {d}, {d}, {vr(EX+4*q+2*p,2)}, {d}")
    A("s_waitcnt lgkmcnt(2)")
    cblock(0)
    A("s_waitcnt vmcnt(2)")
    stamp(6, sW, 1)
    A("s_nop 0")
    mfma(0,0); mfma(0,1)
    A(f"s_cmp_lg_u32 s{sSAFE}, 0")
    A("s_cbranch_scc1 K2_LOOPS")
    def loop(tag, safe):
        LB(f"K2_LOOP{tag}")
        for ph in range(2):
            ra, rb = ROWA[ph], ROWA[1-ph]
            o = 16*ph
            cblock(1)
            A(f"v_add_u32 v{rb}, v{DSC}, v{LP}")
            A(f"ds_read_b128 {vr(Bv,4)}, v{rb}")
            A(f"ds_read_b128 {vr(Bv+4,4)}, v{rb} offset:128")
            for q in range(4):
                A(f"ds_read_u16_d16_hi v{EA+q}, v{AE} offset:{LIST+o+16+4*q+2}")
            A(f"ds_read_b32 v{DSC}, v{AE+1} offset:{QD+4*ph+8}")
            A("s_sub_u32 s72, s72, 1")
            A("s_waitcnt vmcnt(0)")
            mfma(1,0)
            exps(0,0,4)
            mfma(1,1)
            A("s_cmp_eq_u32 s72, 0")
            A(f"s_cbranch_scc1 K2_A{tag}{ph}")
            A("s_waitcnt lgkmcnt(7)")
            gathers()
            A(f"ds_read_u16 v{IP[0]}, v{AI} offset:{LIST+o+32}")
            A(f"ds_read_u16 v{IP[1]}, v{AI+1} offset:{LIST+o+32}")
            LB(f"K2_A{tag}{ph}")
            exps(0,4,16)
            if ph == 1:
                A(f"v_lshl_add_u64 {vr(AI,2)}, {vr(AI,2)}, 0, s[68:69]")
                A(f"v_lshl_add_u64 {vr(AE,2)}, {vr(AE,2)}, 0, s[70:71]")
            chain(0, safe)
            A(f"s_cbranch_scc1 K2_B{tag}{ph}")
            A("s_waitcnt lgkmcnt(2)")
            cblock(0)
            LB(f"K2_B{tag}{ph}")
            exps(1,0,8)
            A(f"s_cbranch_scc1 K2_C{tag}{ph}")
            A("s_waitcnt vmcnt(2)")
            mfma(0,0)
            LB(f"K2_C{tag}{ph}")
            exps(1,8,12)
            A(f"s_cbranch_scc1 K2_D{tag}{ph}")
            mfma(0,1)
            LB(f"K2_D{tag}{ph}")
            exps(1,12,16)
            A(f"v_cmp_ne_u32 vcc, v{ra}, v{rb}")
            chain(1, safe)
            A("s_mov_b64 exec, vcc")
            A(f"s_cbranch_execz K2_E{tag}{ph}")
            A(f"ds_write_b128 v{ra}, {vr(Nn,4)} offset:256")
            A(f"ds_write_b128 v{ra}, {vr(Nn+4,4)} offset:384")
            A(f"ds_write_b128 v{ra}, {vr(Dd,4)} offset:512")
            A(f"ds_write_b128 v{ra}, {vr(Dd+4,4)} offset:640")
            A(f"ds_write_b32 v{ra}, v{SID} offset:768")
            LB(f"K2_E{tag}{ph}")
            A("s_mov_b64 exec, -1")
            if ph == 0: A("s_cbranch_scc1 K2_SEND")
            else: A(f"s_cbranch_scc0 K2_LOOP{tag}")
    loop("F", False)
    LB("K2_SEND")
    stamp(7, sW, 1)
    for q in range(8): A(f"v_rcp_f32 v{EX+q}, v{Dd+q}")
    A(f"v_mul_u32_u24 v80, {TP}, v{SID}")
    A(f"v_add_u32 v80, v80, v{LP}")
    A(f"v_add_u32 v80, {TOT}, v80")
    for q in range(0,8,2): A(f"v_pk_mul_f32 {vr(EX+q,2)}, {vr(Nn+q,2)}, {vr(EX+q,2)}")
    A(f"ds_write_b128 v80, {vr(EX,4)}")
    A(f"ds_write_b128 v80, {vr(EX+4,4)} offset:128")
    A(f"v_pk_add_f32 v[82:83], {vr(Dd,2)}, {vr(Dd+2,2)}")
    A(f"v_pk_add_f32 v[84:85], {vr(Dd+4,2)}, {vr(Dd+6,2)}")
    A(f"v_pk_add_f32 v[86:87], {vr(EX,2)}, {vr(EX+2,2)}")
    A(f"v_pk_add_f32 v[88:89], {vr(EX+4,2)}, {vr(EX+6,2)}")
    A("v_pk_add_f32 v[82:83], v[82:83], v[84:85]")
    A("v_pk_add_f32 v[86:87], v[86:87], v[88:89]")
    A("v_pk_fma_f32 v[82:83], v[86:87], 0, v[82:83] op_sel_hi:[1,0,1]")
    A("v_add_f32 v82, v82, v83")
    A(f"v_cmp_ngt_f32 vcc, {f2u(2.0**100):#x}, v82")
    A("s_cbranch_vccz K2_WEND")
    A("v_mov_b32 v82, 0")
    A("v_mov_b32 v83, 1")
    A(f"ds_write_b32 v82, v83 offset:{FLAGS+4}")
    LB("K2_WEND")
    A("s_and_b32 s56, s3, 3")
    A("s_lshl_b32 s56, s56, 11")
    A(f"s_add_u32 s56, s56, {WFRAG+8192:#x}")
    A("s_add_u32 s57, s56, 8192")
    A("v_and_b32 v80, 63, v0")
    A("v_lshlrev_b32 v81, 4, v80")
    A("s_waitcnt vmcnt(0)")
    A(f"buffer_load_dwordx4 {vr(G,4)}, v81, {sr(sW,4)}, s56 offen")
    A(f"buffer_load_dwordx4 {vr(G+4,4)}, v81, {sr(sW,4)}, s56 offen offset:1024")
    A(f"buffer_load_dwordx4 {vr(G+8,4)}, v81, {sr(sW,4)}, s57 offen")
    A(f"buffer_load_dwordx4 {vr(G+12,4)}, v81, {sr(sW,4)}, s57 offen offset:1024")
    A(f"v_mul_u32_u24 v82, {RP}, v80")
    A("s_lshl_b32 s58, s3, 4")
    A(f"v_add_u32 v83, s58, v82")
    A("v_mov_b32 v84, 0")
    A("s_waitcnt lgkmcnt(0)")
    A("s_barrier")
    stamp(8, sW, 1)
    A(f"ds_read_b64 v[86:87], v84 offset:{FLAGS}")
    A(f"ds_read_b32 v85, v82 offset:{ROWS+768}")
    A(f"ds_read_b128 v[92:95], v83 offset:{ROWS+512}")
    A(f"ds_read_b128 v[88:91], v83 offset:{ROWS+256}")
    for r in range(96, 112): A(f"v_mov_b32 v{r}, 0")
    A("s_waitcnt lgkmcnt(3)")
    A(f"v_readfirstlane_b32 s{sMORE}, v86")
    A("v_readfirstlane_b32 s56, v87")
    A(f"s_andn2_b32 s56, s56, s{sSAFE}")
    A("s_cbranch_scc1 K2_RETRY")
    A("s_waitcnt lgkmcnt(2)")
    A("v_mov_b32_dpp v86, v85 wave_shr:1 row_mask:0xf bank_mask:0xf bound_ctrl:1")
    A(f"v_cmp_gt_u32 vcc, s6, v80")
    A("v_sub_u32 v85, v85, v86")
    A(f"v_mul_u32_u24 v86, {TP}, v86")
    A("v_cndmask_b32 v85, 0, v85, vcc")
    A("v_min_i32 v85, 0x80, v85")
    A(f"s_add_u32 s58, s58, {TOT}")
    A("v_add_u32 v86, s58, v86")
    LB("K2_TL")
    for k in range(4):
        A(f"v_cmpx_lt_i32 vcc, {k}, v85")
        A(f"ds_read_b128 {vr(96+4*k,4)}, v86 offset:{TP*k}")
    A("s_mov_b64 exec, -1")
    A("v_cmp_lt_i32 vcc, 4, v85")
    A("s_waitcnt lgkmcnt(0)")
    A("v_pk_add_f32 v[96:97], v[96:97], v[100:101]")
    A("v_pk_add_f32 v[98:99], v[98:99], v[102:103]")
    A("v_pk_add_f32 v[104:105], v[104:105], v[108:109]")
    A("v_pk_add_f32 v[106:107], v[106:107], v[110:111]")
    A(f"v_pk_add_f32 {vr(AGG,2)}, {vr(AGG,2)}, v[96:97]")
    A(f"v_pk_add_f32 {vr(AGG+2,2)}, {vr(AGG+2,2)}, v[98:99]")
    A(f"v_pk_add_f32 {vr(AGG,2)}, {vr(AGG,2)}, v[104:105]")
    A(f"v_pk_add_f32 {vr(AGG+2,2)}, {vr(AGG+2,2)}, v[106:107]")
    A("s_cbranch_vccz K2_TLE")
    for r in range(96, 112): A(f"v_mov_b32 v{r}, 0")
    A("v_add_u32 v85, -4, v85")
    A(f"v_add_u32 v86, {4*TP}, v86")
    A("s_branch K2_TL")
    LB("K2_TLE")
    for q in range(4): A(f"v_rcp_f32 v{92+q}, v{92+q}")
    A("s_nop 0")
    A("v_pk_mul_f32 v[88:89], v[88:89], v[92:93]")
    A("v_pk_mul_f32 v[90:91], v[90:91], v[94:95]")
    A(f"v_pk_add_f32 {vr(AGG,2)}, {vr(AGG,2)}, v[88:89]")
    A(f"v_pk_add_f32 {vr(AGG+2,2)}, {vr(AGG+2,2)}, v[90:91]")
    A("s_nop 0")
    for q in range(4):
        A(f"v_subrev_f32_dpp v{AGG+q}, v{88+q}, v{AGG+q} wave_shr:1 row_mask:0xf bank_mask:0xf bound_ctrl:1")
    A(f"s_cmp_lg_u32 s{sMORE}, 0")
    A("s_cbranch_scc1 K2_NEXT")
    A(f"s_mov_b32 s56, {NLN2:#x}")
    for q in range(4): A(f"v_mul_f32 v{88+q}, s56, v{AGG+q}")
    A("v_cvt_pk_bf16_f32 v88, v88, v89")
    A("v_cvt_pk_bf16_f32 v89, v90, v91")
    A(f"v_mul_u32_u24 v90, {XP}, v80")
    A("s_lshl_b32 s58, s3, 3")
    A(f"s_add_u32 s58, s58, {AGS}")
    A("v_add_u32 v90, s58, v90")
    A("ds_write_b64 v90, v[88:89]")
    A("s_lshr_b32 s57, s3, 2")
    A("s_lshl_b32 s57, s57, 4")
    A("v_and_b32 v91, 15, v0")
    A("v_add_u32 v91, s57, v91")
    A("v_bfe_u32 v92, v0, 4, 2")
    A(f"v_mul_u32_u24 v93, {XP}, v91")
    A("v_lshl_add_u32 v93, v92, 4, v93")
    A(f"v_add_u32 v93, {XST}, v93")
    A("ds_read_b128 v[96:99], v93")
    A("ds_read_b128 v[100:103], v93 offset:64")
    A("v_lshlrev_b32 v94, 7, v91")
    A("v_lshl_add_u32 v94, v92, 3, v94")
    A("s_and_b32 s57, s3, 3")
    A("s_lshl_b32 s57, s57, 5")
    A("s_lshl_b32 s58, s5, 7")
    A("s_add_u32 s57, s57, s58")
    A("v_cmp_gt_u32 s[58:59], s6, v91")
    A("s_waitcnt vmcnt(0) lgkmcnt(0)")
    A(f"v_mfma_f32_16x16x32_bf16 v[112:115], {vr(G,4)}, v[96:99], 0")
    A(f"v_mfma_f32_16x16x32_bf16 v[112:115], {vr(G+4,4)}, v[100:103], v[112:115]")
    A("s_barrier")
    stamp(9, sW, 1)
    A(f"ds_read_b128 v[104:107], v93 offset:{AGS-XST}")
    A(f"ds_read_b128 v[108:111], v93 offset:{AGS-XST+64}")
    A(f"s_mov_b32 s56, {NLOG2E:#x}")
    A("s_waitcnt lgkmcnt(1)")
    A(f"v_mfma_f32_16x16x32_bf16 v[112:115], {vr(G+8,4)}, v[104:107], v[112:115]")
    A("s_waitcnt lgkmcnt(0)")
    A(f"v_mfma_f32_16x16x32_bf16 v[112:115], {vr(G+12,4)}, v[108:111], v[112:115]")
    A("s_nop 7")
    for q in range(4): A(f"v_mul_f32 v{116+q}, s56, v{112+q}")
    for q in range(4): A(f"v_exp_f32 v{116+q}, v{116+q}")
    for q in range(4): A(f"v_add_f32 v{116+q}, 1.0, v{116+q}")
    for q in range(4): A(f"v_rcp_f32 v{116+q}, v{116+q}")
    for q in range(4): A(f"v_mul_f32 v{116+q}, v{112+q}, v{116+q}")
    A("v_cvt_pk_bf16_f32 v116, v116, v117")
    A("v_cvt_pk_bf16_f32 v117, v118, v119")
    A("s_mov_b64 exec, s[58:59]")
    A(f"buffer_store_dwordx2 v[116:117], v94, {sr(sOUT,4)}, s57 offen")
    if DIAG:
        stamp(10, sW, 1)
        A("s_waitcnt vmcnt(0)")
        stamp(11, sW, 1)
        dump(sW, 1)
    LB("K2_END")
    A("s_endpgm")
    LB("K2_RETRY")
    A(f"s_mov_b32 s{sSAFE}, 1")
    A(f"s_mov_b32 s{sREDO}, 1")
    A("s_waitcnt vmcnt(0) lgkmcnt(0)")
    A("s_barrier")
    A("s_branch K2_MAIN")
    LB("K2_NEXT")
    A(f"s_add_u32 s{sLO}, s{sLO}, s{sWID}")
    A("s_waitcnt vmcnt(0) lgkmcnt(0)")
    A("s_barrier")
    A("s_branch K2_PASS")
    LB("K2_TOOBIG")
    A(f"s_mov_b32 s{sWID}, 64")
    A("s_waitcnt vmcnt(0) lgkmcnt(0)")
    A("s_barrier")
    A("s_branch K2_PASS")
    loop("S", True)
    A("s_branch K2_SEND")

def desc(name, vg, sg):
    return f""".amdhsa_kernel {name}
  .amdhsa_next_free_vgpr {vg}
  .amdhsa_next_free_sgpr {sg}
  .amdhsa_accum_offset {vg}
  .amdhsa_group_segment_fixed_size 0
  .amdhsa_kernarg_size 72
  .amdhsa_user_sgpr_count 2
  .amdhsa_user_sgpr_kernarg_segment_ptr 1
  .amdhsa_system_sgpr_workgroup_id_x 1
.end_amdhsa_kernel
"""
hdr = open("cdna_kernels/%s.s.ref" % NAME).read().split("; Override")[0]
out = hdr + f"; @launch kernel=part_kernel grid=(253,1,1) block=(1024,1,1) lds=27648\n; @launch kernel=main_kernel grid=(256,1,1) block=(1024,1,1) lds={LDS2}\n"
out += '.amdgcn_target "amdgcn-amd-amdhsa--gfx950"\n.text\n'
k1(); k2()
out += "\n".join(L) + "\n"
out += '.section .rodata,"a"\n.p2align 6\n' + desc("part_kernel", 128, 96) + ".p2align 6\n" + desc("main_kernel", 128, 96)
dst = [a for a in sys.argv[1:] if not a.startswith("--")]
open(dst[0] if dst else f"cdna_kernels/{NAME}.s", "w").write(out)
```

```python
import sys, struct
NAME = "gather_scatter__mpnn_edge_mlp__graph"
KN = NAME + "_kernel"
N, E = 12500, 800000
CH, NPB = 3136, 49
ATAB, OFFS, REC = 0, 0x190000, 0x200000
CHB = CH * 8
WS_END = REC + 256 * CHB
STAMP = 0x900000
LOG2E = 1.4426950408889634
def f2u(x): return struct.unpack("<I", struct.pack("<f", x))[0]
NLOG2E = f2u(-LOG2E); NLN2 = f2u(-0.6931471805599453)
DIAG = "--diag" in sys.argv
OPT = {a.split("=")[0][2:]: (a.split("=")[1] if "=" in a else "1") for a in sys.argv[1:] if a.startswith("--")}
WS_REC = (STAMP + 0x100000) if DIAG else WS_END

L = []
def A(s): L.append("    " + s)
def LB(s): L.append(s + ":")
def C(s): L.append("    ; " + s)
def vr(b, n=1): return f"v{b}" if n == 1 else f"v[{b}:{b+n-1}]"
def sr(b, n=1): return f"s{b}" if n == 1 else f"s[{b}:{b+n-1}]"
def scan(v):
    for m in ["row_shr:1 row_mask:0xf bank_mask:0xf bound_ctrl:1", "row_shr:2 row_mask:0xf bank_mask:0xf bound_ctrl:1",
              "row_shr:4 row_mask:0xf bank_mask:0xf bound_ctrl:1", "row_shr:8 row_mask:0xf bank_mask:0xf bound_ctrl:1",
              "row_bcast:15 row_mask:0xa bank_mask:0xf", "row_bcast:31 row_mask:0xc bank_mask:0xf"]:
        A("s_nop 1")
        A(f"v_add_u32_dpp v{v}, v{v}, v{v} {m}")
def stamp(k, real=False):
    if not DIAG: return
    A("s_memrealtime s[98:99]" if real else "s_memtime s[98:99]")
    A("s_waitcnt lgkmcnt(0)")
    A(f"v_writelane_b32 v255, s98, {k}")

LIST, QD, HIST2, FLAGS = 0, 16384, 20512, 20768
ROWS, RP = 20784, 912
R2 = 79360
STG = R2; TOT = R2; TP = 272; AGS = TOT + 64*TP; XP = 144
H1 = R2 + 26624; BASE1 = H1 + 1024
XS = H1 + 2048
AST = XS + 8192
WM = AST + 8192
WU = WM + 16384
LDSZ = WU + 16384
assert ROWS + 64*RP <= R2 and XS % 256 == 0 and LDSZ <= 163840

DSC, AGG, LP, SID = 1, 2, 10, 11
ROWA = [12, 13]; AI = 14; AE = 16; IP = [18, 20]; EA = 22; NPAD = 26; LANE = 27
Bv, S, W, Nn, Dd, U, WF2 = 28, 36, 44, 52, 60, 68, 76
G = [92, 108]; T = [124, 140]; EX = 156
DST, SRC, EE, BK, RK1, BSV, XF, WF = 172, 180, 188, 192, 200, 208, 216, 224
XG, XA, WA, T16, ENA, RCB, K8, PFA, BWA, WA2 = 240, 242, 244, 246, 247, 248, 249, 250, 251, 252
sWS, sA, sOUT = 8, 12, 16
pX, pE, pSRC, pDST, pWM, pWU, pOUT, pDBG = 20, 22, 24, 26, 28, 30, 32, 34
M0_, M1_, MA_ = 36, 38, 40
MK = 48
sLO, sWID, sHI, sSAFE, sT, sREDO, sSTART, sMORE, sCNT = 80, 81, 82, 83, 84, 85, 86, 87, 88
sNL = 90
sI0, sI1 = 92, 94

def prefill():
    A(f"v_mov_b32 v124, {N}")
    for i in range(1, 4): A(f"v_mov_b32 v{124+i}, v124")
    A(f"ds_write_b128 v{T16}, v[124:127] offset:{LIST}")
    A(f"ds_write_b128 v{T16}, v[124:127] offset:{LIST+8192}")
    A(f"v_mov_b32 v128, {ROWS + 63*RP}")
    A(f"v_mov_b32 v129, v128")
    A(f"v_lshlrev_b32 v130, 3, v0")
    A(f"ds_write_b64 v130, v[128:129] offset:{QD}")
    A(f"ds_write_b64 v130, v[128:129] offset:{QD+32}")
    A(f"v_lshlrev_b32 v130, 2, v{LANE}")
    A("v_mov_b32 v131, 0")
    A(f"ds_write_b32 v130, v131 offset:{HIST2}")
    A(f"ds_write_b32 v130, v131 offset:{HIST2+16}")

def kernel():
    L.append(f".globl {KN}\n.p2align 8\n.type {KN},@function")
    LB(KN)
    A("s_cmp_ge_u32 s2, 256")
    A("s_cbranch_scc1 L_END")
    A("s_load_dwordx16 s[20:35], s[0:1], 0")
    A("s_load_dwordx2 s[8:9], s[0:1], 64")
    if DIAG:
        stamp(30, real=True); stamp(29)
    A(f"v_lshrrev_b32 v156, 6, v0")
    A(f"v_and_b32 v{LANE}, 63, v0")
    A("s_and_b32 s4, s2, 7")
    A("v_readfirstlane_b32 s3, v156")
    A(f"v_mad_u32_u24 v157, v156, {NPB}, v{LANE}")
    A(f"s_mul_i32 s42, s2, {CH}")
    A("v_lshl_add_u32 v157, v157, 2, s42")
    A(f"s_mov_b32 s43, {E}")
    A(f"s_mov_b32 s44, {E - CH//2}")
    A(f"v_cmp_gt_u32 vcc, {NPB}, v{LANE}")
    A(f"v_cmp_gt_u32 {sr(M0_,2)}, s43, v157")
    A(f"v_cmp_gt_u32 {sr(M1_,2)}, s44, v157")
    A("s_lshl_b32 s4, s4, 5")
    A("s_lshr_b32 s7, s2, 3")
    A("s_add_u32 s4, s4, s7")
    A(f"s_mul_i32 s5, s4, {NPB}")
    A(f"s_sub_u32 s6, {N}, s5")
    A(f"s_min_u32 s6, s6, {NPB}")
    A(f"s_and_b64 {sr(M0_,2)}, {sr(M0_,2)}, vcc")
    A(f"s_and_b64 {sr(M1_,2)}, {sr(M1_,2)}, vcc")
    A("v_lshlrev_b32 v158, 1, v157")
    A("v_lshlrev_b32 v157, 2, v157")
    A(f"v_add_u32 v157, {CH}, v157")
    A("v_lshrrev_b32 v159, 3, v0")
    A("v_and_b32 v160, 7, v0")
    A("v_xor_b32 v161, v159, v0")
    A("v_and_b32 v161, 7, v161")
    A("v_add_u32 v162, s5, v159")
    A(f"v_min_u32 v162, {N-1}, v162")
    A("v_lshlrev_b32 v162, 3, v162")
    A(f"v_add_lshl_u32 v{XG}, v162, v161, 4")
    A("v_lshrrev_b32 v161, 1, v159")
    A("v_and_b32 v161, 4, v161")
    A("v_and_or_b32 v161, v159, 2, v161")
    A("v_xor_b32 v161, v161, v0")
    A("v_lshlrev_b32 v161, 4, v161")
    A(f"v_cmp_gt_u32 {sr(MA_,2)}, s6, v159")
    A(f"v_lshlrev_b32 v{T16}, 4, v0")
    A(f"v_lshlrev_b32 v163, 4, v{LANE}")
    for i in range(4): A(f"v_mov_b32 v{164+i}, -1")
    A("s_lshl_b32 s42, s3, 10")
    A("s_lshl_b32 s43, s2, 10")
    A("s_lshl_b32 s44, s3, 7")
    A(f"s_add_u32 s43, s43, {OFFS:#x}")
    A("s_add_u32 s44, s44, s43")
    A(f"s_add_u32 s45, s42, {XS}")
    A(f"s_mov_b32 s10, {WS_REC:#x}")
    A("s_mov_b32 s11, 0x20000")
    A("s_mov_b32 m0, s45")
    A("s_mov_b64 exec, 0xff")
    A("s_waitcnt lgkmcnt(0)")
    stamp(0)
    A(f"buffer_store_dwordx4 v[164:167], v163, {sr(sWS,4)}, s44 offen sc1")
    A("s_mov_b64 exec, -1")
    A(f"global_load_lds_dwordx4 v{XG}, {sr(pX,2)}")
    A(f"s_add_u32 m0, s42, {WM}")
    A(f"s_add_u32 s46, s{pWM}, 8192")
    A(f"global_load_lds_dwordx4 v161, {sr(pWM,2)}")
    A(f"s_mov_b64 exec, {sr(M0_,2)}")
    A(f"global_load_dwordx4 {vr(DST,4)}, v157, {sr(pDST,2)} offset:{-CH}")
    A(f"s_mov_b64 exec, {sr(M1_,2)}")
    A(f"global_load_dwordx4 {vr(DST+4,4)}, v157, {sr(pDST,2)} offset:{CH}")
    A(f"global_load_dwordx4 {vr(SRC+4,4)}, v157, {sr(pSRC,2)} offset:{CH}")
    A(f"global_load_dwordx2 {vr(EE+2,2)}, v158, {sr(pE,2)} offset:{CH}")
    A(f"s_mov_b64 exec, {sr(M0_,2)}")
    A(f"global_load_dwordx4 {vr(SRC,4)}, v157, {sr(pSRC,2)} offset:{-CH}")
    A(f"global_load_dwordx2 {vr(EE,2)}, v158, {sr(pE,2)}")
    A("s_mov_b64 exec, -1")
    A(f"s_addc_u32 s47, s{pWM+1}, 0")
    A(f"s_add_u32 m0, s42, {WM+8192}")
    A(f"s_mov_b32 s14, {(N+1)*128}")
    A(f"global_load_lds_dwordx4 v161, s[46:47]")
    A(f"s_add_u32 m0, s42, {WU}")
    A(f"s_add_u32 s46, s{pWU}, 8192")
    A(f"global_load_lds_dwordx4 v161, {sr(pWU,2)}")
    A(f"s_addc_u32 s47, s{pWU+1}, 0")
    A(f"s_add_u32 m0, s42, {WU+8192}")
    A("v_lshrrev_b32 v162, 2, v160")
    A(f"global_load_lds_dwordx4 v161, s[46:47]")
    A("v_and_b32 v168, 3, v160")
    A("v_lshl_add_u32 v162, v162, 4, v168")
    A("v_lshlrev_b32 v162, 1, v162")
    A("v_add_u32 v162, 0x4000, v162")
    for q in range(8): A(f"v_mov_b32 v{W+q}, 0")
    for q in range(8):
        A(f"global_load_short_d16_hi v{W+q}, v162, {sr(pWM,2)} offset:{64*(q>>2) + 8*(q&3)}")
    C("---- data-independent setup (in the shadow of the loads)")
    A("v_lshlrev_b32 v168, 2, v0")
    A("v_mov_b32 v169, 0")
    A(f"v_add_u32 v168, {H1}, v168")
    A("ds_write_b32 v168, v169")
    A("s_mov_b32 s12, s8")
    A(f"s_or_b32 s13, s9, {128 << 16:#x}")
    A("s_mov_b32 s15, 0x20000")
    A(f"s_mov_b32 s16, s{pOUT}")
    A(f"s_mov_b32 s17, s{pOUT+1}")
    A(f"s_mov_b32 s18, {N*128}")
    A("s_mov_b32 s19, 0x20000")
    A(f"s_mov_b32 s{sLO}, 0")
    A(f"s_movk_i32 s{sWID}, 256")
    A(f"s_mov_b32 s{sSAFE}, 0")
    A(f"s_mov_b32 s{sNL}, {NLOG2E:#x}")
    A(f"s_mov_b32 s{sNL+1}, s{sNL}")
    A(f"s_mov_b32 s{sI0}, 32")
    A(f"s_mov_b32 s{sI0+1}, 32")
    A(f"s_mov_b32 s{sI1}, 32")
    A(f"s_mov_b32 s{sI1+1}, 8")
    prefill()
    for i in range(8): A(f"v_mov_b32 v{AGG+i}, 0")
    A(f"v_lshlrev_b32 v{LP}, 4, v160")
    A("v_and_b32 v164, 1, v160")
    A("v_lshlrev_b32 v164, 4, v164")
    A("v_mov_b32 v165, 0x3f80")
    A("v_lshlrev_b32 v164, v164, v165")
    A("v_bfe_u32 v165, v0, 3, 2")
    A("v_bfe_u32 v166, v0, 5, 1")
    A("v_sub_u32 v165, v165, v166")
    A("v_lshlrev_b32 v165, 1, v165")
    A("v_lshrrev_b32 v166, 1, v160")
    A("v_add_u32 v166, v165, v166")
    A("v_and_b32 v165, 2, v165")
    A("v_lshl_add_u32 v166, v165, 5, v166")
    for r in range(8):
        A(f"v_cmp_eq_u32 {sr(MK+2*r,2)}, {r}, v166")
    for r in range(8):
        A(f"v_cndmask_b32 v{S+r}, 0, v164, {sr(MK+2*r,2)}")
    A("s_lshr_b32 s44, s3, 1")
    A("s_lshl_b32 s44, s44, 4")
    A("s_and_b32 s45, s3, 1")
    A("v_and_b32 v164, 15, v0")
    A("v_add_u32 v165, s44, v164")
    A("v_bfe_u32 v166, v0, 4, 2")
    A("v_xor_b32 v167, v166, v160")
    A("v_lshlrev_b32 v167, 4, v167")
    A("v_lshl_add_u32 v167, v165, 7, v167")
    A(f"v_add_u32 v{XA}, {XS}, v167")
    A(f"v_xor_b32 v{XA+1}, 64, v{XA}")
    A(f"v_mul_u32_u24 v{BWA}, {RP}, v165")
    A(f"v_lshl_add_u32 v{BWA}, v166, 2, v{BWA}")
    A("s_lshl_b32 s46, s45, 7")
    A(f"s_add_u32 s46, s46, {ROWS}")
    A(f"v_add_u32 v{BWA}, s46, v{BWA}")
    A("v_bfe_u32 v167, v0, 2, 2")
    A("v_bfe_u32 v168, v0, 1, 1")
    A("s_lshl_b32 s46, s45, 2")
    A("v_or_b32 v168, s46, v168")
    A("v_and_b32 v169, 1, v0")
    A("v_lshlrev_b32 v169, 3, v169")
    A("v_and_b32 v170, 1, v166")
    A("v_lshlrev_b32 v171, 2, v170")
    A("v_and_or_b32 v171, v167, 2, v171")
    A("v_xor_b32 v171, v171, v168")
    A("v_lshl_add_u32 v171, v171, 4, v169")
    A("v_lshl_add_u32 v124, v166, 3, v167")
    A("v_lshl_add_u32 v171, v124, 7, v171")
    A(f"v_add_u32 v{WA}, {WM}, v171")
    A(f"v_xor_b32 v{WA+1}, 32, v{WA}")
    A("v_lshlrev_b32 v171, 1, v170")
    A("v_and_b32 v124, 2, v167")
    A("v_lshl_or_b32 v124, v124, 1, v171")
    A("v_xor_b32 v124, v124, v168")
    A("v_lshl_add_u32 v124, v124, 4, v169")
    A("v_lshl_add_u32 v171, v167, 2, v171")
    A("v_and_b32 v125, 2, v166")
    A("v_lshl_add_u32 v171, v125, 3, v171")
    A("v_lshl_add_u32 v124, v171, 7, v124")
    A(f"v_add_u32 v{WA2}, {WU+8192}, v124")
    A(f"v_xor_b32 v{WA2+1}, 32, v{WA2}")
    A("s_lshl_b32 s46, s3, 5")
    A("v_lshl_add_u32 v167, v166, 3, s46")
    A("s_lshl_b32 s47, s4, 2")
    A(f"s_add_u32 s47, s47, {OFFS:#x}")
    A(f"v_lshl_add_u32 v{ENA}, v167, 10, s47")
    A(f"v_lshlrev_b32 v{K8}, 3, v164")
    A(f"v_mul_u32_u24 v{RCB}, {CHB}, v167")
    A("s_add_u32 s46, s46, s7")
    A("s_and_b32 s47, s46, 7")
    A("s_lshl_b32 s47, s47, 5")
    A("s_lshr_b32 s46, s46, 3")
    A("s_add_u32 s46, s46, s47")
    A(f"s_mul_i32 s46, s46, {NPB}")
    A(f"v_min_u32 v{PFA}, {NPB-1}, v{LANE}")
    A(f"v_add_lshl_u32 v{PFA}, v{PFA}, s46, 7")
    A(f"v_and_b32 v{IP[0]+1}, 3, v0")
    A(f"v_lshlrev_b32 v{IP[0]+1}, 4, v{IP[0]+1}")
    A(f"v_mov_b32 v{IP[1]+1}, v{IP[0]+1}")
    for q in range(4): A(f"v_mov_b32 v{EA+q}, 0")
    A(f"s_mov_b32 s46, {(2**32 + 48)//49}")
    A(f"s_mov_b32 s47, {H1}")
    A("v_mov_b32 v156, 8")
    A(f"v_add_u32 v163, {H1}, v163")
    stamp(1)
    A("s_waitcnt vmcnt(17) lgkmcnt(0)")
    A("s_barrier")
    stamp(2)
    A(f"ds_read_b128 {vr(XF,4)}, v{XA}")
    A(f"ds_read_b128 {vr(XF+4,4)}, v{XA+1}")
    def wfrags(dst, areg, off, tstep):
        for cb in range(2):
            for ks in range(2):
                for t in range(2):
                    A(f"ds_read_b64_tr_b16 {vr(dst+8*cb+4*ks+2*t,2)}, v{areg+cb} offset:{off + 4096*ks + tstep*t}")
    def mm(dst, wf, c0="0"):
        for ks in range(2):
            for cb in range(2):
                c = c0 if ks == 0 else vr(dst+4*cb,4)
                A(f"v_mfma_f32_16x16x32_bf16 {vr(dst+4*cb,4)}, {vr(wf+8*cb+4*ks,4)}, {vr(XF+4*ks,4)}, {c}")
    wfrags(WF, WA, 0, 512)
    A("s_cmp_lg_u32 s3, 0")
    A("s_cbranch_scc1 L_NOFLAG")
    A("v_mov_b32 v124, s2")
    A("v_mov_b32 v125, 1")
    A("s_mov_b64 exec, 1")
    A(f"global_store_byte v124, v125, {sr(pDBG,2)} sc1")
    LB("L_NOFLAG")
    for h in range(2):
        A(f"s_mov_b64 exec, {sr(M0_+2*h,2)}")
        A(f"s_waitcnt vmcnt({16-h})")
        if h == 0: stamp(3)
        for i in range(4*h, 4*h+4): A(f"v_mul_hi_u32 v{BK+i}, v{DST+i}, s46")
        for i in range(4*h, 4*h+4):
            A(f"v_lshl_add_u32 v{BK+i}, v{BK+i}, 2, s47")
            A(f"ds_add_rtn_u32 v{RK1+i}, v{BK+i}, v156")
    A("s_mov_b64 exec, -1")
    A("s_waitcnt lgkmcnt(8)")
    mm(124, WF)
    A("s_mov_b32 s47, 0xffff0000")
    A("s_cmp_eq_u32 s45, 0")
    A(f"v_mov_b32 v136, v{XA}")
    A(f"s_cbranch_scc1 L_U0")
    A(f"v_mov_b32 v136, v{XA+1}")
    LB("L_U0")
    A("s_waitcnt vmcnt(11)")
    for q in range(4):
        A(f"v_lshl_or_b32 v{SRC+2*q}, v{EE+q}, 16, v{SRC+2*q}")
        A(f"v_and_or_b32 v{SRC+2*q+1}, v{EE+q}, s47, v{SRC+2*q+1}")
    for q in range(0, 8, 2): A(f"v_pk_mul_f32 {vr(124+q,2)}, {vr(124+q,2)}, {sr(sNL,2)}")
    for q in range(4): A(f"v_cvt_pk_bf16_f32 v{132+q}, v{124+2*q}, v{125+2*q}")
    A(f"ds_write_b128 v136, v[132:135] offset:{AST-XS}")
    A(f"v_add_u32 v137, {AST}, v{T16}")
    A("s_waitcnt lgkmcnt(0)")
    A("s_barrier")
    stamp(4)
    HH, BB = 164, 168
    A(f"ds_read_b128 {vr(HH,4)}, v163")
    A("ds_read_b128 v[132:135], v137")
    A(f"v_lshlrev_b32 v138, 2, v{LANE}")
    A("s_waitcnt lgkmcnt(1)")
    A(f"v_add3_u32 v124, v{HH}, v{HH+1}, v{HH+2}")
    A(f"v_add_u32 v125, v124, v{HH+3}")
    A("v_mov_b32 v126, v125")
    scan(126)
    A(f"v_sub_u32 v{BB}, v126, v125")
    A(f"v_add_u32 v{BB+1}, v{BB}, v{HH}")
    A(f"v_add_u32 v{BB+2}, v{BB+1}, v{HH+1}")
    A(f"v_add_u32 v{BB+3}, v{BB}, v124")
    A(f"ds_write_b128 v163, {vr(BB,4)} offset:1024")
    A(f"s_mov_b64 exec, {sr(MA_,2)}")
    A("s_waitcnt lgkmcnt(1)")
    A(f"buffer_store_dwordx4 v[132:135], v{XG}, {sr(sWS,4)}, 0 offen sc1")
    A(f"s_mov_b32 s47, {STG}")
    for h in range(2):
        A(f"s_mov_b64 exec, {sr(M0_+2*h,2)}")
        for i in range(4*h, 4*h+4): A(f"ds_read_b32 v{BSV+i}, v{BK+i} offset:1024")
    for h in range(2):
        A(f"s_mov_b64 exec, {sr(M0_+2*h,2)}")
        for i in range(4*h, 4*h+4):
            A("s_waitcnt lgkmcnt(7)")
            A(f"v_add3_u32 v{BSV+i}, v{BSV+i}, v{RK1+i}, s47")
            A(f"ds_write2_b32 v{BSV+i}, v{SRC+i}, v{DST+i} offset0:0 offset1:1")
    A("s_mov_b64 exec, -1")
    A(f"global_load_dword v139, v138, {sr(pDBG,2)} sc1")
    A(f"v_add_u32 v137, {STG}, v{T16}")
    A(f"s_mul_i32 s44, s2, {CHB}")
    A(f"s_add_u32 s44, s44, {REC:#x}")
    A("s_add_u32 s46, s44, 8192")
    A("s_add_u32 s47, s44, 16384")
    A("s_waitcnt vmcnt(2) lgkmcnt(0)")
    A("s_barrier")
    stamp(5)
    for r in range(3): A(f"ds_read_b128 {vr(172+4*r,4)}, v137 offset:{8192*r}")
    A("s_cmp_lg_u32 s3, 0")
    A("s_cbranch_scc1 L_NOTAIL")
    A("s_mov_b32 exec_hi, 0")
    A("ds_read_b128 v[184:187], v137 offset:24576")
    A("s_add_u32 s42, s44, 24576")
    A("s_waitcnt lgkmcnt(0)")
    A(f"buffer_store_dwordx4 v[184:187], v{T16}, {sr(sWS,4)}, s42 offen sc1")
    A("s_cmpk_lg_u32 s2, 255")
    A("s_cbranch_scc1 L_NOZROW")
    A("v_mov_b32 v188, 0")
    A(f"s_mov_b32 s42, {N*128}")
    A(f"buffer_store_dword v188, v138, {sr(sWS,4)}, s42 offen sc1")
    LB("L_NOZROW")
    A("s_mov_b64 exec, -1")
    LB("L_NOTAIL")
    for r in range(3):
        A(f"s_waitcnt lgkmcnt({2-r})")
        A(f"buffer_store_dwordx4 {vr(172+4*r,4)}, v{T16}, {sr(sWS,4)}, s{[44,46,47][r]} offen sc1")
    stamp(6)
    C("---- deferred setup while the stores drain: B', U, Wu2 fragments, w3'")
    wfrags(WF, WA, 8192, 512)
    for i in range(4): A(f"v_lshl_or_b32 v{BB+i}, v{HH+i}, 16, v{BB+i}")
    for q in range(0, 8, 2): A(f"v_pk_mul_f32 {vr(W+q,2)}, {vr(W+q,2)}, {sr(sNL,2)}")
    A("s_waitcnt lgkmcnt(0)")
    mm(124, WF)
    wfrags(188, WA, WU-WM, 512)
    wfrags(WF2, WA2, 0, 128)
    for q in range(0, 8, 2): A(f"v_pk_mul_f32 {vr(124+q,2)}, {vr(124+q,2)}, {sr(sNL,2)}")
    for q in range(4):
        A(f"ds_write2_b32 v{BWA}, v{124+2*q}, v{125+2*q} offset0:{8*q} offset1:{8*q+4}")
    A("s_waitcnt lgkmcnt(12)")
    mm(U, 188)
    A("s_mov_b32 s42, 0x01010101")
    A(f"s_mov_b32 s{sCNT}, 0")
    LB("L_EB")
    A("s_waitcnt vmcnt(0)")
    A("v_cmp_ne_u32 vcc, s42, v139")
    A("s_cbranch_vccz L_EBD")
    A(f"global_load_dword v139, v138, {sr(pDBG,2)} sc1")
    A(f"s_add_u32 s{sCNT}, s{sCNT}, 1")
    A(f"s_cmp_lt_u32 s{sCNT}, 0x8000")
    A("s_cbranch_scc1 L_EB")
    A("s_endpgm")
    LB("L_EBD")
    stamp(7)
    A("s_waitcnt lgkmcnt(0)")
    A("s_barrier")
    A("s_cmp_lg_u32 s3, 0")
    A("s_cbranch_scc1 L_PASS")
    A(f"buffer_store_dwordx4 {vr(BB,4)}, v{T16}, {sr(sWS,4)}, s43 offen sc1")
    LB("L_PASS")
    stamp(8)
    OF, RA, RK, BP = 172, 180, 188, 204
    RW = G[0]
    A("s_movk_i32 s42, 0x1000")
    A(f"s_mov_b32 s{sCNT}, 0")
    A(f"s_add_u32 s{sHI}, s{sLO}, s{sWID}")
    A(f"v_add_u32 v124, s{sLO}, v{K8}")
    A(f"v_add_u32 v125, 128, v124")
    A(f"v_add_u32 v126, v{RCB}, v124")
    LB("L_POLL")
    for i in range(8):
        A(f"buffer_load_dword v{OF+i}, v{ENA}, {sr(sWS,4)}, {'s42' if i >= 4 else '0'} offen offset:{1024*(i&3)} sc1")
    A(f"s_add_u32 s{sCNT}, s{sCNT}, 1")
    A(f"s_cmp_ge_u32 s{sCNT}, 0x8000")
    A("s_cbranch_scc1 L_END")
    A("s_waitcnt vmcnt(0)")
    A(f"v_max3_u32 v127, v{OF}, v{OF+1}, v{OF+2}")
    A(f"v_max3_u32 v128, v{OF+3}, v{OF+4}, v{OF+5}")
    A(f"v_max3_u32 v127, v{OF+6}, v{OF+7}, v127")
    A("v_max_u32 v127, v127, v128")
    A("v_cmp_eq_u32 vcc, -1, v127")
    A("s_cbranch_vccnz L_POLL")
    stamp(9)
    A("v_lshrrev_b32 v127, 16, v127")
    A(f"s_mov_b32 s44, {REC:#x}")
    A(f"v_cmp_lt_u32 vcc, s{sHI}, v127")
    for i in range(8):
        A(f"v_min_u32_sdwa v128, v{OF+i}, s{sHI} dst_sel:DWORD dst_unused:UNUSED_PAD src0_sel:WORD_1 src1_sel:DWORD")
        A(f"v_add_u32_sdwa v{RA+i}, v{OF+i}, v126 dst_sel:DWORD dst_unused:UNUSED_PAD src0_sel:WORD_0 src1_sel:DWORD")
        A(f"v_cmp_lt_u32 {sr(MK+16+2*i,2)}, v125, v128")
        A(f"v_cmpx_lt_u32 {sr(MK+2*i,2)}, v124, v128")
        A(f"buffer_load_dwordx2 {vr(RW+2*i,2)}, v{RA+i}, {sr(sWS,4)}, s44 offen sc1")
        A(f"s_mov_b64 exec, {sr(MK+16+2*i,2)}")
        A(f"buffer_load_dwordx2 {vr(RW+16+2*i,2)}, v{RA+i}, {sr(sWS,4)}, s44 offen offset:128 sc1")
        A("s_mov_b64 exec, -1")
        if i < 7: A(f"s_add_u32 s44, s44, {CHB}")
    A(f"buffer_load_dword v254, v{PFA}, {sr(sWS,4)}, 0 offen sc1")
    A("s_cbranch_vccz L_NOMORE")
    A("v_mov_b32 v127, 0")
    A("v_mov_b32 v128, 1")
    A(f"ds_write_b32 v127, v128 offset:{FLAGS}")
    LB("L_NOMORE")
    A("s_lshl_b32 s44, s5, 2")
    A("s_sub_u32 s44, 0, s44")
    A("v_mov_b32 v129, 4")
    stamp(10)
    for i in range(8):
        A(f"s_waitcnt vmcnt({15-2*i})")
        if i == 0: stamp(11)
        for r in range(2):
            k = 8*r + i
            A(f"s_mov_b64 exec, {sr(MK+2*k,2)}")
            if r: A(f"s_cbranch_execz L_H{k}")
            A(f"v_lshl_add_u32 v{RW+2*k+1}, v{RW+2*k+1}, 2, s44")
            A(f"ds_add_rtn_u32 v{RK+k}, v{RW+2*k+1}, v129 offset:{HIST2}")
            if r: LB(f"L_H{k}")
    A("s_mov_b64 exec, -1")
    A(f"v_lshlrev_b32 v124, 2, v{LANE}")
    A(f"v_cmp_gt_u32 vcc, s6, v{LANE}")
    A(f"v_mul_u32_u24 v130, {RP}, v{LANE}")
    A(f"v_add_u32 v130, {ROWS}, v130")
    A("s_waitcnt lgkmcnt(0)")
    A("s_barrier")
    stamp(12)
    CNT, PB, INC, BS = 125, 126, 127, 128
    A(f"ds_read_b32 v{CNT}, v124 offset:{HIST2}")
    A("s_waitcnt lgkmcnt(0)")
    A(f"v_add_u32 v{PB}, 12, v{CNT}")
    A(f"v_and_b32 v{PB}, -16, v{PB}")
    A(f"v_max_u32 v{PB}, 16, v{PB}")
    A(f"v_cndmask_b32 v{PB}, 0, v{PB}, vcc")
    A(f"v_mov_b32 v{INC}, v{PB}")
    scan(INC)
    A(f"v_sub_u32 v{BS}, v{INC}, v{PB}")
    A(f"v_readlane_b32 s44, v{INC}, 63")
    for i in range(8):
        A(f"ds_bpermute_b32 v{BP+i}, v{RW+2*i+1}, v{BS}")
    A("s_cmpk_gt_u32 s44, 16384")
    A("s_cbranch_scc1 L_TOOBIG")
    for i in range(8):
        k = 8 + i
        A(f"s_cmp_eq_u64 {sr(MK+2*k,2)}, 0")
        A(f"s_cbranch_scc1 L_P{k}")
        A(f"ds_bpermute_b32 v{BP+k}, v{RW+2*k+1}, v{BS}")
        LB(f"L_P{k}")
    A("s_lshl_b32 s46, s3, 4")
    A(f"v_add_u32 v131, s46, v{BS}")
    A(f"v_lshrrev_b32 v131, 2, v131")
    LB("L_QD")
    A(f"v_cmpx_lt_u32 vcc, s46, v{PB}")
    A("s_add_u32 s46, s46, 128")
    A(f"ds_write_b32 v131, v130 offset:{QD}")
    A(f"v_cmpx_lt_u32 vcc, s46, v{PB}")
    A("s_add_u32 s46, s46, 128")
    A(f"ds_write_b32 v131, v130 offset:{QD+32}")
    A(f"v_cmpx_lt_u32 vcc, s46, v{PB}")
    A("s_add_u32 s46, s46, 128")
    A(f"ds_write_b32 v131, v130 offset:{QD+64}")
    A(f"v_cmpx_lt_u32 vcc, s46, v{PB}")
    A("v_add_u32 v131, 96, v131")
    A("s_cbranch_execnz L_QD")
    A("s_add_u32 s44, s44, 127")
    A("s_lshr_b32 s44, s44, 7")
    A("s_lshr_b32 s45, s44, 3")
    A("s_and_b32 s44, s44, 7")
    A("s_mul_i32 s46, s45, s3")
    A("s_min_u32 s47, s44, s3")
    A(f"s_add_u32 s{sSTART}, s46, s47")
    A("s_cmp_lt_u32 s3, s44")
    A(f"s_addc_u32 s{sT}, s45, 0")
    A("s_waitcnt lgkmcnt(3)")
    for k in range(16):
        A(f"s_mov_b64 exec, {sr(MK+2*k,2)}")
        if k >= 8: A(f"s_cbranch_execz L_S{k}")
        A(f"v_add_u32 v{BP+k}, v{BP+k}, v{RK+k}")
        A(f"ds_write_b32 v{BP+k}, v{RW+2*k} offset:{LIST}")
        if k >= 8: LB(f"L_S{k}")
    A("s_mov_b64 exec, -1")
    A(f"v_sub_u32 v{NPAD}, v{PB}, v{CNT}")
    A(f"s_mov_b32 s{sREDO}, 0")
    LB("L_MAIN")
    A(f"s_lshl_b32 s44, s{sT}, 4")
    A(f"s_lshl_b32 s45, s{sSTART}, 7")
    A("v_bfe_u32 v124, v0, 5, 1")
    A("v_bfe_u32 v125, v0, 2, 1")
    A("v_lshl_add_u32 v125, v124, 1, v125")
    A("v_bfe_u32 v126, v0, 3, 2")
    A("v_lshl_add_u32 v127, v126, 2, s45")
    A(f"v_mad_u32_u24 v{AI}, v125, s44, v127")
    A("s_lshl_b32 s46, s44, 2")
    A(f"v_add_u32 v{AI+1}, s46, v{AI}")
    A("v_lshl_add_u32 v128, v126, 1, v124")
    A(f"v_mul_u32_u24 v{AE}, s44, v128")
    A(f"v_add_u32 v{AE}, s45, v{AE}")
    A(f"v_lshrrev_b32 v{AE+1}, 2, v{AE}")
    A("s_lshl_b32 s46, s3, 3")
    A(f"v_add_u32 v{SID}, s46, v128")
    A("s_waitcnt lgkmcnt(0)")
    A("s_barrier")
    stamp(13)
    def gathers(g):
        for u in range(2):
            for s in range(2):
                A(f"buffer_load_dwordx4 {vr(G[g]+8*u+4*s,4)}, {vr(IP[s],2)}, {sr(sA,4)}, 0 idxen offen offset:{64*u}")
    def idx(o):
        A(f"ds_read_u16 v{IP[0]}, v{AI} offset:{LIST+o}")
        A(f"ds_read_u16 v{IP[1]}, v{AI+1} offset:{LIST+o}")
    idx(0)
    A(f"ds_read_u16 v124, v{AI} offset:{LIST+16}")
    A(f"ds_read_u16 v125, v{AI+1} offset:{LIST+16}")
    A(f"ds_read_b32 v{ROWA[0]}, v{AE+1} offset:{QD}")
    A(f"ds_read_b32 v{DSC}, v{AE+1} offset:{QD+4}")
    for q in range(4):
        A(f"ds_read_u16_d16_hi v{EA+q}, v{AE} offset:{LIST+4*q+2}")
    A("s_waitcnt lgkmcnt(8)")
    gathers(0)
    A("s_waitcnt lgkmcnt(5)")
    A(f"v_mov_b32 v{IP[0]}, v124")
    A(f"v_mov_b32 v{IP[1]}, v125")
    A(f"v_add_u32 v{ROWA[0]}, v{ROWA[0]}, v{LP}")
    gathers(1)
    A(f"ds_read_b128 {vr(Bv,4)}, v{ROWA[0]}")
    A(f"ds_read_b128 {vr(Bv+4,4)}, v{ROWA[0]} offset:128")
    idx(32)
    A(f"s_cmp_lg_u32 s{sSAFE}, 0")
    A(f"s_cselect_b32 s44, 1.0, {f2u(2.0**-64):#x}")
    for q in range(8):
        A(f"v_mov_b32 v{Nn+q}, 0")
        A(f"v_mov_b32 v{Dd+q}, s44")
    A(f"s_cmp_lg_u32 s{sREDO}, 0")
    A("s_cbranch_scc1 L_NOSH")
    A(f"v_mul_u32_u24 v140, {RP}, v{LANE}")
    A("s_lshl_b32 s46, s3, 5")
    A(f"v_add_u32 v140, s46, v140")
    A(f"ds_read_b128 v[144:147], v140 offset:{ROWS}")
    A(f"ds_read_b128 v[148:151], v140 offset:{ROWS+16}")
    A(f"v_cvt_f32_u32 v142, v{NPAD}")
    A(f"v_mul_f32 v142, {f2u(-0.25):#x}, v142")
    A("s_waitcnt lgkmcnt(0)")
    for q in range(8): A(f"v_exp_f32 v{EX+q}, v{144+q}")
    for q in range(0,8,2): A(f"v_pk_add_f32 {vr(EX+q,2)}, {vr(EX+q,2)}, 1.0 op_sel_hi:[1,0]")
    for q in range(8): A(f"v_rcp_f32 v{EX+q}, v{EX+q}")
    for q in range(0,8,2): A(f"v_pk_mul_f32 {vr(144+q,2)}, {vr(144+q,2)}, v[142:143] op_sel_hi:[1,0]")
    for q in range(0,8,2): A(f"v_pk_fma_f32 {vr(AGG+q,2)}, {vr(144+q,2)}, {vr(EX+q,2)}, {vr(AGG+q,2)}")
    LB("L_NOSH")
    A(f"s_cmp_eq_u32 s{sT}, 0")
    A("s_cbranch_scc1 L_WEND")
    A(f"s_mov_b32 s{sCNT}, s{sT}")
    def cblock(u):
        for q in range(4):
            for p in range(2):
                e = vr(EA + (q & 2), 2)
                sel = "op_sel:[1,0,0] op_sel_hi:[1,1,1]" if q & 1 else "op_sel_hi:[0,1,1]"
                A(f"v_pk_fma_f32 {vr(T[u]+4*q+2*p,2)}, {e}, {vr(W+4*u+2*p,2)}, {vr(Bv+4*u+2*p,2)} {sel}")
    def mfma(g, u, s):
        A(f"v_mfma_f32_32x32x16_bf16 {vr(T[u],16)}, {vr(G[g]+8*u+4*s,4)}, {vr(S+4*s,4)}, {vr(T[u],16)}")
    def exps(u, a, b):
        for r in range(a, b): A(f"v_exp_f32 v{EX+r}, v{T[u]+r}")
    def chain(u, safe):
        if safe:
            for r in range(0,16,2): A(f"v_pk_add_f32 {vr(EX+r,2)}, {vr(EX+r,2)}, 1.0 op_sel_hi:[1,0]")
            for r in range(16): A(f"v_rcp_f32 v{EX+r}, v{EX+r}")
            for q in range(4):
                for p in range(2):
                    n = vr(Nn+4*u+2*p,2)
                    A(f"v_pk_fma_f32 {n}, {vr(T[u]+4*q+2*p,2)}, {vr(EX+4*q+2*p,2)}, {n}")
            return
        for q in range(4):
            for p in range(2):
                n = vr(Nn+4*u+2*p,2); A(f"v_pk_fma_f32 {n}, {n}, {vr(EX+4*q+2*p,2)}, {n}")
            for p in range(2):
                n = vr(Nn+4*u+2*p,2); A(f"v_pk_fma_f32 {n}, {vr(T[u]+4*q+2*p,2)}, {vr(Dd+4*u+2*p,2)}, {n}")
            for p in range(2):
                d = vr(Dd+4*u+2*p,2); A(f"v_pk_fma_f32 {d}, {d}, {vr(EX+4*q+2*p,2)}, {d}")
    A("s_waitcnt lgkmcnt(2)")
    cblock(0)
    A("s_waitcnt vmcnt(6)")
    stamp(14)
    A(f"s_cmp_lg_u32 s{sSAFE}, 0")
    mfma(0,0,0); mfma(0,0,1)
    A("s_cbranch_scc1 L_LOOPS")
    def loop(tag, safe):
        LB(f"L_LOOP{tag}")
        for ph in range(2):
            ra, rb = ROWA[ph], ROWA[1-ph]
            o = 16*ph
            cblock(1)
            A(f"v_add_u32 v{rb}, v{DSC}, v{LP}")
            A("s_waitcnt vmcnt(4)")
            mfma(ph,1,0)
            A(f"ds_read_b128 {vr(Bv,4)}, v{rb}")
            A(f"ds_read_b128 {vr(Bv+4,4)}, v{rb} offset:128")
            exps(0,0,2)
            for q in range(4):
                A(f"ds_read_u16_d16_hi v{EA+q}, v{AE} offset:{LIST+o+16+4*q+2}")
            exps(0,2,4)
            A(f"ds_read_b32 v{DSC}, v{AE+1} offset:{QD+4*ph+8}")
            mfma(ph,1,1)
            exps(0,4,6)
            A("s_waitcnt lgkmcnt(7)")
            gathers(ph)
            exps(0,6,8)
            idx(o+48)
            exps(0,8,16)
            if ph == 1:
                A(f"v_lshl_add_u64 {vr(AI,2)}, {vr(AI,2)}, 0, {sr(sI0,2)}")
                A(f"v_lshl_add_u64 {vr(AE,2)}, {vr(AE,2)}, 0, {sr(sI1,2)}")
            chain(0, safe)
            A("s_waitcnt lgkmcnt(2)")
            cblock(0)
            A(f"v_cmp_ne_u32 vcc, v{ra}, v{rb}")
            A("s_waitcnt vmcnt(6)")
            mfma(1-ph,0,0)
            exps(1,0,4)
            mfma(1-ph,0,1)
            exps(1,4,16)
            A(f"s_sub_u32 s{sCNT}, s{sCNT}, 1")
            A(f"s_cmp_eq_u32 s{sCNT}, 0")
            chain(1, safe)
            A("s_mov_b64 exec, vcc")
            if "flushbr" in OPT: A(f"s_cbranch_execz L_E{tag}{ph}")
            A(f"ds_write_b128 v{ra}, {vr(Nn,4)} offset:256")
            A(f"ds_write_b128 v{ra}, {vr(Nn+4,4)} offset:384")
            A(f"ds_write_b128 v{ra}, {vr(Dd,4)} offset:512")
            A(f"ds_write_b128 v{ra}, {vr(Dd+4,4)} offset:640")
            A(f"ds_write_b32 v{ra}, v{SID} offset:768")
            LB(f"L_E{tag}{ph}")
            A("s_mov_b64 exec, -1")
            if ph == 0: A("s_cbranch_scc1 L_SEND")
            else: A(f"s_cbranch_scc0 L_LOOP{tag}")
    loop("F", False)
    LB("L_SEND")
    stamp(15)
    for q in range(8): A(f"v_rcp_f32 v{EX+q}, v{Dd+q}")
    A(f"v_mul_u32_u24 v172, {TP}, v{SID}")
    A(f"v_add_u32 v172, v172, v{LP}")
    A(f"v_add_u32 v172, {TOT}, v172")
    for q in range(0,8,2): A(f"v_pk_mul_f32 {vr(EX+q,2)}, {vr(Nn+q,2)}, {vr(EX+q,2)}")
    A(f"ds_write_b128 v172, {vr(EX,4)}")
    A(f"ds_write_b128 v172, {vr(EX+4,4)} offset:128")
    A(f"v_pk_add_f32 v[174:175], {vr(Dd,2)}, {vr(Dd+2,2)}")
    A(f"v_pk_add_f32 v[176:177], {vr(Dd+4,2)}, {vr(Dd+6,2)}")
    A(f"v_pk_add_f32 v[178:179], {vr(EX,2)}, {vr(EX+2,2)}")
    A(f"v_pk_add_f32 v[180:181], {vr(EX+4,2)}, {vr(EX+6,2)}")
    A("v_pk_add_f32 v[174:175], v[174:175], v[176:177]")
    A("v_pk_add_f32 v[178:179], v[178:179], v[180:181]")
    A("v_pk_fma_f32 v[174:175], v[178:179], 0, v[174:175] op_sel_hi:[1,0,1]")
    A("v_add_f32 v174, v174, v175")
    A(f"v_cmp_ngt_f32 vcc, {f2u(2.0**110):#x}, v174")
    A("s_cbranch_vccz L_WEND")
    A("v_mov_b32 v174, 0")
    A("v_mov_b32 v175, 1")
    A(f"ds_write_b32 v174, v175 offset:{FLAGS+4}")
    LB("L_WEND")
    A(f"v_mul_u32_u24 v172, {RP}, v{LANE}")
    A("s_lshl_b32 s46, s3, 5")
    A(f"v_add_u32 v173, s46, v172")
    A("v_mov_b32 v174, 0")
    A(f"s_add_u32 s46, s46, {TOT}")
    A(f"v_cmp_gt_u32 s[44:45], s6, v{LANE}")
    A("s_waitcnt lgkmcnt(0)")
    A("s_barrier")
    stamp(16)
    FN, FD, T0_, T1_ = 180, 188, 196, 204
    A(f"ds_read_b32 v175, v172 offset:{ROWS+768}")
    A(f"ds_read_b64 v[176:177], v174 offset:{FLAGS}")
    A(f"ds_read_b128 {vr(FD,4)}, v173 offset:{ROWS+512}")
    A(f"ds_read_b128 {vr(FD+4,4)}, v173 offset:{ROWS+528}")
    A(f"ds_read_b128 {vr(FN,4)}, v173 offset:{ROWS+256}")
    A(f"ds_read_b128 {vr(FN+4,4)}, v173 offset:{ROWS+272}")
    A("s_waitcnt lgkmcnt(5)")
    A("v_mov_b32_dpp v178, v175 wave_shr:1 row_mask:0xf bank_mask:0xf bound_ctrl:1")
    A("v_sub_u32 v175, v175, v178")
    A(f"v_mul_u32_u24 v178, {TP}, v178")
    A("v_cndmask_b32 v175, 0, v175, s[44:45]")
    A("v_min_i32 v175, 64, v175")
    A("v_add_u32 v178, s46, v178")
    A("s_waitcnt lgkmcnt(4)")
    A(f"v_readfirstlane_b32 s{sMORE}, v176")
    A("v_readfirstlane_b32 s47, v177")
    A(f"s_andn2_b32 s47, s47, s{sSAFE}")
    A("s_cbranch_scc1 L_RETRY")
    LB("L_TL")
    A("v_cmpx_lt_i32 s[44:45], 0, v175")
    A(f"ds_read_b128 {vr(T0_,4)}, v178")
    A(f"ds_read_b128 {vr(T0_+4,4)}, v178 offset:16")
    A("v_cmpx_lt_i32 vcc, 1, v175")
    A(f"ds_read_b128 {vr(T1_,4)}, v178 offset:{TP}")
    A(f"ds_read_b128 {vr(T1_+4,4)}, v178 offset:{TP+16}")
    A("v_cmp_lt_i32 vcc, 2, v175")
    A("s_waitcnt lgkmcnt(0)")
    for q in range(0,8,2): A(f"v_pk_add_f32 {vr(AGG+q,2)}, {vr(AGG+q,2)}, {vr(T1_+q,2)}")
    A("s_mov_b64 exec, s[44:45]")
    for q in range(0,8,2): A(f"v_pk_add_f32 {vr(AGG+q,2)}, {vr(AGG+q,2)}, {vr(T0_+q,2)}")
    A("s_mov_b64 exec, -1")
    A("s_cbranch_vccnz L_TLM")
    for q in range(8): A(f"v_rcp_f32 v{FD+q}, v{FD+q}")
    A(f"v_mul_u32_u24 v176, {XP}, v{LANE}")
    for q in range(0,8,2): A(f"v_pk_mul_f32 {vr(FN+q,2)}, {vr(FN+q,2)}, {vr(FD+q,2)}")
    for q in range(0,8,2): A(f"v_pk_add_f32 {vr(AGG+q,2)}, {vr(AGG+q,2)}, {vr(FN+q,2)}")
    A(f"s_cmp_lg_u32 s{sMORE}, 0")
    for q in range(8):
        A(f"v_subrev_f32_dpp v{AGG+q}, v{FN+q}, v{AGG+q} wave_shr:1 row_mask:0xf bank_mask:0xf bound_ctrl:1")
    A("s_cbranch_scc1 L_NEXT")
    A(f"s_mov_b32 s44, {NLN2:#x}")
    A("s_mov_b32 s45, s44")
    A("s_lshl_b32 s46, s3, 4")
    A(f"s_add_u32 s46, s46, {AGS}")
    for q in range(0,8,2): A(f"v_pk_mul_f32 {vr(FN+q,2)}, {vr(AGG+q,2)}, s[44:45]")
    A("v_add_u32 v176, s46, v176")
    for q in range(4): A(f"v_cvt_pk_bf16_f32 v{FD+q}, v{FN+2*q}, v{FN+2*q+1}")
    A(f"ds_write_b128 v176, {vr(FD,4)}")
    A("s_lshr_b32 s44, s3, 1")
    A("s_lshl_b32 s44, s44, 4")
    A("v_and_b32 v177, 15, v0")
    A("v_add_u32 v177, s44, v177")
    A("v_bfe_u32 v178, v0, 4, 2")
    A(f"v_mul_u32_u24 v179, {XP}, v177")
    A("v_lshl_add_u32 v179, v178, 4, v179")
    A(f"v_add_u32 v179, {AGS}, v179")
    A("v_and_b32 v196, 1, v178")
    A("v_lshrrev_b32 v197, 1, v178")
    A("v_lshl_add_u32 v196, v196, 1, v197")
    A("v_lshl_add_u32 v196, v177, 3, v196")
    A("v_lshlrev_b32 v196, 4, v196")
    A("s_and_b32 s45, s3, 1")
    A("s_lshl_b32 s45, s45, 6")
    A("s_lshl_b32 s46, s5, 7")
    A("s_add_u32 s45, s45, s46")
    A("v_cmp_gt_u32 s[46:47], s6, v177")
    A("s_waitcnt lgkmcnt(0)")
    A("s_barrier")
    stamp(17)
    A(f"ds_read_b128 {vr(XF,4)}, v179")
    A(f"ds_read_b128 {vr(XF+4,4)}, v179 offset:64")
    for ks in range(2):
        A(f"s_waitcnt lgkmcnt({1-ks})")
        for cb in range(2):
            A(f"v_mfma_f32_16x16x32_bf16 {vr(U+4*cb,4)}, {vr(WF2+8*cb+4*ks,4)}, {vr(XF+4*ks,4)}, {vr(U+4*cb,4)}")
    A("s_nop 6")
    for q in range(0,8,2): A(f"v_pk_mul_f32 {vr(FN+q,2)}, {vr(U+q,2)}, {sr(sNL,2)}")
    for q in range(8): A(f"v_exp_f32 v{FN+q}, v{FN+q}")
    for q in range(0,8,2): A(f"v_pk_add_f32 {vr(FN+q,2)}, {vr(FN+q,2)}, 1.0 op_sel_hi:[1,0]")
    for q in range(8): A(f"v_rcp_f32 v{FN+q}, v{FN+q}")
    for q in range(0,8,2): A(f"v_pk_mul_f32 {vr(FN+q,2)}, {vr(U+q,2)}, {vr(FN+q,2)}")
    for q in range(4): A(f"v_cvt_pk_bf16_f32 v{FD+q}, v{FN+2*q}, v{FN+2*q+1}")
    A("s_nop 1")
    A(f"v_permlane16_swap_b32 v{FD}, v{FD+2}")
    A(f"v_permlane16_swap_b32 v{FD+1}, v{FD+3}")
    A("s_mov_b64 exec, s[46:47]")
    A(f"buffer_store_dwordx4 {vr(FD,4)}, v196, {sr(sOUT,4)}, s45 offen")
    if DIAG:
        stamp(18)
        A("s_waitcnt vmcnt(0)")
        stamp(19)
        stamp(31, real=True)
        A("s_mov_b32 exec_lo, -1")
        A("s_mov_b32 exec_hi, 0")
        A("s_lshl_b32 s44, s2, 3")
        A("s_add_u32 s44, s44, s3")
        A("s_lshl_b32 s44, s44, 7")
        A(f"s_add_u32 s44, s44, {STAMP:#x}")
        A(f"v_lshlrev_b32 v254, 2, v{LANE}")
        A(f"buffer_store_dword v255, v254, {sr(sWS,4)}, s44 offen")
    LB("L_END")
    A("s_endpgm")
    LB("L_TLM")
    A("v_add_u32 v175, -2, v175")
    A(f"v_add_u32 v178, {2*TP}, v178")
    A("s_branch L_TL")
    LB("L_RETRY")
    A(f"s_mov_b32 s{sSAFE}, 1")
    A(f"s_mov_b32 s{sREDO}, 1")
    A("s_waitcnt vmcnt(0) lgkmcnt(0)")
    A("s_branch L_MAIN")
    LB("L_TOOBIG")
    A(f"s_mov_b32 s{sWID}, 64")
    A("s_branch L_AGAIN")
    LB("L_NEXT")
    A(f"s_mov_b32 s{sLO}, s{sHI}")
    LB("L_AGAIN")
    A("s_waitcnt vmcnt(0) lgkmcnt(0)")
    A("s_barrier")
    prefill()
    A("s_waitcnt lgkmcnt(0)")
    A("s_barrier")
    A("s_branch L_PASS")
    loop("S", True)
    A("s_branch L_SEND")

hdr = open("cdna_kernels/%s.s.ref" % NAME).read().split("; Override")[0]
out = hdr + f"; @launch grid=(256,1,1) block=(512,1,1) lds={LDSZ}\n"
out += '.amdgcn_target "amdgcn-amd-amdhsa--gfx950"\n.text\n'
kernel()
out += "\n".join(L) + "\n"
out += f""".section .rodata,"a"
.p2align 6
.amdhsa_kernel {KN}
  .amdhsa_next_free_vgpr 256
  .amdhsa_next_free_sgpr 102
  .amdhsa_accum_offset 256
  .amdhsa_group_segment_fixed_size 0
  .amdhsa_kernarg_size 72
  .amdhsa_user_sgpr_count 2
  .amdhsa_user_sgpr_kernarg_segment_ptr 1
  .amdhsa_system_sgpr_workgroup_id_x 1
.end_amdhsa_kernel
"""
dst = [a for a in sys.argv[1:] if not a.startswith("--")]
open(dst[0] if dst else f"cdna_kernels/{NAME}.s", "w").write(out)
```

```python
import sys, struct
NAME = "gather_scatter__mpnn_edge_mlp__graph"
KN = NAME + "_kernel"
N, E = 12500, 800000
CH, NPB = 3136, 49
ATAB, FL2, OFFS, REC = 0, 0x18C000, 0x190000, 0x210000
CHB = CH * 8
WS_END = REC + 256 * CHB
STAMP = 0x900000
LOG2E = 1.4426950408889634
def f2u(x): return struct.unpack("<I", struct.pack("<f", x))[0]
NLOG2E = f2u(-LOG2E); NLN2 = f2u(-0.6931471805599453)
DIAG = "--diag" in sys.argv
OPT = {a.split("=")[0][2:]: (a.split("=")[1] if "=" in a else "1") for a in sys.argv[1:] if a.startswith("--")}
WS_REC = (STAMP + 0x100000) if DIAG else WS_END
BIG = 0x40000000

L = []
def A(s): L.append("    " + s)
def LB(s): L.append(s + ":")
def C(s): L.append("    ; " + s)
def vr(b, n=1): return f"v{b}" if n == 1 else f"v[{b}:{b+n-1}]"
def sr(b, n=1): return f"s{b}" if n == 1 else f"s[{b}:{b+n-1}]"
SCANM = ["row_shr:1 row_mask:0xf bank_mask:0xf bound_ctrl:1", "row_shr:2 row_mask:0xf bank_mask:0xf bound_ctrl:1",
         "row_shr:4 row_mask:0xf bank_mask:0xf bound_ctrl:1", "row_shr:8 row_mask:0xf bank_mask:0xf bound_ctrl:1",
         "row_bcast:15 row_mask:0xa bank_mask:0xf", "row_bcast:31 row_mask:0xc bank_mask:0xf"]
def scan(v, fill=None):
    fill = list(fill or [])
    for m in SCANM:
        k = 0
        while k < 2 and fill:
            A(fill.pop(0)); k += 1
        if k < 2: A(f"s_nop {1-k}")
        A(f"v_add_u32_dpp v{v}, v{v}, v{v} {m}")
    for f in fill: A(f)
def stamp(k, real=False):
    if not DIAG: return
    A("s_memrealtime s[98:99]" if real else "s_memtime s[98:99]")
    A("s_waitcnt lgkmcnt(0)")
    A(f"v_writelane_b32 v255, s98, {k}")

LIST, QD = 0, 16384
HIST2 = QD + 8256; FLAGS = HIST2 + 256; BASE2 = FLAGS + 16; NONCE = BASE2 + 256; W3 = NONCE + 16
ROWS, RP = W3 + 128, 1168
NROW = 50; oSB, oN, oD, oS = 256, 512, 768, 1024
R2 = (ROWS + NROW*RP + 255) // 256 * 256
STG = R2; TOT = R2; TP = 272; AGS = TOT + 64*TP; XP = 144
H1 = R2 + 26624; BASE1 = H1 + 1024
XS = H1 + 2048
AST = XS + 8192
WM = AST + 8192
WU = WM + 16384
LDSZ = WU + 16384
assert ROWS % 16 == 0 and XS % 256 == 0 and LDSZ <= 163840, LDSZ

SID, AGG, LP = 1, 2, 10
RAp = 12; AI = 14; AE = 16; IP = [18, 20]; DSC = 22; NPAD = 24; LANE = 25
EA = [26, 30]; Bv = [34, 42]
S, W, Nn, Dd, U, WF2 = 50, 58, 66, 74, 82, 90
G = [106, 122]; T = [138, 154]; EX = 170
X0 = 186
XG, XA, WA, T16, ENA, ENB, RCA, RCB, PFA, L4, FLA = 238, 240, 242, 244, 245, 246, 247, 248, 249, 250, 251
HUGE = 0x10000000
DST, SRC, EE, BK, RK1, BSV = 106, 114, 122, 126, 138, 146
XF, WF = 186, 194
HH, BB = 210, 214
TM = 218
sWS, sA, sOUT = 8, 12, 16
pX, pE, pSRC, pDST, pWM, pWU, pOUT, pDBG = 20, 22, 24, 26, 28, 30, 32, 34
M0_, M1_, MA_ = 36, 38, 40
MK = 48
sLO, sWID, sHI, sSAFE, sT, sREDO, sSTART, sMORE, sCNT, sTAG = 80, 81, 82, 83, 84, 85, 86, 87, 88, 89
sNL = 90; sI0, sI1 = 92, 94; sT8 = 96; sRARE = 97

def prefill_small(z):
    A(f"ds_write_b32 v{L4}, v{z} offset:{HIST2}")
    A(f"ds_write_b32 v{L4}, v{z} offset:{HIST2+16}")
def prefill_big(t):
    A(f"v_mov_b32 v{t}, {N}")
    A(f"v_mov_b32 v{t+1}, {N}")
    A(f"v_mov_b64 {vr(t+2,2)}, {vr(t,2)}")
    A(f"ds_write_b128 v{T16}, {vr(t,4)} offset:{LIST}")
    A(f"ds_write_b128 v{T16}, {vr(t,4)} offset:{LIST+8192}")
    A(f"v_mov_b32 v{t+4}, {ROWS + 49*RP}")
    A(f"v_mov_b32 v{t+5}, {BIG:#x}")
    A(f"v_mov_b64 {vr(t+6,2)}, {vr(t+4,2)}")
    A(f"ds_write_b128 v{T16}, {vr(t+4,4)} offset:{QD}")
    A("s_mov_b64 exec, 15")
    A(f"ds_write_b128 v{IP[0]+1}, {vr(t+4,4)} offset:{QD+8192}")
    A("s_mov_b64 exec, -1")

def kernel():
    t = TM
    L.append(f".globl {KN}\n.p2align 8\n.type {KN},@function")
    LB(KN)
    A("s_cmp_ge_u32 s2, 256")
    A("s_cbranch_scc1 L_END")
    A("s_load_dwordx16 s[20:35], s[0:1], 0")
    A("s_load_dwordx2 s[8:9], s[0:1], 64")
    A("s_memrealtime s[46:47]")
    if DIAG:
        stamp(30, real=True); stamp(29)
    A(f"v_lshrrev_b32 v{t}, 6, v0")
    A(f"v_and_b32 v{LANE}, 63, v0")
    A(f"s_mul_i32 s42, s2, {CH}")
    A(f"v_readfirstlane_b32 s3, v{t}")
    A(f"v_mad_u32_u24 v{t+1}, v{t}, {NPB}, v{LANE}")
    A(f"v_lshl_add_u32 v{t+1}, v{t+1}, 2, s42")
    A(f"s_mov_b32 s43, {E}")
    A(f"s_mov_b32 s44, {E - CH//2}")
    A(f"v_cmp_gt_u32 vcc, {NPB}, v{LANE}")
    A(f"v_cmp_gt_u32 {sr(M0_,2)}, s43, v{t+1}")
    A(f"v_cmp_gt_u32 {sr(M1_,2)}, s44, v{t+1}")
    A(f"v_lshlrev_b32 v{t+2}, 1, v{t+1}")
    A(f"v_lshlrev_b32 v{t+1}, 2, v{t+1}")
    A(f"v_add_u32 v{t+1}, {CH}, v{t+1}")
    A(f"s_and_b64 {sr(M0_,2)}, {sr(M0_,2)}, vcc")
    A(f"s_and_b64 {sr(M1_,2)}, {sr(M1_,2)}, vcc")
    A(f"v_lshlrev_b32 v{t+3}, 2, v0")
    A(f"v_mov_b32 v{t+4}, 0")
    A(f"v_add_u32 v{t+3}, {H1}, v{t+3}")
    A(f"ds_write_b32 v{t+3}, v{t+4}")
    A(f"s_mov_b64 exec, {sr(M0_,2)}")
    A("s_waitcnt lgkmcnt(0)")
    stamp(0)
    A(f"global_load_dwordx4 {vr(DST,4)}, v{t+1}, {sr(pDST,2)} offset:{-CH}")
    A(f"s_mov_b64 exec, {sr(M1_,2)}")
    A(f"global_load_dwordx4 {vr(DST+4,4)}, v{t+1}, {sr(pDST,2)} offset:{CH}")
    A("s_lshl_b32 s42, s2, 3")
    A("s_or_b32 s42, s42, s3")
    A("s_cmp_eq_u32 s42, 7")
    A("s_cbranch_scc1 L_NONCE")
    LB("L_NONONCE")
    A("s_mov_b64 exec, -1")
    A("s_and_b32 s4, s2, 7")
    A("s_lshl_b32 s4, s4, 5")
    A("s_lshr_b32 s7, s2, 3")
    A("s_add_u32 s4, s4, s7")
    A(f"s_mul_i32 s5, s4, {NPB}")
    row, pos, wg_ = t+9, t+10, t+19
    A(f"v_lshrrev_b32 v{row}, 3, v0")
    A(f"v_xor_b32 v{t+7}, v{row}, v0")
    A(f"v_and_b32 v{t+7}, 7, v{t+7}")
    A(f"v_add_u32 v{t+8}, s5, v{row}")
    A(f"v_min_u32 v{t+8}, {N-1}, v{t+8}")
    A(f"v_lshlrev_b32 v{t+8}, 3, v{t+8}")
    A(f"v_add_lshl_u32 v{t+8}, v{t+8}, v{t+7}, 4")
    A("s_lshl_b32 s42, s3, 10")
    A(f"s_add_u32 m0, s42, {XS}")
    A(f"v_lshrrev_b32 v{t+7}, 1, v{row}")
    A(f"global_load_lds_dwordx4 v{t+8}, {sr(pX,2)}")
    A(f"v_and_b32 v{t+7}, 4, v{t+7}")
    A(f"v_and_or_b32 v{t+7}, v{row}, 2, v{t+7}")
    A(f"s_add_u32 m0, s42, {WM}")
    A(f"v_xor_b32 v{t+7}, v{t+7}, v0")
    A(f"v_lshlrev_b32 v{wg_}, 4, v{t+7}")
    A(f"global_load_lds_dwordx4 v{wg_}, {sr(pWM,2)}")
    A(f"s_mov_b64 exec, {sr(M1_,2)}")
    A("s_barrier")
    A(f"global_load_dwordx4 {vr(SRC+4,4)}, v{t+1}, {sr(pSRC,2)} offset:{CH}")
    A(f"global_load_dwordx2 {vr(EE+2,2)}, v{t+2}, {sr(pE,2)} offset:{CH}")
    A(f"s_mov_b64 exec, {sr(M0_,2)}")
    A(f"global_load_dwordx4 {vr(SRC,4)}, v{t+1}, {sr(pSRC,2)} offset:{-CH}")
    A(f"global_load_dwordx2 {vr(EE,2)}, v{t+2}, {sr(pE,2)}")
    A("s_mov_b64 exec, -1")
    C("---- setup in the shadow of the loads")
    A(f"s_sub_u32 s6, {N}, s5")
    A(f"s_min_u32 s6, s6, {NPB}")
    A(f"v_and_b32 v{pos}, 7, v0")
    A(f"v_lshlrev_b32 v{T16}, 4, v0")
    A(f"v_lshlrev_b32 v{L4}, 2, v{LANE}")
    prefill_small(t+4)
    A(f"s_mov_b32 s10, {WS_REC:#x}")
    A("s_mov_b32 s11, 0x20000")
    node, g = t+11, t+12
    A("s_lshr_b32 s44, s3, 1")
    A("s_lshl_b32 s44, s44, 4")
    A("s_and_b32 s45, s3, 1")
    A(f"v_and_b32 v{node}, 15, v0")
    A(f"v_add_u32 v{node}, s44, v{node}")
    A(f"v_bfe_u32 v{g}, v0, 4, 2")
    A(f"v_xor_b32 v{t+13}, v{g}, v{pos}")
    A(f"v_lshlrev_b32 v{t+13}, 4, v{t+13}")
    A(f"v_lshl_add_u32 v{t+13}, v{node}, 7, v{t+13}")
    A(f"v_add_u32 v{XA}, {XS}, v{t+13}")
    A(f"v_xor_b32 v{XA+1}, 64, v{XA}")
    r_, ch_, c8, g1 = t+13, t+14, t+15, t+16
    A(f"v_bfe_u32 v{r_}, v0, 2, 2")
    A(f"v_bfe_u32 v{ch_}, v0, 1, 1")
    A("s_lshl_b32 s46, s45, 2")
    A(f"v_or_b32 v{ch_}, s46, v{ch_}")
    A(f"v_and_b32 v{c8}, 1, v0")
    A(f"v_lshlrev_b32 v{c8}, 3, v{c8}")
    A(f"v_and_b32 v{g1}, 1, v{g}")
    A(f"v_lshlrev_b32 v{t+7}, 2, v{g1}")
    A(f"v_and_or_b32 v{t+7}, v{r_}, 2, v{t+7}")
    A(f"v_xor_b32 v{t+7}, v{t+7}, v{ch_}")
    A(f"v_lshl_add_u32 v{t+7}, v{t+7}, 4, v{c8}")
    A(f"v_lshl_add_u32 v{t+8}, v{g}, 3, v{r_}")
    A(f"v_lshl_add_u32 v{t+7}, v{t+8}, 7, v{t+7}")
    A(f"v_add_u32 v{WA}, {WM}, v{t+7}")
    A(f"v_xor_b32 v{WA+1}, 32, v{WA}")
    AW, AR, AG = 176, 177, 178
    A("s_lshl_b32 s46, s45, 6")
    A(f"v_xor_b32 v{AW}, s46, v{XA}")
    A(f"v_bfe_u32 v{t+2}, v0, 2, 4")
    A(f"v_add_u32 v{t+2}, s44, v{t+2}")
    A(f"v_and_b32 v{t+3}, 3, v0")
    A(f"v_lshlrev_b32 v{IP[0]+1}, 4, v{t+3}")
    A(f"v_or_b32 v{t+3}, s46, v{IP[0]+1}")
    A(f"v_lshl_add_u32 v{AG}, v{t+2}, 7, v{t+3}")
    A(f"v_lshlrev_b32 v{AR}, 4, v{t+2}")
    A(f"v_and_b32 v{AR}, 0x70, v{AR}")
    A(f"v_xor_b32 v{AR}, v{AR}, v{AG}")
    A(f"v_add_u32 v{AR}, {AST}, v{AR}")
    A(f"v_cmp_gt_u32 {sr(MA_,2)}, s6, v{t+2}")
    A(f"s_mov_b32 s46, {(2**32 + 48)//49}")
    A(f"s_mov_b32 s47, {H1}")
    A(f"v_mov_b32 v{t}, 8")
    A(f"v_lshl_add_u32 v{t+17}, v{LANE}, 4, s47")
    stamp(1)
    for h in range(2):
        A(f"s_mov_b64 exec, {sr(M0_+2*h,2)}")
        A(f"s_waitcnt vmcnt({7-h})")
        if h == 0: stamp(2)
        for i in range(4*h, 4*h+4): A(f"v_mul_hi_u32 v{BK+i}, v{DST+i}, s46")
        for i in range(4*h, 4*h+4):
            A(f"v_lshl_add_u32 v{BK+i}, v{BK+i}, 2, s47")
            A(f"ds_add_rtn_u32 v{RK1+i}, v{BK+i}, v{t}")
    A("s_mov_b64 exec, -1")
    A(f"s_mov_b32 s46, {49*H1}")
    A("s_movk_i32 s47, -49")
    for i in range(8): A(f"v_lshl_add_u32 v{DST+i}, v{DST+i}, 2, s46")
    A("s_waitcnt vmcnt(4) lgkmcnt(0)")
    A("s_barrier")
    stamp(3)
    def wfrags(dst, areg, off, tstep):
        return [f"ds_read_b64_tr_b16 {vr(dst+8*cb+4*ks+2*tt,2)}, v{areg+cb} offset:{off + 4096*ks + tstep*tt}"
                for cb in range(2) for ks in range(2) for tt in range(2)]
    def mm(dst, wf, c0="0"):
        o = []
        for ks in range(2):
            for cb in range(2):
                c = c0 if ks == 0 else vr(dst+4*cb,4)
                o.append(f"v_mfma_f32_16x16x32_bf16 {vr(dst+4*cb,4)}, {vr(wf+8*cb+4*ks,4)}, {vr(XF+4*ks,4)}, {c}")
        return o
    A(f"ds_read_b128 {vr(HH,4)}, v{t+17}")
    A(f"ds_read_b128 {vr(XF,4)}, v{XA}")
    A(f"ds_read_b128 {vr(XF+4,4)}, v{XA+1}")
    for x in wfrags(WF, WA, 0, 512): A(x)
    A(f"s_mov_b32 s{sNL}, {NLOG2E:#x}")
    A(f"s_mov_b32 s{sNL+1}, s{sNL}")
    A("s_waitcnt lgkmcnt(0)")
    for x in mm(154, WF): A(x)
    A(f"v_add3_u32 v{t+1}, v{HH}, v{HH+1}, v{HH+2}")
    A(f"v_add_u32 v{t+2}, v{t+1}, v{HH+3}")
    A(f"v_mov_b32 v{t+3}, v{t+2}")
    scan(t+3, [f"v_mad_i32_i24 v{DST+i}, v{BK+i}, s47, v{DST+i}" for i in range(4)] +
              [f"v_pk_mul_f32 {vr(154+q,2)}, {vr(154+q,2)}, {sr(sNL,2)}" for q in range(0, 8, 2)] +
              [f"v_cvt_pk_bf16_f32 v{162+q}, v{154+2*q}, v{155+2*q}" for q in range(4)])
    A(f"ds_write_b128 v{AW}, v[162:165] offset:{AST-XS}")
    A(f"ds_read_b128 v[166:169], v{AR}")
    A(f"v_sub_u32 v{BB}, v{t+3}, v{t+2}")
    A(f"v_add_u32 v{BB+1}, v{BB}, v{HH}")
    A(f"v_add_u32 v{BB+2}, v{BB+1}, v{HH+1}")
    A(f"v_add_u32 v{BB+3}, v{BB}, v{t+1}")
    A(f"ds_write_b128 v{t+17}, {vr(BB,4)} offset:1024")
    for i in range(4, 8): A(f"v_mad_i32_i24 v{DST+i}, v{BK+i}, s47, v{DST+i}")
    A("s_lshl_b32 s46, s5, 7")
    A(f"s_mov_b64 exec, {sr(MA_,2)}")
    A("s_waitcnt lgkmcnt(1)")
    A(f"buffer_store_dwordx4 v[166:169], v{AG}, {sr(sWS,4)}, s46 offen sc1")
    for h in range(2):
        A(f"s_mov_b64 exec, {sr(M0_+2*h,2)}")
        for i in range(4*h, 4*h+4): A(f"ds_read_b32 v{BSV+i}, v{BK+i} offset:1024")
    A("s_mov_b64 exec, -1")
    A(f"s_add_u32 s48, s{pWM}, 8192")
    A(f"s_addc_u32 s49, s{pWM+1}, 0")
    A(f"s_add_u32 m0, s42, {WM+8192}")
    A(f"s_add_u32 s50, s{pWU}, 8192")
    A(f"global_load_lds_dwordx4 v{wg_}, s[48:49]")
    A(f"s_addc_u32 s51, s{pWU+1}, 0")
    A(f"s_add_u32 m0, s42, {WU}")
    A(f"s_add_u32 s52, s{pWM}, 16384")
    A(f"global_load_lds_dwordx4 v{wg_}, {sr(pWU,2)}")
    A(f"s_addc_u32 s53, s{pWM+1}, 0")
    A(f"s_add_u32 m0, s42, {WU+8192}")
    A(f"s_mov_b32 s{sLO}, 0")
    A(f"global_load_lds_dwordx4 v{wg_}, s[50:51]")
    A(f"s_mov_b32 m0, {W3}")
    A("s_mov_b32 exec_hi, 0")
    A(f"global_load_lds_dword v{L4}, s[52:53]")
    A("s_mov_b64 exec, -1")
    A("s_cmp_eq_u32 s3, 0")
    A("s_cbranch_scc1 L_NONCEL")
    LB("L_NONCELD")
    stamp(4)
    A(f"v_add_u32 v{t+6}, {STG}, v{T16}")
    A("s_lshl_b32 s54, s3, 6")
    A(f"s_add_u32 s54, s54, {STG+24576}")
    A(f"v_lshl_add_u32 v{t+7}, v{LANE}, 4, s54")
    A(f"s_mul_i32 s43, s2, {CHB}")
    A(f"s_add_u32 s43, s43, {REC:#x}")
    A("s_add_u32 s55, s43, 8192")
    A("s_add_u32 s56, s43, 16384")
    A(f"s_sub_u32 s54, s43, {STG}")
    A(f"s_mov_b32 s{sCNT}, 0")
    A("s_mul_i32 s46, s7, 392")
    A(f"s_mul_i32 s47, s3, {NPB}")
    A("s_add_u32 s46, s46, s47")
    A(f"v_add_lshl_u32 v{PFA}, v{LANE}, s46, 7")
    A("s_mov_b32 s46, 0xffff0000")
    A(f"s_mov_b32 s47, {STG}")
    for i in range(8):
        if i % 4 == 0: A(f"s_waitcnt lgkmcnt({4-i})")
        A(f"v_add3_u32 v{BSV+i}, v{BSV+i}, v{RK1+i}, s47")
    stamp(24)
    for h in (1, 0):
        A(f"s_mov_b64 exec, {sr(M0_+2*h,2)}")
        A(f"s_waitcnt vmcnt({7 if h else 5})")
        for q in range(2*h, 2*h+2):
            A(f"v_lshl_or_b32 v{SRC+2*q}, v{EE+q}, 16, v{SRC+2*q}")
            A(f"ds_write2_b32 v{BSV+2*q}, v{SRC+2*q}, v{DST+2*q} offset0:0 offset1:1")
            A(f"v_and_or_b32 v{SRC+2*q+1}, v{EE+q}, s46, v{SRC+2*q+1}")
            A(f"ds_write2_b32 v{BSV+2*q+1}, v{SRC+2*q+1}, v{DST+2*q+1} offset0:0 offset1:1")
    A("s_mov_b64 exec, -1")
    A("s_cmp_eq_u32 s3, 0")
    A("s_waitcnt vmcnt(0)")
    A("s_cbranch_scc1 L_NONCEC")
    LB("L_NONCECD")
    A("s_waitcnt lgkmcnt(0)")
    A("s_barrier")
    A("s_cbranch_scc1 L_PUB")
    LB("L_PUBD")
    stamp(5)
    OF = 166
    def entry_loads():
        A(f"buffer_load_dwordx2 {vr(OF+8,2)}, v{ENB}, {sr(sWS,4)}, 0 offen sc1")
    A(f"ds_read_b32 v{t+5}, v{t+4} offset:{NONCE}")
    for r in range(3): A(f"ds_read_b128 {vr(106+4*r,4)}, v{t+6} offset:{8192*r}")
    A(f"ds_read_b128 v[118:121], v{t+7}")
    A("s_waitcnt lgkmcnt(4)")
    A(f"v_readfirstlane_b32 s{sTAG}, v{t+5}")
    A(f"v_lshlrev_b32 v{t+5}, 8, v{t+5}")
    for r in range(3):
        A(f"s_waitcnt lgkmcnt({3-r})")
        A(f"v_or_b32 v{107+4*r}, v{107+4*r}, v{t+5}")
        A(f"v_or_b32 v{109+4*r}, v{109+4*r}, v{t+5}")
        A(f"buffer_store_dwordx4 {vr(106+4*r,4)}, v{T16}, {sr(sWS,4)}, s{[43,55,56][r]} offen sc1")
    A("s_mov_b64 exec, 15")
    A("s_waitcnt lgkmcnt(0)")
    A(f"v_or_b32 v119, v119, v{t+5}")
    A(f"v_or_b32 v121, v121, v{t+5}")
    A(f"buffer_store_dwordx4 v[118:121], v{t+7}, {sr(sWS,4)}, s54 offen sc1")
    A("s_mov_b64 exec, -1")
    PF1 = int(OPT.get("pf1", 0))
    def pf(a, b):
        if a >= b: return
        m = ((1 << b) - 1) ^ ((1 << a) - 1)
        A(f"s_mov_b32 exec_lo, {m & 0xffffffff:#x}")
        A(f"s_mov_b32 exec_hi, {m >> 32:#x}")
        A(f"buffer_load_dword v253, v{PFA}, {sr(sWS,4)}, 0 offen sc1")
        A("s_mov_b64 exec, -1")
    pf(0, PF1)
    A(f"s_lshl_b32 s{sT8}, s{sTAG}, 8")
    stamp(6)
    C("---- B', S_B (while the stores drain)")
    for x in wfrags(WF, WA, 8192, 512): A(x)
    BWA, WA2, W3A = 162, 182, 164
    A(f"v_mul_u32_u24 v{BWA}, {RP}, v{node}")
    A(f"v_lshlrev_b32 v{t+8}, 2, v{g}")
    A("s_lshl_b32 s44, s45, 7")
    A(f"s_add_u32 s45, s44, {ROWS}")
    A(f"v_add3_u32 v{BWA}, v{BWA}, v{t+8}, s45")
    A(f"v_cmp_gt_u32 {sr(MA_,2)}, {NROW}, v{node}")
    A("s_lshr_b32 s47, s4, 2")
    A("s_lshl_b32 s47, s47, 1")
    A("s_and_b32 s44, s4, 1")
    A("s_add_u32 s47, s47, s44")
    A("s_and_b32 s44, s4, 2")
    A("s_lshl_b32 s44, s44, 6")
    A("s_add_u32 s47, s47, s44")
    A("s_lshl_b32 s47, s47, 3")
    A(f"s_add_u32 s47, s47, {OFFS:#x}")
    A("s_waitcnt lgkmcnt(0)")
    for x in mm(154, WF): A(x)
    A(f"v_lshrrev_b32 v{t+8}, 1, v0")
    A(f"v_lshl_add_u32 v{ENB}, v{t+8}, 11, s47")
    A(f"v_mul_u32_u24 v{RCB}, {CHB}, v{t+8}")
    A(f"v_lshlrev_b32 v{t+8}, 2, v{row}")
    A(f"v_and_b32 v{ENA}, 0xe0, v{L4}")
    A(f"v_mul_u32_u24 v{RCA}, {CHB}, v{t+8}")
    A(f"v_lshlrev_b32 v{LP}, 4, v{pos}")
    A(f"v_mov_b32 v{LP+1}, v{LP}")
    for q in range(0, 8, 2): A(f"v_pk_mul_f32 {vr(154+q,2)}, {vr(154+q,2)}, {sr(sNL,2)}")
    for q in range(8): A(f"v_exp_f32 v{210+q}, v{154+q}")
    for q in range(0, 8, 2): A(f"v_pk_add_f32 {vr(210+q,2)}, {vr(210+q,2)}, 1.0 op_sel_hi:[1,0]")
    for q in range(8): A(f"v_rcp_f32 v{210+q}, v{210+q}")
    A(f"s_mov_b64 exec, {sr(MA_,2)}")
    for q in range(4):
        A(f"ds_write2_b32 v{BWA}, v{154+2*q}, v{155+2*q} offset0:{8*q} offset1:{8*q+4}")
    for q in range(0, 8, 2): A(f"v_pk_mul_f32 {vr(210+q,2)}, {vr(154+q,2)}, {vr(210+q,2)}")
    for q in range(4):
        A(f"ds_write2_b32 v{BWA}, v{210+2*q}, v{211+2*q} offset0:{oSB//4+8*q} offset1:{oSB//4+8*q+4}")
    A("s_mov_b64 exec, -1")
    entry_loads()
    A(f"s_movk_i32 s{sWID}, 256")
    A(f"s_mov_b32 s{sSAFE}, 0")
    A("s_mov_b32 s0, 1")
    A(f"v_lshlrev_b32 v{t+8}, 1, v{g1}")
    A(f"v_and_b32 v{t+18}, 2, v{r_}")
    A(f"v_lshl_or_b32 v{t+18}, v{t+18}, 1, v{t+8}")
    A(f"v_xor_b32 v{t+18}, v{t+18}, v{ch_}")
    A(f"v_lshl_add_u32 v{t+18}, v{t+18}, 4, v{c8}")
    A(f"v_lshl_add_u32 v{t+8}, v{r_}, 2, v{t+8}")
    A(f"v_and_b32 v{t+17}, 2, v{g}")
    A(f"v_lshl_add_u32 v{t+8}, v{t+17}, 3, v{t+8}")
    A(f"v_lshl_add_u32 v{t+18}, v{t+8}, 7, v{t+18}")
    A(f"v_add_u32 v{WA2}, {WU+8192}, v{t+18}")
    A(f"v_xor_b32 v{WA2+1}, 32, v{WA2}")
    for x in wfrags(138, WA, WU-WM, 512): A(x)
    A(f"v_lshrrev_b32 v{t+8}, 2, v{pos}")
    A(f"v_and_b32 v{t+17}, 3, v{pos}")
    A(f"v_lshl_add_u32 v{t+8}, v{t+8}, 4, v{t+17}")
    A(f"v_lshlrev_b32 v{W3A}, 1, v{t+8}")
    for q in range(8): A(f"v_mov_b32 v{W+q}, 0")
    A("s_mov_b32 s12, s8")
    A(f"s_or_b32 s13, s9, {128 << 16:#x}")
    A(f"s_mov_b32 s14, {(N+1)*128}")
    A("s_mov_b32 s15, 0x20000")
    A(f"s_mov_b32 s16, s{pOUT}")
    A(f"s_mov_b32 s17, s{pOUT+1}")
    A(f"s_mov_b32 s18, {N*128}")
    A("s_mov_b32 s19, 0x20000")
    A("s_waitcnt lgkmcnt(0)")
    for x in mm(U, 138): A(x)
    prefill_big(122)
    stamp(7)
    A("s_waitcnt vmcnt(0)")
    def late_setup():
        C("---- remaining constants (in the shadow of the record loads)")
        for x in wfrags(WF2, WA2, 0, 128): A(x)
        for q in range(8): A(f"ds_read_u16_d16_hi v{W+q}, v{W3A} offset:{W3 + 64*(q>>2) + 8*(q&3)}")
        A(f"v_and_b32 v{t+7}, 1, v{pos}")
        A(f"v_lshlrev_b32 v{t+7}, 4, v{t+7}")
        A(f"v_mov_b32 v{t+8}, 0x3f80")
        A(f"v_lshlrev_b32 v{t+7}, v{t+7}, v{t+8}")
        A(f"v_bfe_u32 v{t+13}, v0, 3, 2")
        A(f"v_bfe_u32 v{t+11}, v0, 5, 1")
        A(f"v_sub_u32 v{t+8}, v{t+13}, v{t+11}")
        A(f"v_lshlrev_b32 v{t+8}, 1, v{t+8}")
        A(f"v_lshrrev_b32 v{t+9}, 1, v{pos}")
        A(f"v_add_u32 v{t+9}, v{t+8}, v{t+9}")
        A(f"v_and_b32 v{t+8}, 2, v{t+8}")
        A(f"v_lshl_add_u32 v{t+9}, v{t+8}, 5, v{t+9}")
        mk = lambda r: sr(20+2*r,2) if r < 6 else sr(36+2*(r-6),2)
        for r in range(8): A(f"v_cmp_eq_u32 {mk(r)}, {r}, v{t+9}")
        for r in range(8): A(f"v_cndmask_b32 v{S+r}, 0, v{t+7}, {mk(r)}")
        A(f"v_bfe_u32 v{t+12}, v0, 2, 1")
        A(f"v_lshl_add_u32 v{t+12}, v{t+11}, 1, v{t+12}")
        A(f"v_lshl_add_u32 v{t+14}, v{t+13}, 1, v{t+11}")
        A("s_lshl_b32 s44, s3, 3")
        A(f"v_add_u32 v{SID}, s44, v{t+14}")
        A(f"v_mul_u32_u24 v{t+6}, {RP}, v{LANE}")
        A(f"v_add_u32 v{t+6}, {ROWS}, v{t+6}")
        A(f"v_mov_b32 v{IP[1]+1}, v{IP[0]+1}")
        for q in range(0, 8, 2): A(f"v_mov_b64 {vr(EA[0]+q,2)}, 0")
        for q in range(0, 8, 2): A(f"v_mov_b64 {vr(AGG+q,2)}, 0")
        A(f"s_mov_b32 s{sI0}, 32")
        A(f"s_mov_b32 s{sI0+1}, 32")
        A(f"s_mov_b32 s{sI1}, 32")
        A(f"s_mov_b32 s{sI1+1}, 16")
        A("s_waitcnt lgkmcnt(0)")
        for q in range(0, 8, 2): A(f"v_pk_mul_f32 {vr(W+q,2)}, {vr(W+q,2)}, {sr(sNL,2)}")
    LB("L_ENT")
    RA, RK, BP = 176, 138, 154
    RW = G[0]
    KA, KB = t+1, t+2
    A("s_mov_b32 s46, 0x80078007")
    for i in range(4): A(f"ds_bpermute_b32 v{OF+2*i}, v{ENA}, v{OF+8} offset:{8*i}")
    A(f"v_xor_b32 v{OF+9}, s{sTAG}, v{OF+9}")
    A(f"v_and_or_b32 v{OF+9}, v{OF+8}, s46, v{OF+9}")
    A(f"v_cmp_ne_u32 vcc, 0, v{OF+9}")
    A(f"s_add_u32 s{sHI}, s{sLO}, s{sWID}")
    A("s_cbranch_vccnz L_ENTR")
    stamp(8)
    A(f"v_cmp_gt_u32 vcc, s{sWID}, v{LP}")
    A(f"v_add_u32 v{KA}, s{sLO}, v{LP}")
    A(f"v_mov_b32 v{t+3}, {HUGE:#x}")
    A(f"v_cndmask_b32 v{KA}, v{t+3}, v{KA}, vcc")
    A(f"s_add_u32 s46, s{sLO}, 128")
    A(f"s_cmpk_eq_u32 s{sWID}, 256")
    A(f"s_cselect_b32 s46, s46, {HUGE:#x}")
    A(f"v_and_b32 v{KB}, 16, v{LP}")
    A(f"v_add_u32 v{KB}, s46, v{KB}")
    A(f"v_add_u32 v{t+3}, v{KA}, v{RCA}")
    A("s_waitcnt lgkmcnt(0)")
    for i in range(4):
        lo = OF+2*i
        A(f"v_and_b32 v{lo+1}, 8, v{lo}")
        A(f"v_and_b32 v{RA+i}, 0xfff0, v{lo}")
        A(f"v_sub_u32 v{lo+1}, v{KA}, v{lo+1}")
        A(f"v_add_u32 v{RA+i}, v{RA+i}, v{t+3}")
        A(f"v_cmp_lt_u32_sdwa {sr(MK+4*i,2)}, v{lo+1}, v{lo} src0_sel:DWORD src1_sel:WORD_1")
        A(f"v_add_u32 v{lo+1}, 8, v{lo+1}")
        A(f"v_cmp_lt_u32_sdwa {sr(MK+4*i+2,2)}, v{lo+1}, v{lo} src0_sel:DWORD src1_sel:WORD_1")
    lo = OF+8
    A(f"v_and_b32 v{lo+1}, 8, v{lo}")
    A(f"v_and_b32 v{RA+4}, 0xfff0, v{lo}")
    A(f"v_add_u32_sdwa v{lo+1}, v{lo+1}, v{lo} dst_sel:DWORD dst_unused:UNUSED_PAD src0_sel:DWORD src1_sel:WORD_1")
    A(f"v_add3_u32 v{RA+4}, v{RA+4}, v{KB}, v{RCB}")
    A(f"v_cmp_lt_u32 s[56+24:56+25], s{sHI}, v{lo+1}".replace("[56+24:56+25]", "[100:101]"))
    A(f"v_sub_u32 v{lo+1}, v{lo+1}, v{KB}")
    A(f"v_add_u32 v{lo}, -64, v{lo+1}".replace("-64", "0xffffffc0"))
    for j in range(4):
        src = lo+1 if j < 2 else lo
        A(f"v_cmp_lt_i32 {sr(MK+16+4*j,2)}, {32*(j&1)}, v{src}")
        A(f"v_cmp_lt_i32 {sr(MK+16+4*j+2,2)}, {32*(j&1)+8}, v{src}")
    A(f"s_mov_b32 s46, {REC:#x}")
    A(f"s_mov_b32 s47, {REC+CHB:#x}")
    A(f"s_mov_b32 s43, {REC+2*CHB:#x}")
    A(f"s_mov_b32 s42, {REC+3*CHB:#x}")
    def rload(q):
        if q < 4:
            return [f"s_or_b64 exec, {sr(MK+4*q,2)}, {sr(MK+4*q+2,2)}",
                    f"buffer_load_dwordx4 {vr(RW+4*q,4)}, v{RA+q}, {sr(sWS,4)}, s{[46,47,43,42][q]} offen sc1"]
        return [f"s_mov_b64 exec, {sr(MK+4*q,2)}",
                f"buffer_load_dwordx4 {vr(RW+4*q,4)}, v{RA+4}, {sr(sWS,4)}, s46 offen offset:{32*(q-4)} sc1"]
    A(f"s_cmp_lg_u64 {sr(MK+24,2)}, 0")
    A(f"s_cselect_b32 s{sRARE}, 1, 0")
    if "b4" in OPT: A("s_barrier")
    stamp(9)
    for q in range(8):
        for x in rload(q): A(x)
    A("s_mov_b64 exec, -1")
    if DIAG: A(f"v_writelane_b32 v255, s{sCNT}, 20")
    A(f"s_mov_b32 s{sCNT}, 0")
    stamp(10)
    A("s_cmp_eq_u32 s0, 0")
    A("s_cbranch_scc1 L_HIST")
    A("s_mov_b32 s0, 0")
    late_setup()
    LB("L_HIST")
    A(f"v_mov_b32 v{t+4}, 0")
    A(f"v_mov_b32 v{t+5}, 4")
    A("s_mov_b64 exec, s[100:101]")
    A(f"ds_write_b32 v{t+4}, v{t+5} offset:{FLAGS}")
    A("s_movk_i32 s44, 255")
    stamp(11)
    def hist(q):
        A(f"s_waitcnt vmcnt({7-q})")
        LB(f"L_HC{q}")
        A(rload(q)[0])
        A(f"v_xor_b32 v{RW+4*q+1}, s{sT8}, v{RW+4*q+1}")
        A(f"v_xor_b32 v{RW+4*q+3}, s{sT8}, v{RW+4*q+3}")
        A(f"v_or_b32 v{t+3}, v{RW+4*q+1}, v{RW+4*q+3}")
        A(f"v_cmp_lt_u32 vcc, s44, v{t+3}")
        A(f"s_cbranch_vccnz L_HR{q}")
        if q < 4: A(f"s_mov_b64 exec, {sr(MK+4*q,2)}")
        A(f"ds_add_rtn_u32 v{RK+2*q}, v{RW+4*q+1}, v{t+5} offset:{HIST2}")
        A(f"s_mov_b64 exec, {sr(MK+4*q+2,2)}")
        A(f"ds_add_rtn_u32 v{RK+2*q+1}, v{RW+4*q+3}, v{t+5} offset:{HIST2}")
    for q in range(6): hist(q)
    A(f"s_cmp_lg_u32 s{sRARE}, 0")
    A("s_cbranch_scc1 L_RARE1")
    LB("L_RARE1D")
    A("s_mov_b64 exec, -1")
    if DIAG: A(f"v_writelane_b32 v255, s{sCNT}, 21")
    stamp(23)
    if DIAG: A(f"v_writelane_b32 v255, s{sCNT}, 22")
    if DIAG: A(f"v_writelane_b32 v255, s{sRARE}, 25")
    A(f"v_cmp_gt_u32 vcc, s6, v{LANE}")
    A("s_waitcnt lgkmcnt(0)")
    A("s_barrier")
    stamp(12)
    CNT, PB, INC, BS = t+7, t+8, t+9, t+10
    A(f"ds_read_b32 v{CNT}, v{L4} offset:{HIST2}")
    pf(PF1, int(OPT.get("pf2", 49)))
    A("s_lshl_b32 s46, s3, 4")
    A(f"s_cmp_lg_u32 s{sSAFE}, 0")
    A(f"s_cselect_b32 s45, 1.0, {f2u(2.0**-64):#x}")
    for q in range(8): A(f"v_mov_b32 v{Dd+q}, s45")
    A("s_waitcnt lgkmcnt(0)")
    A(f"v_add_u32 v{PB}, 12, v{CNT}")
    A(f"v_and_b32 v{PB}, -16, v{PB}")
    A(f"v_max_u32 v{PB}, 16, v{PB}")
    A(f"v_cndmask_b32 v{PB}, 0, v{PB}, vcc")
    A(f"v_mov_b32 v{INC}, v{PB}")
    scan(INC, [f"v_sub_u32 v{NPAD}, v{PB}, v{CNT}", f"s_mov_b32 s{sREDO}, 0"] + [f"v_mov_b32 v{Nn+q}, 0" for q in range(8)] +
              [f"v_cvt_f32_u32 v{NPAD}, v{NPAD}", f"v_mul_f32 v{NPAD}, {f2u(-0.25):#x}, v{NPAD}"])
    A(f"v_sub_u32 v{BS}, v{INC}, v{PB}")
    A(f"v_readlane_b32 s44, v{INC}, 63")
    A(f"ds_write_b32 v{L4}, v{BS} offset:{BASE2}")
    def baserd(k):
        A(f"s_mov_b64 exec, {sr(MK+2*k,2)}")
        A(f"ds_read_b32 v{BP+k}, v{RW+2*k+1} offset:{BASE2}")
    def scat(k):
        A(f"s_mov_b64 exec, {sr(MK+2*k,2)}")
        A(f"v_add_u32 v{BP+k}, v{BP+k}, v{RK+k}")
        A(f"ds_write_b32 v{BP+k}, v{RW+2*k} offset:{LIST}")
    for k in range(12): baserd(k)
    A("s_mov_b64 exec, vcc")
    A("s_cmpk_gt_u32 s44, 16384")
    A("s_cbranch_scc1 L_TOOBIG")
    A(f"v_lshrrev_b32 v{t+15}, 1, v{INC}")
    A(f"ds_write_b32 v{t+15}, v{t+6} offset:{QD-4}")
    A(f"v_add_u32 v{t+15}, s46, v{BS}")
    A(f"v_lshrrev_b32 v{t+15}, 1, v{t+15}")
    LB("L_QD")
    for q in range(3):
        A(f"v_cmpx_lt_u32 vcc, s46, v{PB}")
        A("s_add_u32 s46, s46, 128")
        A(f"ds_write_b32 v{t+15}, v{t+6} offset:{QD+64*q}")
    A(f"v_cmpx_lt_u32 vcc, s46, v{PB}")
    A(f"v_add_u32 v{t+15}, 192, v{t+15}")
    A("s_cbranch_execnz L_QD")
    A("s_waitcnt lgkmcnt(4)")
    for k in range(12): scat(k)
    A(f"s_cmp_lg_u32 s{sRARE}, 0")
    A("s_cbranch_scc1 L_RARE2")
    LB("L_RARE2D")
    A("s_mov_b64 exec, -1")
    A("s_add_u32 s44, s44, 127")
    A("s_lshr_b32 s44, s44, 7")
    A("s_lshr_b32 s45, s44, 3")
    A("s_and_b32 s44, s44, 7")
    A("s_mul_i32 s46, s45, s3")
    A("s_min_u32 s47, s44, s3")
    A(f"s_add_u32 s{sSTART}, s46, s47")
    A("s_cmp_lt_u32 s3, s44")
    A(f"s_addc_u32 s{sT}, s45, 0")
    LB("L_MAIN")
    A(f"s_lshl_b32 s44, s{sT}, 4")
    A(f"s_lshl_b32 s45, s{sSTART}, 7")
    A(f"v_lshl_add_u32 v{t+15}, v{t+13}, 2, s45")
    A(f"v_mad_u32_u24 v{AI}, v{t+12}, s44, v{t+15}")
    A("s_lshl_b32 s46, s44, 2")
    A(f"v_add_u32 v{AI+1}, s46, v{AI}")
    A(f"v_mul_u32_u24 v{AE}, s44, v{t+14}")
    A(f"v_add_u32 v{AE}, s45, v{AE}")
    A(f"v_lshrrev_b32 v{AE+1}, 1, v{AE}")
    A(f"v_add_u32 v{AE+1}, {QD}, v{AE+1}")
    A("s_waitcnt lgkmcnt(0)")
    A("s_barrier")
    A("s_setprio 2")
    stamp(13)
    def gathers(g_):
        return [f"buffer_load_dwordx4 {vr(G[g_]+8*u+4*s,4)}, {vr(IP[s],2)}, {sr(sA,4)}, 0 idxen offen offset:{64*u}" for u in range(2) for s in range(2)]
    def idx(o):
        return [f"ds_read_u16 v{IP[0]}, v{AI} offset:{LIST+o}", f"ds_read_u16 v{IP[1]}, v{AI+1} offset:{LIST+o}"]
    def eas(b, o):
        return [f"ds_read_u16_d16_hi v{EA[b]+q}, v{AE} offset:{LIST+o+4*q+2}" for q in range(4)]
    def bs(b, areg):
        return [f"ds_read_b128 {vr(Bv[b],4)}, v{areg}", f"ds_read_b128 {vr(Bv[b]+4,4)}, v{areg} offset:128"]
    for x in idx(0): A(x)
    A(f"ds_read_u16 v{t}, v{AI} offset:{LIST+16}")
    A(f"ds_read_u16 v{t+1}, v{AI+1} offset:{LIST+16}")
    A(f"ds_read2_b32 {vr(RAp,2)}, v{AE+1} offset0:0 offset1:2")
    A(f"ds_read2_b32 {vr(DSC,2)}, v{AE+1} offset0:4 offset1:1")
    for x in eas(0, 0): A(x)
    A("s_waitcnt lgkmcnt(8)")
    for x in gathers(0): A(x)
    A("s_waitcnt lgkmcnt(5)")
    A(f"v_mov_b32 v{IP[0]}, v{t}")
    A(f"v_mov_b32 v{IP[1]}, v{t+1}")
    A(f"v_lshl_add_u64 {vr(RAp,2)}, {vr(RAp,2)}, 0, {vr(LP,2)}")
    for x in gathers(1): A(x)
    for x in bs(0, RAp) + bs(1, RAp+1) + eas(1, 16) + idx(32): A(x)
    A(f"s_cmp_lg_u32 s{sREDO}, 0")
    A("s_cbranch_scc1 L_NOSH")
    A("s_lshl_b32 s46, s3, 5")
    A(f"v_add_u32 v{t+2}, s46, v{t+6}")
    A(f"ds_read_b128 v[154:157], v{t+2} offset:{oSB}")
    A(f"ds_read_b128 v[158:161], v{t+2} offset:{oSB+16}")
    A("s_waitcnt lgkmcnt(0)")
    for q in range(0,8,2): A(f"v_pk_fma_f32 {vr(AGG+q,2)}, {vr(154+q,2)}, {vr(NPAD,2)}, {vr(AGG+q,2)} op_sel_hi:[1,0,1]")
    LB("L_NOSH")
    A(f"s_cmp_eq_u32 s{sT}, 0")
    A("s_cbranch_scc1 L_WEND")
    A(f"s_sub_u32 s{sCNT}, s{sT}, 1")
    def cblock(u, b):
        for q in range(4):
            for p in range(2):
                e = vr(EA[b] + (q & 2), 2)
                sel = "op_sel:[1,0,0] op_sel_hi:[1,1,1]" if q & 1 else "op_sel_hi:[0,1,1]"
                A(f"v_pk_fma_f32 {vr(T[u]+4*q+2*p,2)}, {e}, {vr(W+4*u+2*p,2)}, {vr(Bv[b]+4*u+2*p,2)} {sel}")
    def mfma(g_, u, s):
        return f"v_mfma_f32_32x32x16_bf16 {vr(T[u],16)}, {vr(G[g_]+8*u+4*s,4)}, {vr(S+4*s,4)}, {vr(T[u],16)}"
    def esec(u, m0, m1, pre, post):
        pre, post = list(pre), list(post)
        for r in range(16):
            A(f"v_exp_f32 v{EX+r}, v{T[u]+r}")
            if r == 1: A(m0)
            elif r == 5: A(m1)
            elif r < 5:
                if pre: A(pre.pop(0))
            else:
                if pre: A(pre.pop(0))
                elif post: A(post.pop(0))
        assert not pre and not post
    def chain(u, safe):
        if safe:
            for r in range(0,16,2): A(f"v_pk_add_f32 {vr(EX+r,2)}, {vr(EX+r,2)}, 1.0 op_sel_hi:[1,0]")
            for r in range(16): A(f"v_rcp_f32 v{EX+r}, v{EX+r}")
            for q in range(4):
                for p in range(2):
                    n = vr(Nn+4*u+2*p,2)
                    A(f"v_pk_fma_f32 {n}, {vr(T[u]+4*q+2*p,2)}, {vr(EX+4*q+2*p,2)}, {n}")
            return
        for q in range(4):
            for p in range(2):
                n = vr(Nn+4*u+2*p,2); A(f"v_pk_fma_f32 {n}, {n}, {vr(EX+4*q+2*p,2)}, {n}")
            for p in range(2):
                n = vr(Nn+4*u+2*p,2); A(f"v_pk_fma_f32 {n}, {vr(T[u]+4*q+2*p,2)}, {vr(Dd+4*u+2*p,2)}, {n}")
            for p in range(2):
                d = vr(Dd+4*u+2*p,2); A(f"v_pk_fma_f32 {d}, {d}, {vr(EX+4*q+2*p,2)}, {d}")
    def flush(u):
        o = [f"ds_write_b128 v{RAp+1}, {vr(Nn+4*u,4)} offset:{oN+128*u}", f"ds_write_b128 v{RAp+1}, {vr(Dd+4*u,4)} offset:{oD+128*u}"]
        if "noflush" in OPT: o = []
        if u: o.append(f"ds_write_b32 v{RAp+1}, v{SID} offset:{oS}")
        return o
    A("s_waitcnt lgkmcnt(0)")
    cblock(0, 0)
    A("s_waitcnt vmcnt(4)")
    stamp(14)
    A(f"s_cmp_lg_u32 s{sSAFE}, 0")
    A(mfma(0,0,0)); A(mfma(0,0,1))
    A("s_setprio 0")
    A("s_nop 2")
    A("s_cbranch_scc1 L_LOOPS")
    PK = int(OPT.get("pk", 8))
    def loop(tag, safe):
        LB(f"L_LOOP{tag}")
        for ph in range(2):
            o = 16*ph
            cblock(1, ph)
            A("s_setprio 1")
            esec(0, mfma(ph,1,0), mfma(ph,1,1), [], [])
            chain(0, safe)
            A("s_waitcnt lgkmcnt(0)" if "novmwait" in OPT else "s_waitcnt vmcnt(0) lgkmcnt(0)")
            cblock(0, 1-ph)
            A(f"v_lshl_add_u64 {vr(RAp,2)}, {vr(DSC,2)}, 0, {vr(LP,2)}")
            esec(1, mfma(1-ph,0,0), mfma(1-ph,0,1), [], [])
            if ph == 1:
                A(f"v_lshl_add_u64 {vr(AI,2)}, {vr(AI,2)}, 0, {sr(sI0,2)}")
                A(f"v_lshl_add_u64 {vr(AE,2)}, {vr(AE,2)}, 0, {sr(sI1,2)}")
                o -= 32
            if "flushbr" in OPT: A(f"v_cmp_gt_u32 vcc, {BIG:#x}, v{RAp+1}")
            chain(1, safe)
            A("s_setprio 0")
            A(f"s_sub_u32 s{sCNT}, s{sCNT}, 1")
            A("s_cbranch_scc1 L_SEND")
            if "nogather" not in OPT:
                for x in gathers(ph): A(x)
            for x in bs(ph, RAp) + eas(ph, o+32) + idx(o+48): A(x)
            A(f"ds_read2_b32 {vr(DSC,2)}, v{AE+1} offset0:{o//8+6} offset1:{o//8+3}")
            if "flushbr" in OPT: A(f"s_cbranch_vccz " + (f"L_M{tag}" if ph == 0 else f"L_LOOP{tag}"))
            for x in flush(0) + flush(1): A(x)
            if ph == 1: A(f"s_branch L_LOOP{tag}")
            else: LB(f"L_M{tag}")
    loop("F", False)
    LB("L_SEND")
    stamp(15)
    for x in flush(0) + flush(1): A(x)
    for q in range(8): A(f"v_rcp_f32 v{EX+q}, v{Dd+q}")
    A(f"v_mul_u32_u24 v{t}, {TP}, v{SID}")
    A(f"v_add_u32 v{t}, v{t}, v{LP}")
    A(f"v_add_u32 v{t}, {TOT}, v{t}")
    for q in range(0,8,2): A(f"v_pk_mul_f32 {vr(EX+q,2)}, {vr(Nn+q,2)}, {vr(EX+q,2)}")
    A(f"ds_write_b128 v{t}, {vr(EX,4)}")
    A(f"ds_write_b128 v{t}, {vr(EX+4,4)} offset:128")
    A(f"v_pk_add_f32 v[186:187], {vr(Dd,2)}, {vr(Dd+2,2)}")
    A(f"v_pk_add_f32 v[188:189], {vr(Dd+4,2)}, {vr(Dd+6,2)}")
    A(f"v_pk_add_f32 v[190:191], {vr(EX,2)}, {vr(EX+2,2)}")
    A(f"v_pk_add_f32 v[192:193], {vr(EX+4,2)}, {vr(EX+6,2)}")
    A("v_pk_add_f32 v[186:187], v[186:187], v[188:189]")
    A("v_pk_add_f32 v[190:191], v[190:191], v[192:193]")
    A("v_pk_fma_f32 v[186:187], v[190:191], 0, v[186:187] op_sel_hi:[1,0,1]")
    A("v_add_f32 v186, v186, v187")
    A("v_mov_b32 v188, 0")
    A("v_mov_b32 v189, 1")
    A(f"v_cmpx_ngt_f32 vcc, {f2u(2.0**110):#x}, v186")
    A(f"ds_write_b32 v188, v189 offset:{FLAGS+4}")
    A("s_mov_b64 exec, -1")
    LB("L_WEND")
    A("s_lshl_b32 s46, s3, 5")
    A(f"v_add_u32 v{t+1}, s46, v{t+6}")
    A(f"v_mov_b32 v{t+2}, 0")
    A(f"s_add_u32 s46, s46, {TOT}")
    A(f"v_cmp_gt_u32 s[44:45], s6, v{LANE}")
    A("s_waitcnt lgkmcnt(0)")
    A("s_barrier")
    stamp(16)
    FN, FD, T0_, T1_ = 186, 194, 202, 210
    cn, ta = t+3, t+7
    A(f"ds_read_b32 v{cn}, v{t+6} offset:{oS}")
    A(f"ds_read_b64 {vr(t+4,2)}, v{t+2} offset:{FLAGS}")
    A(f"ds_read_b128 {vr(FD,4)}, v{t+1} offset:{oD}")
    A(f"ds_read_b128 {vr(FD+4,4)}, v{t+1} offset:{oD+16}")
    A(f"ds_read_b128 {vr(FN,4)}, v{t+1} offset:{oN}")
    A(f"ds_read_b128 {vr(FN+4,4)}, v{t+1} offset:{oN+16}")
    A("s_waitcnt lgkmcnt(5)")
    A(f"v_mov_b32_dpp v{ta}, v{cn} wave_shr:1 row_mask:0xf bank_mask:0xf bound_ctrl:1")
    A(f"v_sub_u32 v{cn}, v{cn}, v{ta}")
    A(f"v_mul_u32_u24 v{ta}, {TP}, v{ta}")
    A(f"v_cndmask_b32 v{cn}, 0, v{cn}, s[44:45]")
    A(f"v_min_i32 v{cn}, 64, v{cn}")
    A(f"v_add_u32 v{ta}, s46, v{ta}")
    A("s_waitcnt lgkmcnt(4)")
    A(f"v_readfirstlane_b32 s{sMORE}, v{t+4}")
    A(f"v_readfirstlane_b32 s47, v{t+5}")
    A(f"s_andn2_b32 s47, s47, s{sSAFE}")
    A("s_cbranch_scc1 L_RETRY")
    LB("L_TL")
    A(f"v_cmpx_lt_i32 s[44:45], 0, v{cn}")
    A(f"ds_read_b128 {vr(T0_,4)}, v{ta}")
    A(f"ds_read_b128 {vr(T0_+4,4)}, v{ta} offset:16")
    A(f"v_cmpx_lt_i32 vcc, 1, v{cn}")
    A(f"ds_read_b128 {vr(T1_,4)}, v{ta} offset:{TP}")
    A(f"ds_read_b128 {vr(T1_+4,4)}, v{ta} offset:{TP+16}")
    A(f"v_cmp_lt_i32 vcc, 2, v{cn}")
    A("s_waitcnt lgkmcnt(0)")
    for q in range(0,8,2): A(f"v_pk_add_f32 {vr(AGG+q,2)}, {vr(AGG+q,2)}, {vr(T1_+q,2)}")
    A("s_mov_b64 exec, s[44:45]")
    for q in range(0,8,2): A(f"v_pk_add_f32 {vr(AGG+q,2)}, {vr(AGG+q,2)}, {vr(T0_+q,2)}")
    A("s_mov_b64 exec, -1")
    A("s_cbranch_vccnz L_TLM")
    for q in range(8): A(f"v_rcp_f32 v{FD+q}, v{FD+q}")
    A(f"v_mul_u32_u24 v{t+4}, {XP}, v{LANE}")
    for q in range(0,8,2): A(f"v_pk_mul_f32 {vr(FN+q,2)}, {vr(FN+q,2)}, {vr(FD+q,2)}")
    for q in range(0,8,2): A(f"v_pk_add_f32 {vr(AGG+q,2)}, {vr(AGG+q,2)}, {vr(FN+q,2)}")
    A(f"s_cmp_lg_u32 s{sMORE}, 0")
    for q in range(8):
        A(f"v_subrev_f32_dpp v{AGG+q}, v{FN+q}, v{AGG+q} wave_shr:1 row_mask:0xf bank_mask:0xf bound_ctrl:1")
    A("s_cbranch_scc1 L_NEXT")
    A(f"s_mov_b32 s44, {NLN2:#x}")
    A("s_mov_b32 s45, s44")
    A("s_lshl_b32 s46, s3, 4")
    A(f"s_add_u32 s46, s46, {AGS}")
    for q in range(0,8,2): A(f"v_pk_mul_f32 {vr(FN+q,2)}, {vr(AGG+q,2)}, s[44:45]")
    A(f"v_add_u32 v{t+4}, s46, v{t+4}")
    for q in range(4): A(f"v_cvt_pk_bf16_f32 v{FD+q}, v{FN+2*q}, v{FN+2*q+1}")
    A(f"ds_write_b128 v{t+4}, {vr(FD,4)}")
    A("s_lshr_b32 s44, s3, 1")
    A("s_lshl_b32 s44, s44, 4")
    A(f"v_and_b32 v{t+8}, 15, v0")
    A(f"v_add_u32 v{t+8}, s44, v{t+8}")
    A(f"v_bfe_u32 v{t+9}, v0, 4, 2")
    A(f"v_mul_u32_u24 v{t+10}, {XP}, v{t+8}")
    A(f"v_lshl_add_u32 v{t+10}, v{t+9}, 4, v{t+10}")
    A(f"v_add_u32 v{t+10}, {AGS}, v{t+10}")
    A(f"v_and_b32 v{t+11}, 1, v{t+9}")
    A(f"v_lshrrev_b32 v{t+9}, 1, v{t+9}")
    A(f"v_lshl_add_u32 v{t+11}, v{t+11}, 1, v{t+9}")
    A(f"v_lshl_add_u32 v{t+11}, v{t+8}, 3, v{t+11}")
    A(f"v_lshlrev_b32 v{t+11}, 4, v{t+11}")
    A("s_and_b32 s45, s3, 1")
    A("s_lshl_b32 s45, s45, 6")
    A("s_lshl_b32 s46, s5, 7")
    A("s_add_u32 s45, s45, s46")
    A(f"v_cmp_gt_u32 s[46:47], s6, v{t+8}")
    A("s_waitcnt lgkmcnt(0)")
    A("s_barrier")
    stamp(17)
    A(f"ds_read_b128 {vr(T0_,4)}, v{t+10}")
    A(f"ds_read_b128 {vr(T0_+4,4)}, v{t+10} offset:64")
    for ks in range(2):
        A(f"s_waitcnt lgkmcnt({1-ks})")
        for cb in range(2):
            A(f"v_mfma_f32_16x16x32_bf16 {vr(U+4*cb,4)}, {vr(WF2+8*cb+4*ks,4)}, {vr(T0_+4*ks,4)}, {vr(U+4*cb,4)}")
    A("s_nop 6")
    for q in range(0,8,2): A(f"v_pk_mul_f32 {vr(FN+q,2)}, {vr(U+q,2)}, {sr(sNL,2)}")
    for q in range(8): A(f"v_exp_f32 v{FN+q}, v{FN+q}")
    for q in range(0,8,2): A(f"v_pk_add_f32 {vr(FN+q,2)}, {vr(FN+q,2)}, 1.0 op_sel_hi:[1,0]")
    for q in range(8): A(f"v_rcp_f32 v{FN+q}, v{FN+q}")
    for q in range(0,8,2): A(f"v_pk_mul_f32 {vr(FN+q,2)}, {vr(U+q,2)}, {vr(FN+q,2)}")
    for q in range(4): A(f"v_cvt_pk_bf16_f32 v{FD+q}, v{FN+2*q}, v{FN+2*q+1}")
    A("s_nop 1")
    A(f"v_permlane16_swap_b32 v{FD}, v{FD+2}")
    A(f"v_permlane16_swap_b32 v{FD+1}, v{FD+3}")
    A("s_mov_b64 exec, s[46:47]")
    A(f"buffer_store_dwordx4 {vr(FD,4)}, v{t+11}, {sr(sOUT,4)}, s45 offen")
    if DIAG:
        stamp(18)
        A("s_waitcnt vmcnt(0)")
        stamp(19)
        stamp(31, real=True)
        A("s_mov_b32 exec_lo, -1")
        A("s_mov_b32 exec_hi, 0")
        A("s_lshl_b32 s44, s2, 3")
        A("s_add_u32 s44, s44, s3")
        A("s_lshl_b32 s44, s44, 7")
        A(f"s_add_u32 s44, s44, {STAMP:#x}")
        A(f"buffer_store_dword v255, v{L4}, {sr(sWS,4)}, s44 offen")
    LB("L_END")
    A("s_endpgm")
    LB("L_NONCE")
    A("s_or_b32 s46, s46, 0x80000000")
    A("s_mov_b64 exec, 1")
    A(f"v_mov_b32 v{t+5}, s46")
    A(f"global_store_dword v{t+4}, v{t+5}, {sr(pDBG,2)} sc1")
    A("s_branch L_NONONCE")
    def bound():
        A(f"s_add_u32 s{sCNT}, s{sCNT}, 1")
        A(f"s_cmp_ge_u32 s{sCNT}, 0x8000")
        A("s_cbranch_scc1 L_END")
    LB("L_NONCEL")
    A(f"global_load_dword v171, v{t+4}, {sr(pDBG,2)} sc1")
    A("s_cmpk_lg_u32 s2, 255")
    A("s_cbranch_scc1 L_NONCELD")
    A("s_mov_b32 exec_hi, 0")
    A(f"s_mov_b32 s43, {N*128}")
    A(f"buffer_store_dword v{t+4}, v{L4}, {sr(sWS,4)}, s43 offen sc1")
    A("s_mov_b64 exec, -1")
    A("s_branch L_NONCELD")
    LB("L_NONCEW")
    A(f"global_load_dword v171, v{t+4}, {sr(pDBG,2)} sc1")
    bound()
    A("s_waitcnt vmcnt(0)")
    LB("L_NONCEC")
    A("v_cmp_eq_u32 vcc, 0, v171")
    A("s_cbranch_vccnz L_NONCEW")
    A(f"ds_write_b32 v{t+4}, v171 offset:{NONCE}")
    for i in range(4): A(f"v_lshl_or_b32 v{170+2*i}, v{HH+i}, 16, v{BB+i}")
    for i in range(1,4): A(f"v_mov_b32 v{171+2*i}, v171")
    A("s_lshl_b32 s57, s2, 11")
    A(f"s_add_u32 s57, s57, {OFFS:#x}")
    A("s_cmp_eq_u32 s3, 0")
    A("s_branch L_NONCECD")
    LB("L_PUB")
    A(f"buffer_store_dwordx4 v[170:173], v{T16}, {sr(sWS,4)}, s57 offen sc1")
    A(f"buffer_store_dwordx4 v[174:177], v{T16}, {sr(sWS,4)}, s57 offen offset:1024 sc1")
    A("s_branch L_PUBD")
    LB("L_PASS")
    A(f"s_mov_b32 s{sCNT}, 0")
    LB("L_ENTR")
    A("s_waitcnt lgkmcnt(0)")
    entry_loads()
    bound()
    A("s_waitcnt vmcnt(0)")
    A("s_branch L_ENT")
    for q in range(8):
        LB(f"L_HR{q}")
        A(rload(q)[1])
        bound()
        A("s_waitcnt vmcnt(0)")
        A(f"s_branch L_HC{q}")
    LB("L_RARE1")
    hist(6); hist(7)
    A("s_branch L_RARE1D")
    LB("L_RARE2")
    for k in range(12, 16): baserd(k)
    A("s_waitcnt lgkmcnt(0)")
    for k in range(12, 16): scat(k)
    A("s_branch L_RARE2D")
    LB("L_TLM")
    A(f"v_add_u32 v{cn}, -2, v{cn}")
    A(f"v_add_u32 v{ta}, {2*TP}, v{ta}")
    A("s_branch L_TL")
    LB("L_RETRY")
    A(f"s_mov_b32 s{sSAFE}, 1")
    A(f"s_mov_b32 s{sREDO}, 1")
    for q in range(8):
        A(f"v_mov_b32 v{Nn+q}, 0")
        A(f"v_mov_b32 v{Dd+q}, 1.0")
    A("s_waitcnt vmcnt(0) lgkmcnt(0)")
    A("s_branch L_MAIN")
    LB("L_TOOBIG")
    A("s_mov_b64 exec, -1")
    A(f"s_mov_b32 s{sWID}, 64")
    A("s_branch L_AGAIN")
    LB("L_NEXT")
    A(f"s_mov_b32 s{sLO}, s{sHI}")
    LB("L_AGAIN")
    A("s_waitcnt vmcnt(0) lgkmcnt(0)")
    A("s_barrier")
    A(f"v_mov_b32 v{t}, 0")
    prefill_small(t)
    prefill_big(122)
    A("s_waitcnt lgkmcnt(0)")
    A("s_barrier")
    A("s_branch L_PASS")
    loop("S", True)

hdr = open("cdna_kernels/%s.s.ref" % NAME).read().split("; Override")[0]
out = hdr + f"; @launch grid=(256,1,1) block=(512,1,1) lds={LDSZ}\n"
out += '.amdgcn_target "amdgcn-amd-amdhsa--gfx950"\n.text\n'
kernel()
out += "\n".join(L) + "\n"
out += f""".section .rodata,"a"
.p2align 6
.amdhsa_kernel {KN}
  .amdhsa_next_free_vgpr 256
  .amdhsa_next_free_sgpr 102
  .amdhsa_accum_offset 256
  .amdhsa_group_segment_fixed_size 0
  .amdhsa_kernarg_size 72
  .amdhsa_user_sgpr_count 2
  .amdhsa_user_sgpr_kernarg_segment_ptr 1
  .amdhsa_system_sgpr_workgroup_id_x 1
.end_amdhsa_kernel
"""
dst = [a for a in sys.argv[1:] if not a.startswith("--")]
open(dst[0] if dst else f"cdna_kernels/{NAME}.s", "w").write(out)
```

```python
import sys
KN="gather_scatter__mpnn_edge_mlp__graph_kernel"
STAMP=0x900000
def make(src, dst, mode, ia, ib, mult):
    s=open(src).read()
    i=s.index('; @launch grid'); i2=s.index('.amdgcn_target'); j=s.index('.section .rodata')
    line=s[i:i2].replace('@launch grid','@launch kernel='+KN+' grid')
    ld=""
    for k in range(4):
        ld+=f"    global_load_dword v{8+k}, v1, s[4:5] offset:{4*ia}\n    global_load_dword v{12+k}, v1, s[4:5] offset:{4*ib}\n    v_add_u32 v1, 0x10000, v1\n"
    if mode in('maxd','avgd'):
        red="".join(f"    v_sub_u32 v{12+k}, v{12+k}, v{8+k}\n    v_mov_b32 v{8+k}, 0\n" for k in range(4))
    else: red=""
    op = "add" if mode=='avgd' else "max"
    body=f""".globl probe_kernel
.p2align 8
.type probe_kernel,@function
probe_kernel:
    s_cmp_lg_u32 s2, 0
    s_cbranch_scc1 PR_END
    s_load_dwordx2 s[4:5], s[0:1], 64
    v_lshlrev_b32 v1, 10, v0
    v_add_u32 v1, {STAMP:#x}, v1
    s_waitcnt lgkmcnt(0)
{ld}    s_waitcnt vmcnt(0)
{red}    v_min_u32 v8, v8, v9
    v_min_u32 v10, v10, v11
    v_min_u32 v8, v8, v10
    v_{op}_u32 v12, v12, v13
    v_{op}_u32 v14, v14, v15
    v_{op}_u32 v12, v12, v14
    s_mov_b32 s10, -1
    s_mov_b32 s11, 0
    s_mov_b32 s6, 0
PR_R:
    s_nop 4
    v_readlane_b32 s7, v8, s6
    v_readlane_b32 s8, v12, s6
    s_min_u32 s10, s10, s7
    s_{op}_u32 s11, s11, s8
    s_add_u32 s6, s6, 1
    s_cmp_lt_u32 s6, 63
    s_cbranch_scc1 PR_R
    s_sub_u32 s10, s11, s10
    s_lshr_b32 s10, s10, {8 if mode=='avgd' else 0}
    s_min_u32 s10, s10, 60000
    s_mul_i32 s10, s10, {mult}
    s_memrealtime s[12:13]
    s_waitcnt lgkmcnt(0)
PR_L:
    s_memrealtime s[14:15]
    s_waitcnt lgkmcnt(0)
    s_sub_u32 s14, s14, s12
    s_cmp_lt_u32 s14, s10
    s_cbranch_scc1 PR_L
PR_END:
    s_endpgm
"""
    d=""".p2align 6
.amdhsa_kernel probe_kernel
  .amdhsa_next_free_vgpr 16
  .amdhsa_next_free_sgpr 24
  .amdhsa_accum_offset 16
  .amdhsa_group_segment_fixed_size 0
  .amdhsa_kernarg_size 72
  .amdhsa_user_sgpr_count 2
  .amdhsa_user_sgpr_kernarg_segment_ptr 1
  .amdhsa_system_sgpr_workgroup_id_x 1
.end_amdhsa_kernel
"""
    v=s[:i]+line+"; @launch kernel=probe_kernel grid=(1,1,1) block=(64,1,1) lds=0\n"+s[i2:j]+body+s[j:]+d
    open(dst,'w').write(v)
if __name__=="__main__":
    src=sys.argv[1]
    for n,spec in enumerate(sys.argv[2:]):
        mode,ia,ib,mult=spec.split(',')
        make(src,f'q{n}.s',mode,int(ia),int(ib),int(mult))
```

```python
import sys, struct
NAME = "gather_scatter__mpnn_edge_mlp__graph"
KN = NAME + "_kernel"
N, E = 12500, 800000
CH, NPB = 3136, 49
ATAB, FL2, OFFS, REC = 0, 0x18C000, 0x190000, 0x210000
CHB = CH * 8
WS_END = REC + 256 * CHB
STAMP = 0x900000
LOG2E = 1.4426950408889634
def f2u(x): return struct.unpack("<I", struct.pack("<f", x))[0]
NLOG2E = f2u(-LOG2E); NLN2 = f2u(-0.6931471805599453)
DIAG = "--diag" in sys.argv
OPT = {a.split("=")[0][2:]: (a.split("=")[1] if "=" in a else "1") for a in sys.argv[1:] if a.startswith("--")}
WS_REC = (STAMP + 0x100000) if DIAG else WS_END
BIG = 0x40000000

L = []
def A(s): L.append("    " + s)
def LB(s): L.append(s + ":")
def C(s): L.append("    ; " + s)
def vr(b, n=1): return f"v{b}" if n == 1 else f"v[{b}:{b+n-1}]"
def sr(b, n=1): return f"s{b}" if n == 1 else f"s[{b}:{b+n-1}]"
SCANM = ["row_shr:1 row_mask:0xf bank_mask:0xf bound_ctrl:1", "row_shr:2 row_mask:0xf bank_mask:0xf bound_ctrl:1",
         "row_shr:4 row_mask:0xf bank_mask:0xf bound_ctrl:1", "row_shr:8 row_mask:0xf bank_mask:0xf bound_ctrl:1",
         "row_bcast:15 row_mask:0xa bank_mask:0xf", "row_bcast:31 row_mask:0xc bank_mask:0xf"]
def scan(v, fill=None):
    fill = list(fill or [])
    for m in SCANM:
        k = 0
        while k < 2 and fill:
            A(fill.pop(0)); k += 1
        if k < 2: A(f"s_nop {1-k}")
        A(f"v_add_u32_dpp v{v}, v{v}, v{v} {m}")
    for f in fill: A(f)
def stamp(k, real=False):
    if not DIAG: return
    A("s_memrealtime s[98:99]" if real else "s_memtime s[98:99]")
    A("s_waitcnt lgkmcnt(0)")
    A(f"v_writelane_b32 v255, s98, {k}")

LIST, QD = 0, 16384
HIST2 = QD + 8256; FLAGS = HIST2 + 256; BASE2 = FLAGS + 16; NONCE = BASE2 + 256; W3 = NONCE + 16
ROWS, RP = W3 + 128, 1168
NROW = 50; oSB, oN, oD, oS = 256, 512, 768, 1024
R2 = (ROWS + NROW*RP + 255) // 256 * 256
STG = R2; TOT = R2; TP = 272; AGS = TOT + 64*TP; XP = 144
H1 = R2 + 26624; BASE1 = H1 + 1024
XS = H1 + 2048
AST = XS + 8192
WM = AST + 8192
WU = WM + 16384
LDSZ = WU + 16384
assert ROWS % 16 == 0 and XS % 256 == 0 and LDSZ <= 163840, LDSZ

SID, AGG, LP = 1, 2, 10
RAp = 12; AI = 14; AE = 16; IP = [18, 20]; DSC = 22; NPAD = 24; LANE = 25
EA = [26, 30]; Bv = [34, 42]
S, W, Nn, Dd, U, WF2 = 50, 58, 66, 74, 82, 90
G = [106, 122]; T = [138, 154]; EX = 170
X0 = 186
XG, XA, WA, T16, ENA, ENB, RCA, RCB, PFA, L4, FLA = 238, 240, 242, 244, 245, 246, 247, 248, 249, 250, 251
HUGE = 0x10000000
DST, SRC, EE, BK, RK1, BSV = 106, 114, 122, 126, 138, 146
XF, WF = 186, 194
HH, BB = 210, 214
TM = 218
sWS, sA, sOUT = 8, 12, 16
pX, pE, pSRC, pDST, pWM, pWU, pOUT, pDBG = 20, 22, 24, 26, 28, 30, 32, 34
M0_, M1_, MA_ = 36, 38, 40
MK = 48
sLO, sWID, sHI, sSAFE, sT, sREDO, sSTART, sMORE, sCNT, sTAG = 80, 81, 82, 83, 84, 85, 86, 87, 88, 89
sNL = 90; sI0, sI1 = 92, 94; sT8 = 96; sRARE = 97

def prefill_small(z):
    A(f"ds_write_b32 v{L4}, v{z} offset:{HIST2}")
    A(f"ds_write_b32 v{L4}, v{z} offset:{HIST2+16}")
def prefill_big(t):
    A(f"v_mov_b32 v{t}, {N}")
    A(f"v_mov_b32 v{t+1}, {N}")
    A(f"v_mov_b64 {vr(t+2,2)}, {vr(t,2)}")
    A(f"ds_write_b128 v{T16}, {vr(t,4)} offset:{LIST}")
    A(f"ds_write_b128 v{T16}, {vr(t,4)} offset:{LIST+8192}")
    A(f"v_mov_b32 v{t+4}, {ROWS + 49*RP}")
    A(f"v_mov_b32 v{t+5}, {BIG:#x}")
    A(f"v_mov_b64 {vr(t+6,2)}, {vr(t+4,2)}")
    A(f"ds_write_b128 v{T16}, {vr(t+4,4)} offset:{QD}")
    A("s_mov_b64 exec, 15")
    A(f"ds_write_b128 v{IP[0]+1}, {vr(t+4,4)} offset:{QD+8192}")
    A("s_mov_b64 exec, -1")

def kernel():
    t = TM
    L.append(f".globl {KN}\n.p2align 8\n.type {KN},@function")
    LB(KN)
    A("s_cmp_ge_u32 s2, 256")
    A("s_cbranch_scc1 L_END")
    A("s_load_dwordx16 s[20:35], s[0:1], 0")
    A("s_load_dwordx2 s[8:9], s[0:1], 64")
    A("s_memrealtime s[46:47]")
    if DIAG:
        stamp(30, real=True); stamp(29)
    A(f"v_lshrrev_b32 v{t}, 6, v0")
    A(f"v_and_b32 v{LANE}, 63, v0")
    A(f"s_mul_i32 s42, s2, {CH}")
    A(f"v_readfirstlane_b32 s3, v{t}")
    A(f"v_mad_u32_u24 v{t+1}, v{t}, {NPB}, v{LANE}")
    A(f"v_lshl_add_u32 v{t+1}, v{t+1}, 2, s42")
    A(f"s_mov_b32 s43, {E}")
    A(f"s_mov_b32 s44, {E - CH//2}")
    A(f"v_cmp_gt_u32 vcc, {NPB}, v{LANE}")
    A(f"v_cmp_gt_u32 {sr(M0_,2)}, s43, v{t+1}")
    A(f"v_cmp_gt_u32 {sr(M1_,2)}, s44, v{t+1}")
    A(f"v_lshlrev_b32 v{t+2}, 1, v{t+1}")
    A(f"v_lshlrev_b32 v{t+1}, 2, v{t+1}")
    A(f"v_add_u32 v{t+1}, {CH}, v{t+1}")
    A(f"s_and_b64 {sr(M0_,2)}, {sr(M0_,2)}, vcc")
    A(f"s_and_b64 {sr(M1_,2)}, {sr(M1_,2)}, vcc")
    A(f"v_lshlrev_b32 v{t+3}, 2, v0")
    A(f"v_mov_b32 v{t+4}, 0")
    A(f"v_add_u32 v{t+3}, {H1}, v{t+3}")
    A(f"ds_write_b32 v{t+3}, v{t+4}")
    A("s_waitcnt lgkmcnt(0)")
    if "wsoff" in OPT:
        A(f"s_add_u32 s8, s8, {int(OPT['wsoff'],16):#x}")
        A("s_addc_u32 s9, s9, 0")
    if "dummy" in OPT:
        base = int(OPT["dummy"], 16)
        A(f"s_mul_i32 s48, s2, {CHB}")
        A(f"s_add_u32 s48, s48, {base:#x}")
        A("s_add_u32 s48, s8, s48")
        A("s_addc_u32 s49, s9, 0")
        A("v_lshlrev_b32 v100, 4, v0")
        for r in range(3):
            A("global_store_dwordx4 v100, v[104:107], s[48:49] sc1")
            A("v_add_u32 v100, 8192, v100")
        A("s_waitcnt vmcnt(0)")
        stamp(28)
    if "own" in OPT:
        step = int(OPT["own"])
        A(f"s_mul_i32 s48, s2, {CHB}")
        A(f"s_add_u32 s48, s48, {REC:#x}")
        A("s_add_u32 s48, s8, s48")
        A("s_addc_u32 s49, s9, 0")
        A(f"v_mul_u32_u24 v100, {step}, v0")
        A(f"v_cmp_gt_u32 vcc, {CHB}, v100")
        A("s_mov_b64 exec, vcc")
        A(f"global_store_dword v100, v{t+4}, s[48:49] sc1")
        if "ownwait" in OPT:
            A("s_waitcnt vmcnt(0)")
            stamp(28)
    A(f"s_mov_b64 exec, {sr(M0_,2)}")
    stamp(0)
    A(f"global_load_dwordx4 {vr(DST,4)}, v{t+1}, {sr(pDST,2)} offset:{-CH}")
    A(f"s_mov_b64 exec, {sr(M1_,2)}")
    A(f"global_load_dwordx4 {vr(DST+4,4)}, v{t+1}, {sr(pDST,2)} offset:{CH}")
    A("s_lshl_b32 s42, s2, 3")
    A("s_or_b32 s42, s42, s3")
    A("s_cmp_eq_u32 s42, 7")
    A("s_cbranch_scc1 L_NONCE")
    LB("L_NONONCE")
    A("s_mov_b64 exec, -1")
    A("s_and_b32 s4, s2, 7")
    A("s_lshl_b32 s4, s4, 5")
    A("s_lshr_b32 s7, s2, 3")
    A("s_add_u32 s4, s4, s7")
    A(f"s_mul_i32 s5, s4, {NPB}")
    row, pos, wg_ = t+9, t+10, t+19
    A(f"v_lshrrev_b32 v{row}, 3, v0")
    A(f"v_xor_b32 v{t+7}, v{row}, v0")
    A(f"v_and_b32 v{t+7}, 7, v{t+7}")
    A(f"v_add_u32 v{t+8}, s5, v{row}")
    A(f"v_min_u32 v{t+8}, {N-1}, v{t+8}")
    A(f"v_lshlrev_b32 v{t+8}, 3, v{t+8}")
    A(f"v_add_lshl_u32 v{t+8}, v{t+8}, v{t+7}, 4")
    A("s_lshl_b32 s42, s3, 10")
    A(f"s_add_u32 m0, s42, {XS}")
    A(f"v_lshrrev_b32 v{t+7}, 1, v{row}")
    A(f"global_load_lds_dwordx4 v{t+8}, {sr(pX,2)}")
    A(f"v_and_b32 v{t+7}, 4, v{t+7}")
    A(f"v_and_or_b32 v{t+7}, v{row}, 2, v{t+7}")
    A(f"s_add_u32 m0, s42, {WM}")
    A(f"v_xor_b32 v{t+7}, v{t+7}, v0")
    A(f"v_lshlrev_b32 v{wg_}, 4, v{t+7}")
    A(f"global_load_lds_dwordx4 v{wg_}, {sr(pWM,2)}")
    A(f"s_mov_b64 exec, {sr(M1_,2)}")
    A("s_barrier")
    A(f"global_load_dwordx4 {vr(SRC+4,4)}, v{t+1}, {sr(pSRC,2)} offset:{CH}")
    A(f"global_load_dwordx2 {vr(EE+2,2)}, v{t+2}, {sr(pE,2)} offset:{CH}")
    A(f"s_mov_b64 exec, {sr(M0_,2)}")
    A(f"global_load_dwordx4 {vr(SRC,4)}, v{t+1}, {sr(pSRC,2)} offset:{-CH}")
    A(f"global_load_dwordx2 {vr(EE,2)}, v{t+2}, {sr(pE,2)}")
    A("s_mov_b64 exec, -1")
    C("---- setup in the shadow of the loads")
    A(f"s_sub_u32 s6, {N}, s5")
    A(f"s_min_u32 s6, s6, {NPB}")
    A(f"v_and_b32 v{pos}, 7, v0")
    A(f"v_lshlrev_b32 v{T16}, 4, v0")
    A(f"v_lshlrev_b32 v{L4}, 2, v{LANE}")
    prefill_small(t+4)
    A(f"s_mov_b32 s10, {WS_REC:#x}")
    A("s_mov_b32 s11, 0x20000")
    node, g = t+11, t+12
    A("s_lshr_b32 s44, s3, 1")
    A("s_lshl_b32 s44, s44, 4")
    A("s_and_b32 s45, s3, 1")
    A(f"v_and_b32 v{node}, 15, v0")
    A(f"v_add_u32 v{node}, s44, v{node}")
    A(f"v_bfe_u32 v{g}, v0, 4, 2")
    A(f"v_xor_b32 v{t+13}, v{g}, v{pos}")
    A(f"v_lshlrev_b32 v{t+13}, 4, v{t+13}")
    A(f"v_lshl_add_u32 v{t+13}, v{node}, 7, v{t+13}")
    A(f"v_add_u32 v{XA}, {XS}, v{t+13}")
    A(f"v_xor_b32 v{XA+1}, 64, v{XA}")
    r_, ch_, c8, g1 = t+13, t+14, t+15, t+16
    A(f"v_bfe_u32 v{r_}, v0, 2, 2")
    A(f"v_bfe_u32 v{ch_}, v0, 1, 1")
    A("s_lshl_b32 s46, s45, 2")
    A(f"v_or_b32 v{ch_}, s46, v{ch_}")
    A(f"v_and_b32 v{c8}, 1, v0")
    A(f"v_lshlrev_b32 v{c8}, 3, v{c8}")
    A(f"v_and_b32 v{g1}, 1, v{g}")
    A(f"v_lshlrev_b32 v{t+7}, 2, v{g1}")
    A(f"v_and_or_b32 v{t+7}, v{r_}, 2, v{t+7}")
    A(f"v_xor_b32 v{t+7}, v{t+7}, v{ch_}")
    A(f"v_lshl_add_u32 v{t+7}, v{t+7}, 4, v{c8}")
    A(f"v_lshl_add_u32 v{t+8}, v{g}, 3, v{r_}")
    A(f"v_lshl_add_u32 v{t+7}, v{t+8}, 7, v{t+7}")
    A(f"v_add_u32 v{WA}, {WM}, v{t+7}")
    A(f"v_xor_b32 v{WA+1}, 32, v{WA}")
    AW, AR, AG = 176, 177, 178
    A("s_lshl_b32 s46, s45, 6")
    A(f"v_xor_b32 v{AW}, s46, v{XA}")
    A(f"v_bfe_u32 v{t+2}, v0, 2, 4")
    A(f"v_add_u32 v{t+2}, s44, v{t+2}")
    A(f"v_and_b32 v{t+3}, 3, v0")
    A(f"v_lshlrev_b32 v{IP[0]+1}, 4, v{t+3}")
    A(f"v_or_b32 v{t+3}, s46, v{IP[0]+1}")
    A(f"v_lshl_add_u32 v{AG}, v{t+2}, 7, v{t+3}")
    A(f"v_lshlrev_b32 v{AR}, 4, v{t+2}")
    A(f"v_and_b32 v{AR}, 0x70, v{AR}")
    A(f"v_xor_b32 v{AR}, v{AR}, v{AG}")
    A(f"v_add_u32 v{AR}, {AST}, v{AR}")
    A(f"v_cmp_gt_u32 {sr(MA_,2)}, s6, v{t+2}")
    A(f"s_mov_b32 s46, {(2**32 + 48)//49}")
    A(f"s_mov_b32 s47, {H1}")
    A(f"v_mov_b32 v{t}, 8")
    A(f"v_lshl_add_u32 v{t+17}, v{LANE}, 4, s47")
    stamp(1)
    for h in range(2):
        A(f"s_mov_b64 exec, {sr(M0_+2*h,2)}")
        A(f"s_waitcnt vmcnt({7-h})")
        if h == 0: stamp(2)
        for i in range(4*h, 4*h+4): A(f"v_mul_hi_u32 v{BK+i}, v{DST+i}, s46")
        for i in range(4*h, 4*h+4):
            A(f"v_lshl_add_u32 v{BK+i}, v{BK+i}, 2, s47")
            A(f"ds_add_rtn_u32 v{RK1+i}, v{BK+i}, v{t}")
    A("s_mov_b64 exec, -1")
    A(f"s_mov_b32 s46, {49*H1}")
    A("s_movk_i32 s47, -49")
    for i in range(8): A(f"v_lshl_add_u32 v{DST+i}, v{DST+i}, 2, s46")
    A("s_waitcnt vmcnt(4) lgkmcnt(0)")
    A("s_barrier")
    stamp(3)
    def wfrags(dst, areg, off, tstep):
        return [f"ds_read_b64_tr_b16 {vr(dst+8*cb+4*ks+2*tt,2)}, v{areg+cb} offset:{off + 4096*ks + tstep*tt}"
                for cb in range(2) for ks in range(2) for tt in range(2)]
    def mm(dst, wf, c0="0"):
        o = []
        for ks in range(2):
            for cb in range(2):
                c = c0 if ks == 0 else vr(dst+4*cb,4)
                o.append(f"v_mfma_f32_16x16x32_bf16 {vr(dst+4*cb,4)}, {vr(wf+8*cb+4*ks,4)}, {vr(XF+4*ks,4)}, {c}")
        return o
    A(f"ds_read_b128 {vr(HH,4)}, v{t+17}")
    A(f"ds_read_b128 {vr(XF,4)}, v{XA}")
    A(f"ds_read_b128 {vr(XF+4,4)}, v{XA+1}")
    for x in wfrags(WF, WA, 0, 512): A(x)
    A(f"s_mov_b32 s{sNL}, {NLOG2E:#x}")
    A(f"s_mov_b32 s{sNL+1}, s{sNL}")
    A("s_waitcnt lgkmcnt(0)")
    for x in mm(154, WF): A(x)
    A(f"v_add3_u32 v{t+1}, v{HH}, v{HH+1}, v{HH+2}")
    A(f"v_add_u32 v{t+2}, v{t+1}, v{HH+3}")
    A(f"v_mov_b32 v{t+3}, v{t+2}")
    scan(t+3, [f"v_mad_i32_i24 v{DST+i}, v{BK+i}, s47, v{DST+i}" for i in range(4)] +
              [f"v_pk_mul_f32 {vr(154+q,2)}, {vr(154+q,2)}, {sr(sNL,2)}" for q in range(0, 8, 2)] +
              [f"v_cvt_pk_bf16_f32 v{162+q}, v{154+2*q}, v{155+2*q}" for q in range(4)])
    A(f"ds_write_b128 v{AW}, v[162:165] offset:{AST-XS}")
    A(f"ds_read_b128 v[166:169], v{AR}")
    A(f"v_sub_u32 v{BB}, v{t+3}, v{t+2}")
    A(f"v_add_u32 v{BB+1}, v{BB}, v{HH}")
    A(f"v_add_u32 v{BB+2}, v{BB+1}, v{HH+1}")
    A(f"v_add_u32 v{BB+3}, v{BB}, v{t+1}")
    A(f"ds_write_b128 v{t+17}, {vr(BB,4)} offset:1024")
    for i in range(4, 8): A(f"v_mad_i32_i24 v{DST+i}, v{BK+i}, s47, v{DST+i}")
    A("s_lshl_b32 s46, s5, 7")
    A(f"s_mov_b64 exec, {sr(MA_,2)}")
    A("s_waitcnt lgkmcnt(1)")
    A(f"buffer_store_dwordx4 v[166:169], v{AG}, {sr(sWS,4)}, s46 offen sc1")
    for h in range(2):
        A(f"s_mov_b64 exec, {sr(M0_+2*h,2)}")
        for i in range(4*h, 4*h+4): A(f"ds_read_b32 v{BSV+i}, v{BK+i} offset:1024")
    A("s_mov_b64 exec, -1")
    A(f"s_add_u32 s48, s{pWM}, 8192")
    A(f"s_addc_u32 s49, s{pWM+1}, 0")
    A(f"s_add_u32 m0, s42, {WM+8192}")
    A(f"s_add_u32 s50, s{pWU}, 8192")
    A(f"global_load_lds_dwordx4 v{wg_}, s[48:49]")
    A(f"s_addc_u32 s51, s{pWU+1}, 0")
    A(f"s_add_u32 m0, s42, {WU}")
    A(f"s_add_u32 s52, s{pWM}, 16384")
    A(f"global_load_lds_dwordx4 v{wg_}, {sr(pWU,2)}")
    A(f"s_addc_u32 s53, s{pWM+1}, 0")
    A(f"s_add_u32 m0, s42, {WU+8192}")
    A(f"s_mov_b32 s{sLO}, 0")
    A(f"global_load_lds_dwordx4 v{wg_}, s[50:51]")
    A(f"s_mov_b32 m0, {W3}")
    A("s_mov_b32 exec_hi, 0")
    A(f"global_load_lds_dword v{L4}, s[52:53]")
    A("s_mov_b64 exec, -1")
    A("s_cmp_eq_u32 s3, 0")
    A("s_cbranch_scc1 L_NONCEL")
    LB("L_NONCELD")
    stamp(4)
    A(f"v_add_u32 v{t+6}, {STG}, v{T16}")
    A("s_lshl_b32 s54, s3, 6")
    A(f"s_add_u32 s54, s54, {STG+24576}")
    A(f"v_lshl_add_u32 v{t+7}, v{LANE}, 4, s54")
    A(f"s_mul_i32 s43, s2, {CHB}")
    A(f"s_add_u32 s43, s43, {REC:#x}")
    A("s_add_u32 s55, s43, 8192")
    A("s_add_u32 s56, s43, 16384")
    A(f"s_sub_u32 s54, s43, {STG}")
    A(f"s_mov_b32 s{sCNT}, 0")
    A("s_mul_i32 s46, s7, 392")
    A(f"s_mul_i32 s47, s3, {NPB}")
    A("s_add_u32 s46, s46, s47")
    A(f"v_add_lshl_u32 v{PFA}, v{LANE}, s46, 7")
    A("s_mov_b32 s46, 0xffff0000")
    A(f"s_mov_b32 s47, {STG}")
    for i in range(8):
        if i % 4 == 0: A(f"s_waitcnt lgkmcnt({4-i})")
        A(f"v_add3_u32 v{BSV+i}, v{BSV+i}, v{RK1+i}, s47")
    stamp(24)
    for h in (1, 0):
        A(f"s_mov_b64 exec, {sr(M0_+2*h,2)}")
        A(f"s_waitcnt vmcnt({7 if h else 5})")
        for q in range(2*h, 2*h+2):
            A(f"v_lshl_or_b32 v{SRC+2*q}, v{EE+q}, 16, v{SRC+2*q}")
            A(f"ds_write2_b32 v{BSV+2*q}, v{SRC+2*q}, v{DST+2*q} offset0:0 offset1:1")
            A(f"v_and_or_b32 v{SRC+2*q+1}, v{EE+q}, s46, v{SRC+2*q+1}")
            A(f"ds_write2_b32 v{BSV+2*q+1}, v{SRC+2*q+1}, v{DST+2*q+1} offset0:0 offset1:1")
    A("s_mov_b64 exec, -1")
    A("s_cmp_eq_u32 s3, 0")
    A("s_waitcnt vmcnt(0)")
    A("s_cbranch_scc1 L_NONCEC")
    LB("L_NONCECD")
    A("s_waitcnt lgkmcnt(0)")
    A("s_barrier")
    A("s_cbranch_scc1 L_PUB")
    LB("L_PUBD")
    stamp(5)
    OF = 166
    def entry_loads():
        A(f"buffer_load_dwordx2 {vr(OF+8,2)}, v{ENB}, {sr(sWS,4)}, 0 offen sc1")
    A(f"ds_read_b32 v{t+5}, v{t+4} offset:{NONCE}")
    for r in range(3): A(f"ds_read_b128 {vr(106+4*r,4)}, v{t+6} offset:{8192*r}")
    A(f"ds_read_b128 v[118:121], v{t+7}")
    A("s_waitcnt lgkmcnt(4)")
    A(f"v_readfirstlane_b32 s{sTAG}, v{t+5}")
    A(f"v_lshlrev_b32 v{t+5}, 8, v{t+5}")
    for r in range(3):
        A(f"s_waitcnt lgkmcnt({3-r})")
        A(f"v_or_b32 v{107+4*r}, v{107+4*r}, v{t+5}")
        A(f"v_or_b32 v{109+4*r}, v{109+4*r}, v{t+5}")
        A(f"buffer_store_dwordx4 {vr(106+4*r,4)}, v{T16}, {sr(sWS,4)}, s{[43,55,56][r]} offen sc1")
    A("s_mov_b64 exec, 15")
    A("s_waitcnt lgkmcnt(0)")
    A(f"v_or_b32 v119, v119, v{t+5}")
    A(f"v_or_b32 v121, v121, v{t+5}")
    A(f"buffer_store_dwordx4 v[118:121], v{t+7}, {sr(sWS,4)}, s54 offen sc1")
    A("s_mov_b64 exec, -1")
    PF1 = int(OPT.get("pf1", 0))
    def pf(a, b):
        if a >= b: return
        m = ((1 << b) - 1) ^ ((1 << a) - 1)
        A(f"s_mov_b32 exec_lo, {m & 0xffffffff:#x}")
        A(f"s_mov_b32 exec_hi, {m >> 32:#x}")
        A(f"buffer_load_dword v253, v{PFA}, {sr(sWS,4)}, 0 offen sc1")
        A("s_mov_b64 exec, -1")
    pf(0, PF1)
    A(f"s_lshl_b32 s{sT8}, s{sTAG}, 8")
    stamp(6)
    C("---- B', S_B (while the stores drain)")
    for x in wfrags(WF, WA, 8192, 512): A(x)
    BWA, WA2, W3A = 162, 182, 164
    A(f"v_mul_u32_u24 v{BWA}, {RP}, v{node}")
    A(f"v_lshlrev_b32 v{t+8}, 2, v{g}")
    A("s_lshl_b32 s44, s45, 7")
    A(f"s_add_u32 s45, s44, {ROWS}")
    A(f"v_add3_u32 v{BWA}, v{BWA}, v{t+8}, s45")
    A(f"v_cmp_gt_u32 {sr(MA_,2)}, {NROW}, v{node}")
    A("s_lshr_b32 s47, s4, 2")
    A("s_lshl_b32 s47, s47, 1")
    A("s_and_b32 s44, s4, 1")
    A("s_add_u32 s47, s47, s44")
    A("s_and_b32 s44, s4, 2")
    A("s_lshl_b32 s44, s44, 6")
    A("s_add_u32 s47, s47, s44")
    A("s_lshl_b32 s47, s47, 3")
    A(f"s_add_u32 s47, s47, {OFFS:#x}")
    A("s_waitcnt lgkmcnt(0)")
    for x in mm(154, WF): A(x)
    A(f"v_lshrrev_b32 v{t+8}, 1, v0")
    A(f"v_lshl_add_u32 v{ENB}, v{t+8}, 11, s47")
    A(f"v_mul_u32_u24 v{RCB}, {CHB}, v{t+8}")
    A(f"v_lshlrev_b32 v{t+8}, 2, v{row}")
    A(f"v_and_b32 v{ENA}, 0xe0, v{L4}")
    A(f"v_mul_u32_u24 v{RCA}, {CHB}, v{t+8}")
    A(f"v_lshlrev_b32 v{LP}, 4, v{pos}")
    A(f"v_mov_b32 v{LP+1}, v{LP}")
    for q in range(0, 8, 2): A(f"v_pk_mul_f32 {vr(154+q,2)}, {vr(154+q,2)}, {sr(sNL,2)}")
    for q in range(8): A(f"v_exp_f32 v{210+q}, v{154+q}")
    for q in range(0, 8, 2): A(f"v_pk_add_f32 {vr(210+q,2)}, {vr(210+q,2)}, 1.0 op_sel_hi:[1,0]")
    for q in range(8): A(f"v_rcp_f32 v{210+q}, v{210+q}")
    A(f"s_mov_b64 exec, {sr(MA_,2)}")
    for q in range(4):
        A(f"ds_write2_b32 v{BWA}, v{154+2*q}, v{155+2*q} offset0:{8*q} offset1:{8*q+4}")
    for q in range(0, 8, 2): A(f"v_pk_mul_f32 {vr(210+q,2)}, {vr(154+q,2)}, {vr(210+q,2)}")
    for q in range(4):
        A(f"ds_write2_b32 v{BWA}, v{210+2*q}, v{211+2*q} offset0:{oSB//4+8*q} offset1:{oSB//4+8*q+4}")
    A("s_mov_b64 exec, -1")
    entry_loads()
    A(f"s_movk_i32 s{sWID}, 256")
    A(f"s_mov_b32 s{sSAFE}, 0")
    A("s_mov_b32 s0, 1")
    A(f"v_lshlrev_b32 v{t+8}, 1, v{g1}")
    A(f"v_and_b32 v{t+18}, 2, v{r_}")
    A(f"v_lshl_or_b32 v{t+18}, v{t+18}, 1, v{t+8}")
    A(f"v_xor_b32 v{t+18}, v{t+18}, v{ch_}")
    A(f"v_lshl_add_u32 v{t+18}, v{t+18}, 4, v{c8}")
    A(f"v_lshl_add_u32 v{t+8}, v{r_}, 2, v{t+8}")
    A(f"v_and_b32 v{t+17}, 2, v{g}")
    A(f"v_lshl_add_u32 v{t+8}, v{t+17}, 3, v{t+8}")
    A(f"v_lshl_add_u32 v{t+18}, v{t+8}, 7, v{t+18}")
    A(f"v_add_u32 v{WA2}, {WU+8192}, v{t+18}")
    A(f"v_xor_b32 v{WA2+1}, 32, v{WA2}")
    for x in wfrags(138, WA, WU-WM, 512): A(x)
    A(f"v_lshrrev_b32 v{t+8}, 2, v{pos}")
    A(f"v_and_b32 v{t+17}, 3, v{pos}")
    A(f"v_lshl_add_u32 v{t+8}, v{t+8}, 4, v{t+17}")
    A(f"v_lshlrev_b32 v{W3A}, 1, v{t+8}")
    for q in range(8): A(f"v_mov_b32 v{W+q}, 0")
    A("s_mov_b32 s12, s8")
    A(f"s_or_b32 s13, s9, {128 << 16:#x}")
    A(f"s_mov_b32 s14, {(N+1)*128}")
    A("s_mov_b32 s15, 0x20000")
    A(f"s_mov_b32 s16, s{pOUT}")
    A(f"s_mov_b32 s17, s{pOUT+1}")
    A(f"s_mov_b32 s18, {N*128}")
    A("s_mov_b32 s19, 0x20000")
    A("s_waitcnt lgkmcnt(0)")
    for x in mm(U, 138): A(x)
    prefill_big(122)
    stamp(7)
    if DIAG:
        A("s_waitcnt vmcnt(1)")
        stamp(26)
        A("s_waitcnt vmcnt(0)")
        stamp(27)
    A("s_waitcnt vmcnt(0)")
    def late_setup():
        C("---- remaining constants (in the shadow of the record loads)")
        for x in wfrags(WF2, WA2, 0, 128): A(x)
        for q in range(8): A(f"ds_read_u16_d16_hi v{W+q}, v{W3A} offset:{W3 + 64*(q>>2) + 8*(q&3)}")
        A(f"v_and_b32 v{t+7}, 1, v{pos}")
        A(f"v_lshlrev_b32 v{t+7}, 4, v{t+7}")
        A(f"v_mov_b32 v{t+8}, 0x3f80")
        A(f"v_lshlrev_b32 v{t+7}, v{t+7}, v{t+8}")
        A(f"v_bfe_u32 v{t+13}, v0, 3, 2")
        A(f"v_bfe_u32 v{t+11}, v0, 5, 1")
        A(f"v_sub_u32 v{t+8}, v{t+13}, v{t+11}")
        A(f"v_lshlrev_b32 v{t+8}, 1, v{t+8}")
        A(f"v_lshrrev_b32 v{t+9}, 1, v{pos}")
        A(f"v_add_u32 v{t+9}, v{t+8}, v{t+9}")
        A(f"v_and_b32 v{t+8}, 2, v{t+8}")
        A(f"v_lshl_add_u32 v{t+9}, v{t+8}, 5, v{t+9}")
        mk = lambda r: sr(20+2*r,2) if r < 6 else sr(36+2*(r-6),2)
        for r in range(8): A(f"v_cmp_eq_u32 {mk(r)}, {r}, v{t+9}")
        for r in range(8): A(f"v_cndmask_b32 v{S+r}, 0, v{t+7}, {mk(r)}")
        A(f"v_bfe_u32 v{t+12}, v0, 2, 1")
        A(f"v_lshl_add_u32 v{t+12}, v{t+11}, 1, v{t+12}")
        A(f"v_lshl_add_u32 v{t+14}, v{t+13}, 1, v{t+11}")
        A("s_lshl_b32 s44, s3, 3")
        A(f"v_add_u32 v{SID}, s44, v{t+14}")
        A(f"v_mul_u32_u24 v{t+6}, {RP}, v{LANE}")
        A(f"v_add_u32 v{t+6}, {ROWS}, v{t+6}")
        A(f"v_mov_b32 v{IP[1]+1}, v{IP[0]+1}")
        for q in range(0, 8, 2): A(f"v_mov_b64 {vr(EA[0]+q,2)}, 0")
        for q in range(0, 8, 2): A(f"v_mov_b64 {vr(AGG+q,2)}, 0")
        A(f"s_mov_b32 s{sI0}, 32")
        A(f"s_mov_b32 s{sI0+1}, 32")
        A(f"s_mov_b32 s{sI1}, 32")
        A(f"s_mov_b32 s{sI1+1}, 16")
        A("s_waitcnt lgkmcnt(0)")
        for q in range(0, 8, 2): A(f"v_pk_mul_f32 {vr(W+q,2)}, {vr(W+q,2)}, {sr(sNL,2)}")
    LB("L_ENT")
    RA, RK, BP = 176, 138, 154
    RW = G[0]
    KA, KB = t+1, t+2
    A("s_mov_b32 s46, 0x80078007")
    for i in range(4): A(f"ds_bpermute_b32 v{OF+2*i}, v{ENA}, v{OF+8} offset:{8*i}")
    A(f"v_xor_b32 v{OF+9}, s{sTAG}, v{OF+9}")
    A(f"v_and_or_b32 v{OF+9}, v{OF+8}, s46, v{OF+9}")
    A(f"v_cmp_ne_u32 vcc, 0, v{OF+9}")
    A(f"s_add_u32 s{sHI}, s{sLO}, s{sWID}")
    A("s_cbranch_vccnz L_ENTR")
    stamp(8)
    A(f"v_cmp_gt_u32 vcc, s{sWID}, v{LP}")
    A(f"v_add_u32 v{KA}, s{sLO}, v{LP}")
    A(f"v_mov_b32 v{t+3}, {HUGE:#x}")
    A(f"v_cndmask_b32 v{KA}, v{t+3}, v{KA}, vcc")
    A(f"s_add_u32 s46, s{sLO}, 128")
    A(f"s_cmpk_eq_u32 s{sWID}, 256")
    A(f"s_cselect_b32 s46, s46, {HUGE:#x}")
    A(f"v_and_b32 v{KB}, 16, v{LP}")
    A(f"v_add_u32 v{KB}, s46, v{KB}")
    A(f"v_add_u32 v{t+3}, v{KA}, v{RCA}")
    A("s_waitcnt lgkmcnt(0)")
    for i in range(4):
        lo = OF+2*i
        A(f"v_and_b32 v{lo+1}, 8, v{lo}")
        A(f"v_and_b32 v{RA+i}, 0xfff0, v{lo}")
        A(f"v_sub_u32 v{lo+1}, v{KA}, v{lo+1}")
        A(f"v_add_u32 v{RA+i}, v{RA+i}, v{t+3}")
        A(f"v_cmp_lt_u32_sdwa {sr(MK+4*i,2)}, v{lo+1}, v{lo} src0_sel:DWORD src1_sel:WORD_1")
        A(f"v_add_u32 v{lo+1}, 8, v{lo+1}")
        A(f"v_cmp_lt_u32_sdwa {sr(MK+4*i+2,2)}, v{lo+1}, v{lo} src0_sel:DWORD src1_sel:WORD_1")
    lo = OF+8
    A(f"v_and_b32 v{lo+1}, 8, v{lo}")
    A(f"v_and_b32 v{RA+4}, 0xfff0, v{lo}")
    A(f"v_add_u32_sdwa v{lo+1}, v{lo+1}, v{lo} dst_sel:DWORD dst_unused:UNUSED_PAD src0_sel:DWORD src1_sel:WORD_1")
    A(f"v_add3_u32 v{RA+4}, v{RA+4}, v{KB}, v{RCB}")
    A(f"v_cmp_lt_u32 s[56+24:56+25], s{sHI}, v{lo+1}".replace("[56+24:56+25]", "[100:101]"))
    A(f"v_sub_u32 v{lo+1}, v{lo+1}, v{KB}")
    A(f"v_add_u32 v{lo}, -64, v{lo+1}".replace("-64", "0xffffffc0"))
    for j in range(4):
        src = lo+1 if j < 2 else lo
        A(f"v_cmp_lt_i32 {sr(MK+16+4*j,2)}, {32*(j&1)}, v{src}")
        A(f"v_cmp_lt_i32 {sr(MK+16+4*j+2,2)}, {32*(j&1)+8}, v{src}")
    A(f"s_mov_b32 s46, {REC:#x}")
    A(f"s_mov_b32 s47, {REC+CHB:#x}")
    A(f"s_mov_b32 s43, {REC+2*CHB:#x}")
    A(f"s_mov_b32 s42, {REC+3*CHB:#x}")
    def rload(q):
        if q < 4:
            return [f"s_or_b64 exec, {sr(MK+4*q,2)}, {sr(MK+4*q+2,2)}",
                    f"buffer_load_dwordx4 {vr(RW+4*q,4)}, v{RA+q}, {sr(sWS,4)}, s{[46,47,43,42][q]} offen sc1"]
        return [f"s_mov_b64 exec, {sr(MK+4*q,2)}",
                f"buffer_load_dwordx4 {vr(RW+4*q,4)}, v{RA+4}, {sr(sWS,4)}, s46 offen offset:{32*(q-4)} sc1"]
    A(f"s_cmp_lg_u64 {sr(MK+24,2)}, 0")
    A(f"s_cselect_b32 s{sRARE}, 1, 0")
    if "b4" in OPT: A("s_barrier")
    stamp(9)
    for q in range(8):
        for x in rload(q): A(x)
    A("s_mov_b64 exec, -1")
    if DIAG: A(f"v_writelane_b32 v255, s{sCNT}, 20")
    A(f"s_mov_b32 s{sCNT}, 0")
    stamp(10)
    A("s_cmp_eq_u32 s0, 0")
    A("s_cbranch_scc1 L_HIST")
    A("s_mov_b32 s0, 0")
    late_setup()
    LB("L_HIST")
    A(f"v_mov_b32 v{t+4}, 0")
    A(f"v_mov_b32 v{t+5}, 4")
    A("s_mov_b64 exec, s[100:101]")
    A(f"ds_write_b32 v{t+4}, v{t+5} offset:{FLAGS}")
    A("s_movk_i32 s44, 255")
    stamp(11)
    def hist(q):
        A(f"s_waitcnt vmcnt({7-q})")
        LB(f"L_HC{q}")
        A(rload(q)[0])
        A(f"v_xor_b32 v{RW+4*q+1}, s{sT8}, v{RW+4*q+1}")
        A(f"v_xor_b32 v{RW+4*q+3}, s{sT8}, v{RW+4*q+3}")
        A(f"v_or_b32 v{t+3}, v{RW+4*q+1}, v{RW+4*q+3}")
        A(f"v_cmp_lt_u32 vcc, s44, v{t+3}")
        A(f"s_cbranch_vccnz L_HR{q}")
        if q < 4: A(f"s_mov_b64 exec, {sr(MK+4*q,2)}")
        A(f"ds_add_rtn_u32 v{RK+2*q}, v{RW+4*q+1}, v{t+5} offset:{HIST2}")
        A(f"s_mov_b64 exec, {sr(MK+4*q+2,2)}")
        A(f"ds_add_rtn_u32 v{RK+2*q+1}, v{RW+4*q+3}, v{t+5} offset:{HIST2}")
    for q in range(6): hist(q)
    A(f"s_cmp_lg_u32 s{sRARE}, 0")
    A("s_cbranch_scc1 L_RARE1")
    LB("L_RARE1D")
    A("s_mov_b64 exec, -1")
    if DIAG: A(f"v_writelane_b32 v255, s{sCNT}, 21")
    stamp(23)
    if DIAG: A(f"v_writelane_b32 v255, s{sCNT}, 22")
    if DIAG: A(f"v_writelane_b32 v255, s{sRARE}, 25")
    A(f"v_cmp_gt_u32 vcc, s6, v{LANE}")
    A("s_waitcnt lgkmcnt(0)")
    A("s_barrier")
    stamp(12)
    CNT, PB, INC, BS = t+7, t+8, t+9, t+10
    A(f"ds_read_b32 v{CNT}, v{L4} offset:{HIST2}")
    pf(PF1, int(OPT.get("pf2", 49)))
    A("s_lshl_b32 s46, s3, 4")
    A(f"s_cmp_lg_u32 s{sSAFE}, 0")
    A(f"s_cselect_b32 s45, 1.0, {f2u(2.0**-64):#x}")
    for q in range(8): A(f"v_mov_b32 v{Dd+q}, s45")
    A("s_waitcnt lgkmcnt(0)")
    A(f"v_add_u32 v{PB}, 12, v{CNT}")
    A(f"v_and_b32 v{PB}, -16, v{PB}")
    A(f"v_max_u32 v{PB}, 16, v{PB}")
    A(f"v_cndmask_b32 v{PB}, 0, v{PB}, vcc")
    A(f"v_mov_b32 v{INC}, v{PB}")
    scan(INC, [f"v_sub_u32 v{NPAD}, v{PB}, v{CNT}", f"s_mov_b32 s{sREDO}, 0"] + [f"v_mov_b32 v{Nn+q}, 0" for q in range(8)] +
              [f"v_cvt_f32_u32 v{NPAD}, v{NPAD}", f"v_mul_f32 v{NPAD}, {f2u(-0.25):#x}, v{NPAD}"])
    A(f"v_sub_u32 v{BS}, v{INC}, v{PB}")
    A(f"v_readlane_b32 s44, v{INC}, 63")
    A(f"ds_write_b32 v{L4}, v{BS} offset:{BASE2}")
    def baserd(k):
        A(f"s_mov_b64 exec, {sr(MK+2*k,2)}")
        A(f"ds_read_b32 v{BP+k}, v{RW+2*k+1} offset:{BASE2}")
    def scat(k):
        A(f"s_mov_b64 exec, {sr(MK+2*k,2)}")
        A(f"v_add_u32 v{BP+k}, v{BP+k}, v{RK+k}")
        A(f"ds_write_b32 v{BP+k}, v{RW+2*k} offset:{LIST}")
    for k in range(12): baserd(k)
    A("s_mov_b64 exec, vcc")
    A("s_cmpk_gt_u32 s44, 16384")
    A("s_cbranch_scc1 L_TOOBIG")
    A(f"v_lshrrev_b32 v{t+15}, 1, v{INC}")
    A(f"ds_write_b32 v{t+15}, v{t+6} offset:{QD-4}")
    A(f"v_add_u32 v{t+15}, s46, v{BS}")
    A(f"v_lshrrev_b32 v{t+15}, 1, v{t+15}")
    LB("L_QD")
    for q in range(3):
        A(f"v_cmpx_lt_u32 vcc, s46, v{PB}")
        A("s_add_u32 s46, s46, 128")
        A(f"ds_write_b32 v{t+15}, v{t+6} offset:{QD+64*q}")
    A(f"v_cmpx_lt_u32 vcc, s46, v{PB}")
    A(f"v_add_u32 v{t+15}, 192, v{t+15}")
    A("s_cbranch_execnz L_QD")
    A("s_waitcnt lgkmcnt(4)")
    for k in range(12): scat(k)
    A(f"s_cmp_lg_u32 s{sRARE}, 0")
    A("s_cbranch_scc1 L_RARE2")
    LB("L_RARE2D")
    A("s_mov_b64 exec, -1")
    A("s_add_u32 s44, s44, 127")
    A("s_lshr_b32 s44, s44, 7")
    A("s_lshr_b32 s45, s44, 3")
    A("s_and_b32 s44, s44, 7")
    A("s_mul_i32 s46, s45, s3")
    A("s_min_u32 s47, s44, s3")
    A(f"s_add_u32 s{sSTART}, s46, s47")
    A("s_cmp_lt_u32 s3, s44")
    A(f"s_addc_u32 s{sT}, s45, 0")
    LB("L_MAIN")
    A(f"s_lshl_b32 s44, s{sT}, 4")
    A(f"s_lshl_b32 s45, s{sSTART}, 7")
    A(f"v_lshl_add_u32 v{t+15}, v{t+13}, 2, s45")
    A(f"v_mad_u32_u24 v{AI}, v{t+12}, s44, v{t+15}")
    A("s_lshl_b32 s46, s44, 2")
    A(f"v_add_u32 v{AI+1}, s46, v{AI}")
    A(f"v_mul_u32_u24 v{AE}, s44, v{t+14}")
    A(f"v_add_u32 v{AE}, s45, v{AE}")
    A(f"v_lshrrev_b32 v{AE+1}, 1, v{AE}")
    A(f"v_add_u32 v{AE+1}, {QD}, v{AE+1}")
    A("s_waitcnt lgkmcnt(0)")
    A("s_barrier")
    A("s_setprio 2")
    stamp(13)
    def gathers(g_):
        return [f"buffer_load_dwordx4 {vr(G[g_]+8*u+4*s,4)}, {vr(IP[s],2)}, {sr(sA,4)}, 0 idxen offen offset:{64*u}" for u in range(2) for s in range(2)]
    def idx(o):
        return [f"ds_read_u16 v{IP[0]}, v{AI} offset:{LIST+o}", f"ds_read_u16 v{IP[1]}, v{AI+1} offset:{LIST+o}"]
    def eas(b, o):
        return [f"ds_read_u16_d16_hi v{EA[b]+q}, v{AE} offset:{LIST+o+4*q+2}" for q in range(4)]
    def bs(b, areg):
        return [f"ds_read_b128 {vr(Bv[b],4)}, v{areg}", f"ds_read_b128 {vr(Bv[b]+4,4)}, v{areg} offset:128"]
    for x in idx(0): A(x)
    A(f"ds_read_u16 v{t}, v{AI} offset:{LIST+16}")
    A(f"ds_read_u16 v{t+1}, v{AI+1} offset:{LIST+16}")
    A(f"ds_read2_b32 {vr(RAp,2)}, v{AE+1} offset0:0 offset1:2")
    A(f"ds_read2_b32 {vr(DSC,2)}, v{AE+1} offset0:4 offset1:1")
    for x in eas(0, 0): A(x)
    A("s_waitcnt lgkmcnt(8)")
    for x in gathers(0): A(x)
    A("s_waitcnt lgkmcnt(5)")
    A(f"v_mov_b32 v{IP[0]}, v{t}")
    A(f"v_mov_b32 v{IP[1]}, v{t+1}")
    A(f"v_lshl_add_u64 {vr(RAp,2)}, {vr(RAp,2)}, 0, {vr(LP,2)}")
    for x in gathers(1): A(x)
    for x in bs(0, RAp) + bs(1, RAp+1) + eas(1, 16) + idx(32): A(x)
    A(f"s_cmp_lg_u32 s{sREDO}, 0")
    A("s_cbranch_scc1 L_NOSH")
    A("s_lshl_b32 s46, s3, 5")
    A(f"v_add_u32 v{t+2}, s46, v{t+6}")
    A(f"ds_read_b128 v[154:157], v{t+2} offset:{oSB}")
    A(f"ds_read_b128 v[158:161], v{t+2} offset:{oSB+16}")
    A("s_waitcnt lgkmcnt(0)")
    for q in range(0,8,2): A(f"v_pk_fma_f32 {vr(AGG+q,2)}, {vr(154+q,2)}, {vr(NPAD,2)}, {vr(AGG+q,2)} op_sel_hi:[1,0,1]")
    LB("L_NOSH")
    A(f"s_cmp_eq_u32 s{sT}, 0")
    A("s_cbranch_scc1 L_WEND")
    A(f"s_sub_u32 s{sCNT}, s{sT}, 1")
    def cblock(u, b):
        for q in range(4):
            for p in range(2):
                e = vr(EA[b] + (q & 2), 2)
                sel = "op_sel:[1,0,0] op_sel_hi:[1,1,1]" if q & 1 else "op_sel_hi:[0,1,1]"
                A(f"v_pk_fma_f32 {vr(T[u]+4*q+2*p,2)}, {e}, {vr(W+4*u+2*p,2)}, {vr(Bv[b]+4*u+2*p,2)} {sel}")
    def mfma(g_, u, s):
        return f"v_mfma_f32_32x32x16_bf16 {vr(T[u],16)}, {vr(G[g_]+8*u+4*s,4)}, {vr(S+4*s,4)}, {vr(T[u],16)}"
    def esec(u, m0, m1, pre, post):
        pre, post = list(pre), list(post)
        for r in range(16):
            A(f"v_exp_f32 v{EX+r}, v{T[u]+r}")
            if r == 1: A(m0)
            elif r == 5: A(m1)
            elif r < 5:
                if pre: A(pre.pop(0))
            else:
                if pre: A(pre.pop(0))
                elif post: A(post.pop(0))
        assert not pre and not post
    def chain(u, safe):
        if safe:
            for r in range(0,16,2): A(f"v_pk_add_f32 {vr(EX+r,2)}, {vr(EX+r,2)}, 1.0 op_sel_hi:[1,0]")
            for r in range(16): A(f"v_rcp_f32 v{EX+r}, v{EX+r}")
            for q in range(4):
                for p in range(2):
                    n = vr(Nn+4*u+2*p,2)
                    A(f"v_pk_fma_f32 {n}, {vr(T[u]+4*q+2*p,2)}, {vr(EX+4*q+2*p,2)}, {n}")
            return
        for q in range(4):
            for p in range(2):
                n = vr(Nn+4*u+2*p,2); A(f"v_pk_fma_f32 {n}, {n}, {vr(EX+4*q+2*p,2)}, {n}")
            for p in range(2):
                n = vr(Nn+4*u+2*p,2); A(f"v_pk_fma_f32 {n}, {vr(T[u]+4*q+2*p,2)}, {vr(Dd+4*u+2*p,2)}, {n}")
            for p in range(2):
                d = vr(Dd+4*u+2*p,2); A(f"v_pk_fma_f32 {d}, {d}, {vr(EX+4*q+2*p,2)}, {d}")
    def flush(u):
        o = [f"ds_write_b128 v{RAp+1}, {vr(Nn+4*u,4)} offset:{oN+128*u}", f"ds_write_b128 v{RAp+1}, {vr(Dd+4*u,4)} offset:{oD+128*u}"]
        if "noflush" in OPT: o = []
        if u: o.append(f"ds_write_b32 v{RAp+1}, v{SID} offset:{oS}")
        return o
    A("s_waitcnt lgkmcnt(0)")
    cblock(0, 0)
    A("s_waitcnt vmcnt(4)")
    stamp(14)
    A(f"s_cmp_lg_u32 s{sSAFE}, 0")
    A(mfma(0,0,0)); A(mfma(0,0,1))
    A("s_setprio 0")
    A("s_nop 2")
    A("s_cbranch_scc1 L_LOOPS")
    PK = int(OPT.get("pk", 8))
    def loop(tag, safe):
        LB(f"L_LOOP{tag}")
        for ph in range(2):
            o = 16*ph
            cblock(1, ph)
            A("s_setprio 1")
            esec(0, mfma(ph,1,0), mfma(ph,1,1), [], [])
            chain(0, safe)
            A("s_waitcnt lgkmcnt(0)" if "novmwait" in OPT else "s_waitcnt vmcnt(0) lgkmcnt(0)")
            cblock(0, 1-ph)
            A(f"v_lshl_add_u64 {vr(RAp,2)}, {vr(DSC,2)}, 0, {vr(LP,2)}")
            esec(1, mfma(1-ph,0,0), mfma(1-ph,0,1), [], [])
            if ph == 1:
                A(f"v_lshl_add_u64 {vr(AI,2)}, {vr(AI,2)}, 0, {sr(sI0,2)}")
                A(f"v_lshl_add_u64 {vr(AE,2)}, {vr(AE,2)}, 0, {sr(sI1,2)}")
                o -= 32
            if "flushbr" in OPT: A(f"v_cmp_gt_u32 vcc, {BIG:#x}, v{RAp+1}")
            chain(1, safe)
            A("s_setprio 0")
            A(f"s_sub_u32 s{sCNT}, s{sCNT}, 1")
            A("s_cbranch_scc1 L_SEND")
            if "nogather" not in OPT:
                for x in gathers(ph): A(x)
            for x in bs(ph, RAp) + eas(ph, o+32) + idx(o+48): A(x)
            A(f"ds_read2_b32 {vr(DSC,2)}, v{AE+1} offset0:{o//8+6} offset1:{o//8+3}")
            if "flushbr" in OPT: A(f"s_cbranch_vccz " + (f"L_M{tag}" if ph == 0 else f"L_LOOP{tag}"))
            for x in flush(0) + flush(1): A(x)
            if ph == 1: A(f"s_branch L_LOOP{tag}")
            else: LB(f"L_M{tag}")
    loop("F", False)
    LB("L_SEND")
    stamp(15)
    for x in flush(0) + flush(1): A(x)
    for q in range(8): A(f"v_rcp_f32 v{EX+q}, v{Dd+q}")
    A(f"v_mul_u32_u24 v{t}, {TP}, v{SID}")
    A(f"v_add_u32 v{t}, v{t}, v{LP}")
    A(f"v_add_u32 v{t}, {TOT}, v{t}")
    for q in range(0,8,2): A(f"v_pk_mul_f32 {vr(EX+q,2)}, {vr(Nn+q,2)}, {vr(EX+q,2)}")
    A(f"ds_write_b128 v{t}, {vr(EX,4)}")
    A(f"ds_write_b128 v{t}, {vr(EX+4,4)} offset:128")
    A(f"v_pk_add_f32 v[186:187], {vr(Dd,2)}, {vr(Dd+2,2)}")
    A(f"v_pk_add_f32 v[188:189], {vr(Dd+4,2)}, {vr(Dd+6,2)}")
    A(f"v_pk_add_f32 v[190:191], {vr(EX,2)}, {vr(EX+2,2)}")
    A(f"v_pk_add_f32 v[192:193], {vr(EX+4,2)}, {vr(EX+6,2)}")
    A("v_pk_add_f32 v[186:187], v[186:187], v[188:189]")
    A("v_pk_add_f32 v[190:191], v[190:191], v[192:193]")
    A("v_pk_fma_f32 v[186:187], v[190:191], 0, v[186:187] op_sel_hi:[1,0,1]")
    A("v_add_f32 v186, v186, v187")
    A("v_mov_b32 v188, 0")
    A("v_mov_b32 v189, 1")
    A(f"v_cmpx_ngt_f32 vcc, {f2u(2.0**110):#x}, v186")
    A(f"ds_write_b32 v188, v189 offset:{FLAGS+4}")
    A("s_mov_b64 exec, -1")
    LB("L_WEND")
    A("s_lshl_b32 s46, s3, 5")
    A(f"v_add_u32 v{t+1}, s46, v{t+6}")
    A(f"v_mov_b32 v{t+2}, 0")
    A(f"s_add_u32 s46, s46, {TOT}")
    A(f"v_cmp_gt_u32 s[44:45], s6, v{LANE}")
    A("s_waitcnt lgkmcnt(0)")
    A("s_barrier")
    stamp(16)
    FN, FD, T0_, T1_ = 186, 194, 202, 210
    cn, ta = t+3, t+7
    A(f"ds_read_b32 v{cn}, v{t+6} offset:{oS}")
    A(f"ds_read_b64 {vr(t+4,2)}, v{t+2} offset:{FLAGS}")
    A(f"ds_read_b128 {vr(FD,4)}, v{t+1} offset:{oD}")
    A(f"ds_read_b128 {vr(FD+4,4)}, v{t+1} offset:{oD+16}")
    A(f"ds_read_b128 {vr(FN,4)}, v{t+1} offset:{oN}")
    A(f"ds_read_b128 {vr(FN+4,4)}, v{t+1} offset:{oN+16}")
    A("s_waitcnt lgkmcnt(5)")
    A(f"v_mov_b32_dpp v{ta}, v{cn} wave_shr:1 row_mask:0xf bank_mask:0xf bound_ctrl:1")
    A(f"v_sub_u32 v{cn}, v{cn}, v{ta}")
    A(f"v_mul_u32_u24 v{ta}, {TP}, v{ta}")
    A(f"v_cndmask_b32 v{cn}, 0, v{cn}, s[44:45]")
    A(f"v_min_i32 v{cn}, 64, v{cn}")
    A(f"v_add_u32 v{ta}, s46, v{ta}")
    A("s_waitcnt lgkmcnt(4)")
    A(f"v_readfirstlane_b32 s{sMORE}, v{t+4}")
    A(f"v_readfirstlane_b32 s47, v{t+5}")
    A(f"s_andn2_b32 s47, s47, s{sSAFE}")
    A("s_cbranch_scc1 L_RETRY")
    LB("L_TL")
    A(f"v_cmpx_lt_i32 s[44:45], 0, v{cn}")
    A(f"ds_read_b128 {vr(T0_,4)}, v{ta}")
    A(f"ds_read_b128 {vr(T0_+4,4)}, v{ta} offset:16")
    A(f"v_cmpx_lt_i32 vcc, 1, v{cn}")
    A(f"ds_read_b128 {vr(T1_,4)}, v{ta} offset:{TP}")
    A(f"ds_read_b128 {vr(T1_+4,4)}, v{ta} offset:{TP+16}")
    A(f"v_cmp_lt_i32 vcc, 2, v{cn}")
    A("s_waitcnt lgkmcnt(0)")
    for q in range(0,8,2): A(f"v_pk_add_f32 {vr(AGG+q,2)}, {vr(AGG+q,2)}, {vr(T1_+q,2)}")
    A("s_mov_b64 exec, s[44:45]")
    for q in range(0,8,2): A(f"v_pk_add_f32 {vr(AGG+q,2)}, {vr(AGG+q,2)}, {vr(T0_+q,2)}")
    A("s_mov_b64 exec, -1")
    A("s_cbranch_vccnz L_TLM")
    for q in range(8): A(f"v_rcp_f32 v{FD+q}, v{FD+q}")
    A(f"v_mul_u32_u24 v{t+4}, {XP}, v{LANE}")
    for q in range(0,8,2): A(f"v_pk_mul_f32 {vr(FN+q,2)}, {vr(FN+q,2)}, {vr(FD+q,2)}")
    for q in range(0,8,2): A(f"v_pk_add_f32 {vr(AGG+q,2)}, {vr(AGG+q,2)}, {vr(FN+q,2)}")
    A(f"s_cmp_lg_u32 s{sMORE}, 0")
    for q in range(8):
        A(f"v_subrev_f32_dpp v{AGG+q}, v{FN+q}, v{AGG+q} wave_shr:1 row_mask:0xf bank_mask:0xf bound_ctrl:1")
    A("s_cbranch_scc1 L_NEXT")
    A(f"s_mov_b32 s44, {NLN2:#x}")
    A("s_mov_b32 s45, s44")
    A("s_lshl_b32 s46, s3, 4")
    A(f"s_add_u32 s46, s46, {AGS}")
    for q in range(0,8,2): A(f"v_pk_mul_f32 {vr(FN+q,2)}, {vr(AGG+q,2)}, s[44:45]")
    A(f"v_add_u32 v{t+4}, s46, v{t+4}")
    for q in range(4): A(f"v_cvt_pk_bf16_f32 v{FD+q}, v{FN+2*q}, v{FN+2*q+1}")
    A(f"ds_write_b128 v{t+4}, {vr(FD,4)}")
    A("s_lshr_b32 s44, s3, 1")
    A("s_lshl_b32 s44, s44, 4")
    A(f"v_and_b32 v{t+8}, 15, v0")
    A(f"v_add_u32 v{t+8}, s44, v{t+8}")
    A(f"v_bfe_u32 v{t+9}, v0, 4, 2")
    A(f"v_mul_u32_u24 v{t+10}, {XP}, v{t+8}")
    A(f"v_lshl_add_u32 v{t+10}, v{t+9}, 4, v{t+10}")
    A(f"v_add_u32 v{t+10}, {AGS}, v{t+10}")
    A(f"v_and_b32 v{t+11}, 1, v{t+9}")
    A(f"v_lshrrev_b32 v{t+9}, 1, v{t+9}")
    A(f"v_lshl_add_u32 v{t+11}, v{t+11}, 1, v{t+9}")
    A(f"v_lshl_add_u32 v{t+11}, v{t+8}, 3, v{t+11}")
    A(f"v_lshlrev_b32 v{t+11}, 4, v{t+11}")
    A("s_and_b32 s45, s3, 1")
    A("s_lshl_b32 s45, s45, 6")
    A("s_lshl_b32 s46, s5, 7")
    A("s_add_u32 s45, s45, s46")
    A(f"v_cmp_gt_u32 s[46:47], s6, v{t+8}")
    A("s_waitcnt lgkmcnt(0)")
    A("s_barrier")
    stamp(17)
    A(f"ds_read_b128 {vr(T0_,4)}, v{t+10}")
    A(f"ds_read_b128 {vr(T0_+4,4)}, v{t+10} offset:64")
    for ks in range(2):
        A(f"s_waitcnt lgkmcnt({1-ks})")
        for cb in range(2):
            A(f"v_mfma_f32_16x16x32_bf16 {vr(U+4*cb,4)}, {vr(WF2+8*cb+4*ks,4)}, {vr(T0_+4*ks,4)}, {vr(U+4*cb,4)}")
    A("s_nop 6")
    for q in range(0,8,2): A(f"v_pk_mul_f32 {vr(FN+q,2)}, {vr(U+q,2)}, {sr(sNL,2)}")
    for q in range(8): A(f"v_exp_f32 v{FN+q}, v{FN+q}")
    for q in range(0,8,2): A(f"v_pk_add_f32 {vr(FN+q,2)}, {vr(FN+q,2)}, 1.0 op_sel_hi:[1,0]")
    for q in range(8): A(f"v_rcp_f32 v{FN+q}, v{FN+q}")
    for q in range(0,8,2): A(f"v_pk_mul_f32 {vr(FN+q,2)}, {vr(U+q,2)}, {vr(FN+q,2)}")
    for q in range(4): A(f"v_cvt_pk_bf16_f32 v{FD+q}, v{FN+2*q}, v{FN+2*q+1}")
    A("s_nop 1")
    A(f"v_permlane16_swap_b32 v{FD}, v{FD+2}")
    A(f"v_permlane16_swap_b32 v{FD+1}, v{FD+3}")
    A("s_mov_b64 exec, s[46:47]")
    A(f"buffer_store_dwordx4 {vr(FD,4)}, v{t+11}, {sr(sOUT,4)}, s45 offen")
    if DIAG:
        stamp(18)
        A("s_waitcnt vmcnt(0)")
        stamp(19)
        stamp(31, real=True)
        A("s_mov_b32 exec_lo, -1")
        A("s_mov_b32 exec_hi, 0")
        A("s_lshl_b32 s44, s2, 3")
        A("s_add_u32 s44, s44, s3")
        A("s_lshl_b32 s44, s44, 7")
        A(f"s_add_u32 s44, s44, {STAMP:#x}")
        A(f"buffer_store_dword v255, v{L4}, {sr(sWS,4)}, s44 offen")
    LB("L_END")
    A("s_endpgm")
    LB("L_NONCE")
    A("s_or_b32 s46, s46, 0x80000000")
    A("s_mov_b64 exec, 1")
    A(f"v_mov_b32 v{t+5}, s46")
    A(f"global_store_dword v{t+4}, v{t+5}, {sr(pDBG,2)} sc1")
    A("s_branch L_NONONCE")
    def bound():
        A(f"s_add_u32 s{sCNT}, s{sCNT}, 1")
        A(f"s_cmp_ge_u32 s{sCNT}, 0x8000")
        A("s_cbranch_scc1 L_END")
    LB("L_NONCEL")
    A(f"global_load_dword v171, v{t+4}, {sr(pDBG,2)} sc1")
    A("s_cmpk_lg_u32 s2, 255")
    A("s_cbranch_scc1 L_NONCELD")
    A("s_mov_b32 exec_hi, 0")
    A(f"s_mov_b32 s43, {N*128}")
    A(f"buffer_store_dword v{t+4}, v{L4}, {sr(sWS,4)}, s43 offen sc1")
    A("s_mov_b64 exec, -1")
    A("s_branch L_NONCELD")
    LB("L_NONCEW")
    A(f"global_load_dword v171, v{t+4}, {sr(pDBG,2)} sc1")
    bound()
    A("s_waitcnt vmcnt(0)")
    LB("L_NONCEC")
    A("v_cmp_eq_u32 vcc, 0, v171")
    A("s_cbranch_vccnz L_NONCEW")
    A(f"ds_write_b32 v{t+4}, v171 offset:{NONCE}")
    for i in range(4): A(f"v_lshl_or_b32 v{170+2*i}, v{HH+i}, 16, v{BB+i}")
    for i in range(1,4): A(f"v_mov_b32 v{171+2*i}, v171")
    A("s_lshl_b32 s57, s2, 11")
    A(f"s_add_u32 s57, s57, {OFFS:#x}")
    A("s_cmp_eq_u32 s3, 0")
    A("s_branch L_NONCECD")
    LB("L_PUB")
    A(f"buffer_store_dwordx4 v[170:173], v{T16}, {sr(sWS,4)}, s57 offen sc1")
    A(f"buffer_store_dwordx4 v[174:177], v{T16}, {sr(sWS,4)}, s57 offen offset:1024 sc1")
    A("s_branch L_PUBD")
    LB("L_PASS")
    A(f"s_mov_b32 s{sCNT}, 0")
    LB("L_ENTR")
    A("s_waitcnt lgkmcnt(0)")
    entry_loads()
    bound()
    A("s_waitcnt vmcnt(0)")
    A("s_branch L_ENT")
    for q in range(8):
        LB(f"L_HR{q}")
        A(rload(q)[1])
        bound()
        A("s_waitcnt vmcnt(0)")
        A(f"s_branch L_HC{q}")
    LB("L_RARE1")
    hist(6); hist(7)
    A("s_branch L_RARE1D")
    LB("L_RARE2")
    for k in range(12, 16): baserd(k)
    A("s_waitcnt lgkmcnt(0)")
    for k in range(12, 16): scat(k)
    A("s_branch L_RARE2D")
    LB("L_TLM")
    A(f"v_add_u32 v{cn}, -2, v{cn}")
    A(f"v_add_u32 v{ta}, {2*TP}, v{ta}")
    A("s_branch L_TL")
    LB("L_RETRY")
    A(f"s_mov_b32 s{sSAFE}, 1")
    A(f"s_mov_b32 s{sREDO}, 1")
    for q in range(8):
        A(f"v_mov_b32 v{Nn+q}, 0")
        A(f"v_mov_b32 v{Dd+q}, 1.0")
    A("s_waitcnt vmcnt(0) lgkmcnt(0)")
    A("s_branch L_MAIN")
    LB("L_TOOBIG")
    A("s_mov_b64 exec, -1")
    A(f"s_mov_b32 s{sWID}, 64")
    A("s_branch L_AGAIN")
    LB("L_NEXT")
    A(f"s_mov_b32 s{sLO}, s{sHI}")
    LB("L_AGAIN")
    A("s_waitcnt vmcnt(0) lgkmcnt(0)")
    A("s_barrier")
    A(f"v_mov_b32 v{t}, 0")
    prefill_small(t)
    prefill_big(122)
    A("s_waitcnt lgkmcnt(0)")
    A("s_barrier")
    A("s_branch L_PASS")
    loop("S", True)

hdr = open("cdna_kernels/%s.s.ref" % NAME).read().split("; Override")[0]
out = hdr + f"; @launch grid=(256,1,1) block=(512,1,1) lds={LDSZ}\n"
out += '.amdgcn_target "amdgcn-amd-amdhsa--gfx950"\n.text\n'
kernel()
out += "\n".join(L) + "\n"
out += f""".section .rodata,"a"
.p2align 6
.amdhsa_kernel {KN}
  .amdhsa_next_free_vgpr 256
  .amdhsa_next_free_sgpr 102
  .amdhsa_accum_offset 256
  .amdhsa_group_segment_fixed_size 0
  .amdhsa_kernarg_size 72
  .amdhsa_user_sgpr_count 2
  .amdhsa_user_sgpr_kernarg_segment_ptr 1
  .amdhsa_system_sgpr_workgroup_id_x 1
.end_amdhsa_kernel
"""
dst = [a for a in sys.argv[1:] if not a.startswith("--")]
open(dst[0] if dst else f"cdna_kernels/{NAME}.s", "w").write(out)
```

```python
import sys
KN="gather_scatter__mpnn_edge_mlp__graph_kernel"
STAMP=0x900000
def make(src, dst, mode, ia, ib, mult, when='cold'):
    s=open(src).read()
    i=s.index('; @launch grid'); i2=s.index('.amdgcn_target'); j=s.index('.section .rodata')
    line=s[i:i2].replace('@launch grid','@launch kernel='+KN+' grid')
    ld=""
    for k in range(4):
        ld+=f"    global_load_dword v{8+k}, v1, s[4:5] offset:{4*ia}\n    global_load_dword v{12+k}, v1, s[4:5] offset:{4*ib}\n    v_add_u32 v1, 0x10000, v1\n"
    if mode in('maxd','avgd'):
        red="".join(f"    v_sub_u32 v{12+k}, v{12+k}, v{8+k}\n    v_mov_b32 v{8+k}, 0\n" for k in range(4))
    else: red=""
    op = "add" if mode=='avgd' else "max"
    body=f""".globl probe_kernel
.p2align 8
.type probe_kernel,@function
probe_kernel:
    s_cmp_lg_u32 s2, 0
    s_cbranch_scc1 PR_END
    s_load_dwordx2 s[4:5], s[0:1], 64
    v_lshlrev_b32 v1, 10, v0
    v_add_u32 v1, {STAMP:#x}, v1
    v_mov_b32 v2, 0x4000000
    v_mov_b32 v3, 0x13572468
    s_waitcnt lgkmcnt(0)
    global_load_dword v4, v2, s[4:5]
{ld}    s_waitcnt vmcnt(0)
    v_readfirstlane_b32 s16, v4
    global_store_dword v2, v3, s[4:5]
{red}    v_min_u32 v8, v8, v9
    v_min_u32 v10, v10, v11
    v_min_u32 v8, v8, v10
    v_{op}_u32 v12, v12, v13
    v_{op}_u32 v14, v14, v15
    v_{op}_u32 v12, v12, v14
    s_mov_b32 s10, -1
    s_mov_b32 s11, 0
    s_mov_b32 s6, 0
PR_R:
    s_nop 4
    v_readlane_b32 s7, v8, s6
    v_readlane_b32 s8, v12, s6
    s_min_u32 s10, s10, s7
    s_{op}_u32 s11, s11, s8
    s_add_u32 s6, s6, 1
    s_cmp_lt_u32 s6, 63
    s_cbranch_scc1 PR_R
    s_sub_u32 s10, s11, s10
    s_lshr_b32 s10, s10, {8 if mode=='avgd' else 0}
    s_min_u32 s10, s10, 60000
    s_mul_i32 s10, s10, {mult}
    s_add_u32 s10, s10, 1000
    s_cmp_eq_u32 s16, 0x13572468
    s_cselect_b32 s10, {'0, s10' if when=='cold' else 's10, 0'}
    s_memrealtime s[12:13]
    s_waitcnt lgkmcnt(0)
PR_L:
    s_memrealtime s[14:15]
    s_waitcnt lgkmcnt(0)
    s_sub_u32 s14, s14, s12
    s_cmp_lt_u32 s14, s10
    s_cbranch_scc1 PR_L
PR_END:
    s_endpgm
"""
    d=""".p2align 6
.amdhsa_kernel probe_kernel
  .amdhsa_next_free_vgpr 16
  .amdhsa_next_free_sgpr 24
  .amdhsa_accum_offset 16
  .amdhsa_group_segment_fixed_size 0
  .amdhsa_kernarg_size 72
  .amdhsa_user_sgpr_count 2
  .amdhsa_user_sgpr_kernarg_segment_ptr 1
  .amdhsa_system_sgpr_workgroup_id_x 1
.end_amdhsa_kernel
"""
    v=s[:i]+line+"; @launch kernel=probe_kernel grid=(1,1,1) block=(64,1,1) lds=0\n"+s[i2:j]+body+s[j:]+d
    open(dst,'w').write(v)
if __name__=="__main__":
    src=sys.argv[1]
    for n,spec in enumerate(sys.argv[2:]):
        mode,ia,ib,mult,when=spec.split(',')
        make(src,f'q{n}.s',mode,int(ia),int(ib),int(mult),when)
```

```python
import sys, struct
NAME = "gather_scatter__mpnn_edge_mlp__graph"
KN = NAME + "_kernel"
N, E = 12500, 800000
CH, NPB = 3136, 49
ATAB, FL2, OFFS, REC = 0, 0x18C000, 0x190000, 0x210000
CHB = CH * 8
WS_END = REC + 256 * CHB
STAMP = 0x900000
LOG2E = 1.4426950408889634
def f2u(x): return struct.unpack("<I", struct.pack("<f", x))[0]
NLOG2E = f2u(-LOG2E); NLN2 = f2u(-0.6931471805599453)
DIAG = "--diag" in sys.argv
OPT = {a.split("=")[0][2:]: (a.split("=")[1] if "=" in a else "1") for a in sys.argv[1:] if a.startswith("--")}
WS_REC = (STAMP + 0x100000) if DIAG else WS_END
BIG = 0x40000000; HUGE = 0x10000000

L = []
def A(s): L.append("    " + s)
def AA(xs):
    for x in xs: A(x)
def LB(s): L.append(s + ":")
def C(s): L.append("    ; " + s)
def vr(b, n=1): return f"v{b}" if n == 1 else f"v[{b}:{b+n-1}]"
def sr(b, n=1): return f"s{b}" if n == 1 else f"s[{b}:{b+n-1}]"
SCANM = ["row_shr:1 row_mask:0xf bank_mask:0xf bound_ctrl:1", "row_shr:2 row_mask:0xf bank_mask:0xf bound_ctrl:1",
         "row_shr:4 row_mask:0xf bank_mask:0xf bound_ctrl:1", "row_shr:8 row_mask:0xf bank_mask:0xf bound_ctrl:1",
         "row_bcast:15 row_mask:0xa bank_mask:0xf", "row_bcast:31 row_mask:0xc bank_mask:0xf"]
def scan(v, fill=None):
    fill = list(fill or [])
    for m in SCANM:
        k = 0
        while k < 2 and fill:
            A(fill.pop(0)); k += 1
        if k < 2: A(f"s_nop {1-k}")
        A(f"v_add_u32_dpp v{v}, v{v}, v{v} {m}")
    AA(fill)
def stamp(k, real=False):
    if not DIAG: return
    A("s_memrealtime s[98:99]" if real else "s_memtime s[98:99]")
    A("s_waitcnt lgkmcnt(0)")
    A(f"v_writelane_b32 v255, s98, {k}")
def note(sreg, k):
    if DIAG: A(f"v_writelane_b32 v255, s{sreg}, {k}")

LIST, QD = 0, 16384
HIST2 = QD + 8256; FLAGS = HIST2 + 256; BASE2 = FLAGS + 16; NONCE = BASE2 + 256; W3 = NONCE + 16
ROWS, RP = W3 + 128, 1168
NROW = 50; oSB, oN, oD, oS = 256, 512, 768, 1024
R2 = (ROWS + NROW*RP + 255) // 256 * 256
STG = R2; TOT = R2; TP = 272; AGS = TOT + 64*TP; XP = 144
H1 = R2 + 26624; BASE1 = H1 + 1024
XS = H1 + 2048; AST = XS + 8192; WM = AST + 8192; WU = WM + 16384
LDSZ = WU + 16384
assert ROWS % 16 == 0 and XS % 256 == 0 and LDSZ <= 163840, LDSZ

SID, AGG, LP = 1, 2, 10
RAp = 12; AI = 14; AE = 16; IP = [18, 20]; DSC = 22; NPAD = 24; LANE = 25
EA = [26, 30]; Bv = [34, 42]
S, W, Nn, Dd, U, WF2 = 50, 58, 66, 74, 82, 90
G = [106, 122]; T = [138, 154]; EX = 170
TOTW, CRA, AGW, AGR, OUTO, ROWL, T16, ENA, ENB, RCA, RCB, PFA, L4, FLA, GA, GQ, GD, ZERO = range(236, 254)
DST, SRC, EE, BK, RK1, BSV = 106, 114, 122, 126, 138, 146
PUB = 154
XA, WA, WA2, AW, AR, AG, BWA, W3A, WG_, SRA, TLA = 170, 172, 174, 176, 177, 178, 179, 180, 181, 182, 183
XF, WF = 186, 194
HH, BB = 210, 214
t = 218
sWS, sA, sOUT = 8, 12, 16
pX, pE, pSRC, pDST, pWM, pWU, pOUT, pDBG = 20, 22, 24, 26, 28, 30, 32, 34
M0_, M1_, MA_ = 36, 38, 40
mLN, mON = 36, 38
MK = 48
sLO, sWID, sHI, sSAFE, sT, sREDO, sSTART, sMORE, sCNT, sTAG = range(80, 90)
sNL = 90; sI0, sI1 = 92, 94; sT8 = 96; sRARE = 97; mMORE = 100; sFIRST = 0; sOUTS = 1

def prefill_small():
    A(f"ds_write_b32 v{L4}, v{ZERO} offset:{HIST2}")
    A(f"ds_write_b32 v{L4}, v{ZERO} offset:{HIST2+16}")
def prefill_big(r):
    A(f"v_mov_b32 v{r}, {N}")
    A(f"v_mov_b32 v{r+1}, {N}")
    A(f"v_mov_b64 {vr(r+2,2)}, {vr(r,2)}")
    A(f"ds_write_b128 v{T16}, {vr(r,4)} offset:{LIST}")
    A(f"ds_write_b128 v{T16}, {vr(r,4)} offset:{LIST+8192}")
    A(f"v_mov_b32 v{r+4}, {ROWS + 49*RP}")
    A(f"v_mov_b32 v{r+5}, {BIG:#x}")
    A(f"v_mov_b64 {vr(r+6,2)}, {vr(r+4,2)}")
    A(f"ds_write_b128 v{T16}, {vr(r+4,4)} offset:{QD}")
    A("s_mov_b64 exec, 15")
    A(f"ds_write_b128 v{IP[0]+1}, {vr(r+4,4)} offset:{QD+8192}")
    A("s_mov_b64 exec, -1")
def bound():
    A(f"s_add_u32 s{sCNT}, s{sCNT}, 1")
    A(f"s_cmp_ge_u32 s{sCNT}, 0x8000")
    A("s_cbranch_scc1 L_END")
def wfrags(dst, areg, off, tstep):
    return [f"ds_read_b64_tr_b16 {vr(dst+8*cb+4*ks+2*tt,2)}, v{areg+cb} offset:{off + 4096*ks + tstep*tt}"
            for cb in range(2) for ks in range(2) for tt in range(2)]
def mm(dst, wf):
    return [f"v_mfma_f32_16x16x32_bf16 {vr(dst+4*cb,4)}, {vr(wf+8*cb+4*ks,4)}, {vr(XF+4*ks,4)}, {'0' if ks == 0 else vr(dst+4*cb,4)}"
            for ks in range(2) for cb in range(2)]
def pk(op, d, a, b, n=8, tail=""):
    f = lambda x, q: vr(x+q,2) if isinstance(x, int) else x
    return [f"{op} {vr(d+q,2)}, {f(a,q)}, {f(b,q)}{tail}" for q in range(0, n, 2)]

def kernel():
    L.append(f".globl {KN}\n.p2align 8\n.type {KN},@function")
    LB(KN)
    A("s_cmp_ge_u32 s2, 256")
    A("s_cbranch_scc1 L_END")
    A("s_load_dwordx16 s[20:35], s[0:1], 0")
    A("s_load_dwordx2 s[8:9], s[0:1], 64")
    A("s_memrealtime s[46:47]")
    if DIAG:
        stamp(30, real=True); stamp(29)
    A(f"v_lshrrev_b32 v{t}, 6, v0")
    A(f"v_and_b32 v{LANE}, 63, v0")
    A(f"s_mul_i32 s42, s2, {CH}")
    A(f"v_readfirstlane_b32 s3, v{t}")
    A(f"v_mad_u32_u24 v{t+1}, v{t}, {NPB}, v{LANE}")
    A(f"v_lshl_add_u32 v{t+1}, v{t+1}, 2, s42")
    A(f"s_mov_b32 s43, {E}")
    A(f"s_mov_b32 s44, {E - CH//2}")
    A(f"v_cmp_gt_u32 vcc, {NPB}, v{LANE}")
    A(f"v_cmp_gt_u32 {sr(M0_,2)}, s43, v{t+1}")
    A(f"v_cmp_gt_u32 {sr(M1_,2)}, s44, v{t+1}")
    A(f"v_lshlrev_b32 v{t+2}, 1, v{t+1}")
    A(f"v_lshlrev_b32 v{t+1}, 2, v{t+1}")
    A(f"v_add_u32 v{t+1}, {CH}, v{t+1}")
    A(f"s_and_b64 {sr(M0_,2)}, {sr(M0_,2)}, vcc")
    A(f"s_and_b64 {sr(M1_,2)}, {sr(M1_,2)}, vcc")
    A(f"v_lshlrev_b32 v{t+3}, 2, v0")
    A(f"v_mov_b32 v{ZERO}, 0")
    A(f"v_add_u32 v{t+3}, {H1}, v{t+3}")
    A(f"ds_write_b32 v{t+3}, v{ZERO}")
    A("s_lshl_b32 s42, s2, 3")
    A("s_or_b32 s42, s42, s3")
    A(f"s_mov_b64 exec, {sr(M0_,2)}")
    A("s_waitcnt lgkmcnt(0)")
    stamp(0)
    A(f"global_load_dwordx4 {vr(DST,4)}, v{t+1}, {sr(pDST,2)} offset:{-CH}")
    A(f"s_mov_b64 exec, {sr(M1_,2)}")
    A(f"global_load_dwordx4 {vr(DST+4,4)}, v{t+1}, {sr(pDST,2)} offset:{CH}")
    C("launch-unique tag: written by WG 0 / wave 7 (lane mask empty everywhere else)")
    A("s_or_b32 s46, s46, 0x80000000")
    A("s_cmp_eq_u32 s42, 7")
    A("s_cselect_b64 exec, 1, 0")
    A(f"v_mov_b32 v{t+5}, s46")
    A(f"global_store_dword v{ZERO}, v{t+5}, {sr(pDBG,2)} sc1")
    A(f"s_mov_b64 exec, {sr(M1_,2)}")
    A("s_barrier")
    A(f"global_load_dwordx4 {vr(SRC+4,4)}, v{t+1}, {sr(pSRC,2)} offset:{CH}")
    A(f"global_load_dwordx2 {vr(EE+2,2)}, v{t+2}, {sr(pE,2)} offset:{CH}")
    A(f"s_mov_b64 exec, {sr(M0_,2)}")
    A(f"global_load_dwordx4 {vr(SRC,4)}, v{t+1}, {sr(pSRC,2)} offset:{-CH}")
    A(f"global_load_dwordx2 {vr(EE,2)}, v{t+2}, {sr(pE,2)}")
    A("s_mov_b64 exec, -1")
    A(f"v_lshlrev_b32 v{T16}, 4, v0")
    A(f"v_lshlrev_b32 v{L4}, 2, v{LANE}")
    A(f"v_and_b32 v{IP[0]+1}, 0x30, v{T16}")
    prefill_small()
    prefill_big(154)
    A("s_and_b32 s4, s2, 7")
    A("s_lshl_b32 s4, s4, 5")
    A("s_lshr_b32 s7, s2, 3")
    A("s_add_u32 s4, s4, s7")
    A(f"s_mul_i32 s5, s4, {NPB}")
    row, pos = t+9, t+10
    A(f"v_lshrrev_b32 v{row}, 3, v0")
    A(f"v_xor_b32 v{t+7}, v{row}, v0")
    A(f"v_and_b32 v{t+7}, 7, v{t+7}")
    A(f"v_add_u32 v{t+8}, s5, v{row}")
    A(f"v_min_u32 v{t+8}, {N-1}, v{t+8}")
    A(f"v_lshlrev_b32 v{t+8}, 3, v{t+8}")
    A(f"v_add_lshl_u32 v{t+8}, v{t+8}, v{t+7}, 4")
    A("s_lshl_b32 s42, s3, 10")
    A(f"s_add_u32 m0, s42, {XS}")
    A(f"v_lshrrev_b32 v{t+7}, 1, v{row}")
    A(f"global_load_lds_dwordx4 v{t+8}, {sr(pX,2)}")
    A(f"v_and_b32 v{t+7}, 4, v{t+7}")
    A(f"v_and_or_b32 v{t+7}, v{row}, 2, v{t+7}")
    A(f"s_add_u32 m0, s42, {WM}")
    A(f"v_xor_b32 v{t+7}, v{t+7}, v0")
    A(f"v_lshlrev_b32 v{WG_}, 4, v{t+7}")
    A(f"global_load_lds_dwordx4 v{WG_}, {sr(pWM,2)}")
    A(f"s_mov_b32 s46, {(2**32 + 48)//49}")
    A(f"s_mov_b32 s47, {H1}")
    A(f"v_mov_b32 v{t}, 8")
    A(f"v_lshl_add_u32 v{t+17}, v{LANE}, 4, s47")
    stamp(1)
    for h in range(2):
        A(f"s_mov_b64 exec, {sr(M0_+2*h,2)}")
        A(f"s_waitcnt vmcnt({8-h})")
        if h == 0: stamp(2)
        for i in range(4*h, 4*h+4): A(f"v_mul_hi_u32 v{BK+i}, v{DST+i}, s46")
        for i in range(4*h, 4*h+4):
            A(f"v_lshl_add_u32 v{BK+i}, v{BK+i}, 2, s47")
            A(f"ds_add_rtn_u32 v{RK1+i}, v{BK+i}, v{t}")
    A("s_mov_b64 exec, -1")
    A(f"s_mov_b32 s46, {49*H1}")
    A("s_movk_i32 s47, -49")
    for i in range(8): A(f"v_lshl_add_u32 v{DST+i}, v{DST+i}, 2, s46")
    A("s_waitcnt lgkmcnt(0)")
    A("s_barrier")
    stamp(3)
    A(f"ds_read_b128 {vr(HH,4)}, v{t+17}")
    A(f"s_add_u32 s48, s{pWM}, 8192")
    A(f"s_addc_u32 s49, s{pWM+1}, 0")
    A(f"s_add_u32 s50, s{pWU}, 8192")
    A(f"s_addc_u32 s51, s{pWU+1}, 0")
    A(f"s_add_u32 s52, s{pWM}, 16384")
    A(f"s_addc_u32 s53, s{pWM+1}, 0")
    A(f"s_add_u32 m0, s42, {WM+8192}")
    A(f"s_mov_b32 s10, {WS_REC:#x}")
    A("s_mov_b32 s11, 0x20000")
    A("s_waitcnt lgkmcnt(0)")
    A(f"v_add3_u32 v{t+1}, v{HH}, v{HH+1}, v{HH+2}")
    A(f"v_add_u32 v{t+2}, v{t+1}, v{HH+3}")
    A(f"v_mov_b32 v{t+3}, v{t+2}")
    scan(t+3, [f"v_mad_i32_i24 v{DST+i}, v{BK+i}, s47, v{DST+i}" for i in range(8)] +
              [f"v_and_b32 v{pos}, 7, v0", f"s_sub_u32 s6, {N}, s5", f"s_min_u32 s6, s6, {NPB}", f"s_mov_b32 s47, {STG}"])
    A(f"v_sub_u32 v{BB}, v{t+3}, v{t+2}")
    A(f"v_add_u32 v{BB+1}, v{BB}, v{HH}")
    A(f"v_add_u32 v{BB+2}, v{BB+1}, v{HH+1}")
    A(f"v_add_u32 v{BB+3}, v{BB}, v{t+1}")
    A(f"ds_write_b128 v{t+17}, {vr(BB,4)} offset:1024")
    for h in range(2):
        A(f"s_mov_b64 exec, {sr(M0_+2*h,2)}")
        for i in range(4*h, 4*h+4): A(f"ds_read_b32 v{BSV+i}, v{BK+i} offset:1024")
    A("s_cmp_eq_u32 s3, 0")
    A("s_cselect_b64 exec, -1, 0")
    A(f"global_load_dword v{PUB+1}, v{ZERO}, {sr(pDBG,2)} sc1")
    A("s_mov_b64 exec, -1")
    A(f"global_load_lds_dwordx4 v{WG_}, s[48:49]")
    A(f"s_add_u32 m0, s42, {WU}")
    A(f"s_mov_b32 s{sLO}, 0")
    A(f"global_load_lds_dwordx4 v{WG_}, {sr(pWU,2)}")
    A(f"s_add_u32 m0, s42, {WU+8192}")
    A(f"s_movk_i32 s{sWID}, 256")
    A(f"global_load_lds_dwordx4 v{WG_}, s[50:51]")
    A(f"s_mov_b32 m0, {W3}")
    A("s_mov_b32 exec_hi, 0")
    A(f"global_load_lds_dword v{L4}, s[52:53]")
    A("s_mov_b64 exec, -1")
    for i in range(8):
        if i % 4 == 0: A(f"s_waitcnt lgkmcnt({4-i})")
        A(f"v_add3_u32 v{BSV+i}, v{BSV+i}, v{RK1+i}, s47")
    stamp(4)
    C("---- address setup while src / e are still in flight")
    node, g, r_, ch_, c8, g1 = t+11, t+12, t+13, t+14, t+15, t+16
    A(f"v_add_u32 v{SRA}, {STG}, v{T16}")
    A("s_lshl_b32 s54, s3, 6")
    A(f"s_add_u32 s54, s54, {STG+24576}")
    A(f"v_lshl_add_u32 v{TLA}, v{LANE}, 4, s54")
    A(f"s_mul_i32 s43, s2, {CHB}")
    A(f"s_add_u32 s43, s43, {REC:#x}")
    A("s_add_u32 s55, s43, 8192")
    A("s_add_u32 s56, s43, 16384")
    A(f"s_sub_u32 s54, s43, {STG}")
    A("s_lshl_b32 s57, s2, 11")
    A(f"s_add_u32 s57, s57, {OFFS:#x}")
    for i in range(4): A(f"v_lshl_or_b32 v{PUB+2*i}, v{HH+i}, 16, v{BB+i}")
    A("s_lshr_b32 s44, s3, 1")
    A("s_lshl_b32 s44, s44, 4")
    A("s_and_b32 s45, s3, 1")
    A(f"v_and_b32 v{node}, 15, v0")
    A(f"v_add_u32 v{node}, s44, v{node}")
    A(f"v_bfe_u32 v{g}, v0, 4, 2")
    A(f"v_xor_b32 v{t+7}, v{g}, v{pos}")
    A(f"v_lshlrev_b32 v{t+7}, 4, v{t+7}")
    A(f"v_lshl_add_u32 v{t+7}, v{node}, 7, v{t+7}")
    A(f"v_add_u32 v{XA}, {XS}, v{t+7}")
    A(f"v_xor_b32 v{XA+1}, 64, v{XA}")
    A(f"v_bfe_u32 v{r_}, v0, 2, 2")
    A(f"v_bfe_u32 v{ch_}, v0, 1, 1")
    A("s_lshl_b32 s46, s45, 2")
    A(f"v_or_b32 v{ch_}, s46, v{ch_}")
    A(f"v_and_b32 v{c8}, 1, v0")
    A(f"v_lshlrev_b32 v{c8}, 3, v{c8}")
    A(f"v_and_b32 v{g1}, 1, v{g}")
    A(f"v_lshlrev_b32 v{t+7}, 2, v{g1}")
    A(f"v_and_or_b32 v{t+7}, v{r_}, 2, v{t+7}")
    A(f"v_xor_b32 v{t+7}, v{t+7}, v{ch_}")
    A(f"v_lshl_add_u32 v{t+7}, v{t+7}, 4, v{c8}")
    A(f"v_lshl_add_u32 v{t+8}, v{g}, 3, v{r_}")
    A(f"v_lshl_add_u32 v{t+7}, v{t+8}, 7, v{t+7}")
    A(f"v_add_u32 v{WA}, {WM}, v{t+7}")
    A(f"v_xor_b32 v{WA+1}, 32, v{WA}")
    A("s_lshl_b32 s46, s45, 6")
    A(f"v_xor_b32 v{AW}, s46, v{XA}")
    A(f"v_bfe_u32 v{t+2}, v0, 2, 4")
    A(f"v_add_u32 v{t+2}, s44, v{t+2}")
    A(f"v_or_b32 v{t+3}, s46, v{IP[0]+1}")
    A(f"v_lshl_add_u32 v{AG}, v{t+2}, 7, v{t+3}")
    A(f"v_lshlrev_b32 v{AR}, 4, v{t+2}")
    A(f"v_and_b32 v{AR}, 0x70, v{AR}")
    A(f"v_xor_b32 v{AR}, v{AR}, v{AG}")
    A(f"v_add_u32 v{AR}, {AST}, v{AR}")
    A(f"v_cmp_gt_u32 {sr(MA_,2)}, s6, v{t+2}")
    A(f"s_mov_b32 s{sCNT}, 0")
    A("s_mov_b32 s46, 0xffff0000")
    stamp(24)
    for h in (1, 0):
        A(f"s_mov_b64 exec, {sr(M0_+2*h,2)}")
        A(f"s_waitcnt vmcnt({9 if h else 7})")
        for q in range(2*h, 2*h+2):
            A(f"v_lshl_or_b32 v{SRC+2*q}, v{EE+q}, 16, v{SRC+2*q}")
            A(f"ds_write2_b32 v{BSV+2*q}, v{SRC+2*q}, v{DST+2*q} offset0:0 offset1:1")
            A(f"v_and_or_b32 v{SRC+2*q+1}, v{EE+q}, s46, v{SRC+2*q+1}")
            A(f"ds_write2_b32 v{BSV+2*q+1}, v{SRC+2*q+1}, v{DST+2*q+1} offset0:0 offset1:1")
    A("s_mov_b64 exec, -1")
    A("s_cmp_lg_u32 s3, 0")
    A("s_waitcnt vmcnt(0)")
    A("s_cbranch_scc1 L_PUBD")
    LB("L_PUB")
    A(f"v_cmp_eq_u32 vcc, 0, v{PUB+1}")
    A("s_cbranch_vccnz L_NONCEW")
    A(f"ds_write_b32 v{ZERO}, v{PUB+1} offset:{NONCE}")
    for i in range(1,4): A(f"v_mov_b32 v{PUB+1+2*i}, v{PUB+1}")
    A(f"buffer_store_dwordx4 {vr(PUB,4)}, v{T16}, {sr(sWS,4)}, s57 offen sc1")
    A(f"buffer_store_dwordx4 {vr(PUB+4,4)}, v{T16}, {sr(sWS,4)}, s57 offen offset:1024 sc1")
    LB("L_PUBD")
    A("s_waitcnt lgkmcnt(0)")
    A("s_barrier")
    stamp(5)
    A(f"ds_read_b32 v{t+5}, v{ZERO} offset:{NONCE}")
    for r in range(3): A(f"ds_read_b128 {vr(106+4*r,4)}, v{SRA} offset:{8192*r}")
    A(f"ds_read_b128 v[118:121], v{TLA}")
    A("s_waitcnt lgkmcnt(4)")
    A(f"v_readfirstlane_b32 s{sTAG}, v{t+5}")
    A(f"v_lshlrev_b32 v{t+5}, 8, v{t+5}")
    for r in range(3):
        A(f"s_waitcnt lgkmcnt({3-r})")
        A(f"v_or_b32 v{107+4*r}, v{107+4*r}, v{t+5}")
        A(f"v_or_b32 v{109+4*r}, v{109+4*r}, v{t+5}")
        A(f"buffer_store_dwordx4 {vr(106+4*r,4)}, v{T16}, {sr(sWS,4)}, s{[43,55,56][r]} offen sc1")
    A("s_mov_b64 exec, 15")
    A("s_waitcnt lgkmcnt(0)")
    A(f"v_or_b32 v119, v119, v{t+5}")
    A(f"v_or_b32 v121, v121, v{t+5}")
    A(f"buffer_store_dwordx4 v[118:121], v{TLA}, {sr(sWS,4)}, s54 offen sc1")
    A("s_mov_b64 exec, -1")
    stamp(6)
    C("---- A' rows, B', S_B (while the stores drain)")
    A(f"ds_read_b128 {vr(XF,4)}, v{XA}")
    A(f"ds_read_b128 {vr(XF+4,4)}, v{XA+1}")
    AA(wfrags(WF, WA, 0, 512))
    A(f"s_lshl_b32 s{sT8}, s{sTAG}, 8")
    A(f"s_mov_b32 s{sNL}, {NLOG2E:#x}")
    A(f"s_mov_b32 s{sNL+1}, s{sNL}")
    A("s_lshr_b32 s47, s4, 2")
    A("s_lshl_b32 s47, s47, 1")
    A("s_and_b32 s43, s4, 1")
    A("s_add_u32 s47, s47, s43")
    A("s_and_b32 s43, s4, 2")
    A("s_lshl_b32 s43, s43, 6")
    A("s_add_u32 s47, s47, s43")
    A("s_lshl_b32 s47, s47, 3")
    A(f"s_add_u32 s47, s47, {OFFS:#x}")
    A("s_waitcnt lgkmcnt(0)")
    AA(mm(122, WF))
    AA(wfrags(138, WA, 8192, 512))
    AA(pk("v_pk_mul_f32", 122, 122, sr(sNL,2)))
    for q in range(4): A(f"v_cvt_pk_bf16_f32 v{130+q}, v{122+2*q}, v{123+2*q}")
    A(f"ds_write_b128 v{AW}, v[130:133] offset:{AST-XS}")
    A(f"ds_read_b128 v[134:137], v{AR}")
    A("s_lshl_b32 s46, s5, 7")
    A("s_waitcnt lgkmcnt(2)")
    AA(mm(162, 138))
    A(f"v_lshrrev_b32 v{t+8}, 1, v0")
    A(f"v_lshl_add_u32 v{ENB}, v{t+8}, 11, s47")
    A(f"s_mov_b64 exec, {sr(MA_,2)}")
    A("s_waitcnt lgkmcnt(0)")
    A(f"buffer_store_dwordx4 v[134:137], v{AG}, {sr(sWS,4)}, s46 offen sc1")
    C("all-zero pad row (index N): written by the last workgroup")
    A("s_cmpk_eq_u32 s2, 255")
    A("s_cselect_b32 exec_lo, -1, 0")
    A("s_mov_b32 exec_hi, 0")
    A(f"s_mov_b32 s43, {N*128}")
    A(f"buffer_store_dword v{ZERO}, v{L4}, {sr(sWS,4)}, s43 offen sc1")
    A("s_mov_b64 exec, -1")
    OF = 122
    def entry_load(): A(f"buffer_load_dwordx2 {vr(OF+8,2)}, v{ENB}, {sr(sWS,4)}, 0 offen sc1")
    if "ent0" in OPT: entry_load()
    AA(wfrags(WF, WA, WU-WM, 512))
    AA(pk("v_pk_mul_f32", 162, 162, sr(sNL,2)))
    for q in range(8): A(f"v_exp_f32 v{210+q}, v{162+q}")
    A(f"v_mul_u32_u24 v{BWA}, {RP}, v{node}")
    AA(pk("v_pk_add_f32", 210, 210, "1.0", tail=" op_sel_hi:[1,0]"))
    for q in range(8): A(f"v_rcp_f32 v{210+q}, v{210+q}")
    A(f"v_lshlrev_b32 v{t+7}, 2, v{g}")
    A("s_lshl_b32 s43, s45, 7")
    A(f"s_add_u32 s43, s43, {ROWS}")
    A(f"v_add3_u32 v{BWA}, v{BWA}, v{t+7}, s43")
    AA(pk("v_pk_mul_f32", 210, 162, 210))
    A("s_waitcnt lgkmcnt(0)")
    AA(mm(U, WF))
    A(f"v_cmpx_gt_u32 vcc, {NROW}, v{node}")
    for q in range(4):
        A(f"ds_write2_b32 v{BWA}, v{162+2*q}, v{163+2*q} offset0:{8*q} offset1:{8*q+4}")
    for q in range(4):
        A(f"ds_write2_b32 v{BWA}, v{210+2*q}, v{211+2*q} offset0:{oSB//4+8*q} offset1:{oSB//4+8*q+4}")
    A("s_mov_b64 exec, -1")
    if "ent0" not in OPT: entry_load()
    A(f"v_mul_u32_u24 v{RCB}, {CHB}, v{t+8}")
    A(f"v_lshlrev_b32 v{t+8}, 2, v{row}")
    A(f"v_and_b32 v{ENA}, 0xe0, v{L4}")
    A(f"v_mul_u32_u24 v{RCA}, {CHB}, v{t+8}")
    A(f"v_lshlrev_b32 v{LP}, 4, v{pos}")
    A(f"v_mov_b32 v{LP+1}, v{LP}")
    A(f"s_mov_b32 s{sSAFE}, 0")
    A(f"s_mov_b32 s{sFIRST}, 1")
    A(f"v_lshlrev_b32 v{t+8}, 1, v{g1}")
    A(f"v_and_b32 v{t+7}, 2, v{r_}")
    A(f"v_lshl_or_b32 v{t+7}, v{t+7}, 1, v{t+8}")
    A(f"v_xor_b32 v{t+7}, v{t+7}, v{ch_}")
    A(f"v_lshl_add_u32 v{t+7}, v{t+7}, 4, v{c8}")
    A(f"v_lshl_add_u32 v{t+8}, v{r_}, 2, v{t+8}")
    A(f"v_and_b32 v{t+17}, 2, v{g}")
    A(f"v_lshl_add_u32 v{t+8}, v{t+17}, 3, v{t+8}")
    A(f"v_lshl_add_u32 v{t+7}, v{t+8}, 7, v{t+7}")
    A(f"v_add_u32 v{WA2}, {WU+8192}, v{t+7}")
    A(f"v_xor_b32 v{WA2+1}, 32, v{WA2}")
    AA(wfrags(WF2, WA2, 0, 128))
    A(f"v_lshrrev_b32 v{t+8}, 2, v{pos}")
    A(f"v_and_b32 v{t+17}, 3, v{pos}")
    A(f"v_lshl_add_u32 v{t+8}, v{t+8}, 4, v{t+17}")
    A(f"v_lshlrev_b32 v{W3A}, 1, v{t+8}")
    for q in range(0, 8, 2): A(f"v_mov_b64 {vr(W+q,2)}, 0")
    for q in range(8): A(f"ds_read_u16_d16_hi v{W+q}, v{W3A} offset:{W3 + 64*(q>>2) + 8*(q&3)}")
    A("s_mov_b32 s12, s8")
    A(f"s_or_b32 s13, s9, {128 << 16:#x}")
    A(f"s_mov_b32 s14, {(N+1)*128}")
    A("s_mov_b32 s15, 0x20000")
    A(f"s_mov_b32 s16, s{pOUT}")
    A(f"s_mov_b32 s17, s{pOUT+1}")
    A(f"s_mov_b32 s18, {N*128}")
    A("s_mov_b32 s19, 0x20000")
    A(f"v_mov_b32 v{t+6}, s{sTAG}")
    A(f"v_not_b32 v{t+7}, v{t+6}")
    A(f"v_mov_b32 v{t+4}, 1")
    A("s_lshl_b32 s44, s2, 4")
    A(f"s_add_u32 s44, s44, {FL2:#x}")
    stamp(7)
    C("the wave that is last to see its stores acknowledged publishes this workgroup's table flag")
    A("s_mov_b64 exec, 1")
    A("s_waitcnt vmcnt(1)")
    stamp(26)
    A(f"ds_add_rtn_u32 v{t+4}, v{ZERO}, v{t+4} offset:{FLAGS+8}")
    A("s_waitcnt lgkmcnt(0)")
    A(f"v_cmpx_eq_u32 vcc, 7, v{t+4}")
    A(f"buffer_store_dwordx2 {vr(t+6,2)}, off, {sr(sWS,4)}, s44 sc1")
    A("s_mov_b64 exec, -1")
    A("s_waitcnt vmcnt(1)")
    LB("L_ENT")
    RA, RK, BP, RW = 132, 186, 202, 138
    KA, KB = t+1, t+2
    A("s_mov_b32 s46, 0x80078007")
    for i in range(4): A(f"ds_bpermute_b32 v{OF+2*i}, v{ENA}, v{OF+8} offset:{8*i}")
    A(f"v_xor_b32 v{OF+9}, s{sTAG}, v{OF+9}")
    A(f"v_and_or_b32 v{OF+9}, v{OF+8}, s46, v{OF+9}")
    A(f"v_cmp_ne_u32 vcc, 0, v{OF+9}")
    A(f"s_add_u32 s{sHI}, s{sLO}, s{sWID}")
    A("s_cbranch_vccnz L_ENTR")
    stamp(8)
    A(f"v_cmp_gt_u32 vcc, s{sWID}, v{LP}")
    A(f"v_add_u32 v{KA}, s{sLO}, v{LP}")
    A(f"v_mov_b32 v{t+3}, {HUGE:#x}")
    A(f"v_cndmask_b32 v{KA}, v{t+3}, v{KA}, vcc")
    A(f"s_mov_b32 s46, {REC:#x}")
    A(f"s_mov_b32 s47, {REC+CHB:#x}")
    A(f"s_mov_b32 s43, {REC+2*CHB:#x}")
    A(f"s_mov_b32 s42, {REC+3*CHB:#x}")
    A(f"v_add_u32 v{t+3}, v{KA}, v{RCA}")
    def rload(q):
        if q < 4:
            return [f"s_or_b64 exec, {sr(MK+4*q,2)}, {sr(MK+4*q+2,2)}",
                    f"buffer_load_dwordx4 {vr(RW+4*q,4)}, v{RA+q}, {sr(sWS,4)}, s{[46,47,43,42][q]} offen sc1"]
        return [f"s_mov_b64 exec, {sr(MK+4*q,2)}",
                f"buffer_load_dwordx4 {vr(RW+4*q,4)}, v{RA+4}, {sr(sWS,4)}, s46 offen offset:{32*(q-4)} sc1"]
    for i in range(4):
        lo = OF+2*i
        A(f"s_waitcnt lgkmcnt({3-i})")
        A(f"v_and_b32 v{lo+1}, 8, v{lo}")
        A(f"v_and_b32 v{RA+i}, 0xfff0, v{lo}")
        A(f"v_sub_u32 v{lo+1}, v{KA}, v{lo+1}")
        A(f"v_add_u32 v{RA+i}, v{RA+i}, v{t+3}")
        A(f"v_cmp_lt_u32_sdwa {sr(MK+4*i,2)}, v{lo+1}, v{lo} src0_sel:DWORD src1_sel:WORD_1")
        A(f"v_add_u32 v{lo+1}, 8, v{lo+1}")
        A(f"v_cmp_lt_u32_sdwa {sr(MK+4*i+2,2)}, v{lo+1}, v{lo} src0_sel:DWORD src1_sel:WORD_1")
        if i == 0: stamp(9)
        AA(rload(i))
        A("s_mov_b64 exec, -1")
    lo = OF+8
    A(f"s_add_u32 s44, s{sLO}, 128")
    A(f"s_cmpk_eq_u32 s{sWID}, 256")
    A(f"s_cselect_b32 s44, s44, {HUGE:#x}")
    A(f"v_and_b32 v{KB}, 16, v{LP}")
    A(f"v_add_u32 v{KB}, s44, v{KB}")
    A(f"v_and_b32 v{lo+1}, 8, v{lo}")
    A(f"v_and_b32 v{RA+4}, 0xfff0, v{lo}")
    A(f"v_add_u32_sdwa v{lo+1}, v{lo+1}, v{lo} dst_sel:DWORD dst_unused:UNUSED_PAD src0_sel:DWORD src1_sel:WORD_1")
    A(f"v_add3_u32 v{RA+4}, v{RA+4}, v{KB}, v{RCB}")
    A(f"v_cmp_lt_u32 {sr(mMORE,2)}, s{sHI}, v{lo+1}")
    A(f"v_sub_u32 v{lo+1}, v{lo+1}, v{KB}")
    A(f"v_add_u32 v{lo}, 0xffffffc0, v{lo+1}")
    for j in range(4):
        src = lo+1 if j < 2 else lo
        A(f"v_cmp_lt_i32 {sr(MK+16+4*j,2)}, {32*(j&1)}, v{src}")
        A(f"v_cmp_lt_i32 {sr(MK+16+4*j+2,2)}, {32*(j&1)+8}, v{src}")
    for q in range(4, 8): AA(rload(q))
    A("s_mov_b64 exec, -1")
    A(f"s_cmp_lg_u64 {sr(MK+24,2)}, 0")
    A(f"s_cselect_b32 s{sRARE}, 1, 0")
    note(sCNT, 20)
    A(f"s_mov_b32 s{sCNT}, 0")
    stamp(10)
    A(f"s_cmp_eq_u32 s{sFIRST}, 0")
    A("s_cbranch_scc1 L_HIST")
    A(f"s_mov_b32 s{sFIRST}, 0")
    C("---- remaining constants (in the shadow of the record loads)")
    AA(pk("v_pk_mul_f32", W, W, sr(sNL,2)))
    A(f"v_mul_u32_u24 v{AGR}, {XP}, v{node}")
    A(f"v_lshl_add_u32 v{AGR}, v{g}, 4, v{AGR}")
    A(f"v_add_u32 v{AGR}, {AGS}, v{AGR}")
    A(f"v_lshrrev_b32 v{t+7}, 1, v{g}")
    A(f"v_lshl_add_u32 v{t+7}, v{g1}, 1, v{t+7}")
    A(f"v_lshl_add_u32 v{t+7}, v{node}, 3, v{t+7}")
    A(f"v_lshlrev_b32 v{OUTO}, 4, v{t+7}")
    A(f"v_cmp_gt_u32 {sr(mON,2)}, s6, v{node}")
    A(f"v_cmp_gt_u32 {sr(mLN,2)}, s6, v{LANE}")
    A("s_lshl_b32 s45, s45, 6")
    A("s_lshl_b32 s44, s5, 7")
    A(f"s_add_u32 s{sOUTS}, s44, s45")
    A(f"v_mul_u32_u24 v{AGW}, {XP}, v{LANE}")
    A("s_lshl_b32 s44, s3, 4")
    A(f"s_add_u32 s44, s44, {AGS}")
    A(f"v_add_u32 v{AGW}, s44, v{AGW}")
    A(f"v_mul_u32_u24 v{ROWL}, {RP}, v{LANE}")
    A(f"v_add_u32 v{ROWL}, {ROWS}, v{ROWL}")
    A("s_lshl_b32 s44, s3, 5")
    A(f"v_add_u32 v{CRA}, s44, v{ROWL}")
    A(f"v_and_b32 v{FLA}, 31, v0")
    A(f"v_add_lshl_u32 v{FLA}, v{FLA}, s44, 4")
    A(f"v_add_u32 v{FLA}, {FL2:#x}, v{FLA}")
    A(f"v_and_b32 v{t+7}, 1, v{pos}")
    A(f"v_lshlrev_b32 v{t+7}, 4, v{t+7}")
    A(f"v_mov_b32 v{t+8}, 0x3f80")
    A(f"v_lshlrev_b32 v{t+7}, v{t+7}, v{t+8}")
    A(f"v_bfe_u32 v{GQ}, v0, 3, 2")
    A(f"v_bfe_u32 v{t+11}, v0, 5, 1")
    A(f"v_sub_u32 v{t+8}, v{GQ}, v{t+11}")
    A(f"v_lshlrev_b32 v{t+8}, 1, v{t+8}")
    A(f"v_lshrrev_b32 v{t+9}, 1, v{pos}")
    A(f"v_add_u32 v{t+9}, v{t+8}, v{t+9}")
    A(f"v_and_b32 v{t+8}, 2, v{t+8}")
    A(f"v_lshl_add_u32 v{t+9}, v{t+8}, 5, v{t+9}")
    for r in range(8): A(f"v_cmp_eq_u32 {sr(20+2*r,2)}, {r}, v{t+9}")
    for r in range(8): A(f"v_cndmask_b32 v{S+r}, 0, v{t+7}, {sr(20+2*r,2)}")
    A(f"v_bfe_u32 v{GA}, v0, 2, 1")
    A(f"v_lshl_add_u32 v{GA}, v{t+11}, 1, v{GA}")
    A(f"v_lshl_add_u32 v{GD}, v{GQ}, 1, v{t+11}")
    A("s_lshl_b32 s44, s3, 3")
    A(f"v_add_u32 v{SID}, s44, v{GD}")
    A(f"v_mul_u32_u24 v{SID}, {TP}, v{SID}")
    A(f"v_add_u32 v{TOTW}, v{SID}, v{LP}")
    A(f"v_add_u32 v{TOTW}, {TOT}, v{TOTW}")
    A("s_mul_i32 s44, s7, 392")
    A(f"s_mul_i32 s45, s3, {NPB}")
    A("s_add_u32 s44, s44, s45")
    A(f"v_add_lshl_u32 v{PFA}, v{LANE}, s44, 7")
    A(f"v_mov_b32 v{IP[1]+1}, v{IP[0]+1}")
    for q in range(0, 8, 2): A(f"v_mov_b64 {vr(EA[0]+q,2)}, 0")
    for q in range(0, 8, 2): A(f"v_mov_b64 {vr(AGG+q,2)}, 0")
    A(f"s_mov_b32 s{sI0}, 32")
    A(f"s_mov_b32 s{sI0+1}, 32")
    A(f"s_mov_b32 s{sI1}, 32")
    A(f"s_mov_b32 s{sI1+1}, 16")
    LB("L_HIST")
    A(f"v_mov_b32 v{t+5}, 4")
    A(f"s_mov_b64 exec, {sr(mMORE,2)}")
    A(f"ds_write_b32 v{ZERO}, v{t+5} offset:{FLAGS}")
    A("s_movk_i32 s44, 255")
    stamp(11)
    def hist(q):
        A(f"s_waitcnt vmcnt({7-q})")
        LB(f"L_HC{q}")
        A(rload(q)[0])
        A(f"v_xor_b32 v{RW+4*q+1}, s{sT8}, v{RW+4*q+1}")
        A(f"v_xor_b32 v{RW+4*q+3}, s{sT8}, v{RW+4*q+3}")
        A(f"v_or_b32 v{t+3}, v{RW+4*q+1}, v{RW+4*q+3}")
        A(f"v_cmp_lt_u32 vcc, s44, v{t+3}")
        A(f"s_cbranch_vccnz L_HR{q}")
        if q < 4: A(f"s_mov_b64 exec, {sr(MK+4*q,2)}")
        A(f"ds_add_rtn_u32 v{RK+2*q}, v{RW+4*q+1}, v{t+5} offset:{HIST2}")
        A(f"s_mov_b64 exec, {sr(MK+4*q+2,2)}")
        A(f"ds_add_rtn_u32 v{RK+2*q+1}, v{RW+4*q+3}, v{t+5} offset:{HIST2}")
    for q in range(6): hist(q)
    A(f"s_cmp_eq_u32 s{sRARE}, 0")
    A("s_cbranch_scc1 L_RARE1")
    hist(6); hist(7)
    LB("L_RARE1")
    A("s_mov_b64 exec, -1")
    note(sCNT, 21); stamp(23); note(sRARE, 25)
    A(f"s_cmp_lg_u32 s{sSAFE}, 0")
    A(f"s_cselect_b32 s44, 1.0, {f2u(2.0**-64):#x}")
    A("s_mov_b32 s45, s44")
    A("s_lshl_b32 s46, s3, 4")
    A("s_waitcnt lgkmcnt(0)")
    A("s_barrier")
    stamp(12)
    CNT, PB, INC, BS = t+7, t+8, t+9, t+10
    A(f"ds_read_b32 v{CNT}, v{L4} offset:{HIST2}")
    A(f"buffer_load_dwordx2 {vr(t+12,2)}, v{FLA}, {sr(sWS,4)}, 0 offen sc1")
    PF = int(OPT.get("pf", 24))
    A(f"s_mov_b64 exec, {(1 << PF) - 1:#x}")
    A(f"buffer_load_dword v254, v{PFA}, {sr(sWS,4)}, 0 offen sc1")
    A("s_mov_b64 exec, -1")
    A("s_waitcnt lgkmcnt(0)")
    A(f"v_add_u32 v{PB}, 12, v{CNT}")
    A(f"v_and_b32 v{PB}, -16, v{PB}")
    A(f"v_max_u32 v{PB}, 16, v{PB}")
    A(f"v_cndmask_b32 v{PB}, 0, v{PB}, {sr(mLN,2)}")
    A(f"v_mov_b32 v{INC}, v{PB}")
    scan(INC, [f"v_sub_u32 v{NPAD}, v{PB}, v{CNT}", f"s_mov_b32 s{sREDO}, 0"] + [f"v_mov_b64 {vr(Nn+q,2)}, 0" for q in range(0,8,2)] +
              [f"v_mov_b64 {vr(Dd+q,2)}, s[44:45]" for q in range(0,8,2)] +
              [f"v_cvt_f32_u32 v{NPAD}, v{NPAD}", f"v_mul_f32 v{NPAD}, {f2u(-0.25):#x}, v{NPAD}"])
    A(f"v_sub_u32 v{BS}, v{INC}, v{PB}")
    A(f"v_readlane_b32 s44, v{INC}, 63")
    A(f"ds_write_b32 v{L4}, v{BS} offset:{BASE2}")
    def baserd(k):
        A(f"s_mov_b64 exec, {sr(MK+2*k,2)}")
        A(f"ds_read_b32 v{BP+k}, v{RW+2*k+1} offset:{BASE2}")
    def scat(k):
        A(f"s_mov_b64 exec, {sr(MK+2*k,2)}")
        A(f"v_add_u32 v{BP+k}, v{BP+k}, v{RK+k}")
        A(f"ds_write_b32 v{BP+k}, v{RW+2*k} offset:{LIST}")
    for k in range(12): baserd(k)
    A(f"s_mov_b64 exec, {sr(mLN,2)}")
    A("s_cmpk_gt_u32 s44, 16384")
    A("s_cbranch_scc1 L_TOOBIG")
    A(f"v_lshrrev_b32 v{t+15}, 1, v{INC}")
    A(f"ds_write_b32 v{t+15}, v{ROWL} offset:{QD-4}")
    A(f"v_add_u32 v{t+15}, s46, v{BS}")
    A(f"v_lshrrev_b32 v{t+15}, 1, v{t+15}")
    LB("L_QD")
    for q in range(3):
        A(f"v_cmpx_lt_u32 vcc, s46, v{PB}")
        A("s_add_u32 s46, s46, 128")
        A(f"ds_write_b32 v{t+15}, v{ROWL} offset:{QD+64*q}")
    A(f"v_cmpx_lt_u32 vcc, s46, v{PB}")
    A(f"v_add_u32 v{t+15}, 192, v{t+15}")
    A("s_cbranch_execnz L_QD")
    A("s_waitcnt lgkmcnt(4)")
    for k in range(12): scat(k)
    A(f"s_cmp_eq_u32 s{sRARE}, 0")
    A("s_cbranch_scc1 L_RARE2")
    for k in range(12, 16): baserd(k)
    A("s_waitcnt lgkmcnt(0)")
    for k in range(12, 16): scat(k)
    LB("L_RARE2")
    A("s_mov_b64 exec, -1")
    A("s_add_u32 s44, s44, 127")
    A("s_lshr_b32 s44, s44, 7")
    A("s_lshr_b32 s45, s44, 3")
    A("s_and_b32 s44, s44, 7")
    A("s_mul_i32 s46, s45, s3")
    A("s_min_u32 s47, s44, s3")
    A(f"s_add_u32 s{sSTART}, s46, s47")
    A("s_cmp_lt_u32 s3, s44")
    A(f"s_addc_u32 s{sT}, s45, 0")
    A(f"s_not_b32 s45, s{sTAG}")
    A("s_waitcnt vmcnt(1)")
    LB("L_FC")
    A(f"v_xor_b32 v{t+12}, s{sTAG}, v{t+12}")
    A(f"v_xor_b32 v{t+13}, s45, v{t+13}")
    A(f"v_or_b32 v{t+12}, v{t+12}, v{t+13}")
    A(f"v_cmp_ne_u32 vcc, 0, v{t+12}")
    A("s_cbranch_vccnz L_FR")
    note(sCNT, 22)
    LB("L_MAIN")
    A(f"s_lshl_b32 s44, s{sT}, 4")
    A(f"s_lshl_b32 s45, s{sSTART}, 7")
    A(f"v_lshl_add_u32 v{t+15}, v{GQ}, 2, s45")
    A(f"v_mad_u32_u24 v{AI}, v{GA}, s44, v{t+15}")
    A("s_lshl_b32 s46, s44, 2")
    A(f"v_add_u32 v{AI+1}, s46, v{AI}")
    A(f"v_mul_u32_u24 v{AE}, s44, v{GD}")
    A(f"v_add_u32 v{AE}, s45, v{AE}")
    A(f"v_lshrrev_b32 v{AE+1}, 1, v{AE}")
    A(f"v_add_u32 v{AE+1}, {QD}, v{AE+1}")
    A("s_waitcnt lgkmcnt(0)")
    A("s_barrier")
    A("s_setprio 2")
    stamp(13)
    def gathers(g_):
        return [f"buffer_load_dwordx4 {vr(G[g_]+8*u+4*s,4)}, {vr(IP[s],2)}, {sr(sA,4)}, 0 idxen offen offset:{64*u}" for u in range(2) for s in range(2)]
    def idx(o):
        return [f"ds_read_u16 v{IP[0]}, v{AI} offset:{LIST+o}", f"ds_read_u16 v{IP[1]}, v{AI+1} offset:{LIST+o}"]
    def eas(b, o):
        return [f"ds_read_u16_d16_hi v{EA[b]+q}, v{AE} offset:{LIST+o+4*q+2}" for q in range(4)]
    def bs(b, areg):
        return [f"ds_read_b128 {vr(Bv[b],4)}, v{areg}", f"ds_read_b128 {vr(Bv[b]+4,4)}, v{areg} offset:128"]
    AA(idx(0))
    A(f"ds_read_u16 v{t}, v{AI} offset:{LIST+16}")
    A(f"ds_read_u16 v{t+1}, v{AI+1} offset:{LIST+16}")
    A(f"ds_read2_b32 {vr(RAp,2)}, v{AE+1} offset0:0 offset1:2")
    A("s_waitcnt lgkmcnt(3)")
    AA(gathers(0))
    A("s_waitcnt lgkmcnt(0)")
    A(f"v_mov_b32 v{IP[0]}, v{t}")
    A(f"v_mov_b32 v{IP[1]}, v{t+1}")
    A(f"v_lshl_add_u64 {vr(RAp,2)}, {vr(RAp,2)}, 0, {vr(LP,2)}")
    AA(gathers(1))
    AA(eas(0, 0) + bs(0, RAp) + bs(1, RAp+1) + eas(1, 16) + idx(32))
    A(f"ds_read2_b32 {vr(DSC,2)}, v{AE+1} offset0:4 offset1:1")
    A(f"s_cmp_lg_u32 s{sREDO}, 0")
    A("s_cbranch_scc1 L_NOSH")
    A(f"ds_read_b128 v[154:157], v{CRA} offset:{oSB}")
    A(f"ds_read_b128 v[158:161], v{CRA} offset:{oSB+16}")
    A("s_waitcnt lgkmcnt(0)")
    for q in range(0,8,2): A(f"v_pk_fma_f32 {vr(AGG+q,2)}, {vr(154+q,2)}, {vr(NPAD,2)}, {vr(AGG+q,2)} op_sel_hi:[1,0,1]")
    LB("L_NOSH")
    A(f"s_sub_u32 s{sCNT}, s{sT}, 1")
    A("s_cbranch_scc1 L_WEND")
    def cblock(u, b):
        for q in range(4):
            for p in range(2):
                e = vr(EA[b] + (q & 2), 2)
                sel = "op_sel:[1,0,0] op_sel_hi:[1,1,1]" if q & 1 else "op_sel_hi:[0,1,1]"
                A(f"v_pk_fma_f32 {vr(T[u]+4*q+2*p,2)}, {e}, {vr(W+4*u+2*p,2)}, {vr(Bv[b]+4*u+2*p,2)} {sel}")
    def mfma(g_, u, s):
        return f"v_mfma_f32_32x32x16_bf16 {vr(T[u],16)}, {vr(G[g_]+8*u+4*s,4)}, {vr(S+4*s,4)}, {vr(T[u],16)}"
    def esec(u, m0, m1):
        for r in range(16):
            A(f"v_exp_f32 v{EX+r}, v{T[u]+r}")
            if r == 1: A(m0)
            if r == 5: A(m1)
    def chain(u, safe):
        if safe:
            AA(pk("v_pk_add_f32", EX, EX, "1.0", n=16, tail=" op_sel_hi:[1,0]"))
            for r in range(16): A(f"v_rcp_f32 v{EX+r}, v{EX+r}")
            for q in range(4):
                for p in range(2):
                    n = vr(Nn+4*u+2*p,2)
                    A(f"v_pk_fma_f32 {n}, {vr(T[u]+4*q+2*p,2)}, {vr(EX+4*q+2*p,2)}, {n}")
            return
        for q in range(4):
            for p in range(2):
                n = vr(Nn+4*u+2*p,2); A(f"v_pk_fma_f32 {n}, {n}, {vr(EX+4*q+2*p,2)}, {n}")
            for p in range(2):
                n = vr(Nn+4*u+2*p,2); A(f"v_pk_fma_f32 {n}, {vr(T[u]+4*q+2*p,2)}, {vr(Dd+4*u+2*p,2)}, {n}")
            for p in range(2):
                d = vr(Dd+4*u+2*p,2); A(f"v_pk_fma_f32 {d}, {d}, {vr(EX+4*q+2*p,2)}, {d}")
    def flush():
        return [f"ds_write_b128 v{RAp+1}, {vr(r+4*u,4)} offset:{o+128*u}" for u in range(2) for r, o in ((Nn, oN), (Dd, oD))] + \
               [f"ds_write_b32 v{RAp+1}, v{SID} offset:{oS}"]
    A("s_waitcnt lgkmcnt(0)")
    cblock(0, 0)
    A("s_waitcnt vmcnt(4)")
    stamp(14)
    A(f"s_cmp_lg_u32 s{sSAFE}, 0")
    A(mfma(0,0,0)); A(mfma(0,0,1))
    A("s_setprio 0")
    A("s_nop 2")
    A("s_cbranch_scc1 L_LOOPS")
    def loop(tag, safe):
        LB(f"L_LOOP{tag}")
        for ph in range(2):
            o = 16*ph
            cblock(1, ph)
            A("s_setprio 1")
            esec(0, mfma(ph,1,0), mfma(ph,1,1))
            chain(0, safe)
            A("s_waitcnt vmcnt(0) lgkmcnt(0)")
            cblock(0, 1-ph)
            A(f"v_lshl_add_u64 {vr(RAp,2)}, {vr(DSC,2)}, 0, {vr(LP,2)}")
            esec(1, mfma(1-ph,0,0), mfma(1-ph,0,1))
            if ph == 1:
                A(f"v_lshl_add_u64 {vr(AI,2)}, {vr(AI,2)}, 0, {sr(sI0,2)}")
                A(f"v_lshl_add_u64 {vr(AE,2)}, {vr(AE,2)}, 0, {sr(sI1,2)}")
                o -= 32
            chain(1, safe)
            A("s_setprio 0")
            A(f"s_sub_u32 s{sCNT}, s{sCNT}, 1")
            A("s_cbranch_scc1 L_SEND")
            AA(gathers(ph))
            AA(bs(ph, RAp) + eas(ph, o+32) + idx(o+48))
            A(f"ds_read2_b32 {vr(DSC,2)}, v{AE+1} offset0:{o//8+6} offset1:{o//8+3}")
            AA(flush())
            if ph == 1: A(f"s_branch L_LOOP{tag}")
    loop("F", False)
    LB("L_SEND")
    stamp(15)
    for q in range(8): A(f"v_rcp_f32 v{EX+q}, v{Dd+q}")
    A(f"v_pk_add_f32 v[186:187], {vr(Dd,2)}, {vr(Dd+2,2)}")
    AA(pk("v_pk_mul_f32", EX, Nn, EX))
    A(f"ds_write_b128 v{TOTW}, {vr(EX,4)}")
    A(f"ds_write_b128 v{TOTW}, {vr(EX+4,4)} offset:128")
    AA(flush())
    A(f"v_pk_add_f32 v[188:189], {vr(Dd+4,2)}, {vr(Dd+6,2)}")
    A(f"v_pk_add_f32 v[190:191], {vr(EX,2)}, {vr(EX+2,2)}")
    A(f"v_pk_add_f32 v[192:193], {vr(EX+4,2)}, {vr(EX+6,2)}")
    A("v_pk_add_f32 v[186:187], v[186:187], v[188:189]")
    A("v_pk_add_f32 v[190:191], v[190:191], v[192:193]")
    A("v_pk_fma_f32 v[186:187], v[190:191], 0, v[186:187] op_sel_hi:[1,0,1]")
    A("v_add_f32 v186, v186, v187")
    A("v_mov_b32 v189, 1")
    A(f"v_cmpx_ngt_f32 vcc, {f2u(2.0**110):#x}, v186")
    A(f"ds_write_b32 v{ZERO}, v189 offset:{FLAGS+4}")
    A("s_mov_b64 exec, -1")
    LB("L_WEND")
    A("s_lshl_b32 s46, s3, 5")
    A(f"s_add_u32 s46, s46, {TOT}")
    A(f"s_mov_b32 s42, {NLN2:#x}")
    A("s_mov_b32 s43, s42")
    A("s_waitcnt lgkmcnt(0)")
    A("s_barrier")
    stamp(16)
    FN, FD, T0_, T1_ = 186, 194, 202, 210
    cn, ta = t+3, t+7
    A(f"ds_read_b32 v{cn}, v{ROWL} offset:{oS}")
    A(f"ds_read_b128 {vr(FD,4)}, v{CRA} offset:{oD}")
    A(f"ds_read_b128 {vr(FD+4,4)}, v{CRA} offset:{oD+16}")
    A(f"ds_read_b128 {vr(FN,4)}, v{CRA} offset:{oN}")
    A(f"ds_read_b128 {vr(FN+4,4)}, v{CRA} offset:{oN+16}")
    A(f"ds_read_b64 {vr(t+4,2)}, v{ZERO} offset:{FLAGS}")
    A("s_waitcnt lgkmcnt(5)")
    A(f"v_mov_b32_dpp v{ta}, v{cn} wave_shr:1 row_mask:0xf bank_mask:0xf bound_ctrl:1")
    A(f"v_sub_u32 v{cn}, v{cn}, v{ta}")
    A(f"v_add_u32 v{ta}, s46, v{ta}")
    A(f"v_cndmask_b32 v{cn}, 0, v{cn}, {sr(mLN,2)}")
    A(f"v_cmpx_lt_i32 s[44:45], 0, v{cn}")
    A(f"ds_read_b128 {vr(T0_,4)}, v{ta}")
    A(f"ds_read_b128 {vr(T0_+4,4)}, v{ta} offset:16")
    A(f"v_cmpx_lt_i32 vcc, {TP}, v{cn}")
    A(f"ds_read_b128 {vr(T1_,4)}, v{ta} offset:{TP}")
    A(f"ds_read_b128 {vr(T1_+4,4)}, v{ta} offset:{TP+16}")
    A("s_mov_b64 exec, -1")
    A("s_waitcnt lgkmcnt(4)")
    A(f"v_readfirstlane_b32 s47, v{t+5}")
    A(f"v_readfirstlane_b32 s{sMORE}, v{t+4}")
    for q in range(8): A(f"v_rcp_f32 v{FD+q}, v{FD+q}")
    A(f"s_andn2_b32 s47, s47, s{sSAFE}")
    A("s_cbranch_scc1 L_RETRY")
    AA(pk("v_pk_mul_f32", FN, FN, FD))
    AA(pk("v_pk_add_f32", AGG, AGG, FN))
    for q in range(8):
        A(f"v_subrev_f32_dpp v{AGG+q}, v{FN+q}, v{AGG+q} wave_shr:1 row_mask:0xf bank_mask:0xf bound_ctrl:1")
    LB("L_TL")
    A("s_mov_b64 exec, s[44:45]")
    A("s_waitcnt lgkmcnt(0)")
    AA(pk("v_pk_add_f32", AGG, AGG, T0_))
    A("s_mov_b64 exec, vcc")
    AA(pk("v_pk_add_f32", AGG, AGG, T1_))
    A(f"v_cmp_lt_i32 vcc, {2*TP}, v{cn}")
    A("s_mov_b64 exec, -1")
    A(f"s_cmp_lg_u32 s{sMORE}, 0")
    A("s_cbranch_vccnz L_TLM")
    A("s_cbranch_scc1 L_NEXT")
    AA(pk("v_pk_mul_f32", FN, AGG, "s[42:43]"))
    for q in range(4): A(f"v_cvt_pk_bf16_f32 v{FD+q}, v{FN+2*q}, v{FN+2*q+1}")
    A(f"ds_write_b128 v{AGW}, {vr(FD,4)}")
    A("s_waitcnt lgkmcnt(0)")
    A("s_barrier")
    stamp(17)
    A(f"ds_read_b128 {vr(T0_,4)}, v{AGR}")
    A(f"ds_read_b128 {vr(T0_+4,4)}, v{AGR} offset:64")
    for ks in range(2):
        A(f"s_waitcnt lgkmcnt({1-ks})")
        for cb in range(2):
            A(f"v_mfma_f32_16x16x32_bf16 {vr(U+4*cb,4)}, {vr(WF2+8*cb+4*ks,4)}, {vr(T0_+4*ks,4)}, {vr(U+4*cb,4)}")
    A("s_nop 6")
    AA(pk("v_pk_mul_f32", FN, U, sr(sNL,2)))
    for q in range(8): A(f"v_exp_f32 v{FN+q}, v{FN+q}")
    AA(pk("v_pk_add_f32", FN, FN, "1.0", tail=" op_sel_hi:[1,0]"))
    for q in range(8): A(f"v_rcp_f32 v{FN+q}, v{FN+q}")
    AA(pk("v_pk_mul_f32", FN, U, FN))
    for q in range(4): A(f"v_cvt_pk_bf16_f32 v{FD+q}, v{FN+2*q}, v{FN+2*q+1}")
    A("s_nop 1")
    A(f"v_permlane16_swap_b32 v{FD}, v{FD+2}")
    A(f"v_permlane16_swap_b32 v{FD+1}, v{FD+3}")
    A(f"s_mov_b64 exec, {sr(mON,2)}")
    A(f"buffer_store_dwordx4 {vr(FD,4)}, v{OUTO}, {sr(sOUT,4)}, s{sOUTS} offen {OPT.get('outf','').replace('+',' ')}")
    if DIAG:
        stamp(18)
        A("s_waitcnt vmcnt(0)")
        stamp(19)
        stamp(31, real=True)
        A("s_mov_b32 exec_lo, -1")
        A("s_mov_b32 exec_hi, 0")
        A("s_lshl_b32 s44, s2, 3")
        A("s_add_u32 s44, s44, s3")
        A("s_lshl_b32 s44, s44, 7")
        A(f"s_add_u32 s44, s44, {STAMP:#x}")
        A(f"buffer_store_dword v255, v{L4}, {sr(sWS,4)}, s44 offen")
    LB("L_END")
    A("s_endpgm")
    C("---- out-of-line paths")
    LB("L_TLM")
    A(f"v_min_i32 v{cn}, {64*TP}, v{cn}")
    A(f"v_add_u32 v{cn}, {-2*TP & 0xffffffff:#x}, v{cn}")
    A(f"v_add_u32 v{ta}, {2*TP}, v{ta}")
    A(f"v_cmpx_lt_i32 s[44:45], 0, v{cn}")
    A(f"ds_read_b128 {vr(T0_,4)}, v{ta}")
    A(f"ds_read_b128 {vr(T0_+4,4)}, v{ta} offset:16")
    A(f"v_cmpx_lt_i32 vcc, {TP}, v{cn}")
    A(f"ds_read_b128 {vr(T1_,4)}, v{ta} offset:{TP}")
    A(f"ds_read_b128 {vr(T1_+4,4)}, v{ta} offset:{TP+16}")
    A("s_branch L_TL")
    LB("L_NONCEW")
    A(f"global_load_dword v{PUB+1}, v{ZERO}, {sr(pDBG,2)} sc1")
    bound()
    A("s_waitcnt vmcnt(0)")
    A("s_branch L_PUB")
    LB("L_PASS")
    A(f"s_mov_b32 s{sCNT}, 0")
    LB("L_ENTR")
    A("s_waitcnt lgkmcnt(0)")
    entry_load()
    bound()
    A("s_waitcnt vmcnt(0)")
    A("s_branch L_ENT")
    LB("L_FR")
    A(f"buffer_load_dwordx2 {vr(t+12,2)}, v{FLA}, {sr(sWS,4)}, 0 offen sc1")
    bound()
    A("s_waitcnt vmcnt(0)")
    A("s_branch L_FC")
    for q in range(8):
        LB(f"L_HR{q}")
        A(rload(q)[1])
        bound()
        A("s_waitcnt vmcnt(0)")
        A(f"s_branch L_HC{q}")
    LB("L_RETRY")
    A(f"s_mov_b32 s{sSAFE}, 1")
    A(f"s_mov_b32 s{sREDO}, 1")
    for q in range(8):
        A(f"v_mov_b32 v{Nn+q}, 0")
        A(f"v_mov_b32 v{Dd+q}, 1.0")
    A("s_waitcnt vmcnt(0) lgkmcnt(0)")
    A("s_branch L_MAIN")
    LB("L_TOOBIG")
    A("s_mov_b64 exec, -1")
    A(f"s_mov_b32 s{sWID}, 64")
    A("s_branch L_AGAIN")
    LB("L_NEXT")
    A(f"s_mov_b32 s{sLO}, s{sHI}")
    LB("L_AGAIN")
    A("s_setprio 0")
    A("s_waitcnt vmcnt(0) lgkmcnt(0)")
    A("s_barrier")
    prefill_small()
    prefill_big(154)
    A("s_waitcnt lgkmcnt(0)")
    A("s_barrier")
    A("s_branch L_PASS")
    loop("S", True)

hdr = open("cdna_kernels/%s.s.ref" % NAME).read().split("; Override")[0]
out = hdr + f"; @launch grid=(256,1,1) block=(512,1,1) lds={LDSZ}\n"
out += '.amdgcn_target "amdgcn-amd-amdhsa--gfx950"\n.text\n'
kernel()
out += "\n".join(L) + "\n"
out += f""".section .rodata,"a"
.p2align 6
.amdhsa_kernel {KN}
  .amdhsa_next_free_vgpr 256
  .amdhsa_next_free_sgpr 102
  .amdhsa_accum_offset 256
  .amdhsa_group_segment_fixed_size 0
  .amdhsa_kernarg_size 72
  .amdhsa_user_sgpr_count 2
  .amdhsa_user_sgpr_kernarg_segment_ptr 1
  .amdhsa_system_sgpr_workgroup_id_x 1
.end_amdhsa_kernel
"""
dst = [a for a in sys.argv[1:] if not a.startswith("--")]
open(dst[0] if dst else f"cdna_kernels/{NAME}.s", "w").write(out)
```

```python
import sys, struct
NAME = "gather_scatter__mpnn_edge_mlp__graph"
KN = NAME + "_kernel"
N, E = 12500, 800000
CH, NPB = 3136, 49
ATAB, FL2, OFFS, REC = 0, 0x18C000, 0x190000, 0x210000
CHB = CH * 8
WS_END = REC + 256 * CHB
STAMP = 0x900000
LOG2E = 1.4426950408889634
def f2u(x): return struct.unpack("<I", struct.pack("<f", x))[0]
NLOG2E = f2u(-LOG2E); NLN2 = f2u(-0.6931471805599453)
DIAG = "--diag" in sys.argv
OPT = {a.split("=")[0][2:]: (a.split("=")[1] if "=" in a else "1") for a in sys.argv[1:] if a.startswith("--")}
WS_REC = (STAMP + 0x100000) if DIAG else WS_END
BIG = 0x40000000; HUGE = 0x10000000

L = []
def A(s): L.append("    " + s)
def AA(xs):
    for x in xs: A(x)
def LB(s): L.append(s + ":")
def C(s): L.append("    ; " + s)
def vr(b, n=1): return f"v{b}" if n == 1 else f"v[{b}:{b+n-1}]"
def sr(b, n=1): return f"s{b}" if n == 1 else f"s[{b}:{b+n-1}]"
SCANM = ["row_shr:1 row_mask:0xf bank_mask:0xf bound_ctrl:1", "row_shr:2 row_mask:0xf bank_mask:0xf bound_ctrl:1",
         "row_shr:4 row_mask:0xf bank_mask:0xf bound_ctrl:1", "row_shr:8 row_mask:0xf bank_mask:0xf bound_ctrl:1",
         "row_bcast:15 row_mask:0xa bank_mask:0xf", "row_bcast:31 row_mask:0xc bank_mask:0xf"]
def scan(v, fill=None):
    fill = list(fill or [])
    for m in SCANM:
        k = 0
        while k < 2 and fill:
            A(fill.pop(0)); k += 1
        if k < 2: A(f"s_nop {1-k}")
        A(f"v_add_u32_dpp v{v}, v{v}, v{v} {m}")
    AA(fill)
def stamp(k, real=False):
    if not DIAG: return
    A("s_memrealtime s[98:99]" if real else "s_memtime s[98:99]")
    A("s_waitcnt lgkmcnt(0)")
    A(f"v_writelane_b32 v255, s98, {k}")
def note(sreg, k):
    if DIAG: A(f"v_writelane_b32 v255, s{sreg}, {k}")

LIST, QD = 0, 16384
HIST2 = QD + 8256; FLAGS = HIST2 + 256; BASE2 = FLAGS + 16; NONCE = BASE2 + 256; W3 = NONCE + 16
ROWS, RP = W3 + 128, 1168
NROW = 50; oSB, oN, oD, oS = 256, 512, 768, 1024
R2 = (ROWS + NROW*RP + 255) // 256 * 256
STG = R2; TOT = R2; TP = 272; AGS = TOT + 64*TP; XP = 144
H1 = R2 + 26624; BASE1 = H1 + 1024
XS = H1 + 2048; AST = XS + 8192; WM = AST + 8192; WU = WM + 16384
LDSZ = WU + 16384
assert ROWS % 16 == 0 and XS % 256 == 0 and LDSZ <= 163840, LDSZ

SID, AGG, LP = 1, 2, 10
RAp = [12, 230]; AI = 14; AX = 16; QA = 25; A3 = 232; IP = [18, 20]; DSC = 22; NPAD = 24; LANE = 25
EA = [26, 30]; Bv = [34, 42]
S, W, Nn, Dd, U, WF2 = 50, 58, 66, 74, 82, 90
G = [106, 122]; T = [138, 154]; EX = 170
TOTW, CRA, AGW, AGR, OUTO, ROWL, T16, ENA, ENB, RCA, RCB, PFA, L4, FLA, GA, GQ, GD, ZERO = range(236, 254)
DST, SRC, EE, BK, RK1, BSV = 106, 114, 122, 126, 138, 146
PUB = 154
XA, WA, WA2, AW, AR, AG, BWA, W3A, WG_, SRA, TLA = 170, 172, 174, 176, 177, 178, 179, 180, 181, 182, 183
XF, WF = 186, 194
HH, BB = 210, 214
t = 218
sWS, sA, sOUT = 8, 12, 16
pX, pE, pSRC, pDST, pWM, pWU, pOUT, pDBG = 20, 22, 24, 26, 28, 30, 32, 34
M0_, M1_, MA_ = 36, 38, 40
mLN, mON = 36, 38
MK = 48
sLO, sWID, sHI, sSAFE, sT, sREDO, sSTART, sMORE, sCNT, sTAG = range(80, 90)
sNL = 90; sI0, sI1 = 92, 94; sT8 = 96; sRARE = 97; mMORE = 100; sFIRST = 0; sOUTS = 1

def prefill_small():
    A(f"ds_write_b32 v{L4}, v{ZERO} offset:{HIST2}")
    A(f"ds_write_b32 v{L4}, v{ZERO} offset:{HIST2+16}")
def prefill_big(r):
    A(f"v_mov_b32 v{r}, {N}")
    A(f"v_mov_b32 v{r+1}, {N}")
    A(f"v_mov_b64 {vr(r+2,2)}, {vr(r,2)}")
    A(f"ds_write_b128 v{T16}, {vr(r,4)} offset:{LIST}")
    A(f"ds_write_b128 v{T16}, {vr(r,4)} offset:{LIST+8192}")
    A(f"v_mov_b32 v{r+4}, {ROWS + 49*RP}")
    A(f"v_mov_b32 v{r+5}, {BIG:#x}")
    A(f"v_mov_b64 {vr(r+6,2)}, {vr(r+4,2)}")
    A(f"ds_write_b128 v{T16}, {vr(r+4,4)} offset:{QD}")
    A("s_mov_b64 exec, 15")
    A(f"ds_write_b128 v{IP[0]+1}, {vr(r+4,4)} offset:{QD+8192}")
    A("s_mov_b64 exec, -1")
def bound():
    A(f"s_add_u32 s{sCNT}, s{sCNT}, 1")
    A(f"s_cmp_ge_u32 s{sCNT}, 0x8000")
    A("s_cbranch_scc1 L_END")
def wfrags(dst, areg, off, tstep):
    return [f"ds_read_b64_tr_b16 {vr(dst+8*cb+4*ks+2*tt,2)}, v{areg+cb} offset:{off + 4096*ks + tstep*tt}"
            for cb in range(2) for ks in range(2) for tt in range(2)]
def mm(dst, wf):
    return [f"v_mfma_f32_16x16x32_bf16 {vr(dst+4*cb,4)}, {vr(wf+8*cb+4*ks,4)}, {vr(XF+4*ks,4)}, {'0' if ks == 0 else vr(dst+4*cb,4)}"
            for ks in range(2) for cb in range(2)]
def pk(op, d, a, b, n=8, tail=""):
    f = lambda x, q: vr(x+q,2) if isinstance(x, int) else x
    return [f"{op} {vr(d+q,2)}, {f(a,q)}, {f(b,q)}{tail}" for q in range(0, n, 2)]

def kernel():
    L.append(f".globl {KN}\n.p2align 8\n.type {KN},@function")
    LB(KN)
    A("s_cmp_ge_u32 s2, 256")
    A("s_cbranch_scc1 L_END")
    A("s_load_dwordx16 s[20:35], s[0:1], 0")
    A("s_load_dwordx2 s[8:9], s[0:1], 64")
    A("s_memrealtime s[46:47]")
    if DIAG:
        stamp(30, real=True); stamp(29)
    A(f"v_lshrrev_b32 v{t}, 6, v0")
    if "nocpf" not in OPT:
        C("pull the code (16 KB from here) into L2 early: one 128-B line per wave")
        A("s_getpc_b64 s[48:49]")
        A("s_and_b32 s50, s2, 0x78")
        A(f"v_add_lshl_u32 v{t+6}, v{t}, s50, 7")
        A("s_mov_b64 exec, 1")
        A(f"global_load_dword v254, v{t+6}, s[48:49]")
        A("s_mov_b64 exec, -1")
    A(f"v_and_b32 v{LANE}, 63, v0")
    A(f"s_mul_i32 s42, s2, {CH}")
    A(f"v_readfirstlane_b32 s3, v{t}")
    A(f"v_mad_u32_u24 v{t+1}, v{t}, {NPB}, v{LANE}")
    A(f"v_lshl_add_u32 v{t+1}, v{t+1}, 2, s42")
    A(f"s_mov_b32 s43, {E}")
    A(f"s_mov_b32 s44, {E - CH//2}")
    A(f"v_cmp_gt_u32 vcc, {NPB}, v{LANE}")
    A(f"v_cmp_gt_u32 {sr(M0_,2)}, s43, v{t+1}")
    A(f"v_cmp_gt_u32 {sr(M1_,2)}, s44, v{t+1}")
    A(f"v_lshlrev_b32 v{t+2}, 1, v{t+1}")
    A(f"v_lshlrev_b32 v{t+1}, 2, v{t+1}")
    A(f"v_add_u32 v{t+1}, {CH}, v{t+1}")
    A(f"s_and_b64 {sr(M0_,2)}, {sr(M0_,2)}, vcc")
    A(f"s_and_b64 {sr(M1_,2)}, {sr(M1_,2)}, vcc")
    A(f"v_lshlrev_b32 v{t+3}, 2, v0")
    A(f"v_mov_b32 v{ZERO}, 0")
    A(f"v_add_u32 v{t+3}, {H1}, v{t+3}")
    A(f"ds_write_b32 v{t+3}, v{ZERO}")
    A("s_lshl_b32 s42, s2, 3")
    A("s_or_b32 s42, s42, s3")
    A(f"s_mov_b64 exec, {sr(M0_,2)}")
    A("s_waitcnt lgkmcnt(0)")
    stamp(0)
    A(f"global_load_dwordx4 {vr(DST,4)}, v{t+1}, {sr(pDST,2)} offset:{-CH}")
    A(f"s_mov_b64 exec, {sr(M1_,2)}")
    A(f"global_load_dwordx4 {vr(DST+4,4)}, v{t+1}, {sr(pDST,2)} offset:{CH}")
    C("launch-unique tag: written by WG 0 / wave 7 (lane mask empty everywhere else)")
    A("s_or_b32 s46, s46, 0x80000000")
    A("s_cmp_eq_u32 s42, 7")
    A("s_cselect_b64 exec, 1, 0")
    A(f"v_mov_b32 v{t+5}, s46")
    A(f"global_store_dword v{ZERO}, v{t+5}, {sr(pDBG,2)} sc1")
    A(f"s_mov_b64 exec, {sr(M1_,2)}")
    A("s_barrier")
    A(f"global_load_dwordx4 {vr(SRC+4,4)}, v{t+1}, {sr(pSRC,2)} offset:{CH}")
    A(f"global_load_dwordx2 {vr(EE+2,2)}, v{t+2}, {sr(pE,2)} offset:{CH}")
    A(f"s_mov_b64 exec, {sr(M0_,2)}")
    A(f"global_load_dwordx4 {vr(SRC,4)}, v{t+1}, {sr(pSRC,2)} offset:{-CH}")
    A(f"global_load_dwordx2 {vr(EE,2)}, v{t+2}, {sr(pE,2)}")
    A("s_mov_b64 exec, -1")
    A(f"v_lshlrev_b32 v{T16}, 4, v0")
    A(f"v_lshlrev_b32 v{L4}, 2, v{LANE}")
    A(f"v_and_b32 v{IP[0]+1}, 0x30, v{T16}")
    prefill_small()
    A(f"ds_write_b32 v{ZERO}, v{ZERO} offset:{NONCE+4}")
    A("s_and_b32 s4, s2, 7")
    A("s_lshl_b32 s4, s4, 5")
    A("s_lshr_b32 s7, s2, 3")
    A("s_add_u32 s4, s4, s7")
    A(f"s_mul_i32 s5, s4, {NPB}")
    row, pos = t+9, t+10
    A(f"v_lshrrev_b32 v{row}, 3, v0")
    A(f"v_xor_b32 v{t+7}, v{row}, v0")
    A(f"v_and_b32 v{t+7}, 7, v{t+7}")
    A(f"v_add_u32 v{t+8}, s5, v{row}")
    A(f"v_min_u32 v{t+8}, {N-1}, v{t+8}")
    A(f"v_lshlrev_b32 v{t+8}, 3, v{t+8}")
    A(f"v_add_lshl_u32 v{t+8}, v{t+8}, v{t+7}, 4")
    A("s_lshl_b32 s42, s3, 10")
    A(f"s_add_u32 m0, s42, {XS}")
    A(f"v_lshrrev_b32 v{t+7}, 1, v{row}")
    A(f"global_load_lds_dwordx4 v{t+8}, {sr(pX,2)}")
    A(f"v_and_b32 v{t+7}, 4, v{t+7}")
    A(f"v_and_or_b32 v{t+7}, v{row}, 2, v{t+7}")
    A(f"s_add_u32 m0, s42, {WM}")
    A(f"v_xor_b32 v{t+7}, v{t+7}, v0")
    A(f"v_lshlrev_b32 v{WG_}, 4, v{t+7}")
    A(f"global_load_lds_dwordx4 v{WG_}, {sr(pWM,2)}")
    def late_dma():
        A(f"s_add_u32 s48, s{pWM}, 8192")
        A(f"s_addc_u32 s49, s{pWM+1}, 0")
        A(f"s_add_u32 m0, s42, {WM+8192}")
        A(f"s_add_u32 s50, s{pWU}, 8192")
        A(f"global_load_lds_dwordx4 v{WG_}, s[48:49]")
        A(f"s_addc_u32 s51, s{pWU+1}, 0")
        A(f"s_add_u32 m0, s42, {WU}")
        A(f"s_add_u32 s52, s{pWM}, 16384")
        A(f"global_load_lds_dwordx4 v{WG_}, {sr(pWU,2)}")
        A(f"s_addc_u32 s53, s{pWM+1}, 0")
        A(f"s_add_u32 m0, s42, {WU+8192}")
        A("s_nop 0")
        A(f"global_load_lds_dwordx4 v{WG_}, s[50:51]")
        A(f"s_mov_b32 m0, {W3}")
        A("s_mov_b32 exec_hi, 0")
        A(f"global_load_lds_dword v{L4}, s[52:53]")
        A("s_mov_b64 exec, -1")
    A(f"s_mov_b32 s10, {WS_REC:#x}")
    A("s_mov_b32 s11, 0x20000")
    A(f"s_sub_u32 s6, {N}, s5")
    A(f"s_min_u32 s6, s6, {NPB}")
    A(f"s_mov_b32 s46, {(2**32 + 48)//49}")
    A(f"s_mov_b32 s47, {H1}")
    A(f"v_mov_b32 v{t}, 8")
    A(f"v_lshl_add_u32 v{t+17}, v{LANE}, 4, s47")
    stamp(1)
    for h in range(2):
        A(f"s_mov_b64 exec, {sr(M0_+2*h,2)}")
        A(f"s_waitcnt vmcnt({8-h})")
        if h == 0: stamp(2)
        for i in range(4*h, 4*h+4): A(f"v_mul_hi_u32 v{BK+i}, v{DST+i}, s46")
        for i in range(4*h, 4*h+4):
            A(f"v_lshl_add_u32 v{BK+i}, v{BK+i}, 2, s47")
            A(f"ds_add_rtn_u32 v{RK1+i}, v{BK+i}, v{t}")
    A("s_mov_b64 exec, -1")
    A(f"s_mov_b32 s46, {49*H1}")
    A("s_movk_i32 s47, -49")
    for i in range(8): A(f"v_lshl_add_u32 v{DST+i}, v{DST+i}, 2, s46")
    A("s_waitcnt lgkmcnt(0)")
    A("s_barrier")
    stamp(3)
    A(f"ds_read_b128 {vr(HH,4)}, v{t+17}")
    A(f"s_mov_b32 s{sLO}, 0")
    A(f"s_movk_i32 s{sWID}, 256")
    A("s_waitcnt lgkmcnt(0)")
    A(f"v_add3_u32 v{t+1}, v{HH}, v{HH+1}, v{HH+2}")
    A(f"v_add_u32 v{t+2}, v{t+1}, v{HH+3}")
    A(f"v_mov_b32 v{t+3}, v{t+2}")
    scan(t+3, [f"v_mad_i32_i24 v{187+2*i}, v{BK+i}, s47, v{DST+i}" for i in range(8)] +
              [f"v_and_b32 v{pos}, 7, v0", f"s_mov_b32 s47, {STG}"])
    A(f"v_sub_u32 v{BB}, v{t+3}, v{t+2}")
    A(f"v_add_u32 v{BB+1}, v{BB}, v{HH}")
    A(f"v_add_u32 v{BB+2}, v{BB+1}, v{HH+1}")
    A(f"v_add_u32 v{BB+3}, v{BB}, v{t+1}")
    A(f"ds_write_b128 v{t+17}, {vr(BB,4)} offset:1024")
    for h in range(2):
        A(f"s_mov_b64 exec, {sr(M0_+2*h,2)}")
        for i in range(4*h, 4*h+4): A(f"ds_read_b32 v{BSV+i}, v{BK+i} offset:1024")
    A("s_cmp_eq_u32 s3, 0")
    A("s_cselect_b64 exec, -1, 0")
    A(f"global_load_dword v{PUB+1}, v{ZERO}, {sr(pDBG,2)} sc1")
    A("s_mov_b64 exec, -1")
    late_dma()
    for i in range(8):
        if i % 4 == 0: A(f"s_waitcnt lgkmcnt({4-i})")
        A(f"v_add3_u32 v{BSV+i}, v{BSV+i}, v{RK1+i}, s47")
    stamp(4)
    C("---- address setup while src / e are still in flight")
    node, g, r_, ch_, c8, g1 = t+11, t+12, t+13, t+14, t+15, t+16
    A(f"v_add_u32 v{SRA}, {STG}, v{T16}")
    A("s_lshl_b32 s54, s3, 6")
    A(f"s_add_u32 s54, s54, {STG+24576}")
    A(f"v_lshl_add_u32 v{TLA}, v{LANE}, 4, s54")
    A(f"s_mul_i32 s43, s2, {CHB}")
    A(f"s_add_u32 s43, s43, {REC:#x}")
    A("s_add_u32 s55, s43, 8192")
    A("s_add_u32 s56, s43, 16384")
    A(f"s_sub_u32 s54, s43, {STG}")
    A("s_lshl_b32 s57, s2, 11")
    A(f"s_add_u32 s57, s57, {OFFS:#x}")
    for i in range(4): A(f"v_lshl_or_b32 v{PUB+2*i}, v{HH+i}, 16, v{BB+i}")
    A("s_lshr_b32 s44, s3, 1")
    A("s_lshl_b32 s44, s44, 4")
    A("s_and_b32 s45, s3, 1")
    A(f"v_and_b32 v{node}, 15, v0")
    A(f"v_add_u32 v{node}, s44, v{node}")
    A(f"v_bfe_u32 v{g}, v0, 4, 2")
    A(f"v_xor_b32 v{t+7}, v{g}, v{pos}")
    A(f"v_lshlrev_b32 v{t+7}, 4, v{t+7}")
    A(f"v_lshl_add_u32 v{t+7}, v{node}, 7, v{t+7}")
    A(f"v_add_u32 v{XA}, {XS}, v{t+7}")
    A(f"v_xor_b32 v{XA+1}, 64, v{XA}")
    A(f"v_bfe_u32 v{r_}, v0, 2, 2")
    A(f"v_bfe_u32 v{ch_}, v0, 1, 1")
    A("s_lshl_b32 s46, s45, 2")
    A(f"v_or_b32 v{ch_}, s46, v{ch_}")
    A(f"v_and_b32 v{c8}, 1, v0")
    A(f"v_lshlrev_b32 v{c8}, 3, v{c8}")
    A(f"v_and_b32 v{g1}, 1, v{g}")
    A(f"v_lshlrev_b32 v{t+7}, 2, v{g1}")
    A(f"v_and_or_b32 v{t+7}, v{r_}, 2, v{t+7}")
    A(f"v_xor_b32 v{t+7}, v{t+7}, v{ch_}")
    A(f"v_lshl_add_u32 v{t+7}, v{t+7}, 4, v{c8}")
    A(f"v_lshl_add_u32 v{t+8}, v{g}, 3, v{r_}")
    A(f"v_lshl_add_u32 v{t+7}, v{t+8}, 7, v{t+7}")
    A(f"v_add_u32 v{WA}, {WM}, v{t+7}")
    A(f"v_xor_b32 v{WA+1}, 32, v{WA}")
    A("s_lshl_b32 s46, s45, 6")
    A(f"v_xor_b32 v{AW}, s46, v{XA}")
    A(f"v_bfe_u32 v{t+2}, v0, 2, 4")
    A(f"v_add_u32 v{t+2}, s44, v{t+2}")
    A(f"v_or_b32 v{t+3}, s46, v{IP[0]+1}")
    A(f"v_lshl_add_u32 v{AG}, v{t+2}, 7, v{t+3}")
    A(f"v_lshlrev_b32 v{AR}, 4, v{t+2}")
    A(f"v_and_b32 v{AR}, 0x70, v{AR}")
    A(f"v_xor_b32 v{AR}, v{AR}, v{AG}")
    A(f"v_add_u32 v{AR}, {AST}, v{AR}")
    A(f"v_cmp_gt_u32 {sr(MA_,2)}, s6, v{t+2}")
    A(f"s_mov_b32 s{sCNT}, 0")
    A(f"s_mov_b32 s{sNL}, {NLOG2E:#x}")
    A(f"s_mov_b32 s{sNL+1}, s{sNL}")
    A("s_mov_b32 s46, 0xffff0000")
    stamp(24)
    for h in (1, 0):
        A(f"s_mov_b64 exec, {sr(M0_+2*h,2)}")
        A(f"s_waitcnt vmcnt({9 if h else 7})")
        for q in range(2*h, 2*h+2):
            A(f"v_lshl_or_b32 v{186+4*q}, v{EE+q}, 16, v{SRC+2*q}")
            A(f"ds_write_b64 v{BSV+2*q}, {vr(186+4*q,2)}")
            A(f"v_and_or_b32 v{188+4*q}, v{EE+q}, s46, v{SRC+2*q+1}")
            A(f"ds_write_b64 v{BSV+2*q+1}, {vr(188+4*q,2)}")
    A("s_mov_b64 exec, -1")
    A("s_cmp_lg_u32 s3, 0")
    A("s_waitcnt vmcnt(0)")
    A("s_cbranch_scc1 L_PUBD")
    LB("L_PUB")
    A(f"v_cmp_eq_u32 vcc, 0, v{PUB+1}")
    A("s_cbranch_vccnz L_NONCEW")
    A(f"ds_write_b32 v{ZERO}, v{PUB+1} offset:{NONCE}")
    for i in range(1,4): A(f"v_mov_b32 v{PUB+1+2*i}, v{PUB+1}")
    A(f"buffer_store_dwordx4 {vr(PUB,4)}, v{T16}, {sr(sWS,4)}, s57 offen sc1")
    A(f"buffer_store_dwordx4 {vr(PUB+4,4)}, v{T16}, {sr(sWS,4)}, s57 offen offset:1024 sc1")
    LB("L_PUBD")
    A("s_waitcnt lgkmcnt(0)")
    A("s_barrier")
    stamp(5)
    A(f"ds_read_b32 v{t+5}, v{ZERO} offset:{NONCE}")
    for r in range(3): A(f"ds_read_b128 {vr(106+4*r,4)}, v{SRA} offset:{8192*r}")
    A(f"ds_read_b128 v[118:121], v{TLA}")
    A("s_waitcnt lgkmcnt(4)")
    A(f"v_readfirstlane_b32 s{sTAG}, v{t+5}")
    A(f"v_lshlrev_b32 v{t+5}, 8, v{t+5}")
    for r in range(3):
        A(f"s_waitcnt lgkmcnt({3-r})")
        A(f"v_or_b32 v{107+4*r}, v{107+4*r}, v{t+5}")
        A(f"v_or_b32 v{109+4*r}, v{109+4*r}, v{t+5}")
        A(f"buffer_store_dwordx4 {vr(106+4*r,4)}, v{T16}, {sr(sWS,4)}, s{[43,55,56][r]} offen sc1")
    A("s_mov_b64 exec, 15")
    A("s_waitcnt lgkmcnt(0)")
    A(f"v_or_b32 v119, v119, v{t+5}")
    A(f"v_or_b32 v121, v121, v{t+5}")
    A(f"buffer_store_dwordx4 v[118:121], v{TLA}, {sr(sWS,4)}, s54 offen sc1")
    A("s_mov_b64 exec, -1")
    stamp(6)
    C("---- A' rows")
    A(f"ds_read_b128 {vr(XF,4)}, v{XA}")
    A(f"ds_read_b128 {vr(XF+4,4)}, v{XA+1}")
    AA(wfrags(WF, WA, 0, 512))
    A("s_lshr_b32 s47, s4, 2")
    A("s_lshl_b32 s47, s47, 1")
    A("s_and_b32 s46, s4, 1")
    A("s_add_u32 s47, s47, s46")
    A("s_and_b32 s46, s4, 2")
    A("s_lshl_b32 s46, s46, 6")
    A("s_add_u32 s47, s47, s46")
    A("s_lshl_b32 s47, s47, 3")
    A(f"s_add_u32 s47, s47, {OFFS:#x}")
    A("s_waitcnt lgkmcnt(0)")
    AA(mm(126, WF))
    A(f"v_lshrrev_b32 v{t+8}, 1, v0")
    A(f"v_lshl_add_u32 v{ENB}, v{t+8}, 11, s47")
    A(f"v_mul_u32_u24 v{RCB}, {CHB}, v{t+8}")
    A(f"v_lshlrev_b32 v{t+8}, 2, v{row}")
    A(f"v_and_b32 v{ENA}, 0xe0, v{L4}")
    A(f"v_mul_u32_u24 v{RCA}, {CHB}, v{t+8}")
    A(f"v_lshlrev_b32 v{LP}, 4, v{pos}")
    A(f"v_mov_b32 v{LP+1}, v{LP}")
    AA(pk("v_pk_mul_f32", 126, 126, sr(sNL,2)))
    for q in range(4): A(f"v_cvt_pk_bf16_f32 v{134+q}, v{126+2*q}, v{127+2*q}")
    A(f"ds_write_b128 v{AW}, v[134:137] offset:{AST-XS}")
    A(f"ds_read_b128 v[106:109], v{AR}")
    def a_store():
        C("all-zero pad row (index N): written by the last workgroup")
        A("s_cmpk_eq_u32 s2, 255")
        A("s_cselect_b32 exec_lo, -1, 0")
        A("s_mov_b32 exec_hi, 0")
        A(f"s_mov_b32 s44, {N*128}")
        A(f"buffer_store_dword v{ZERO}, v{L4}, {sr(sWS,4)}, s44 offen sc1")
        A("s_lshl_b32 s44, s5, 7")
        A(f"s_mov_b64 exec, {sr(MA_,2)}")
        A(f"buffer_store_dwordx4 v[106:109], v{AG}, {sr(sWS,4)}, s44 offen sc1")
        A("s_mov_b64 exec, -1")
    LATE = False
    if not LATE:
        A("s_waitcnt lgkmcnt(0)")
        a_store()
    C("---- B', S_B, U (while the stores drain)")
    AA(wfrags(138, WA, 8192, 512))
    AA(wfrags(WF, WA, WU-WM, 512))
    A(f"s_lshl_b32 s{sT8}, s{sTAG}, 8")
    A("s_waitcnt lgkmcnt(8)")
    AA(mm(122, 138))
    A(f"v_mul_u32_u24 v{BWA}, {RP}, v{node}")
    A(f"v_lshlrev_b32 v{t+7}, 2, v{g}")
    A("s_lshl_b32 s43, s45, 7")
    A(f"s_add_u32 s43, s43, {ROWS}")
    A(f"v_add3_u32 v{BWA}, v{BWA}, v{t+7}, s43")
    A("s_waitcnt lgkmcnt(0)")
    AA(mm(U, WF))
    AA(pk("v_pk_mul_f32", 122, 122, sr(sNL,2)))
    for q in range(8): A(f"v_exp_f32 v{210+q}, v{122+q}")
    AA(pk("v_pk_add_f32", 210, 210, "1.0", tail=" op_sel_hi:[1,0]"))
    for q in range(8): A(f"v_rcp_f32 v{210+q}, v{210+q}")
    A("s_mov_b32 s43, 0xffff0000")
    for q in range(8): A(f"v_and_b32 v{138+q}, s43, v{122+q}")
    AA(pk("v_pk_mul_f32", 210, 122, 210))
    AA(pk("v_pk_add_f32", 122, 122, 138, tail=" neg_lo:[0,1] neg_hi:[0,1]"))
    for q in range(8): A(f"v_cvt_pk_bf16_f32 v{122+q}, v{122+q}, v{138+q}")
    A(f"v_cmpx_gt_u32 vcc, {NROW}, v{node}")
    for q in range(4):
        A(f"ds_write2_b32 v{BWA}, v{122+2*q}, v{123+2*q} offset0:{8*q} offset1:{8*q+4}")
    for q in range(4):
        A(f"ds_write2_b32 v{BWA}, v{210+2*q}, v{211+2*q} offset0:{oSB//4+8*q} offset1:{oSB//4+8*q+4}")
    A("s_mov_b64 exec, -1")
    OF = 122
    def entry_load(): A(f"buffer_load_dwordx2 {vr(OF+8,2)}, v{ENB}, {sr(sWS,4)}, 0 offen sc1")
    entry_load()
    A(f"s_mov_b32 s{sSAFE}, 0")
    A(f"v_lshlrev_b32 v{t+8}, 1, v{g1}")
    A(f"v_and_b32 v{t+7}, 2, v{r_}")
    A(f"v_lshl_or_b32 v{t+7}, v{t+7}, 1, v{t+8}")
    A(f"v_xor_b32 v{t+7}, v{t+7}, v{ch_}")
    A(f"v_lshl_add_u32 v{t+7}, v{t+7}, 4, v{c8}")
    A(f"v_lshl_add_u32 v{t+8}, v{r_}, 2, v{t+8}")
    A(f"v_and_b32 v{t+17}, 2, v{g}")
    A(f"v_lshl_add_u32 v{t+8}, v{t+17}, 3, v{t+8}")
    A(f"v_lshl_add_u32 v{t+7}, v{t+8}, 7, v{t+7}")
    A(f"v_add_u32 v{WA2}, {WU+8192}, v{t+7}")
    A(f"v_xor_b32 v{WA2+1}, 32, v{WA2}")
    AA(wfrags(WF2, WA2, 0, 128))
    A(f"v_lshrrev_b32 v{t+8}, 2, v{pos}")
    A(f"v_and_b32 v{t+17}, 3, v{pos}")
    A(f"v_lshl_add_u32 v{t+8}, v{t+8}, 4, v{t+17}")
    A(f"v_bfe_u32 v{t+17}, v0, 5, 1")
    A(f"v_lshl_add_u32 v{t+8}, v{t+17}, 3, v{t+8}")
    A(f"v_lshlrev_b32 v{W3A}, 1, v{t+8}")
    for q in range(0, 4, 2): A(f"v_mov_b64 {vr(146+q,2)}, 0")
    for q in range(4): A(f"ds_read_u16_d16_hi v{146+q}, v{W3A} offset:{W3 + 64*(q>>1) + 8*(q&1)}")
    A("s_mov_b32 s12, s8")
    A(f"s_or_b32 s13, s9, {128 << 16:#x}")
    A(f"s_mov_b32 s14, {(N+1)*128}")
    A("s_mov_b32 s15, 0x20000")
    A(f"s_mov_b32 s16, s{pOUT}")
    A(f"s_mov_b32 s17, s{pOUT+1}")
    A(f"s_mov_b32 s18, {N*128}")
    A("s_mov_b32 s19, 0x20000")
    A(f"v_mul_u32_u24 v{AGR}, {XP}, v{node}")
    A(f"v_lshl_add_u32 v{AGR}, v{g}, 4, v{AGR}")
    A(f"v_add_u32 v{AGR}, {AGS}, v{AGR}")
    A(f"v_lshrrev_b32 v{t+7}, 1, v{g}")
    A(f"v_lshl_add_u32 v{t+7}, v{g1}, 1, v{t+7}")
    A(f"v_lshl_add_u32 v{t+7}, v{node}, 3, v{t+7}")
    A(f"v_lshlrev_b32 v{OUTO}, 4, v{t+7}")
    A(f"v_cmp_gt_u32 {sr(mON,2)}, s6, v{node}")
    A(f"v_cmp_gt_u32 {sr(mLN,2)}, s6, v{LANE}")
    A("s_lshl_b32 s45, s45, 6")
    A("s_lshl_b32 s44, s5, 7")
    A(f"s_add_u32 s{sOUTS}, s44, s45")
    A(f"v_mul_u32_u24 v{AGW}, {XP}, v{LANE}")
    A("s_lshl_b32 s44, s3, 4")
    A(f"s_add_u32 s44, s44, {AGS}")
    A(f"v_add_u32 v{AGW}, s44, v{AGW}")
    A(f"v_mul_u32_u24 v{ROWL}, {RP}, v{LANE}")
    A(f"v_add_u32 v{ROWL}, {ROWS}, v{ROWL}")
    A("s_lshl_b32 s44, s3, 5")
    A(f"v_add_u32 v{CRA}, s44, v{ROWL}")
    A(f"v_and_b32 v{FLA}, 31, v0")
    A(f"v_add_lshl_u32 v{FLA}, v{FLA}, s44, 4")
    A(f"v_add_u32 v{FLA}, {FL2:#x}, v{FLA}")
    A(f"v_and_b32 v{t+7}, 1, v{pos}")
    A(f"v_lshlrev_b32 v{t+7}, 4, v{t+7}")
    A(f"v_mov_b32 v{t+8}, 0x3f80")
    A(f"v_lshlrev_b32 v{t+7}, v{t+7}, v{t+8}")
    A(f"v_bfe_u32 v{GQ}, v0, 3, 2")
    A(f"v_bfe_u32 v{t+11}, v0, 5, 1")
    A(f"v_sub_u32 v{t+8}, v{GQ}, v{t+11}")
    A(f"v_lshlrev_b32 v{t+8}, 1, v{t+8}")
    A(f"v_lshrrev_b32 v{t+9}, 1, v{pos}")
    A(f"v_add_u32 v{t+9}, v{t+8}, v{t+9}")
    A(f"v_and_b32 v{t+8}, 2, v{t+8}")
    A(f"v_lshl_add_u32 v{t+9}, v{t+8}, 5, v{t+9}")
    for r in range(8): A(f"v_cmp_eq_u32 {sr(20+2*r,2)}, {r}, v{t+9}")
    for r in range(8): A(f"v_cndmask_b32 v{S+r}, 0, v{t+7}, {sr(20+2*r,2)}")
    A(f"v_bfe_u32 v{GA}, v0, 2, 1")
    A(f"v_lshl_add_u32 v{GA}, v{t+11}, 1, v{GA}")
    A(f"v_lshl_add_u32 v{GD}, v{GQ}, 1, v{t+11}")
    A("s_lshl_b32 s44, s3, 3")
    A(f"v_add_u32 v{SID}, s44, v{GD}")
    A(f"v_mul_u32_u24 v{SID}, {TP}, v{SID}")
    A(f"v_add_u32 v{TOTW}, v{SID}, v{LP}")
    A(f"v_add_u32 v{TOTW}, {TOT}, v{TOTW}")
    A("s_mul_i32 s44, s7, 392")
    A(f"s_mul_i32 s45, s3, {NPB}")
    A("s_add_u32 s44, s44, s45")
    A(f"v_add_lshl_u32 v{PFA}, v{LANE}, s44, 7")
    A(f"v_mov_b32 v{IP[1]+1}, v{IP[0]+1}")
    for q in range(0, 8, 2): A(f"v_mov_b64 {vr(EA[0]+q,2)}, 0")
    for q in range(0, 8, 2): A(f"v_mov_b64 {vr(AGG+q,2)}, 0")
    A(f"s_mov_b32 s{sI0}, 32")
    A(f"s_mov_b32 s{sI0+1}, 32")
    A(f"v_xor_b32 v{t+8}, v{GQ}, v{t+11}")
    A(f"v_and_b32 v{t+8}, 1, v{t+8}")
    A(f"v_lshrrev_b32 v{t+9}, 1, v{GQ}")
    A(f"v_lshl_add_u32 v{t+8}, v{t+8}, 1, v{t+9}")
    A(f"v_lshlrev_b32 v{t+9}, 2, v{t+11}")
    A(f"v_xor_b32 v{t+9}, v{t+9}, v{pos}")
    A(f"v_mov_b32 v{t+7}, 0x3f803f80")
    for r in range(4): A(f"v_cmp_eq_u32 {sr(20+2*r,2)}, {r}, v{t+8}")
    for r in range(4): A(f"v_cmp_eq_u32 {sr(28+2*r,2)}, {r}, v{t+9}")
    A("s_waitcnt lgkmcnt(0)")
    AA(pk("v_pk_mul_f32", 146, 146, sr(sNL,2), n=4))
    A("v_cvt_pk_bf16_f32 v146, v146, v147")
    A("v_cvt_pk_bf16_f32 v147, v148, v149")
    for r in range(4): A(f"v_cndmask_b32 v{A3+r}, 0, v{t+7}, {sr(28+2*r,2)}")
    for u in range(2):
        for r in range(4): A(f"v_cndmask_b32 v{W+4*u+r}, 0, v{146+u}, {sr(20+2*r,2)}")
    A("s_mov_b32 s20, 0x11111111")
    A("s_mov_b32 s21, 0x44444444")
    A("s_mov_b32 s22, 0x22222222")
    A("s_mov_b32 s23, 0x88888888")
    def signal(n, tag, blocking):
        A(f"s_cmp_lg_u32 s{sFIRST}, 1")
        A(f"s_cbranch_scc1 L_SG{tag}")
        if not blocking:
            A("s_getreg_b32 s59, hwreg(HW_REG_IB_STS, 0, 4)".replace("s59", "s33"))
            A(f"s_cmp_gt_u32 s33, {n}")
            A(f"s_cbranch_scc1 L_SG{tag}")
        A(f"s_mov_b32 s{sFIRST}, 2")
        A("s_mov_b64 exec, 1")
        A(f"s_waitcnt vmcnt({n})")
        A(f"ds_add_rtn_u32 v110, v{ZERO}, v110 offset:{NONCE+4}")
        A("s_waitcnt lgkmcnt(0)")
        A(f"v_cmpx_eq_u32 vcc, 7, v110")
        A(f"buffer_store_dwordx2 v[112:113], off, {sr(sWS,4)}, s32 sc1")
        A("s_mov_b64 exec, -1")
        stamp(26)
        LB(f"L_SG{tag}")
    A(f"v_mov_b32 v112, s{sTAG}")
    A("v_not_b32 v113, v112")
    A("v_mov_b32 v110, 1")
    A("s_lshl_b32 s32, s2, 4")
    A(f"s_add_u32 s32, s32, {FL2:#x}")
    A(f"s_mov_b32 s{sFIRST}, {0 if LATE else 1}")
    stamp(7)
    if not LATE: signal(1, "0", True)
    A(f"s_waitcnt vmcnt({0 if LATE else 1})")
    LB("L_ENT")
    RA, RK, BP, RW = 132, 186, 202, 138
    KA, KB = t+1, t+2
    A("s_mov_b32 s46, 0x80078007")
    for i in range(4): A(f"ds_bpermute_b32 v{OF+2*i}, v{ENA}, v{OF+8} offset:{8*i}")
    A(f"v_xor_b32 v{OF+9}, s{sTAG}, v{OF+9}")
    A(f"v_and_or_b32 v{OF+9}, v{OF+8}, s46, v{OF+9}")
    A(f"v_cmp_ne_u32 vcc, 0, v{OF+9}")
    A(f"s_add_u32 s{sHI}, s{sLO}, s{sWID}")
    A("s_cbranch_vccnz L_ENTR")
    stamp(8)
    A(f"v_cmp_gt_u32 vcc, s{sWID}, v{LP}")
    A(f"v_add_u32 v{KA}, s{sLO}, v{LP}")
    A(f"v_mov_b32 v{t+3}, {HUGE:#x}")
    A(f"v_cndmask_b32 v{KA}, v{t+3}, v{KA}, vcc")
    A(f"s_mov_b32 s46, {REC:#x}")
    A(f"s_mov_b32 s47, {REC+CHB:#x}")
    A(f"s_mov_b32 s43, {REC+2*CHB:#x}")
    A(f"s_mov_b32 s42, {REC+3*CHB:#x}")
    A(f"v_add_u32 v{t+3}, v{KA}, v{RCA}")
    def rload(q):
        if q < 4:
            return [f"s_or_b64 exec, {sr(MK+4*q,2)}, {sr(MK+4*q+2,2)}",
                    f"buffer_load_dwordx4 {vr(RW+4*q,4)}, v{RA+q}, {sr(sWS,4)}, s{[46,47,43,42][q]} offen sc1"]
        return [f"s_mov_b64 exec, {sr(MK+4*q,2)}",
                f"buffer_load_dwordx4 {vr(RW+4*q,4)}, v{RA+4}, {sr(sWS,4)}, s46 offen offset:{32*(q-4)} sc1"]
    for i in range(4):
        lo = OF+2*i
        A(f"s_waitcnt lgkmcnt({3-i})")
        A(f"v_and_b32 v{lo+1}, 8, v{lo}")
        A(f"v_and_b32 v{RA+i}, 0xfff0, v{lo}")
        A(f"v_sub_u32 v{lo+1}, v{KA}, v{lo+1}")
        A(f"v_add_u32 v{RA+i}, v{RA+i}, v{t+3}")
        A(f"v_cmp_lt_u32_sdwa {sr(MK+4*i,2)}, v{lo+1}, v{lo} src0_sel:DWORD src1_sel:WORD_1")
        A(f"v_add_u32 v{lo+1}, 8, v{lo+1}")
        A(f"v_cmp_lt_u32_sdwa {sr(MK+4*i+2,2)}, v{lo+1}, v{lo} src0_sel:DWORD src1_sel:WORD_1")
        if i == 0: stamp(9)
        AA(rload(i))
        A("s_mov_b64 exec, -1")
    lo = OF+8
    A(f"s_add_u32 s44, s{sLO}, 128")
    A(f"s_cmpk_eq_u32 s{sWID}, 256")
    A(f"s_cselect_b32 s44, s44, {HUGE:#x}")
    A(f"v_and_b32 v{KB}, 16, v{LP}")
    A(f"v_add_u32 v{KB}, s44, v{KB}")
    A(f"v_and_b32 v{lo+1}, 8, v{lo}")
    A(f"v_and_b32 v{RA+4}, 0xfff0, v{lo}")
    A(f"v_add_u32_sdwa v{lo+1}, v{lo+1}, v{lo} dst_sel:DWORD dst_unused:UNUSED_PAD src0_sel:DWORD src1_sel:WORD_1")
    A(f"v_add3_u32 v{RA+4}, v{RA+4}, v{KB}, v{RCB}")
    A(f"v_cmp_lt_u32 {sr(mMORE,2)}, s{sHI}, v{lo+1}")
    A(f"v_sub_u32 v{lo+1}, v{lo+1}, v{KB}")
    A(f"v_add_u32 v{lo}, 0xffffffc0, v{lo+1}")
    for j in range(4):
        src = lo+1 if j < 2 else lo
        A(f"v_cmp_lt_i32 {sr(MK+16+4*j,2)}, {32*(j&1)}, v{src}")
        A(f"v_cmp_lt_i32 {sr(MK+16+4*j+2,2)}, {32*(j&1)+8}, v{src}")
    for q in range(4, 8): AA(rload(q))
    A("s_mov_b64 exec, -1")
    A(f"s_cmp_lg_u64 {sr(MK+24,2)}, 0")
    A(f"s_cselect_b32 s{sRARE}, 1, 0")
    note(sCNT, 20)
    A(f"s_mov_b32 s{sCNT}, 0")
    stamp(10)
    if LATE:
        A(f"s_cmp_lg_u32 s{sFIRST}, 0")
        A("s_cbranch_scc1 L_NOAS")
        A(f"s_mov_b32 s{sFIRST}, 1")
        a_store()
        A("s_branch L_ASD")
        LB("L_NOAS")
        A("s_waitcnt vmcnt(0)")
        LB("L_ASD")
    prefill_big(114)
    LB("L_HIST")
    A(f"v_mov_b32 v{t+5}, 4")
    A(f"s_mov_b64 exec, {sr(mMORE,2)}")
    A(f"ds_write_b32 v{ZERO}, v{t+5} offset:{FLAGS}")
    A("s_movk_i32 s44, 255")
    stamp(11)
    def hist(q):
        A(f"s_waitcnt vmcnt({7-q + (2 if LATE else 0)})")
        LB(f"L_HC{q}")
        A(rload(q)[0])
        A(f"v_xor_b32 v{RW+4*q+1}, s{sT8}, v{RW+4*q+1}")
        A(f"v_xor_b32 v{RW+4*q+3}, s{sT8}, v{RW+4*q+3}")
        A(f"v_or_b32 v{t+3}, v{RW+4*q+1}, v{RW+4*q+3}")
        A(f"v_cmp_lt_u32 vcc, s44, v{t+3}")
        A(f"s_cbranch_vccnz L_HR{q}")
        if q < 4: A(f"s_mov_b64 exec, {sr(MK+4*q,2)}")
        A(f"ds_add_rtn_u32 v{RK+2*q}, v{RW+4*q+1}, v{t+5} offset:{HIST2}")
        A(f"s_mov_b64 exec, {sr(MK+4*q+2,2)}")
        A(f"ds_add_rtn_u32 v{RK+2*q+1}, v{RW+4*q+3}, v{t+5} offset:{HIST2}")
    for q in range(6): hist(q)
    A(f"s_cmp_eq_u32 s{sRARE}, 0")
    A("s_cbranch_scc1 L_RARE1")
    hist(6); hist(7)
    LB("L_RARE1")
    A("s_mov_b64 exec, -1")
    note(sCNT, 21); stamp(23); note(sRARE, 25)
    if LATE: signal(0, "1", False)
    A(f"s_cmp_lg_u32 s{sSAFE}, 0")
    A(f"s_cselect_b32 s44, 1.0, {f2u(2.0**-64):#x}")
    A("s_mov_b32 s45, s44")
    A("s_lshl_b32 s46, s3, 4")
    A("s_waitcnt lgkmcnt(0)")
    A("s_barrier")
    stamp(12)
    CNT, PB, INC, BS = t+7, t+8, t+9, t+10
    A(f"ds_read_b32 v{CNT}, v{L4} offset:{HIST2}")
    if not LATE: A(f"buffer_load_dwordx2 {vr(t+12,2)}, v{FLA}, {sr(sWS,4)}, 0 offen sc1")
    PF = int(OPT.get("pf", 24))
    A(f"s_mov_b64 exec, {(1 << PF) - 1:#x}")
    A(f"buffer_load_dword v254, v{PFA}, {sr(sWS,4)}, 0 offen sc1")
    A("s_mov_b64 exec, -1")
    A("s_waitcnt lgkmcnt(0)")
    A(f"v_add_u32 v{PB}, 12, v{CNT}")
    A(f"v_and_b32 v{PB}, -16, v{PB}")
    A(f"v_max_u32 v{PB}, 16, v{PB}")
    A(f"v_cndmask_b32 v{PB}, 0, v{PB}, {sr(mLN,2)}")
    A(f"v_mov_b32 v{INC}, v{PB}")
    scan(INC, [f"v_sub_u32 v{NPAD}, v{PB}, v{CNT}", f"s_mov_b32 s{sREDO}, 0"] + [f"v_mov_b64 {vr(Nn+q,2)}, 0" for q in range(0,8,2)] +
              [f"v_mov_b64 {vr(Dd+q,2)}, s[44:45]" for q in range(0,8,2)] +
              [f"v_cvt_f32_u32 v{NPAD}, v{NPAD}", f"v_mul_f32 v{NPAD}, {f2u(-0.25):#x}, v{NPAD}"])
    A(f"v_sub_u32 v{BS}, v{INC}, v{PB}")
    A(f"v_readlane_b32 s44, v{INC}, 63")
    A(f"ds_write_b32 v{L4}, v{BS} offset:{BASE2}")
    def baserd(k):
        A(f"s_mov_b64 exec, {sr(MK+2*k,2)}")
        A(f"ds_read_b32 v{BP+k}, v{RW+2*k+1} offset:{BASE2}")
    def scat(k):
        A(f"s_mov_b64 exec, {sr(MK+2*k,2)}")
        A(f"v_add_u32 v{BP+k}, v{BP+k}, v{RK+k}")
        A(f"ds_write_b32 v{BP+k}, v{RW+2*k} offset:{LIST}")
    for k in range(12): baserd(k)
    A(f"s_mov_b64 exec, {sr(mLN,2)}")
    A("s_cmpk_gt_u32 s44, 16384")
    A("s_cbranch_scc1 L_TOOBIG")
    A(f"v_lshrrev_b32 v{t+11}, 1, v{INC}")
    A(f"ds_write_b32 v{t+11}, v{ROWL} offset:{QD-4}")
    A(f"v_add_u32 v{t+11}, s46, v{BS}")
    A(f"v_lshrrev_b32 v{t+11}, 1, v{t+11}")
    LB("L_QD")
    for q in range(3):
        A(f"v_cmpx_lt_u32 vcc, s46, v{PB}")
        A("s_add_u32 s46, s46, 128")
        A(f"ds_write_b32 v{t+11}, v{ROWL} offset:{QD+64*q}")
    A(f"v_cmpx_lt_u32 vcc, s46, v{PB}")
    A(f"v_add_u32 v{t+11}, 192, v{t+11}")
    A("s_cbranch_execnz L_QD")
    A("s_waitcnt lgkmcnt(4)")
    if LATE:
        A("s_mov_b64 exec, -1")
        signal(1, "2", False)
        A(f"buffer_load_dwordx2 {vr(t+12,2)}, v{FLA}, {sr(sWS,4)}, 0 offen sc1")
    for k in range(12): scat(k)
    A(f"s_cmp_eq_u32 s{sRARE}, 0")
    A("s_cbranch_scc1 L_RARE2")
    for k in range(12, 16): baserd(k)
    A("s_waitcnt lgkmcnt(0)")
    for k in range(12, 16): scat(k)
    LB("L_RARE2")
    A("s_mov_b64 exec, -1")
    A("s_add_u32 s44, s44, 127")
    A("s_lshr_b32 s44, s44, 7")
    A("s_lshr_b32 s45, s44, 3")
    A("s_and_b32 s44, s44, 7")
    A("s_mul_i32 s46, s45, s3")
    A("s_min_u32 s47, s44, s3")
    A(f"s_add_u32 s{sSTART}, s46, s47")
    A("s_cmp_lt_u32 s3, s44")
    A(f"s_addc_u32 s{sT}, s45, 0")
    if LATE: signal(2, "3", True)
    A(f"s_not_b32 s45, s{sTAG}")
    A(f"s_waitcnt vmcnt({0 if LATE else 1})")
    LB("L_FC")
    A(f"v_xor_b32 v{t+12}, s{sTAG}, v{t+12}")
    A(f"v_xor_b32 v{t+13}, s45, v{t+13}")
    A(f"v_or_b32 v{t+12}, v{t+12}, v{t+13}")
    A(f"v_cmp_ne_u32 vcc, 0, v{t+12}")
    A("s_cbranch_vccnz L_FR")
    note(sCNT, 22)
    LB("L_MAIN")
    A(f"s_lshl_b32 s44, s{sT}, 4")
    A(f"s_lshl_b32 s45, s{sSTART}, 7")
    A(f"v_lshl_add_u32 v{t+11}, v{GQ}, 2, s45")
    A(f"v_mad_u32_u24 v{AI}, v{GA}, s44, v{t+11}")
    A(f"v_xor_b32 v{AX}, 2, v{GA}")
    A(f"v_mad_u32_u24 v{AX}, v{AX}, s44, v{t+11}")
    A("s_lshl_b32 s46, s44, 2")
    A(f"v_add_u32 v{AI+1}, s46, v{AI}")
    A(f"v_add_u32 v{AX+1}, s46, v{AX}")
    A("s_lshr_b32 s44, s44, 1")
    A("s_lshr_b32 s45, s45, 1")
    A(f"s_add_u32 s45, s45, {QD}")
    A(f"v_mul_u32_u24 v{QA}, s44, v{GD}")
    A(f"v_add_u32 v{QA}, s45, v{QA}")
    A("s_waitcnt lgkmcnt(0)")
    A("s_barrier")
    A("s_setprio 2")
    stamp(13); stamp(27, real=True)
    def gathers(g_):
        return [f"buffer_load_dwordx4 {vr(G[g_]+8*u+4*s,4)}, {vr(IP[s],2)}, {sr(sA,4)}, 0 idxen offen offset:{64*u}" for u in range(2) for s in range(2)]
    def idx(o):
        return [f"ds_read_u16 v{IP[0]}, v{AI} offset:{LIST+o}", f"ds_read_u16 v{IP[1]}, v{AI+1} offset:{LIST+o}"]
    def eas(b, o):
        ar = [AI, AI+1, AX, AX+1]
        return ["s_mov_b64 exec, s[20:21]"] + [f"ds_read_u16 v{EA[b]+r}, v{ar[r]} offset:{LIST+o+2}" for r in range(4)] + \
               ["s_mov_b64 exec, s[22:23]"] + [f"ds_read_u16_d16_hi v{EA[b]+r}, v{ar[r]} offset:{LIST+o+2}" for r in range(4)] + ["s_mov_b64 exec, -1"]
    def bs(b, areg):
        return [f"ds_read_b128 {vr(Bv[b],4)}, v{areg}", f"ds_read_b128 {vr(Bv[b]+4,4)}, v{areg} offset:128"]
    AA(idx(0))
    A(f"ds_read_u16 v{t}, v{AI} offset:{LIST+16}")
    A(f"ds_read_u16 v{t+1}, v{AI+1} offset:{LIST+16}")
    A(f"ds_read2_b32 {vr(RAp[0],2)}, v{QA} offset0:0 offset1:2")
    A("s_waitcnt lgkmcnt(3)")
    AA(gathers(0))
    A("s_waitcnt lgkmcnt(0)")
    A(f"v_mov_b32 v{IP[0]}, v{t}")
    A(f"v_mov_b32 v{IP[1]}, v{t+1}")
    A(f"v_lshl_add_u64 {vr(RAp[0],2)}, {vr(RAp[0],2)}, 0, {vr(LP,2)}")
    AA(gathers(1))
    AA(bs(0, RAp[0]) + eas(0, 0))
    A(f"v_mov_b32 v{RAp[1]+1}, {BIG:#x}")
    A(f"s_cmp_lg_u32 s{sREDO}, 0")
    A("s_cbranch_scc1 L_NOSH")
    A(f"ds_read_b128 v[154:157], v{CRA} offset:{oSB}")
    A(f"ds_read_b128 v[158:161], v{CRA} offset:{oSB+16}")
    A("s_waitcnt lgkmcnt(0)")
    for q in range(0,8,2): A(f"v_pk_fma_f32 {vr(AGG+q,2)}, {vr(154+q,2)}, {vr(NPAD,2)}, {vr(AGG+q,2)} op_sel_hi:[1,0,1]")
    LB("L_NOSH")
    A(f"s_sub_u32 s{sCNT}, s{sT}, 1")
    A("s_cbranch_scc1 L_WEND")
    def mfmas(b, u):
        d = vr(T[u],16)
        return [f"v_mfma_f32_32x32x16_bf16 {d}, {vr(A3,4)}, {vr(Bv[b]+4*u,4)}, 0",
                f"v_mfma_f32_32x32x16_bf16 {d}, {vr(EA[b],4)}, {vr(W+4*u,4)}, {d}"] + \
               [f"v_mfma_f32_32x32x16_bf16 {d}, {vr(G[b]+8*u+4*s,4)}, {vr(S+4*s,4)}, {d}" for s in range(2)]
    def esec(u, ms):
        for r in range(16):
            if r % 3 == 0 and r < 12: A(ms[r//3])
            A(f"v_exp_f32 v{EX+r}, v{T[u]+r}")
    def chain(u, safe):
        o = []
        if safe:
            o += pk("v_pk_add_f32", EX, EX, "1.0", n=16, tail=" op_sel_hi:[1,0]")
            o += [f"v_rcp_f32 v{EX+r}, v{EX+r}" for r in range(16)]
            for q in range(4):
                for p in range(2):
                    n = vr(Nn+4*u+2*p,2)
                    o.append(f"v_pk_fma_f32 {n}, {vr(T[u]+4*q+2*p,2)}, {vr(EX+4*q+2*p,2)}, {n}")
            return o
        for q in range(4):
            for p in range(2):
                n = vr(Nn+4*u+2*p,2); o.append(f"v_pk_fma_f32 {n}, {n}, {vr(EX+4*q+2*p,2)}, {n}")
            for p in range(2):
                n = vr(Nn+4*u+2*p,2); o.append(f"v_pk_fma_f32 {n}, {vr(T[u]+4*q+2*p,2)}, {vr(Dd+4*u+2*p,2)}, {n}")
            for p in range(2):
                d = vr(Dd+4*u+2*p,2); o.append(f"v_pk_fma_f32 {d}, {d}, {vr(EX+4*q+2*p,2)}, {d}")
        return o
    def flush(u, a):
        return [f"ds_write_b128 v{a}, {vr(r+4*u,4)} offset:{o+128*u}" for r, o in ((Nn, oN), (Dd, oD))] + \
               ([f"ds_write_b32 v{a}, v{SID} offset:{oS}"] if u == 0 else [])
    ms = mfmas(0, 0)
    A("s_waitcnt lgkmcnt(0)")
    A(ms[0]); A(ms[1])
    AA(bs(1, RAp[0]+1) + eas(1, 16) + idx(32))
    A(f"ds_read2_b32 {vr(DSC,2)}, v{QA} offset0:4 offset1:1")
    A("s_waitcnt vmcnt(4)")
    stamp(14)
    A(f"s_cmp_lg_u32 s{sSAFE}, 0")
    A(ms[2]); A(ms[3])
    A("s_nop 9")
    A("s_cbranch_scc1 L_INS")
    A("s_branch L_INF")
    def loop(tag, safe):
        L.append(".p2align 6")
        for _ in range(int(OPT.get("lpad", 1))): A("s_nop 0")
        LB(f"L_LOOP{tag}")
        for ph in range(2):
            o = 16*ph
            c = chain(1, safe)
            AA(c[:8]); A("s_setprio 1"); AA(c[8:])
            if ph == 0: LB(f"L_IN{tag}")
            esec(0, mfmas(ph, 1))
            AA(chain(0, safe))
            A("s_waitcnt vmcnt(0) lgkmcnt(0)")
            A(f"v_lshl_add_u64 {vr(RAp[ph],2)}, {vr(DSC,2)}, 0, {vr(LP,2)}")
            if ph == 1:
                A(f"v_lshl_add_u64 {vr(AI,2)}, {vr(AI,2)}, 0, {sr(sI0,2)}")
                A(f"v_lshl_add_u64 {vr(AX,2)}, {vr(AX,2)}, 0, {sr(sI0,2)}")
                A(f"v_add_u32 v{QA}, 16, v{QA}")
                o -= 32
            esec(1, mfmas(1-ph, 0))
            A("s_setprio 0")
            A(f"s_sub_u32 s{sCNT}, s{sCNT}, 1")
            A(f"s_cbranch_scc1 L_X{tag}{ph}")
            if "nogather" not in OPT: AA(gathers(ph))
            if "noflush" not in OPT: AA(flush(1, RAp[1-ph]+1))
            AA(bs(ph, RAp[ph]) + eas(ph, o+32) + idx(o+48))
            A(f"ds_read2_b32 {vr(DSC,2)}, v{QA} offset0:{o//8+6} offset1:{o//8+3}")
            AA(flush(0, RAp[ph]+1)[(2 if "noflush" in OPT else 0):])
            if ph == 1: A(f"s_branch L_LOOP{tag}")
        LB(f"L_X{tag}1")
        A(f"v_swap_b32 v{RAp[0]+1}, v{RAp[1]+1}")
        LB(f"L_X{tag}0")
        AA(flush(1, RAp[1]+1))
        AA(flush(0, RAp[0]+1))
        AA(chain(1, safe))
    loop("F", False)
    LB("L_SEND")
    stamp(15)
    for q in range(8): A(f"v_rcp_f32 v{EX+q}, v{Dd+q}")
    A(f"v_pk_add_f32 v[186:187], {vr(Dd,2)}, {vr(Dd+2,2)}")
    AA(pk("v_pk_mul_f32", EX, Nn, EX))
    A(f"ds_write_b128 v{TOTW}, {vr(EX,4)}")
    A(f"ds_write_b128 v{TOTW}, {vr(EX+4,4)} offset:128")
    AA(flush(1, RAp[0]+1))
    A(f"v_pk_add_f32 v[188:189], {vr(Dd+4,2)}, {vr(Dd+6,2)}")
    A(f"v_pk_add_f32 v[190:191], {vr(EX,2)}, {vr(EX+2,2)}")
    A(f"v_pk_add_f32 v[192:193], {vr(EX+4,2)}, {vr(EX+6,2)}")
    A("v_pk_add_f32 v[186:187], v[186:187], v[188:189]")
    A("v_pk_add_f32 v[190:191], v[190:191], v[192:193]")
    A("v_pk_fma_f32 v[186:187], v[190:191], 0, v[186:187] op_sel_hi:[1,0,1]")
    A("v_add_f32 v186, v186, v187")
    A("v_mov_b32 v189, 1")
    A(f"v_cmpx_ngt_f32 vcc, {f2u(2.0**110):#x}, v186")
    A(f"ds_write_b32 v{ZERO}, v189 offset:{FLAGS+4}")
    A("s_mov_b64 exec, -1")
    LB("L_WEND")
    A("s_lshl_b32 s46, s3, 5")
    A(f"s_add_u32 s46, s46, {TOT}")
    A(f"s_mov_b32 s42, {NLN2:#x}")
    A("s_mov_b32 s43, s42")
    A("s_waitcnt lgkmcnt(0)")
    A("s_barrier")
    stamp(16); stamp(28, real=True)
    FN, FD, T0_, T1_ = 186, 194, 202, 210
    cn, ta = t+3, t+7
    A(f"ds_read_b32 v{cn}, v{ROWL} offset:{oS}")
    A(f"ds_read_b128 {vr(FD,4)}, v{CRA} offset:{oD}")
    A(f"ds_read_b128 {vr(FD+4,4)}, v{CRA} offset:{oD+16}")
    A(f"ds_read_b128 {vr(FN,4)}, v{CRA} offset:{oN}")
    A(f"ds_read_b128 {vr(FN+4,4)}, v{CRA} offset:{oN+16}")
    A(f"ds_read_b64 {vr(t+4,2)}, v{ZERO} offset:{FLAGS}")
    A("s_waitcnt lgkmcnt(5)")
    A(f"v_mov_b32_dpp v{ta}, v{cn} wave_shr:1 row_mask:0xf bank_mask:0xf bound_ctrl:1")
    A(f"v_sub_u32 v{cn}, v{cn}, v{ta}")
    A(f"v_add_u32 v{ta}, s46, v{ta}")
    A(f"v_cndmask_b32 v{cn}, 0, v{cn}, {sr(mLN,2)}")
    A(f"v_cmpx_lt_i32 s[44:45], 0, v{cn}")
    A(f"ds_read_b128 {vr(T0_,4)}, v{ta}")
    A(f"ds_read_b128 {vr(T0_+4,4)}, v{ta} offset:16")
    A(f"v_cmpx_lt_i32 vcc, {TP}, v{cn}")
    A(f"ds_read_b128 {vr(T1_,4)}, v{ta} offset:{TP}")
    A(f"ds_read_b128 {vr(T1_+4,4)}, v{ta} offset:{TP+16}")
    A("s_mov_b64 exec, -1")
    A("s_waitcnt lgkmcnt(4)")
    A(f"v_readfirstlane_b32 s47, v{t+5}")
    A(f"v_readfirstlane_b32 s{sMORE}, v{t+4}")
    for q in range(8): A(f"v_rcp_f32 v{FD+q}, v{FD+q}")
    A(f"s_andn2_b32 s47, s47, s{sSAFE}")
    A("s_cbranch_scc1 L_RETRY")
    AA(pk("v_pk_mul_f32", FN, FN, FD))
    AA(pk("v_pk_add_f32", AGG, AGG, FN))
    for q in range(8):
        A(f"v_subrev_f32_dpp v{AGG+q}, v{FN+q}, v{AGG+q} wave_shr:1 row_mask:0xf bank_mask:0xf bound_ctrl:1")
    LB("L_TL")
    A("s_mov_b64 exec, s[44:45]")
    A("s_waitcnt lgkmcnt(0)")
    AA(pk("v_pk_add_f32", AGG, AGG, T0_))
    A("s_mov_b64 exec, vcc")
    AA(pk("v_pk_add_f32", AGG, AGG, T1_))
    A(f"v_cmp_lt_i32 vcc, {2*TP}, v{cn}")
    A("s_mov_b64 exec, -1")
    A(f"s_cmp_lg_u32 s{sMORE}, 0")
    A("s_cbranch_vccnz L_TLM")
    A("s_cbranch_scc1 L_NEXT")
    AA(pk("v_pk_mul_f32", FN, AGG, "s[42:43]"))
    for q in range(4): A(f"v_cvt_pk_bf16_f32 v{FD+q}, v{FN+2*q}, v{FN+2*q+1}")
    A(f"ds_write_b128 v{AGW}, {vr(FD,4)}")
    A("s_waitcnt lgkmcnt(0)")
    A("s_barrier")
    stamp(17)
    A(f"ds_read_b128 {vr(T0_,4)}, v{AGR}")
    A(f"ds_read_b128 {vr(T0_+4,4)}, v{AGR} offset:64")
    for ks in range(2):
        A(f"s_waitcnt lgkmcnt({1-ks})")
        for cb in range(2):
            A(f"v_mfma_f32_16x16x32_bf16 {vr(U+4*cb,4)}, {vr(WF2+8*cb+4*ks,4)}, {vr(T0_+4*ks,4)}, {vr(U+4*cb,4)}")
    A("s_nop 6")
    AA(pk("v_pk_mul_f32", FN, U, sr(sNL,2)))
    for q in range(8): A(f"v_exp_f32 v{FN+q}, v{FN+q}")
    AA(pk("v_pk_add_f32", FN, FN, "1.0", tail=" op_sel_hi:[1,0]"))
    for q in range(8): A(f"v_rcp_f32 v{FN+q}, v{FN+q}")
    AA(pk("v_pk_mul_f32", FN, U, FN))
    for q in range(4): A(f"v_cvt_pk_bf16_f32 v{FD+q}, v{FN+2*q}, v{FN+2*q+1}")
    A("s_nop 1")
    A(f"v_permlane16_swap_b32 v{FD}, v{FD+2}")
    A(f"v_permlane16_swap_b32 v{FD+1}, v{FD+3}")
    A(f"s_mov_b64 exec, {sr(mON,2)}")
    A(f"buffer_store_dwordx4 {vr(FD,4)}, v{OUTO}, {sr(sOUT,4)}, s{sOUTS} offen {OPT.get('outf','').replace('+',' ')}")
    if DIAG:
        stamp(18)
        A("s_waitcnt vmcnt(0)")
        stamp(19)
        stamp(31, real=True)
        A("s_mov_b32 exec_lo, -1")
        A("s_mov_b32 exec_hi, 0")
        A("s_lshl_b32 s44, s2, 3")
        A("s_add_u32 s44, s44, s3")
        A("s_lshl_b32 s44, s44, 7")
        A(f"s_add_u32 s44, s44, {STAMP:#x}")
        A(f"buffer_store_dword v255, v{L4}, {sr(sWS,4)}, s44 offen")
    LB("L_END")
    A("s_endpgm")
    C("---- out-of-line paths")
    LB("L_TLM")
    A(f"v_min_i32 v{cn}, {64*TP}, v{cn}")
    A(f"v_add_u32 v{cn}, {-2*TP & 0xffffffff:#x}, v{cn}")
    A(f"v_add_u32 v{ta}, {2*TP}, v{ta}")
    A(f"v_cmpx_lt_i32 s[44:45], 0, v{cn}")
    A(f"ds_read_b128 {vr(T0_,4)}, v{ta}")
    A(f"ds_read_b128 {vr(T0_+4,4)}, v{ta} offset:16")
    A(f"v_cmpx_lt_i32 vcc, {TP}, v{cn}")
    A(f"ds_read_b128 {vr(T1_,4)}, v{ta} offset:{TP}")
    A(f"ds_read_b128 {vr(T1_+4,4)}, v{ta} offset:{TP+16}")
    A("s_branch L_TL")
    LB("L_NONCEW")
    A(f"global_load_dword v{PUB+1}, v{ZERO}, {sr(pDBG,2)} sc1")
    bound()
    A("s_waitcnt vmcnt(0)")
    A("s_branch L_PUB")
    LB("L_PASS")
    A(f"s_mov_b32 s{sCNT}, 0")
    LB("L_ENTR")
    A("s_waitcnt lgkmcnt(0)")
    entry_load()
    bound()
    A("s_waitcnt vmcnt(0)")
    A("s_branch L_ENT")
    LB("L_FR")
    A(f"buffer_load_dwordx2 {vr(t+12,2)}, v{FLA}, {sr(sWS,4)}, 0 offen sc1")
    bound()
    A("s_waitcnt vmcnt(0)")
    A("s_branch L_FC")
    for q in range(8):
        LB(f"L_HR{q}")
        A(rload(q)[1])
        bound()
        A("s_waitcnt vmcnt(0)")
        A(f"s_branch L_HC{q}")
    LB("L_RETRY")
    A(f"s_mov_b32 s{sSAFE}, 1")
    A(f"s_mov_b32 s{sREDO}, 1")
    for q in range(8):
        A(f"v_mov_b32 v{Nn+q}, 0")
        A(f"v_mov_b32 v{Dd+q}, 1.0")
    A("s_waitcnt vmcnt(0) lgkmcnt(0)")
    A("s_branch L_MAIN")
    LB("L_TOOBIG")
    A("s_mov_b64 exec, -1")
    A(f"s_mov_b32 s{sWID}, 64")
    A("s_branch L_AGAIN")
    LB("L_NEXT")
    A(f"s_mov_b32 s{sLO}, s{sHI}")
    LB("L_AGAIN")
    A("s_setprio 0")
    A("s_waitcnt vmcnt(0) lgkmcnt(0)")
    A("s_barrier")
    prefill_small()
    A("s_waitcnt lgkmcnt(0)")
    A("s_barrier")
    A("s_branch L_PASS")
    loop("S", True)
    A("s_branch L_SEND")
    L.append(f".fill ((16384 + 256 - (. - {KN})) / 4), 4, 0xbf800000")

hdr = open("cdna_kernels/%s.s.ref" % NAME).read().split("; Override")[0]
out = hdr + f"; @launch grid=(256,1,1) block=(512,1,1) lds={LDSZ}\n"
out += '.amdgcn_target "amdgcn-amd-amdhsa--gfx950"\n.text\n'
kernel()
out += "\n".join(L) + "\n"
out += f""".section .rodata,"a"
.p2align 6
.amdhsa_kernel {KN}
  .amdhsa_next_free_vgpr 256
  .amdhsa_next_free_sgpr 102
  .amdhsa_accum_offset 256
  .amdhsa_group_segment_fixed_size 0
  .amdhsa_kernarg_size 72
  .amdhsa_user_sgpr_count 2
  .amdhsa_user_sgpr_kernarg_segment_ptr 1
  .amdhsa_system_sgpr_workgroup_id_x 1
.end_amdhsa_kernel
"""
dst = [a for a in sys.argv[1:] if not a.startswith("--")]
open(dst[0] if dst else f"cdna_kernels/{NAME}.s", "w").write(out)
```

```python
import sys, struct
NAME = "gather_scatter__mpnn_edge_mlp__graph"
KN = NAME + "_kernel"
N, E = 12500, 800000
CH, NPB = 3136, 49
ATAB, FL2, OFFS, REC = 0, 0x18C000, 0x190000, 0x210000
CHB = CH * 8
WS_END = REC + 256 * CHB
STAMP = 0x900000
LOG2E = 1.4426950408889634
def f2u(x): return struct.unpack("<I", struct.pack("<f", x))[0]
NLOG2E = f2u(-LOG2E); NLN2 = f2u(-0.6931471805599453)
DIAG = "--diag" in sys.argv
OPT = {a.split("=")[0][2:]: (a.split("=")[1] if "=" in a else "1") for a in sys.argv[1:] if a.startswith("--")}
WS_REC = (STAMP + 0x100000) if DIAG else WS_END
BIG = 0x40000000; HUGE = 0x10000000

L = []
def A(s): L.append("    " + s)
def AA(xs):
    for x in xs: A(x)
def LB(s): L.append(s + ":")
def C(s): L.append("    ; " + s)
def vr(b, n=1): return f"v{b}" if n == 1 else f"v[{b}:{b+n-1}]"
def sr(b, n=1): return f"s{b}" if n == 1 else f"s[{b}:{b+n-1}]"
SCANM = ["row_shr:1 row_mask:0xf bank_mask:0xf bound_ctrl:1", "row_shr:2 row_mask:0xf bank_mask:0xf bound_ctrl:1",
         "row_shr:4 row_mask:0xf bank_mask:0xf bound_ctrl:1", "row_shr:8 row_mask:0xf bank_mask:0xf bound_ctrl:1",
         "row_bcast:15 row_mask:0xa bank_mask:0xf", "row_bcast:31 row_mask:0xc bank_mask:0xf"]
def scan(v, fill=None):
    fill = list(fill or [])
    for m in SCANM:
        k = 0
        while k < 2 and fill:
            A(fill.pop(0)); k += 1
        if k < 2: A(f"s_nop {1-k}")
        A(f"v_add_u32_dpp v{v}, v{v}, v{v} {m}")
    AA(fill)
def stamp(k, real=False):
    if not DIAG: return
    A("s_memrealtime s[98:99]" if real else "s_memtime s[98:99]")
    A("s_waitcnt lgkmcnt(0)")
    A(f"v_writelane_b32 v255, s98, {k}")
def note(sreg, k):
    if DIAG: A(f"v_writelane_b32 v255, s{sreg}, {k}")

LIST, QD = 0, 16384
HIST2 = QD + 8256; FLAGS = HIST2 + 256; BASE2 = FLAGS + 16; NONCE = BASE2 + 256; W3 = NONCE + 16
ROWS, RP = W3 + 128, 1168
NROW = 50; oSB, oN, oD, oS = 256, 512, 768, 1024
R2 = (ROWS + NROW*RP + 255) // 256 * 256
STG = R2; TOT = R2; TP = 272; AGS = TOT + 64*TP; XP = 144
H1 = R2 + 26624; BASE1 = H1 + 1024
XS = H1 + 2048; AST = XS + 8192; WM = AST + 8192; WU = WM + 16384
LDSZ = WU + 16384
assert ROWS % 16 == 0 and XS % 256 == 0 and LDSZ <= 163840, LDSZ

SID, AGG, LP = 1, 2, 10
RAp = [12, 230]; AI = 14; AX = 16; QA = 25; A3 = 232; IP = [18, 20]; DSC = 22; NPAD = 24; LANE = 25
EA = [26, 30]; Bv = [34, 42]
S, W, Nn, Dd, U, WF2 = 50, 58, 66, 74, 82, 90
G = [106, 122]; T = [138, 154]; EX = 170
TOTW, CRA, AGW, AGR, OUTO, ROWL, T16, ENA, ENB, RCA, RCB, PFA, L4, FLA, GA, GQ, GD, ZERO = range(236, 254)
DST, SRC, EE, BK, RK1, BSV = 106, 114, 122, 126, 138, 146
PUB = 154
XA, WA, WA2, AW, AR, AG, BWA, W3A, WG_, SRA, TLA = 170, 172, 174, 176, 177, 178, 179, 180, 181, 182, 183
XF, WF = 186, 194
HH, BB = 210, 214
t = 218
sWS, sA, sOUT = 8, 12, 16
pX, pE, pSRC, pDST, pWM, pWU, pOUT, pDBG = 20, 22, 24, 26, 28, 30, 32, 34
M0_, M1_, MA_ = 36, 38, 40
mLN, mON = 36, 38
MK = 48
sLO, sWID, sHI, sSAFE, sT, sREDO, sSTART, sMORE, sCNT, sTAG = range(80, 90)
sNL = 90; sI0, sI1 = 92, 94; sT8 = 96; sRARE = 97; mMORE = 100; sFIRST = 0; sOUTS = 1

def prefill_small():
    A(f"ds_write_b32 v{L4}, v{ZERO} offset:{HIST2}")
    A(f"ds_write_b32 v{L4}, v{ZERO} offset:{HIST2+16}")
def prefill_big(r):
    A(f"v_mov_b32 v{r}, {N}")
    A(f"v_mov_b32 v{r+1}, {N}")
    A(f"v_mov_b64 {vr(r+2,2)}, {vr(r,2)}")
    A(f"ds_write_b128 v{T16}, {vr(r,4)} offset:{LIST}")
    A(f"ds_write_b128 v{T16}, {vr(r,4)} offset:{LIST+8192}")
    A(f"v_mov_b32 v{r+4}, {ROWS + 49*RP}")
    A(f"v_mov_b32 v{r+5}, {BIG:#x}")
    A(f"v_mov_b64 {vr(r+6,2)}, {vr(r+4,2)}")
    A(f"ds_write_b128 v{T16}, {vr(r+4,4)} offset:{QD}")
    A("s_mov_b64 exec, 15")
    A(f"ds_write_b128 v{IP[0]+1}, {vr(r+4,4)} offset:{QD+8192}")
    A("s_mov_b64 exec, -1")
def bound():
    A(f"s_add_u32 s{sCNT}, s{sCNT}, 1")
    A(f"s_cmp_ge_u32 s{sCNT}, 0x8000")
    A("s_cbranch_scc1 L_END")
def wfrags(dst, areg, off, tstep):
    return [f"ds_read_b64_tr_b16 {vr(dst+8*cb+4*ks+2*tt,2)}, v{areg+cb} offset:{off + 4096*ks + tstep*tt}"
            for cb in range(2) for ks in range(2) for tt in range(2)]
def mm(dst, wf):
    return [f"v_mfma_f32_16x16x32_bf16 {vr(dst+4*cb,4)}, {vr(wf+8*cb+4*ks,4)}, {vr(XF+4*ks,4)}, {'0' if ks == 0 else vr(dst+4*cb,4)}"
            for ks in range(2) for cb in range(2)]
def pk(op, d, a, b, n=8, tail=""):
    f = lambda x, q: vr(x+q,2) if isinstance(x, int) else x
    return [f"{op} {vr(d+q,2)}, {f(a,q)}, {f(b,q)}{tail}" for q in range(0, n, 2)]

def kernel():
    L.append(f".globl {KN}\n.p2align 8\n.type {KN},@function")
    LB(KN)
    A("s_cmp_ge_u32 s2, 256")
    A("s_cbranch_scc1 L_END")
    A("s_load_dwordx16 s[20:35], s[0:1], 0")
    A("s_load_dwordx2 s[8:9], s[0:1], 64")
    A("s_memrealtime s[46:47]")
    if DIAG:
        stamp(30, real=True); stamp(29)
    A(f"v_lshrrev_b32 v{t}, 6, v0")
    if "nocpf" not in OPT:
        C("pull the code (16 KB from here) into L2 early: one 128-B line per wave")
        A("s_getpc_b64 s[48:49]")
        A("s_and_b32 s50, s2, 0x78")
        A(f"v_add_lshl_u32 v{t+6}, v{t}, s50, 7")
        if "cpf2" not in OPT:
            A("s_mov_b64 exec, 1")
            A(f"global_load_dword v254, v{t+6}, s[48:49]")
            A("s_mov_b64 exec, -1")
    A(f"v_and_b32 v{LANE}, 63, v0")
    A(f"s_mul_i32 s42, s2, {CH}")
    A(f"v_readfirstlane_b32 s3, v{t}")
    A(f"v_mad_u32_u24 v{t+1}, v{t}, {NPB}, v{LANE}")
    A(f"v_lshl_add_u32 v{t+1}, v{t+1}, 2, s42")
    A(f"s_mov_b32 s43, {E}")
    A(f"s_mov_b32 s44, {E - CH//2}")
    A(f"v_cmp_gt_u32 vcc, {NPB}, v{LANE}")
    A(f"v_cmp_gt_u32 {sr(M0_,2)}, s43, v{t+1}")
    A(f"v_cmp_gt_u32 {sr(M1_,2)}, s44, v{t+1}")
    A(f"v_lshlrev_b32 v{t+2}, 1, v{t+1}")
    A(f"v_lshlrev_b32 v{t+1}, 2, v{t+1}")
    A(f"v_add_u32 v{t+1}, {CH}, v{t+1}")
    A(f"s_and_b64 {sr(M0_,2)}, {sr(M0_,2)}, vcc")
    A(f"s_and_b64 {sr(M1_,2)}, {sr(M1_,2)}, vcc")
    A(f"v_lshlrev_b32 v{t+3}, 2, v0")
    A(f"v_mov_b32 v{ZERO}, 0")
    A(f"v_add_u32 v{t+3}, {H1}, v{t+3}")
    A(f"ds_write_b32 v{t+3}, v{ZERO}")
    A("s_lshl_b32 s42, s2, 3")
    A("s_or_b32 s42, s42, s3")
    A(f"s_mov_b64 exec, {sr(M0_,2)}")
    A("s_waitcnt lgkmcnt(0)")
    stamp(0)
    A(f"global_load_dwordx4 {vr(DST,4)}, v{t+1}, {sr(pDST,2)} offset:{-CH}")
    A(f"s_mov_b64 exec, {sr(M1_,2)}")
    A(f"global_load_dwordx4 {vr(DST+4,4)}, v{t+1}, {sr(pDST,2)} offset:{CH}")
    if "cpf2" in OPT:
        A("s_mov_b64 exec, 1")
        A(f"global_load_dword v254, v{t+6}, s[48:49]")
    C("launch-unique tag: written by WG 0 / wave 7 (lane mask empty everywhere else)")
    A("s_or_b32 s46, s46, 0x80000000")
    A("s_cmp_eq_u32 s42, 7")
    A("s_cselect_b64 exec, 1, 0")
    A(f"v_mov_b32 v{t+5}, s46")
    A(f"global_store_dword v{ZERO}, v{t+5}, {sr(pDBG,2)} sc1")
    A(f"s_mov_b64 exec, {sr(M1_,2)}")
    A("s_barrier")
    A(f"global_load_dwordx4 {vr(SRC+4,4)}, v{t+1}, {sr(pSRC,2)} offset:{CH}")
    A(f"global_load_dwordx2 {vr(EE+2,2)}, v{t+2}, {sr(pE,2)} offset:{CH}")
    A(f"s_mov_b64 exec, {sr(M0_,2)}")
    A(f"global_load_dwordx4 {vr(SRC,4)}, v{t+1}, {sr(pSRC,2)} offset:{-CH}")
    A(f"global_load_dwordx2 {vr(EE,2)}, v{t+2}, {sr(pE,2)}")
    A("s_mov_b64 exec, -1")
    A(f"v_lshlrev_b32 v{T16}, 4, v0")
    A(f"v_lshlrev_b32 v{L4}, 2, v{LANE}")
    A(f"v_and_b32 v{IP[0]+1}, 0x30, v{T16}")
    prefill_small()
    A(f"ds_write_b32 v{ZERO}, v{ZERO} offset:{NONCE+4}")
    A("s_and_b32 s4, s2, 7")
    A("s_lshl_b32 s4, s4, 5")
    A("s_lshr_b32 s7, s2, 3")
    A("s_add_u32 s4, s4, s7")
    A(f"s_mul_i32 s5, s4, {NPB}")
    row, pos = t+9, t+10
    A(f"v_lshrrev_b32 v{row}, 3, v0")
    A(f"v_xor_b32 v{t+7}, v{row}, v0")
    A(f"v_and_b32 v{t+7}, 7, v{t+7}")
    A(f"v_add_u32 v{t+8}, s5, v{row}")
    A(f"v_min_u32 v{t+8}, {N-1}, v{t+8}")
    A(f"v_lshlrev_b32 v{t+8}, 3, v{t+8}")
    A(f"v_add_lshl_u32 v{t+8}, v{t+8}, v{t+7}, 4")
    A("s_lshl_b32 s42, s3, 10")
    A(f"s_add_u32 m0, s42, {XS}")
    A(f"v_lshrrev_b32 v{t+7}, 1, v{row}")
    A(f"global_load_lds_dwordx4 v{t+8}, {sr(pX,2)}")
    A(f"v_and_b32 v{t+7}, 4, v{t+7}")
    A(f"v_and_or_b32 v{t+7}, v{row}, 2, v{t+7}")
    A(f"s_add_u32 m0, s42, {WM}")
    A(f"v_xor_b32 v{t+7}, v{t+7}, v0")
    A(f"v_lshlrev_b32 v{WG_}, 4, v{t+7}")
    A(f"global_load_lds_dwordx4 v{WG_}, {sr(pWM,2)}")
    def late_dma():
        A(f"s_add_u32 s48, s{pWM}, 8192")
        A(f"s_addc_u32 s49, s{pWM+1}, 0")
        A(f"s_add_u32 m0, s42, {WM+8192}")
        A(f"s_add_u32 s50, s{pWU}, 8192")
        A(f"global_load_lds_dwordx4 v{WG_}, s[48:49]")
        A(f"s_addc_u32 s51, s{pWU+1}, 0")
        A(f"s_add_u32 m0, s42, {WU}")
        A(f"s_add_u32 s52, s{pWM}, 16384")
        A(f"global_load_lds_dwordx4 v{WG_}, {sr(pWU,2)}")
        A(f"s_addc_u32 s53, s{pWM+1}, 0")
        A(f"s_add_u32 m0, s42, {WU+8192}")
        A("s_nop 0")
        A(f"global_load_lds_dwordx4 v{WG_}, s[50:51]")
        A(f"s_mov_b32 m0, {W3}")
        A("s_mov_b32 exec_hi, 0")
        A(f"global_load_lds_dword v{L4}, s[52:53]")
        A("s_mov_b64 exec, -1")
    A(f"s_mov_b32 s10, {WS_REC:#x}")
    A("s_mov_b32 s11, 0x20000")
    A(f"s_sub_u32 s6, {N}, s5")
    A(f"s_min_u32 s6, s6, {NPB}")
    A(f"s_mov_b32 s46, {(2**32 + 48)//49}")
    A(f"s_mov_b32 s47, {H1}")
    A(f"v_mov_b32 v{t}, 8")
    A(f"v_lshl_add_u32 v{t+17}, v{LANE}, 4, s47")
    stamp(1)
    for h in range(2):
        A(f"s_mov_b64 exec, {sr(M0_+2*h,2)}")
        A(f"s_waitcnt vmcnt({8-h+(1 if 'cpf2' in OPT else 0)})")
        if h == 0: stamp(2)
        for i in range(4*h, 4*h+4): A(f"v_mul_hi_u32 v{BK+i}, v{DST+i}, s46")
        for i in range(4*h, 4*h+4):
            A(f"v_lshl_add_u32 v{BK+i}, v{BK+i}, 2, s47")
            A(f"ds_add_rtn_u32 v{RK1+i}, v{BK+i}, v{t}")
    A("s_mov_b64 exec, -1")
    A(f"s_mov_b32 s46, {49*H1}")
    A("s_movk_i32 s47, -49")
    for i in range(8): A(f"v_lshl_add_u32 v{DST+i}, v{DST+i}, 2, s46")
    A("s_waitcnt lgkmcnt(0)")
    A("s_barrier")
    stamp(3)
    A(f"ds_read_b128 {vr(HH,4)}, v{t+17}")
    A(f"s_mov_b32 s{sLO}, 0")
    A(f"s_movk_i32 s{sWID}, 256")
    A("s_waitcnt lgkmcnt(0)")
    A(f"v_add3_u32 v{t+1}, v{HH}, v{HH+1}, v{HH+2}")
    A(f"v_add_u32 v{t+2}, v{t+1}, v{HH+3}")
    A(f"v_mov_b32 v{t+3}, v{t+2}")
    scan(t+3, [f"v_mad_i32_i24 v{187+2*i}, v{BK+i}, s47, v{DST+i}" for i in range(8)] +
              [f"v_and_b32 v{pos}, 7, v0", f"s_mov_b32 s47, {STG}"])
    A(f"v_sub_u32 v{BB}, v{t+3}, v{t+2}")
    A(f"v_add_u32 v{BB+1}, v{BB}, v{HH}")
    A(f"v_add_u32 v{BB+2}, v{BB+1}, v{HH+1}")
    A(f"v_add_u32 v{BB+3}, v{BB}, v{t+1}")
    A(f"ds_write_b128 v{t+17}, {vr(BB,4)} offset:1024")
    for h in range(2):
        A(f"s_mov_b64 exec, {sr(M0_+2*h,2)}")
        for i in range(4*h, 4*h+4): A(f"ds_read_b32 v{BSV+i}, v{BK+i} offset:1024")
    A("s_cmp_eq_u32 s3, 0")
    A("s_cselect_b64 exec, -1, 0")
    A(f"global_load_dword v{PUB+1}, v{ZERO}, {sr(pDBG,2)} sc1")
    A("s_mov_b64 exec, -1")
    late_dma()
    for i in range(8):
        if i % 4 == 0: A(f"s_waitcnt lgkmcnt({4-i})")
        A(f"v_add3_u32 v{BSV+i}, v{BSV+i}, v{RK1+i}, s47")
    stamp(4)
    C("---- address setup while src / e are still in flight")
    node, g, r_, ch_, c8, g1 = t+11, t+12, t+13, t+14, t+15, t+16
    A(f"v_add_u32 v{SRA}, {STG}, v{T16}")
    A("s_lshl_b32 s54, s3, 6")
    A(f"s_add_u32 s54, s54, {STG+24576}")
    A(f"v_lshl_add_u32 v{TLA}, v{LANE}, 4, s54")
    A(f"s_mul_i32 s43, s2, {CHB}")
    A(f"s_add_u32 s43, s43, {REC:#x}")
    A("s_add_u32 s55, s43, 8192")
    A("s_add_u32 s56, s43, 16384")
    A(f"s_sub_u32 s54, s43, {STG}")
    A("s_lshl_b32 s57, s2, 11")
    A(f"s_add_u32 s57, s57, {OFFS:#x}")
    for i in range(4): A(f"v_lshl_or_b32 v{PUB+2*i}, v{HH+i}, 16, v{BB+i}")
    A("s_lshr_b32 s44, s3, 1")
    A("s_lshl_b32 s44, s44, 4")
    A("s_and_b32 s45, s3, 1")
    A(f"v_and_b32 v{node}, 15, v0")
    A(f"v_add_u32 v{node}, s44, v{node}")
    A(f"v_bfe_u32 v{g}, v0, 4, 2")
    A(f"v_xor_b32 v{t+7}, v{g}, v{pos}")
    A(f"v_lshlrev_b32 v{t+7}, 4, v{t+7}")
    A(f"v_lshl_add_u32 v{t+7}, v{node}, 7, v{t+7}")
    A(f"v_add_u32 v{XA}, {XS}, v{t+7}")
    A(f"v_xor_b32 v{XA+1}, 64, v{XA}")
    A(f"v_bfe_u32 v{r_}, v0, 2, 2")
    A(f"v_bfe_u32 v{ch_}, v0, 1, 1")
    A("s_lshl_b32 s46, s45, 2")
    A(f"v_or_b32 v{ch_}, s46, v{ch_}")
    A(f"v_and_b32 v{c8}, 1, v0")
    A(f"v_lshlrev_b32 v{c8}, 3, v{c8}")
    A(f"v_and_b32 v{g1}, 1, v{g}")
    A(f"v_lshlrev_b32 v{t+7}, 2, v{g1}")
    A(f"v_and_or_b32 v{t+7}, v{r_}, 2, v{t+7}")
    A(f"v_xor_b32 v{t+7}, v{t+7}, v{ch_}")
    A(f"v_lshl_add_u32 v{t+7}, v{t+7}, 4, v{c8}")
    A(f"v_lshl_add_u32 v{t+8}, v{g}, 3, v{r_}")
    A(f"v_lshl_add_u32 v{t+7}, v{t+8}, 7, v{t+7}")
    A(f"v_add_u32 v{WA}, {WM}, v{t+7}")
    A(f"v_xor_b32 v{WA+1}, 32, v{WA}")
    A("s_lshl_b32 s46, s45, 6")
    A(f"v_xor_b32 v{AW}, s46, v{XA}")
    A(f"v_bfe_u32 v{t+2}, v0, 2, 4")
    A(f"v_add_u32 v{t+2}, s44, v{t+2}")
    A(f"v_or_b32 v{t+3}, s46, v{IP[0]+1}")
    A(f"v_lshl_add_u32 v{AG}, v{t+2}, 7, v{t+3}")
    A(f"v_lshlrev_b32 v{AR}, 4, v{t+2}")
    A(f"v_and_b32 v{AR}, 0x70, v{AR}")
    A(f"v_xor_b32 v{AR}, v{AR}, v{AG}")
    A(f"v_add_u32 v{AR}, {AST}, v{AR}")
    A(f"v_cmp_gt_u32 {sr(MA_,2)}, s6, v{t+2}")
    A(f"s_mov_b32 s{sCNT}, 0")
    A(f"s_mov_b32 s{sNL}, {NLOG2E:#x}")
    A(f"s_mov_b32 s{sNL+1}, s{sNL}")
    A("s_mov_b32 s46, 0xffff0000")
    stamp(24)
    for h in (1, 0):
        A(f"s_mov_b64 exec, {sr(M0_+2*h,2)}")
        A(f"s_waitcnt vmcnt({9 if h else 7})")
        for q in range(2*h, 2*h+2):
            A(f"v_lshl_or_b32 v{186+4*q}, v{EE+q}, 16, v{SRC+2*q}")
            A(f"ds_write_b64 v{BSV+2*q}, {vr(186+4*q,2)}")
            A(f"v_and_or_b32 v{188+4*q}, v{EE+q}, s46, v{SRC+2*q+1}")
            A(f"ds_write_b64 v{BSV+2*q+1}, {vr(188+4*q,2)}")
    A("s_mov_b64 exec, -1")
    A("s_cmp_lg_u32 s3, 0")
    A("s_waitcnt vmcnt(0)")
    A("s_cbranch_scc1 L_PUBD")
    LB("L_PUB")
    A(f"v_cmp_eq_u32 vcc, 0, v{PUB+1}")
    A("s_cbranch_vccnz L_NONCEW")
    A(f"ds_write_b32 v{ZERO}, v{PUB+1} offset:{NONCE}")
    for i in range(1,4): A(f"v_mov_b32 v{PUB+1+2*i}, v{PUB+1}")
    A(f"buffer_store_dwordx4 {vr(PUB,4)}, v{T16}, {sr(sWS,4)}, s57 offen sc1")
    A(f"buffer_store_dwordx4 {vr(PUB+4,4)}, v{T16}, {sr(sWS,4)}, s57 offen offset:1024 sc1")
    LB("L_PUBD")
    A("s_waitcnt lgkmcnt(0)")
    A("s_barrier")
    stamp(5)
    A(f"ds_read_b32 v{t+5}, v{ZERO} offset:{NONCE}")
    for r in range(3): A(f"ds_read_b128 {vr(106+4*r,4)}, v{SRA} offset:{8192*r}")
    A(f"ds_read_b128 v[118:121], v{TLA}")
    A("s_waitcnt lgkmcnt(4)")
    A(f"v_readfirstlane_b32 s{sTAG}, v{t+5}")
    A(f"v_lshlrev_b32 v{t+5}, 8, v{t+5}")
    for r in range(3):
        A(f"s_waitcnt lgkmcnt({3-r})")
        A(f"v_or_b32 v{107+4*r}, v{107+4*r}, v{t+5}")
        A(f"v_or_b32 v{109+4*r}, v{109+4*r}, v{t+5}")
        A(f"buffer_store_dwordx4 {vr(106+4*r,4)}, v{T16}, {sr(sWS,4)}, s{[43,55,56][r]} offen sc1")
    A("s_mov_b64 exec, 15")
    A("s_waitcnt lgkmcnt(0)")
    A(f"v_or_b32 v119, v119, v{t+5}")
    A(f"v_or_b32 v121, v121, v{t+5}")
    A(f"buffer_store_dwordx4 v[118:121], v{TLA}, {sr(sWS,4)}, s54 offen sc1")
    A("s_mov_b64 exec, -1")
    stamp(6)
    C("---- A' rows")
    A(f"ds_read_b128 {vr(XF,4)}, v{XA}")
    A(f"ds_read_b128 {vr(XF+4,4)}, v{XA+1}")
    AA(wfrags(WF, WA, 0, 512))
    A("s_lshr_b32 s47, s4, 2")
    A("s_lshl_b32 s47, s47, 1")
    A("s_and_b32 s46, s4, 1")
    A("s_add_u32 s47, s47, s46")
    A("s_and_b32 s46, s4, 2")
    A("s_lshl_b32 s46, s46, 6")
    A("s_add_u32 s47, s47, s46")
    A("s_lshl_b32 s47, s47, 3")
    A(f"s_add_u32 s47, s47, {OFFS:#x}")
    A("s_waitcnt lgkmcnt(0)")
    AA(mm(126, WF))
    A(f"v_lshrrev_b32 v{t+8}, 1, v0")
    A(f"v_lshl_add_u32 v{ENB}, v{t+8}, 11, s47")
    A(f"v_mul_u32_u24 v{RCB}, {CHB}, v{t+8}")
    A(f"v_lshlrev_b32 v{t+8}, 2, v{row}")
    A(f"v_and_b32 v{ENA}, 0xe0, v{L4}")
    A(f"v_mul_u32_u24 v{RCA}, {CHB}, v{t+8}")
    A(f"v_lshlrev_b32 v{LP}, 4, v{pos}")
    A(f"v_mov_b32 v{LP+1}, v{LP}")
    AA(pk("v_pk_mul_f32", 126, 126, sr(sNL,2)))
    for q in range(4): A(f"v_cvt_pk_bf16_f32 v{134+q}, v{126+2*q}, v{127+2*q}")
    A(f"ds_write_b128 v{AW}, v[134:137] offset:{AST-XS}")
    A(f"ds_read_b128 v[106:109], v{AR}")
    def a_store():
        C("all-zero pad row (index N): written by the last workgroup")
        A("s_cmpk_eq_u32 s2, 255")
        A("s_cselect_b32 exec_lo, -1, 0")
        A("s_mov_b32 exec_hi, 0")
        A(f"s_mov_b32 s44, {N*128}")
        A(f"buffer_store_dword v{ZERO}, v{L4}, {sr(sWS,4)}, s44 offen sc1")
        A("s_lshl_b32 s44, s5, 7")
        A(f"s_mov_b64 exec, {sr(MA_,2)}")
        A(f"buffer_store_dwordx4 v[106:109], v{AG}, {sr(sWS,4)}, s44 offen sc1")
        A("s_mov_b64 exec, -1")
    A("s_waitcnt lgkmcnt(0)")
    a_store()
    C("---- B', S_B, U (while the stores drain)")
    AA(wfrags(138, WA, 8192, 512))
    AA(wfrags(WF, WA, WU-WM, 512))
    A(f"s_lshl_b32 s{sT8}, s{sTAG}, 8")
    A("s_waitcnt lgkmcnt(8)")
    AA(mm(122, 138))
    A(f"v_mul_u32_u24 v{BWA}, {RP}, v{node}")
    A(f"v_lshlrev_b32 v{t+7}, 2, v{g}")
    A("s_lshl_b32 s43, s45, 7")
    A(f"s_add_u32 s43, s43, {ROWS}")
    A(f"v_add3_u32 v{BWA}, v{BWA}, v{t+7}, s43")
    A("s_waitcnt lgkmcnt(0)")
    AA(mm(U, WF))
    AA(pk("v_pk_mul_f32", 122, 122, sr(sNL,2)))
    for q in range(8): A(f"v_exp_f32 v{210+q}, v{122+q}")
    AA(pk("v_pk_add_f32", 210, 210, "1.0", tail=" op_sel_hi:[1,0]"))
    for q in range(8): A(f"v_rcp_f32 v{210+q}, v{210+q}")
    A("s_mov_b32 s43, 0xffff0000")
    for q in range(8): A(f"v_and_b32 v{138+q}, s43, v{122+q}")
    AA(pk("v_pk_mul_f32", 210, 122, 210))
    AA(pk("v_pk_add_f32", 122, 122, 138, tail=" neg_lo:[0,1] neg_hi:[0,1]"))
    for q in range(8): A(f"v_cvt_pk_bf16_f32 v{122+q}, v{122+q}, v{138+q}")
    A(f"v_cmpx_gt_u32 vcc, {NROW}, v{node}")
    for q in range(4):
        A(f"ds_write2_b32 v{BWA}, v{122+2*q}, v{123+2*q} offset0:{8*q} offset1:{8*q+4}")
    for q in range(4):
        A(f"ds_write2_b32 v{BWA}, v{210+2*q}, v{211+2*q} offset0:{oSB//4+8*q} offset1:{oSB//4+8*q+4}")
    A("s_mov_b64 exec, -1")
    OF = 122
    def entry_load(): A(f"buffer_load_dwordx2 {vr(OF+8,2)}, v{ENB}, {sr(sWS,4)}, 0 offen sc1")
    entry_load()
    A(f"s_mov_b32 s{sSAFE}, 0")
    A(f"v_lshlrev_b32 v{t+8}, 1, v{g1}")
    A(f"v_and_b32 v{t+7}, 2, v{r_}")
    A(f"v_lshl_or_b32 v{t+7}, v{t+7}, 1, v{t+8}")
    A(f"v_xor_b32 v{t+7}, v{t+7}, v{ch_}")
    A(f"v_lshl_add_u32 v{t+7}, v{t+7}, 4, v{c8}")
    A(f"v_lshl_add_u32 v{t+8}, v{r_}, 2, v{t+8}")
    A(f"v_and_b32 v{t+17}, 2, v{g}")
    A(f"v_lshl_add_u32 v{t+8}, v{t+17}, 3, v{t+8}")
    A(f"v_lshl_add_u32 v{t+7}, v{t+8}, 7, v{t+7}")
    A(f"v_add_u32 v{WA2}, {WU+8192}, v{t+7}")
    A(f"v_xor_b32 v{WA2+1}, 32, v{WA2}")
    AA(wfrags(WF2, WA2, 0, 128))
    A(f"v_lshrrev_b32 v{t+8}, 2, v{pos}")
    A(f"v_and_b32 v{t+17}, 3, v{pos}")
    A(f"v_lshl_add_u32 v{t+8}, v{t+8}, 4, v{t+17}")
    A(f"v_bfe_u32 v{t+17}, v0, 5, 1")
    A(f"v_lshl_add_u32 v{t+8}, v{t+17}, 3, v{t+8}")
    A(f"v_lshlrev_b32 v{W3A}, 1, v{t+8}")
    for q in range(0, 4, 2): A(f"v_mov_b64 {vr(114+q,2)}, 0")
    for q in range(4): A(f"ds_read_u16_d16_hi v{114+q}, v{W3A} offset:{W3 + 64*(q>>1) + 8*(q&1)}")
    A("s_mov_b32 s12, s8")
    A(f"s_or_b32 s13, s9, {128 << 16:#x}")
    A(f"s_mov_b32 s14, {(N+1)*128}")
    A("s_mov_b32 s15, 0x20000")
    A(f"s_mov_b32 s16, s{pOUT}")
    A(f"s_mov_b32 s17, s{pOUT+1}")
    A(f"s_mov_b32 s18, {N*128}")
    A("s_mov_b32 s19, 0x20000")
    A(f"v_mul_u32_u24 v{AGR}, {XP}, v{node}")
    A(f"v_lshl_add_u32 v{AGR}, v{g}, 4, v{AGR}")
    A(f"v_add_u32 v{AGR}, {AGS}, v{AGR}")
    A(f"v_lshrrev_b32 v{t+7}, 1, v{g}")
    A(f"v_lshl_add_u32 v{t+7}, v{g1}, 1, v{t+7}")
    A(f"v_lshl_add_u32 v{t+7}, v{node}, 3, v{t+7}")
    A(f"v_lshlrev_b32 v{OUTO}, 4, v{t+7}")
    A(f"v_cmp_gt_u32 {sr(mON,2)}, s6, v{node}")
    A(f"v_cmp_gt_u32 {sr(mLN,2)}, s6, v{LANE}")
    A("s_lshl_b32 s45, s45, 6")
    A("s_lshl_b32 s44, s5, 7")
    A(f"s_add_u32 s{sOUTS}, s44, s45")
    A(f"v_mul_u32_u24 v{AGW}, {XP}, v{LANE}")
    A("s_lshl_b32 s44, s3, 4")
    A(f"s_add_u32 s44, s44, {AGS}")
    A(f"v_add_u32 v{AGW}, s44, v{AGW}")
    A(f"v_mul_u32_u24 v{ROWL}, {RP}, v{LANE}")
    A(f"v_add_u32 v{ROWL}, {ROWS}, v{ROWL}")
    A("s_lshl_b32 s44, s3, 5")
    A(f"v_add_u32 v{CRA}, s44, v{ROWL}")
    A(f"v_and_b32 v{FLA}, 31, v0")
    A(f"v_add_lshl_u32 v{FLA}, v{FLA}, s44, 4")
    A(f"v_add_u32 v{FLA}, {FL2:#x}, v{FLA}")
    def selmat():
        A(f"v_and_b32 v{t+7}, 1, v{pos}")
        A(f"v_lshlrev_b32 v{t+7}, 4, v{t+7}")
        A(f"v_mov_b32 v{t+8}, 0x3f80")
        A(f"v_lshlrev_b32 v{t+7}, v{t+7}, v{t+8}")
        A(f"v_bfe_u32 v{GQ}, v0, 3, 2")
        A(f"v_bfe_u32 v{t+11}, v0, 5, 1")
        A(f"v_sub_u32 v{t+8}, v{GQ}, v{t+11}")
        A(f"v_lshlrev_b32 v{t+8}, 1, v{t+8}")
        A(f"v_lshrrev_b32 v{t+9}, 1, v{pos}")
        A(f"v_add_u32 v{t+9}, v{t+8}, v{t+9}")
        A(f"v_and_b32 v{t+8}, 2, v{t+8}")
        A(f"v_lshl_add_u32 v{t+9}, v{t+8}, 5, v{t+9}")
        for r in range(8): A(f"v_cmp_eq_u32 {sr(20+2*r,2)}, {r}, v{t+9}")
        for r in range(8): A(f"v_cndmask_b32 v{S+r}, 0, v{t+7}, {sr(20+2*r,2)}")
    if "sel2" not in OPT: selmat()
    A(f"v_mov_b32 v112, s{sTAG}")
    A("v_not_b32 v113, v112")
    A("v_mov_b32 v110, 1")
    A("s_lshl_b32 s47, s2, 4")
    A(f"s_add_u32 s47, s47, {FL2:#x}")
    A(f"s_mov_b32 s{sFIRST}, 1")
    for q in range(0, 32, 2): A(f"v_mov_b64 {vr(138+q,2)}, 0")
    stamp(7)
    C("the wave that is last to see its stores acknowledged publishes this workgroup's table flag")
    A("s_mov_b64 exec, 1")
    A("s_waitcnt vmcnt(1)")
    A(f"ds_add_rtn_u32 v110, v{ZERO}, v110 offset:{NONCE+4}")
    A("s_waitcnt lgkmcnt(0)")
    A(f"v_cmpx_eq_u32 vcc, 7, v110")
    A(f"buffer_store_dwordx2 v[112:113], off, {sr(sWS,4)}, s47 sc1")
    A("s_mov_b64 exec, -1")
    stamp(26)
    A(f"s_waitcnt vmcnt(1)")
    LB("L_ENT")
    RA, RK, BP, RW = 132, 186, 202, 138
    KA, KB = t+1, t+2
    A("s_mov_b32 s46, 0x80078007")
    for i in range(4): A(f"ds_bpermute_b32 v{OF+2*i}, v{ENA}, v{OF+8} offset:{8*i}")
    A(f"v_xor_b32 v{OF+9}, s{sTAG}, v{OF+9}")
    A(f"v_and_or_b32 v{OF+9}, v{OF+8}, s46, v{OF+9}")
    A(f"v_cmp_ne_u32 vcc, 0, v{OF+9}")
    A(f"s_add_u32 s{sHI}, s{sLO}, s{sWID}")
    A("s_cbranch_vccnz L_ENTR")
    stamp(8)
    A(f"v_cmp_gt_u32 vcc, s{sWID}, v{LP}")
    A(f"v_add_u32 v{KA}, s{sLO}, v{LP}")
    A(f"v_mov_b32 v{t+3}, {HUGE:#x}")
    A(f"v_cndmask_b32 v{KA}, v{t+3}, v{KA}, vcc")
    A(f"s_mov_b32 s46, {REC:#x}")
    A(f"s_mov_b32 s47, {REC+CHB:#x}")
    A(f"s_mov_b32 s43, {REC+2*CHB:#x}")
    A(f"s_mov_b32 s42, {REC+3*CHB:#x}")
    A(f"v_add_u32 v{t+3}, v{KA}, v{RCA}")
    def rload(q):
        if q < 4:
            return [f"s_or_b64 exec, {sr(MK+4*q,2)}, {sr(MK+4*q+2,2)}",
                    f"buffer_load_dwordx4 {vr(RW+4*q,4)}, v{RA+q}, {sr(sWS,4)}, s{[46,47,43,42][q]} offen sc1"]
        return [f"s_mov_b64 exec, {sr(MK+4*q,2)}",
                f"buffer_load_dwordx4 {vr(RW+4*q,4)}, v{RA+4}, {sr(sWS,4)}, s46 offen offset:{32*(q-4)} sc1"]
    for i in range(4):
        lo = OF+2*i
        A(f"s_waitcnt lgkmcnt({3-i})")
        A(f"v_and_b32 v{lo+1}, 8, v{lo}")
        A(f"v_and_b32 v{RA+i}, 0xfff0, v{lo}")
        A(f"v_sub_u32 v{lo+1}, v{KA}, v{lo+1}")
        A(f"v_add_u32 v{RA+i}, v{RA+i}, v{t+3}")
        A(f"v_cmp_lt_u32_sdwa {sr(MK+4*i,2)}, v{lo+1}, v{lo} src0_sel:DWORD src1_sel:WORD_1")
        A(f"v_add_u32 v{lo+1}, 8, v{lo+1}")
        A(f"v_cmp_lt_u32_sdwa {sr(MK+4*i+2,2)}, v{lo+1}, v{lo} src0_sel:DWORD src1_sel:WORD_1")
        if i == 0: stamp(9)
        AA(rload(i))
        A("s_mov_b64 exec, -1")
    lo = OF+8
    A(f"s_add_u32 s44, s{sLO}, 128")
    A(f"s_cmpk_eq_u32 s{sWID}, 256")
    A(f"s_cselect_b32 s44, s44, {HUGE:#x}")
    A(f"v_and_b32 v{KB}, 16, v{LP}")
    A(f"v_add_u32 v{KB}, s44, v{KB}")
    A(f"v_and_b32 v{lo+1}, 8, v{lo}")
    A(f"v_and_b32 v{RA+4}, 0xfff0, v{lo}")
    A(f"v_add_u32_sdwa v{lo+1}, v{lo+1}, v{lo} dst_sel:DWORD dst_unused:UNUSED_PAD src0_sel:DWORD src1_sel:WORD_1")
    A(f"v_add3_u32 v{RA+4}, v{RA+4}, v{KB}, v{RCB}")
    A(f"v_cmp_lt_u32 {sr(mMORE,2)}, s{sHI}, v{lo+1}")
    A(f"v_sub_u32 v{lo+1}, v{lo+1}, v{KB}")
    A(f"v_add_u32 v{lo}, 0xffffffc0, v{lo+1}")
    for j in range(4):
        src = lo+1 if j < 2 else lo
        A(f"v_cmp_lt_i32 {sr(MK+16+4*j,2)}, {32*(j&1)}, v{src}")
        A(f"v_cmp_lt_i32 {sr(MK+16+4*j+2,2)}, {32*(j&1)+8}, v{src}")
    for q in range(4, 8): AA(rload(q))
    A("s_mov_b64 exec, -1")
    A(f"s_cmp_lg_u64 {sr(MK+24,2)}, 0")
    A(f"s_cselect_b32 s{sRARE}, 1, 0")
    note(sCNT, 20)
    A(f"s_mov_b32 s{sCNT}, 0")
    stamp(10)
    prefill_big(106)
    A(f"s_mov_b32 s40, {BIG:#x}")
    A("s_mov_b32 s41, s40")
    for q in range(0, 16, 2): A(f"v_mov_b64 {vr(RK+q,2)}, s[40:41]")
    A(f"s_cmp_eq_u32 s{sFIRST}, 0")
    A("s_cbranch_scc1 L_HIST")
    A(f"s_mov_b32 s{sFIRST}, 0")
    if "sel2" in OPT: selmat()
    A(f"v_bfe_u32 v{GA}, v0, 2, 1")
    A(f"v_lshl_add_u32 v{GA}, v{t+11}, 1, v{GA}")
    A(f"v_lshl_add_u32 v{GD}, v{GQ}, 1, v{t+11}")
    A("s_lshl_b32 s44, s3, 3")
    A(f"v_add_u32 v{SID}, s44, v{GD}")
    A(f"v_mul_u32_u24 v{SID}, {TP}, v{SID}")
    A(f"v_add_u32 v{TOTW}, v{SID}, v{LP}")
    A(f"v_add_u32 v{TOTW}, {TOT}, v{TOTW}")
    A("s_mul_i32 s44, s7, 392")
    A(f"s_mul_i32 s45, s3, {NPB}")
    A("s_add_u32 s44, s44, s45")
    A(f"v_add_lshl_u32 v{PFA}, v{LANE}, s44, 7")
    A(f"v_mov_b32 v{IP[1]+1}, v{IP[0]+1}")
    for q in range(0, 8, 2): A(f"v_mov_b64 {vr(EA[0]+q,2)}, 0")
    for q in range(0, 8, 2): A(f"v_mov_b64 {vr(AGG+q,2)}, 0")
    A(f"s_mov_b32 s{sI0}, 32")
    A(f"s_mov_b32 s{sI0+1}, 32")
    A(f"v_xor_b32 v{t+8}, v{GQ}, v{t+11}")
    A(f"v_and_b32 v{t+8}, 1, v{t+8}")
    A(f"v_lshrrev_b32 v{t+9}, 1, v{GQ}")
    A(f"v_lshl_add_u32 v{t+8}, v{t+8}, 1, v{t+9}")
    A(f"v_lshlrev_b32 v{t+9}, 2, v{t+11}")
    A(f"v_xor_b32 v{t+9}, v{t+9}, v{pos}")
    A(f"v_mov_b32 v{t+7}, 0x3f803f80")
    for r in range(4): A(f"v_cmp_eq_u32 {sr(20+2*r,2)}, {r}, v{t+8}")
    for r in range(4): A(f"v_cmp_eq_u32 {sr(28+2*r,2)}, {r}, v{t+9}")
    A("s_waitcnt lgkmcnt(0)")
    AA(pk("v_pk_mul_f32", 114, 114, sr(sNL,2), n=4))
    A("v_cvt_pk_bf16_f32 v114, v114, v115")
    A("v_cvt_pk_bf16_f32 v115, v116, v117")
    for r in range(4): A(f"v_cndmask_b32 v{A3+r}, 0, v{t+7}, {sr(28+2*r,2)}")
    for u in range(2):
        for r in range(4): A(f"v_cndmask_b32 v{W+4*u+r}, 0, v{114+u}, {sr(20+2*r,2)}")
    A("s_mov_b32 s20, 0x11111111")
    A("s_mov_b32 s21, 0x44444444")
    A("s_mov_b32 s22, 0x22222222")
    A("s_mov_b32 s23, 0x88888888")
    LB("L_HIST")
    A(f"v_mov_b32 v{t+5}, 4")
    A(f"s_mov_b64 exec, {sr(mMORE,2)}")
    A(f"ds_write_b32 v{ZERO}, v{t+5} offset:{FLAGS}")
    A("s_movk_i32 s44, 255")
    stamp(11)
    def hist(q):
        A(f"s_waitcnt vmcnt({7-q})")
        LB(f"L_HC{q}")
        A(rload(q)[0])
        A(f"v_xor_b32 v{RW+4*q+1}, s{sT8}, v{RW+4*q+1}")
        A(f"v_xor_b32 v{RW+4*q+3}, s{sT8}, v{RW+4*q+3}")
        A(f"v_or_b32 v{t+3}, v{RW+4*q+1}, v{RW+4*q+3}")
        A(f"v_cmp_lt_u32 vcc, s44, v{t+3}")
        A(f"s_cbranch_vccnz L_HR{q}")
        if q < 4: A(f"s_mov_b64 exec, {sr(MK+4*q,2)}")
        A(f"ds_add_rtn_u32 v{RK+2*q}, v{RW+4*q+1}, v{t+5} offset:{HIST2}")
        A(f"s_mov_b64 exec, {sr(MK+4*q+2,2)}")
        A(f"ds_add_rtn_u32 v{RK+2*q+1}, v{RW+4*q+3}, v{t+5} offset:{HIST2}")
    for q in range(6): hist(q)
    A(f"s_cmp_eq_u32 s{sRARE}, 0")
    A("s_cbranch_scc1 L_RARE1")
    hist(6); hist(7)
    LB("L_RARE1")
    A("s_mov_b64 exec, -1")
    note(sCNT, 21); stamp(23); note(sRARE, 25)
    A(f"s_cmp_lg_u32 s{sSAFE}, 0")
    A(f"s_cselect_b32 s44, 1.0, {f2u(2.0**-64):#x}")
    A("s_mov_b32 s45, s44")
    A("s_lshl_b32 s46, s3, 4")
    A("s_waitcnt lgkmcnt(0)")
    A("s_barrier")
    stamp(12)
    CNT, PB, INC, BS = t+7, t+8, t+9, t+10
    A(f"ds_read_b32 v{CNT}, v{L4} offset:{HIST2}")
    A(f"buffer_load_dwordx2 {vr(t+12,2)}, v{FLA}, {sr(sWS,4)}, 0 offen sc1")
    PF = int(OPT.get("pf", 24))
    A(f"s_mov_b64 exec, {(1 << PF) - 1:#x}")
    A(f"buffer_load_dword v254, v{PFA}, {sr(sWS,4)}, 0 offen sc1")
    A("s_mov_b64 exec, -1")
    A("s_waitcnt lgkmcnt(0)")
    A(f"v_add_u32 v{PB}, 12, v{CNT}")
    A(f"v_and_b32 v{PB}, -16, v{PB}")
    A(f"v_max_u32 v{PB}, 16, v{PB}")
    A(f"v_cndmask_b32 v{PB}, 0, v{PB}, {sr(mLN,2)}")
    A(f"v_mov_b32 v{INC}, v{PB}")
    scan(INC, [f"v_sub_u32 v{NPAD}, v{PB}, v{CNT}", f"s_mov_b32 s{sREDO}, 0"] + [f"v_mov_b64 {vr(Nn+q,2)}, 0" for q in range(0,8,2)] +
              [f"v_mov_b64 {vr(Dd+q,2)}, s[44:45]" for q in range(0,8,2)] +
              [f"v_cvt_f32_u32 v{NPAD}, v{NPAD}", f"v_mul_f32 v{NPAD}, {f2u(-0.25):#x}, v{NPAD}"])
    A(f"v_sub_u32 v{BS}, v{INC}, v{PB}")
    A(f"v_readlane_b32 s44, v{INC}, 63")
    A(f"ds_write_b32 v{L4}, v{BS} offset:{BASE2}")
    def baserd(k): A(f"ds_read_b32 v{BP+k}, v{RW+2*k+1} offset:{BASE2}")
    def scat(k):
        A(f"v_add_u32 v{BP+k}, v{BP+k}, v{RK+k}")
        A(f"ds_write_b32 v{BP+k}, v{RW+2*k} offset:{LIST}")
    for k in range(12): baserd(k)
    A("s_cmpk_gt_u32 s44, 16384")
    A("s_cbranch_scc1 L_TOOBIG")
    A(f"v_lshrrev_b32 v{t+6}, 1, v{INC}")
    A(f"v_add_u32 v{t+11}, s46, v{BS}")
    A(f"v_lshrrev_b32 v{t+11}, 1, v{t+11}")
    for k in range(12):
        if k % 2 == 0: A("s_waitcnt lgkmcnt(10)")
        scat(k)
    A(f"s_cmp_eq_u32 s{sRARE}, 0")
    A("s_cbranch_scc1 L_RARE2")
    for k in range(12, 16): baserd(k)
    A("s_waitcnt lgkmcnt(0)")
    for k in range(12, 16): scat(k)
    LB("L_RARE2")
    A(f"s_mov_b64 exec, {sr(mLN,2)}")
    A(f"ds_write_b32 v{t+6}, v{ROWL} offset:{QD-4}")
    LB("L_QD")
    for q in range(3):
        A(f"v_cmpx_lt_u32 vcc, s46, v{PB}")
        A("s_add_u32 s46, s46, 128")
        A(f"ds_write_b32 v{t+11}, v{ROWL} offset:{QD+64*q}")
    A(f"v_cmpx_lt_u32 vcc, s46, v{PB}")
    A(f"v_add_u32 v{t+11}, 192, v{t+11}")
    A("s_cbranch_execnz L_QD")
    A("s_mov_b64 exec, -1")
    A("s_add_u32 s44, s44, 127")
    A("s_lshr_b32 s45, s44, 10")
    A("s_bfe_u32 s44, s44, 0x30007")
    A("s_mul_i32 s46, s45, s3")
    A("s_min_u32 s47, s44, s3")
    A(f"s_add_u32 s{sSTART}, s46, s47")
    A("s_cmp_lt_u32 s3, s44")
    A(f"s_addc_u32 s{sT}, s45, 0")
    A(f"s_not_b32 s45, s{sTAG}")
    A("s_waitcnt vmcnt(1)")
    LB("L_FC")
    A(f"v_xor_b32 v{t+12}, s{sTAG}, v{t+12}")
    A(f"v_xor_b32 v{t+13}, s45, v{t+13}")
    A(f"v_or_b32 v{t+12}, v{t+12}, v{t+13}")
    A(f"v_cmp_ne_u32 vcc, 0, v{t+12}")
    A("s_cbranch_vccnz L_FR")
    note(sCNT, 22)
    LB("L_MAIN")
    A(f"s_lshl_b32 s44, s{sT}, 4")
    A(f"s_lshl_b32 s45, s{sSTART}, 7")
    A(f"v_lshl_add_u32 v{t+11}, v{GQ}, 2, s45")
    A(f"v_mad_u32_u24 v{AI}, v{GA}, s44, v{t+11}")
    A(f"v_xor_b32 v{AX}, 2, v{GA}")
    A(f"v_mad_u32_u24 v{AX}, v{AX}, s44, v{t+11}")
    A("s_lshl_b32 s46, s44, 2")
    A(f"v_add_u32 v{AI+1}, s46, v{AI}")
    A(f"v_add_u32 v{AX+1}, s46, v{AX}")
    A("s_lshr_b32 s44, s44, 1")
    A("s_lshr_b32 s45, s45, 1")
    A(f"s_add_u32 s45, s45, {QD}")
    A(f"v_mul_u32_u24 v{QA}, s44, v{GD}")
    A(f"v_add_u32 v{QA}, s45, v{QA}")
    A("s_waitcnt lgkmcnt(0)")
    A("s_barrier")
    A("s_setprio 2")
    stamp(13); stamp(27, real=True)
    def gathers(g_):
        return [f"buffer_load_dwordx4 {vr(G[g_]+8*u+4*s,4)}, {vr(IP[s],2)}, {sr(sA,4)}, 0 idxen offen offset:{64*u}" for u in range(2) for s in range(2)]
    def idx(o):
        return [f"ds_read_u16 v{IP[0]}, v{AI} offset:{LIST+o}", f"ds_read_u16 v{IP[1]}, v{AI+1} offset:{LIST+o}"]
    def eas(b, o):
        ar = [AI, AI+1, AX, AX+1]
        return ["s_mov_b64 exec, s[20:21]"] + [f"ds_read_u16 v{EA[b]+r}, v{ar[r]} offset:{LIST+o+2}" for r in range(4)] + \
               ["s_mov_b64 exec, s[22:23]"] + [f"ds_read_u16_d16_hi v{EA[b]+r}, v{ar[r]} offset:{LIST+o+2}" for r in range(4)] + ["s_mov_b64 exec, -1"]
    def bs(b, areg):
        return [f"ds_read_b128 {vr(Bv[b],4)}, v{areg}", f"ds_read_b128 {vr(Bv[b]+4,4)}, v{areg} offset:128"]
    AA(idx(0))
    A(f"ds_read_u16 v{t}, v{AI} offset:{LIST+16}")
    A(f"ds_read_u16 v{t+1}, v{AI+1} offset:{LIST+16}")
    A(f"ds_read2_b32 {vr(RAp[0],2)}, v{QA} offset0:0 offset1:2")
    A("s_waitcnt lgkmcnt(3)")
    AA(gathers(0))
    A("s_waitcnt lgkmcnt(0)")
    A(f"v_mov_b32 v{IP[0]}, v{t}")
    A(f"v_mov_b32 v{IP[1]}, v{t+1}")
    A(f"v_lshl_add_u64 {vr(RAp[0],2)}, {vr(RAp[0],2)}, 0, {vr(LP,2)}")
    AA(bs(0, RAp[0]) + eas(0, 0))
    AA(gathers(1))
    A(f"v_mov_b32 v{RAp[1]+1}, {BIG:#x}")
    A(f"s_cmp_lg_u32 s{sREDO}, 0")
    A("s_cbranch_scc1 L_NOSH")
    A(f"ds_read_b128 v[154:157], v{CRA} offset:{oSB}")
    A(f"ds_read_b128 v[158:161], v{CRA} offset:{oSB+16}")
    A("s_waitcnt lgkmcnt(0)")
    for q in range(0,8,2): A(f"v_pk_fma_f32 {vr(AGG+q,2)}, {vr(154+q,2)}, {vr(NPAD,2)}, {vr(AGG+q,2)} op_sel_hi:[1,0,1]")
    LB("L_NOSH")
    A(f"s_sub_u32 s{sCNT}, s{sT}, 1")
    A("s_cbranch_scc1 L_WEND")
    def mfmas(b, u):
        d = vr(T[u],16)
        return [f"v_mfma_f32_32x32x16_bf16 {d}, {vr(A3,4)}, {vr(Bv[b]+4*u,4)}, 0",
                f"v_mfma_f32_32x32x16_bf16 {d}, {vr(EA[b],4)}, {vr(W+4*u,4)}, {d}"] + \
               [f"v_mfma_f32_32x32x16_bf16 {d}, {vr(G[b]+8*u+4*s,4)}, {vr(S+4*s,4)}, {d}" for s in range(2)]
    def chain(u, safe):
        o = []
        if safe:
            o += pk("v_pk_add_f32", EX, EX, "1.0", n=16, tail=" op_sel_hi:[1,0]")
            o += [f"v_rcp_f32 v{EX+r}, v{EX+r}" for r in range(16)]
            for q in range(4):
                for p in range(2):
                    n = vr(Nn+4*u+2*p,2)
                    o.append(f"v_pk_fma_f32 {n}, {vr(T[u]+4*q+2*p,2)}, {vr(EX+4*q+2*p,2)}, {n}")
            return o
        for q in range(4):
            for p in range(2):
                n = vr(Nn+4*u+2*p,2); o.append(f"v_pk_fma_f32 {n}, {n}, {vr(EX+4*q+2*p,2)}, {n}")
            for p in range(2):
                n = vr(Nn+4*u+2*p,2); o.append(f"v_pk_fma_f32 {n}, {vr(T[u]+4*q+2*p,2)}, {vr(Dd+4*u+2*p,2)}, {n}")
            for p in range(2):
                d = vr(Dd+4*u+2*p,2); o.append(f"v_pk_fma_f32 {d}, {d}, {vr(EX+4*q+2*p,2)}, {d}")
        return o
    def flush(u, a):
        return [f"ds_write_b128 v{a}, {vr(r+4*u,4)} offset:{o+128*u}" for r, o in ((Nn, oN), (Dd, oD))] + \
               ([f"ds_write_b32 v{a}, v{SID} offset:{oS}"] if u == 0 else [])
    ms = mfmas(0, 0)
    A("s_waitcnt lgkmcnt(0)")
    A(ms[0]); A(ms[1])
    AA(bs(1, RAp[0]+1) + eas(1, 16) + idx(32))
    A(f"ds_read2_b32 {vr(DSC,2)}, v{QA} offset0:4 offset1:1")
    A("s_waitcnt vmcnt(4)")
    stamp(14)
    A(f"s_cmp_lg_u32 s{sSAFE}, 0")
    A(ms[2]); A(ms[3])
    A("s_mov_b64 s[24:25], 0")
    A("s_setprio 1")
    A("s_nop 8")
    A("s_cbranch_scc1 L_INS")
    A("s_branch L_INF")
    def size(x):
        x = x.strip()
        if x.endswith(":"): return 0
        if x.startswith("s_memtime"): return 8
        if x.startswith("v_exp_f32 ") or x.startswith("v_rcp_f32 ") or x.startswith("s_") or x.startswith("v_add_u32 ") or x.startswith("v_cmp_gt_u32 vcc") or x.startswith("v_swap"): return 4
        return 8
    def aligned(body):
        out = []; off = 0
        for x in body:
            if size(x) == 8 and off % 8 and x.startswith("v_"):
                p = out[-1]
                if p.startswith("v_exp_f32 ") or p.startswith("v_rcp_f32 "):
                    out[-1] = p.replace("_f32 ", "_f32_e64 "); off += 4
                elif "nopad" not in OPT:
                    k = len(out)
                    while out[k-1].endswith(":"): k -= 1
                    out.insert(k, "s_nop 0"); off += 4
            out.append(x); off += size(x)
        return out
    PP = int(OPT.get("pp", 24)); FB = "nofb" not in OPT
    def esec(u, ms, pre=[]):
        o = []; k = 0
        if pre is not None:
            o += [f"v_exp_f32 v{EX}, v{T[u]}"] + pre; k = 1
        for r in range(k, 16):
            if (r-k) % 3 == 0 and (r-k) < 12: o.append(ms[(r-k)//3])
            o.append(f"v_exp_f32 v{EX+r}, v{T[u]+r}")
        return o
    def loop(tag, safe):
        L.append(".p2align 6")
        B = [f"L_LOOP{tag}:"]
        for ph in range(2):
            o = 16*ph
            c = chain(1, safe)
            pp = min(PP, len(c))
            B += c[:pp] + ["s_setprio 1"] + c[pp:]
            if ph == 0: B.append(f"L_IN{tag}:")
            B += esec(0, mfmas(ph, 1), [] if pp == len(c) else None)
            B += chain(0, safe)
            B.append("s_waitcnt vmcnt(0) lgkmcnt(0)")
            adr = [f"v_lshl_add_u64 {vr(RAp[ph],2)}, {vr(DSC,2)}, 0, {vr(LP,2)}"]
            if ph == 1:
                B += [f"v_add_u32 v{QA}, 16, v{QA}"] + adr + [f"v_lshl_add_u64 {vr(AI,2)}, {vr(AI,2)}, 0, {sr(sI0,2)}", f"v_lshl_add_u64 {vr(AX,2)}, {vr(AX,2)}, 0, {sr(sI0,2)}"]
                o -= 32
                B += esec(1, mfmas(1-ph, 0), None)
            else:
                B += esec(1, mfmas(1-ph, 0), adr)
            if FB: B.append(f"v_cmp_gt_u32 vcc, 2.0, v{RAp[ph]+1}")
            B += ["s_setprio 0"]
            if "lst" in OPT: B += ["s_memtime s[98:99]  ", f"s_add_u32 m0, s{sCNT}, 32", "s_waitcnt lgkmcnt(0)", "v_writelane_b32 v255, s98, m0"]
            B += [f"s_sub_u32 s{sCNT}, s{sCNT}, 1", f"s_cbranch_scc1 L_X{tag}{ph}"]
            if "nogather" not in OPT: B += gathers(ph)
            if FB: B += ["s_cmp_eq_u64 s[24:25], 0", f"s_cbranch_scc1 L_F1{tag}{ph}"]
            B += flush(1, RAp[1-ph]+1)
            if FB: B += [f"L_F1{tag}{ph}:", "s_mov_b64 s[24:25], vcc"]
            B += bs(ph, RAp[ph]) + eas(ph, o+32) + idx(o+48)
            B.append(f"ds_read2_b32 {vr(DSC,2)}, v{QA} offset0:{o//8+6} offset1:{o//8+3}")
            if FB: B.append(f"s_cbranch_vccz " + (f"L_F0{tag}" if ph == 0 else f"L_LOOP{tag}"))
            B += flush(0, RAp[ph]+1)
            if "lst" in OPT: B += ["s_memtime s[98:99]  ", f"s_add_u32 m0, s{sCNT}, 49", "s_waitcnt lgkmcnt(0)", "v_writelane_b32 v255, s98, m0"]
            if ph == 1: B.append(f"s_branch L_LOOP{tag}")
            elif FB: B.append(f"L_F0{tag}:")
        B += [f"L_X{tag}1:", f"v_swap_b32 v{RAp[0]+1}, v{RAp[1]+1}", "s_nop 0", f"L_X{tag}0:"]
        B += flush(1, RAp[1]+1) + flush(0, RAp[0]+1) + chain(1, safe)
        for x in aligned(B):
            (L.append(x) if x.endswith(":") else A(x))
    loop("F", False)
    LB("L_SEND")
    stamp(15)
    for q in range(8): A(f"v_rcp_f32 v{EX+q}, v{Dd+q}")
    A(f"v_pk_add_f32 v[186:187], {vr(Dd,2)}, {vr(Dd+2,2)}")
    AA(pk("v_pk_mul_f32", EX, Nn, EX))
    A(f"ds_write_b128 v{TOTW}, {vr(EX,4)}")
    A(f"ds_write_b128 v{TOTW}, {vr(EX+4,4)} offset:128")
    AA(flush(1, RAp[0]+1))
    A(f"v_pk_add_f32 v[188:189], {vr(Dd+4,2)}, {vr(Dd+6,2)}")
    A(f"v_pk_add_f32 v[190:191], {vr(EX,2)}, {vr(EX+2,2)}")
    A(f"v_pk_add_f32 v[192:193], {vr(EX+4,2)}, {vr(EX+6,2)}")
    A("v_pk_add_f32 v[186:187], v[186:187], v[188:189]")
    A("v_pk_add_f32 v[190:191], v[190:191], v[192:193]")
    A("v_pk_fma_f32 v[186:187], v[190:191], 0, v[186:187] op_sel_hi:[1,0,1]")
    A("v_add_f32 v186, v186, v187")
    A("v_mov_b32 v189, 1")
    A(f"v_cmpx_ngt_f32 vcc, {f2u(2.0**110):#x}, v186")
    A(f"ds_write_b32 v{ZERO}, v189 offset:{FLAGS+4}")
    A("s_mov_b64 exec, -1")
    LB("L_WEND")
    A("s_lshl_b32 s46, s3, 5")
    A(f"s_add_u32 s46, s46, {TOT}")
    A(f"s_mov_b32 s42, {NLN2:#x}")
    A("s_mov_b32 s43, s42")
    A("s_waitcnt lgkmcnt(0)")
    A("s_barrier")
    stamp(16); stamp(28, real=True)
    FN, FD, T0_, T1_ = 186, 194, 202, 210
    cn, ta = t+3, t+7
    A(f"ds_read_b32 v{cn}, v{ROWL} offset:{oS}")
    A(f"ds_read_b128 {vr(FD,4)}, v{CRA} offset:{oD}")
    A(f"ds_read_b128 {vr(FD+4,4)}, v{CRA} offset:{oD+16}")
    A(f"ds_read_b128 {vr(FN,4)}, v{CRA} offset:{oN}")
    A(f"ds_read_b128 {vr(FN+4,4)}, v{CRA} offset:{oN+16}")
    A(f"ds_read_b64 {vr(t+4,2)}, v{ZERO} offset:{FLAGS}")
    A("s_waitcnt lgkmcnt(5)")
    A(f"v_mov_b32_dpp v{ta}, v{cn} wave_shr:1 row_mask:0xf bank_mask:0xf bound_ctrl:1")
    A(f"v_sub_u32 v{cn}, v{cn}, v{ta}")
    A(f"v_add_u32 v{ta}, s46, v{ta}")
    A(f"v_cndmask_b32 v{cn}, 0, v{cn}, {sr(mLN,2)}")
    A(f"v_cmpx_lt_i32 s[44:45], 0, v{cn}")
    A(f"ds_read_b128 {vr(T0_,4)}, v{ta}")
    A(f"ds_read_b128 {vr(T0_+4,4)}, v{ta} offset:16")
    A(f"v_cmpx_lt_i32 vcc, {TP}, v{cn}")
    A(f"ds_read_b128 {vr(T1_,4)}, v{ta} offset:{TP}")
    A(f"ds_read_b128 {vr(T1_+4,4)}, v{ta} offset:{TP+16}")
    A("s_mov_b64 exec, -1")
    A("s_waitcnt lgkmcnt(4)")
    A(f"v_readfirstlane_b32 s47, v{t+5}")
    A(f"v_readfirstlane_b32 s{sMORE}, v{t+4}")
    for q in range(8): A(f"v_rcp_f32 v{FD+q}, v{FD+q}")
    A(f"s_andn2_b32 s47, s47, s{sSAFE}")
    A("s_cbranch_scc1 L_RETRY")
    AA(pk("v_pk_mul_f32", FN, FN, FD))
    AA(pk("v_pk_add_f32", AGG, AGG, FN))
    for q in range(8):
        A(f"v_subrev_f32_dpp v{AGG+q}, v{FN+q}, v{AGG+q} wave_shr:1 row_mask:0xf bank_mask:0xf bound_ctrl:1")
    LB("L_TL")
    A("s_mov_b64 exec, s[44:45]")
    A("s_waitcnt lgkmcnt(0)")
    AA(pk("v_pk_add_f32", AGG, AGG, T0_))
    A("s_mov_b64 exec, vcc")
    AA(pk("v_pk_add_f32", AGG, AGG, T1_))
    A(f"v_cmp_lt_i32 vcc, {2*TP}, v{cn}")
    A("s_mov_b64 exec, -1")
    A(f"s_cmp_lg_u32 s{sMORE}, 0")
    A("s_cbranch_vccnz L_TLM")
    A("s_cbranch_scc1 L_NEXT")
    AA(pk("v_pk_mul_f32", FN, AGG, "s[42:43]"))
    for q in range(4): A(f"v_cvt_pk_bf16_f32 v{FD+q}, v{FN+2*q}, v{FN+2*q+1}")
    A(f"ds_write_b128 v{AGW}, {vr(FD,4)}")
    A("s_waitcnt lgkmcnt(0)")
    A("s_barrier")
    stamp(17)
    A(f"ds_read_b128 {vr(T0_,4)}, v{AGR}")
    A(f"ds_read_b128 {vr(T0_+4,4)}, v{AGR} offset:64")
    for ks in range(2):
        A(f"s_waitcnt lgkmcnt({1-ks})")
        for cb in range(2):
            A(f"v_mfma_f32_16x16x32_bf16 {vr(U+4*cb,4)}, {vr(WF2+8*cb+4*ks,4)}, {vr(T0_+4*ks,4)}, {vr(U+4*cb,4)}")
    A("s_nop 6")
    AA(pk("v_pk_mul_f32", FN, U, sr(sNL,2)))
    for q in range(8): A(f"v_exp_f32 v{FN+q}, v{FN+q}")
    AA(pk("v_pk_add_f32", FN, FN, "1.0", tail=" op_sel_hi:[1,0]"))
    for q in range(8): A(f"v_rcp_f32 v{FN+q}, v{FN+q}")
    AA(pk("v_pk_mul_f32", FN, U, FN))
    for q in range(4): A(f"v_cvt_pk_bf16_f32 v{FD+q}, v{FN+2*q}, v{FN+2*q+1}")
    A("s_nop 1")
    A(f"v_permlane16_swap_b32 v{FD}, v{FD+2}")
    A(f"v_permlane16_swap_b32 v{FD+1}, v{FD+3}")
    A(f"s_mov_b64 exec, {sr(mON,2)}")
    A(f"buffer_store_dwordx4 {vr(FD,4)}, v{OUTO}, {sr(sOUT,4)}, s{sOUTS} offen {OPT.get('outf','').replace('+',' ')}")
    if DIAG:
        stamp(18)
        A("s_waitcnt vmcnt(0)")
        stamp(19)
        stamp(31, real=True)
        A("s_mov_b32 exec_lo, -1")
        A("s_mov_b32 exec_hi, 0")
        A("s_lshl_b32 s44, s2, 3")
        A("s_add_u32 s44, s44, s3")
        A("s_lshl_b32 s44, s44, 7")
        A(f"s_add_u32 s44, s44, {STAMP:#x}")
        A(f"buffer_store_dword v255, v{L4}, {sr(sWS,4)}, s44 offen")
        A("s_not_b64 exec, exec")
        A(f"s_add_u32 s44, s44, {0x40000-128:#x}")
        A(f"buffer_store_dword v255, v{L4}, {sr(sWS,4)}, s44 offen")
    LB("L_END")
    A("s_endpgm")
    C("---- out-of-line paths")
    LB("L_TLM")
    A(f"v_min_i32 v{cn}, {64*TP}, v{cn}")
    A(f"v_add_u32 v{cn}, {-2*TP & 0xffffffff:#x}, v{cn}")
    A(f"v_add_u32 v{ta}, {2*TP}, v{ta}")
    A(f"v_cmpx_lt_i32 s[44:45], 0, v{cn}")
    A(f"ds_read_b128 {vr(T0_,4)}, v{ta}")
    A(f"ds_read_b128 {vr(T0_+4,4)}, v{ta} offset:16")
    A(f"v_cmpx_lt_i32 vcc, {TP}, v{cn}")
    A(f"ds_read_b128 {vr(T1_,4)}, v{ta} offset:{TP}")
    A(f"ds_read_b128 {vr(T1_+4,4)}, v{ta} offset:{TP+16}")
    A("s_branch L_TL")
    LB("L_NONCEW")
    A(f"global_load_dword v{PUB+1}, v{ZERO}, {sr(pDBG,2)} sc1")
    bound()
    A("s_waitcnt vmcnt(0)")
    A("s_branch L_PUB")
    LB("L_PASS")
    A(f"s_mov_b32 s{sCNT}, 0")
    LB("L_ENTR")
    A("s_waitcnt lgkmcnt(0)")
    entry_load()
    bound()
    A("s_waitcnt vmcnt(0)")
    A("s_branch L_ENT")
    LB("L_FR")
    A(f"buffer_load_dwordx2 {vr(t+12,2)}, v{FLA}, {sr(sWS,4)}, 0 offen sc1")
    bound()
    A("s_waitcnt vmcnt(0)")
    A("s_branch L_FC")
    for q in range(8):
        LB(f"L_HR{q}")
        A(rload(q)[1])
        bound()
        A("s_waitcnt vmcnt(0)")
        A(f"s_branch L_HC{q}")
    LB("L_RETRY")
    A(f"s_mov_b32 s{sSAFE}, 1")
    A(f"s_mov_b32 s{sREDO}, 1")
    for q in range(8):
        A(f"v_mov_b32 v{Nn+q}, 0")
        A(f"v_mov_b32 v{Dd+q}, 1.0")
    A("s_waitcnt vmcnt(0) lgkmcnt(0)")
    A("s_branch L_MAIN")
    LB("L_TOOBIG")
    A(f"s_mov_b32 s{sWID}, 64")
    A("s_branch L_AGAIN")
    LB("L_NEXT")
    A(f"s_mov_b32 s{sLO}, s{sHI}")
    LB("L_AGAIN")
    A("s_setprio 0")
    A("s_waitcnt vmcnt(0) lgkmcnt(0)")
    A("s_barrier")
    prefill_small()
    for q in range(0, 32, 2): A(f"v_mov_b64 {vr(138+q,2)}, 0")
    A("s_waitcnt lgkmcnt(0)")
    A("s_barrier")
    A("s_branch L_PASS")
    loop("S", True)
    A("s_branch L_SEND")
    L.append(f".fill ((16384 + 256 - (. - {KN})) / 4), 4, 0xbf800000")

hdr = open("cdna_kernels/%s.s.ref" % NAME).read().split("; Override")[0]
out = hdr + f"; @launch grid=(256,1,1) block=(512,1,1) lds={LDSZ}\n"
out += '.amdgcn_target "amdgcn-amd-amdhsa--gfx950"\n.text\n'
kernel()
out += "\n".join(L) + "\n"
out += f""".section .rodata,"a"
.p2align 6
.amdhsa_kernel {KN}
  .amdhsa_next_free_vgpr 256
  .amdhsa_next_free_sgpr 102
  .amdhsa_accum_offset 256
  .amdhsa_group_segment_fixed_size 0
  .amdhsa_kernarg_size 72
  .amdhsa_user_sgpr_count 2
  .amdhsa_user_sgpr_kernarg_segment_ptr 1
  .amdhsa_system_sgpr_workgroup_id_x 1
.end_amdhsa_kernel
"""
dst = [a for a in sys.argv[1:] if not a.startswith("--")]
open(dst[0] if dst else f"cdna_kernels/{NAME}.s", "w").write(out)
```

```python
import sys, struct
NAME = "gather_scatter__mpnn_edge_mlp__graph"
KN = NAME + "_kernel"
N, E = 12500, 800000
CH, NPB = 3136, 49
ATAB, FL2, OFFS, REC = 0, 0x18C000, 0x190000, 0x210000
CHB = 16768
WS_END = REC + 256 * CHB
STAMP = 0x900000
LOG2E = 1.4426950408889634
def f2u(x): return struct.unpack("<I", struct.pack("<f", x))[0]
NLOG2E = f2u(-LOG2E); NLN2 = f2u(-0.6931471805599453)
DIAG = "--diag" in sys.argv
OPT = {a.split("=")[0][2:]: (a.split("=")[1] if "=" in a else "1") for a in sys.argv[1:] if a.startswith("--")}
WS_REC = (STAMP + 0x100000) if DIAG else WS_END
BIG = 0x40000000; HUGE = 0x10000000

L = []
def A(s): L.append("    " + s)
def AA(xs):
    for x in xs: A(x)
def LB(s): L.append(s + ":")
def C(s): L.append("    ; " + s)
def vr(b, n=1): return f"v{b}" if n == 1 else f"v[{b}:{b+n-1}]"
def sr(b, n=1): return f"s{b}" if n == 1 else f"s[{b}:{b+n-1}]"
SCANM = ["row_shr:1 row_mask:0xf bank_mask:0xf bound_ctrl:1", "row_shr:2 row_mask:0xf bank_mask:0xf bound_ctrl:1",
         "row_shr:4 row_mask:0xf bank_mask:0xf bound_ctrl:1", "row_shr:8 row_mask:0xf bank_mask:0xf bound_ctrl:1",
         "row_bcast:15 row_mask:0xa bank_mask:0xf", "row_bcast:31 row_mask:0xc bank_mask:0xf"]
def scan(v, fill=None):
    fill = list(fill or [])
    for m in SCANM:
        k = 0
        while k < 2 and fill:
            A(fill.pop(0)); k += 1
        if k < 2: A(f"s_nop {1-k}")
        A(f"v_add_u32_dpp v{v}, v{v}, v{v} {m}")
    AA(fill)
def stamp(k, real=False):
    if not DIAG: return
    A("s_memrealtime s[98:99]" if real else "s_memtime s[98:99]")
    A("s_waitcnt lgkmcnt(0)")
    A(f"v_writelane_b32 v255, s98, {k}")
def note(sreg, k):
    if DIAG: A(f"v_writelane_b32 v255, s{sreg}, {k}")

LIST, QD = 0, 16384
HIST2 = QD + 8256; FLAGS = HIST2 + 256; BASE2 = FLAGS + 16; NONCE = BASE2 + 256; W3 = NONCE + 16
H1 = W3 + 128; BASE1 = H1 + 1024
R2 = H1 + 2048
STG = R2; TOT = R2; TP = 272; AGS = TOT + 64*TP; XP = 144
ROWS, RP = R2 + 16768 + 8192 + 4192, 1168 - 128
NROW = 50; oSB, oN, oD, oS = 256, 512, 768, 1024
XS = (ROWS + NROW*RP + 255) // 256 * 256; AST = XS + 8192; WM = AST + 8192; WU = WM + 16384
LDSZ = WU + 16384
assert H1 % 16 == 0 and ROWS % 16 == 0 and ROWS < 65536 and LDSZ <= 163840, LDSZ
SN = R2 + 16768 + 8192
TAB = R2 + 16768

SID, AGG, LP = 1, 2, 10
RAp = [12, 230]; AI = 14; AX = 16; QA = 25; A3 = 232; IP = [18, 20]; DSC = 22; NPAD = 24; LANE = 25
EA = [26, 30]; Bv = [34, 42]
S, W, Nn, Dd, U, WF2 = 50, 58, 66, 74, 82, 90
G = [106, 122]; T = [138, 154]; EX = 170
OUTO, AGW, ROWL, KP = 236, 237, 238, 239
GA, GQ, GD, TW = 240, 241, 242, 243
TOTW, CRA, AGR, T16, ENA, ENB, RCA, RCB, L4, ZERO = range(244, 254)
FLA, PFA = 228, 229
DST, SRC, EE, BK, RK1, BSV = 106, 114, 122, 126, 138, 146
PUB = 154
WMK = 162
XA, WA, WA2, AW, WG_, TLA = 170, 172, 174, 176, 177, 178
C4 = 180
AG, AR, BWA, AGR0 = 166, 167, 168, 169
XF, WF = 186, 194
HH, BB = 210, 214
t = 218
sWS, sA, sOUT = 8, 12, 16
pX, pE, pSRC, pDST, pWM, pWU, pOUT, pDBG = 20, 22, 24, 26, 28, 30, 32, 34
M0_, M1_, MA_ = 36, 38, 40
mLN, mON = 36, 38
MK = 48
def mk(k): return sr(MK+2*k, 2) if k < 16 else sr(26+2*(k-16), 2)
sLB, sWID, sHI, sSAFE, sT, sREDO, sSTART, sMORE, sCNT, sTAG = range(80, 90)
sNL = 90; sI0 = 92; sRARE = 97; mMORE = 100; sFIRST = 0; sOUTS = 1
TMASK = 0xff030303

def table():
    rows = [[0]*4*64 for _ in range(8)]
    for l in range(64):
        j = l & 7; h = l >> 5; g4 = (l >> 3) & 3; l15 = l & 15; g = l >> 4; r = (l >> 2) & 3; c = l & 3
        v = [0]*32
        for s_ in range(2):
            if g4 == 2*s_ + h: v[4*s_ + (j >> 1)] = 0x3f80 << (16*(j & 1))
        if ((l >> 2) & 1) == h: v[8 + c] = 0x3f803f80
        v[12 + (g4 >> 1) + 2*((g4 & 1) ^ h)] = 0xffffffff
        v[16] = XS + l15*128 + ((g ^ j) << 4)
        v[17] = WM + (8*g + r)*128 + (((c >> 1) ^ ((r & 2) | ((g & 1) << 2))) << 4) + (c & 1)*8
        v[18] = WU + 8192 + (16*(g >> 1) + 2*(g & 1) + 4*r)*128 + (((c >> 1) ^ (((g & 1) << 1) | ((r & 2) << 1))) << 4) + (c & 1)*8
        v[19] = 2*(16*(j >> 2) + (j & 3) + 8*h)
        v[20] = (l >> 2)*128 + c*16
        v[21] = AST + (v[20] ^ (((l >> 2) & 7) << 4))
        v[22] = ROWS + l15*RP + g*4
        v[23] = l15*XP + g*16
        v[24] = l15*128 + (g & 1)*32 + (g >> 1)*16
        v[25] = l*XP
        v[26] = ROWS + l*RP
        v[27] = 3*j
        v[28] = 2*h + ((l >> 2) & 1)
        v[29] = 4*g4
        v[30] = 2*g4 + h
        v[31] = 0x85ebca6b if l & 1 else 0x9e3779b1
        for k in range(32): rows[k >> 2][4*l + (k & 3)] = v[k]
    o = []
    for rw in rows:
        for i in range(0, 256, 8): o.append(".long " + ", ".join(f"{x:#x}" for x in rw[i:i+8]))
    return o

def prefill_small():
    A(f"ds_write_b32 v{L4}, v{ZERO} offset:{HIST2}")
    A(f"ds_write_b32 v{L4}, v{ZERO} offset:{HIST2+16}")
def prefill_big(r):
    A(f"v_mov_b32 v{r}, {N}")
    A(f"v_mov_b32 v{r+1}, {N}")
    A(f"v_mov_b64 {vr(r+2,2)}, {vr(r,2)}")
    A(f"ds_write_b128 v{T16}, {vr(r,4)} offset:{LIST}")
    A(f"ds_write_b128 v{T16}, {vr(r,4)} offset:{LIST+8192}")
    A(f"v_mov_b32 v{r+4}, {ROWS + 49*RP}")
    A(f"v_mov_b32 v{r+5}, {BIG:#x}")
    A(f"v_mov_b64 {vr(r+6,2)}, {vr(r+4,2)}")
    A(f"ds_write_b128 v{T16}, {vr(r+4,4)} offset:{QD}")
    A("s_mov_b64 exec, 15")
    A(f"ds_write_b128 v{IP[0]+1}, {vr(r+4,4)} offset:{QD+8192}")
    A("s_mov_b64 exec, -1")
def bound():
    A(f"s_add_u32 s{sCNT}, s{sCNT}, 1")
    A(f"s_cmp_ge_u32 s{sCNT}, 0x8000")
    A("s_cbranch_scc1 L_END")
def wfrags(dst, areg, off, tstep):
    return [f"ds_read_b64_tr_b16 {vr(dst+8*cb+4*ks+2*tt,2)}, v{areg+cb} offset:{off + 4096*ks + tstep*tt}"
            for cb in range(2) for ks in range(2) for tt in range(2)]
def mm(dst, wf):
    return [f"v_mfma_f32_16x16x32_bf16 {vr(dst+4*cb,4)}, {vr(wf+8*cb+4*ks,4)}, {vr(XF+4*ks,4)}, {'0' if ks == 0 else vr(dst+4*cb,4)}"
            for ks in range(2) for cb in range(2)]
def pk(op, d, a, b, n=8, tail=""):
    f = lambda x, q: vr(x+q,2) if isinstance(x, int) else x
    return [f"{op} {vr(d+q,2)}, {f(a,q)}, {f(b,q)}{tail}" for q in range(0, n, 2)]

def kernel():
    L.append(f".globl {KN}\n.p2align 8\n.type {KN},@function")
    LB(KN)
    A("s_cmpk_ge_u32 s2, 256")
    A("s_cbranch_scc1 L_END")
    A("s_load_dwordx16 s[20:35], s[0:1], 0")
    A("s_load_dwordx2 s[8:9], s[0:1], 64")
    A("s_memrealtime s[46:47]")
    A("s_getpc_b64 s[48:49]")
    LB("L_PC")
    A(f"v_lshrrev_b32 v{t}, 6, v0")
    C("pull the code into L2 early: one 128-B line per wave")
    A("s_and_b32 s50, s2, 0x78")
    A(f"v_add_lshl_u32 v{t+6}, v{t}, s50, 7")
    A(f"v_readfirstlane_b32 s3, v{t}")
    A(f"global_load_dword v254, v{t+6}, s[48:49]")
    C("lane-constant table -> LDS (1 KB per wave)")
    A(f"v_lshlrev_b32 v{T16}, 4, v0")
    A("s_lshl_b32 s51, s3, 10")
    A(f"s_add_u32 m0, s51, {TAB}")
    A("s_add_u32 s48, s48, L_TAB-L_PC")
    A("s_addc_u32 s49, s49, 0")
    A(f"global_load_lds_dwordx4 v{T16}, s[48:49]")
    A(f"v_and_b32 v{LANE}, 63, v0")
    A(f"v_lshlrev_b32 v{t+3}, 2, v0")
    A(f"v_mov_b32 v{ZERO}, 0")
    A(f"ds_write_b32 v{t+3}, v{ZERO} offset:{H1}")
    A(f"s_mul_i32 s42, s2, {CH//4}")
    A(f"v_mad_u32_u24 v{t+1}, v{t}, {NPB}, v{LANE}")
    A("s_mov_b32 exec_hi, 0x1ffff")
    A(f"v_add_lshl_u32 v{t+2}, v{t+1}, s42, 3")
    A(f"v_cmp_gt_u32 vcc, {2*(E - CH//2)}, v{t+2}")
    A(f"v_lshlrev_b32 v{t+1}, 1, v{t+2}")
    A(f"s_mov_b64 {sr(M1_,2)}, vcc")
    A(f"v_add_u32 v{t+1}, {CH}, v{t+1}")
    A(f"v_cmpx_gt_u32 vcc, {2*E}, v{t+2}")
    if DIAG:
        stamp(30, real=True); stamp(29)
    A("s_waitcnt lgkmcnt(0)")
    A(f"global_load_dwordx4 {vr(DST,4)}, v{t+1}, {sr(pDST,2)} offset:{-CH}")
    A(f"s_mov_b64 exec, {sr(M1_,2)}")
    A(f"global_load_dwordx4 {vr(DST+4,4)}, v{t+1}, {sr(pDST,2)} offset:{CH}")
    A("s_barrier")
    A(f"global_load_dwordx4 {vr(SRC+4,4)}, v{t+1}, {sr(pSRC,2)} offset:{CH}")
    A(f"global_load_dwordx2 {vr(EE+2,2)}, v{t+2}, {sr(pE,2)} offset:{CH}")
    A("s_mov_b64 exec, vcc")
    A(f"global_load_dwordx4 {vr(SRC,4)}, v{t+1}, {sr(pSRC,2)} offset:{-CH}")
    A(f"global_load_dwordx2 {vr(EE,2)}, v{t+2}, {sr(pE,2)}")
    A(f"s_mov_b64 {sr(M0_,2)}, vcc")
    C("launch-unique tag: written by WG 0 / wave 0 (lane mask empty everywhere else)")
    A("s_bitset1_b32 s46, 31")
    A("s_or_b32 s43, s2, s3")
    A("s_cselect_b64 exec, 0, 1")
    A(f"v_mov_b32 v{t+5}, s46")
    A(f"global_store_dword v{ZERO}, v{t+5}, {sr(pDBG,2)} sc1")
    A("s_mov_b64 exec, -1")
    stamp(0)
    A("s_mov_b32 s42, s51")
    A("s_and_b32 s4, s2, 7")
    A("s_lshl_b32 s4, s4, 5")
    A("s_lshr_b32 s7, s2, 3")
    A("s_add_u32 s4, s4, s7")
    A(f"s_mul_i32 s5, s4, {NPB}")
    row = t+9
    A(f"v_lshrrev_b32 v{row}, 3, v0")
    A(f"v_lshlrev_b32 v{L4}, 2, v{LANE}")
    A(f"v_lshlrev_b32 v{t+4}, 4, v{LANE}")
    prefill_small()
    A(f"ds_write_b32 v{ZERO}, v{ZERO} offset:{NONCE+4}")
    A(f"s_mov_b32 s10, {WS_REC:#x}")
    A("s_mov_b32 s11, 0x20000")
    A(f"s_sub_u32 s6, {N}, s5")
    A(f"s_min_u32 s6, s6, {NPB}")
    A(f"v_and_b32 v{LP}, 0x70, v{T16}")
    A("s_lshl_b32 s54, s3, 6")
    A(f"s_add_u32 s54, s54, 16384")
    A(f"v_add_u32 v{TLA}, s54, v{t+4}")
    A(f"s_mul_i32 s43, s2, {CHB}")
    A(f"s_add_u32 s43, s43, {REC:#x}")
    A("s_add_u32 s55, s43, 8192")
    A("s_cmp_lt_u32 s3, 6")
    A("s_cselect_b32 s56, 15, 0")
    A("s_lshl_b32 s57, s2, 11")
    A(f"s_add_u32 s57, s57, {OFFS:#x}")
    A("s_lshr_b32 s47, s4, 2")
    A("s_lshl_b32 s47, s47, 1")
    A("s_and_b32 s46, s4, 1")
    A("s_add_u32 s47, s47, s46")
    A("s_and_b32 s46, s4, 2")
    A("s_lshl_b32 s46, s46, 6")
    A("s_add_u32 s47, s47, s46")
    A("s_lshl_b32 s47, s47, 3")
    A(f"s_add_u32 s47, s47, {OFFS:#x}")
    A(f"v_lshrrev_b32 v{t+8}, 1, v0")
    A(f"v_lshl_add_u32 v{ENB}, v{t+8}, 11, s47")
    A(f"s_movk_i32 s46, {CHB}")
    A(f"v_and_b32 v{t+7}, 16, v{T16}")
    A(f"v_mad_u32_u24 v{RCB}, v{t+8}, s46, v{t+7}")
    A(f"s_mov_b32 s46, {4*CHB}")
    A(f"v_mad_u32_u24 v{RCA}, v{row}, s46, v{LP}")
    A(f"v_and_b32 v{ENA}, 0xe0, v{L4}")
    A(f"v_mov_b32 v{LP+1}, v{LP}")
    A("s_lshr_b32 s44, s3, 1")
    A("s_and_b32 s45, s3, 1")
    A("s_lshl_b32 s45, s45, 6")
    A("s_lshl_b32 s58, s44, 11")
    A("s_add_u32 s59, s58, s45")
    A(f"s_mul_i32 s60, s44, {16*RP}")
    A("s_lshl1_add_u32 s60, s45, s60")
    A(f"s_mul_i32 s61, s44, {16*XP}")
    A("s_lshl_b32 s44, s44, 4")
    A("s_sub_i32 s62, s6, s44")
    A("s_lshl_b32 s63, s62, 2")
    A(f"v_cmp_gt_i32 {sr(MA_,2)}, s63, v{LANE}")
    A(f"s_sub_i32 s63, {NROW}, s44")
    A(f"s_mov_b32 s{sNL}, {NLOG2E:#x}")
    A(f"s_mov_b32 s{sNL+1}, s{sNL}")
    A(f"v_xor_b32 v{t+7}, v{row}, v0")
    A(f"v_and_b32 v{t+7}, 7, v{t+7}")
    A(f"v_add_u32 v{t+8}, s5, v{row}")
    A(f"v_min_u32 v{t+8}, {N-1}, v{t+8}")
    A(f"v_lshlrev_b32 v{t+8}, 3, v{t+8}")
    A(f"s_add_u32 m0, s42, {XS}")
    A(f"v_add_lshl_u32 v{t+8}, v{t+8}, v{t+7}, 4")
    A(f"v_lshrrev_b32 v{t+7}, 1, v{row}")
    A(f"global_load_lds_dwordx4 v{t+8}, {sr(pX,2)}")
    A(f"v_and_b32 v{t+7}, 4, v{t+7}")
    A(f"v_and_or_b32 v{t+7}, v{row}, 2, v{t+7}")
    A(f"s_add_u32 m0, s42, {WM}")
    A(f"v_xor_b32 v{t+7}, v{t+7}, v0")
    A(f"v_lshlrev_b32 v{WG_}, 4, v{t+7}")
    A(f"global_load_lds_dwordx4 v{WG_}, {sr(pWM,2)}")
    A(f"s_mov_b32 s46, {(2**32 + 48)//49}")
    A("s_movk_i32 s47, -49")
    A(f"v_mov_b32 v{t}, 1")
    stamp(1)
    for h in range(2):
        A(f"s_mov_b64 exec, {sr(M0_+2*h,2)}")
        A(f"s_waitcnt vmcnt({8-h})")
        if h == 0: stamp(2)
        for i in range(4*h, 4*h+4): A(f"v_mul_hi_u32 v{BK+i}, v{DST+i}, s46")
        for i in range(4*h, 4*h+4):
            A(f"v_lshlrev_b32 v{BK+i}, 2, v{BK+i}")
            A(f"ds_add_rtn_u32 v{RK1+i}, v{BK+i}, v{t} offset:{H1}")
    A("s_mov_b64 exec, -1")
    for i in range(8): A(f"v_lshlrev_b32 v{DST+i}, 2, v{DST+i}")
    A("s_waitcnt lgkmcnt(0)")
    A("s_barrier")
    stamp(3)
    A(f"ds_read_b128 {vr(HH,4)}, v{t+4} offset:{H1}")
    A(f"s_mov_b32 s{sLB}, 24")
    A(f"s_mov_b32 s{sWID}, 36")
    A(f"s_mov_b32 s{sHI}, 36")
    A("s_mov_b32 s46, 0x55555556")
    A("s_waitcnt lgkmcnt(0)")
    A(f"v_add3_u32 v{t+1}, v{HH}, v{HH+1}, v{HH+2}")
    A(f"v_add_u32 v{t+2}, v{t+1}, v{HH+3}")
    A(f"v_mov_b32 v{t+3}, v{t+2}")
    scan(t+3, [f"v_mad_i32_i24 v{DST+i}, v{BK+i}, s47, v{DST+i}" for i in range(8)] +
              [f"v_and_b32 v{IP[0]+1}, 0x30, v{T16}", f"v_and_b32 v{IP[1]+1}, 0x30, v{T16}", "s_mov_b32 s47, 0x2aaaaaab"])
    A(f"v_sub_u32 v{BB}, v{t+3}, v{t+2}")
    A(f"v_add_u32 v{BB+1}, v{BB}, v{HH}")
    A(f"v_add_u32 v{BB+2}, v{BB+1}, v{HH+1}")
    A(f"v_add_u32 v{BB+3}, v{BB}, v{t+1}")
    A(f"ds_write_b128 v{t+4}, {vr(BB,4)} offset:{BASE1}")
    for h in range(2):
        A(f"s_mov_b64 exec, {sr(M0_+2*h,2)}")
        for i in range(4*h, 4*h+4): A(f"ds_read_b32 v{BSV+i}, v{BK+i} offset:{BASE1}")
    A("s_cmp_eq_u32 s3, 0")
    A("s_cselect_b64 exec, -1, 0")
    A(f"global_load_dword v{PUB+1}, v{ZERO}, {sr(pDBG,2)} sc1")
    def late_dma():
        A(f"s_add_u32 s48, s{pWM}, 8192")
        A(f"s_addc_u32 s49, s{pWM+1}, 0")
        A(f"s_add_u32 m0, s42, {WM+8192}")
        A(f"s_add_u32 s50, s{pWU}, 8192")
        A(f"global_load_lds_dwordx4 v{WG_}, s[48:49]")
        A(f"s_addc_u32 s51, s{pWU+1}, 0")
        A(f"s_add_u32 m0, s42, {WU}")
        A(f"s_add_u32 s52, s{pWM}, 16384")
        A(f"global_load_lds_dwordx4 v{WG_}, {sr(pWU,2)}")
        A(f"s_addc_u32 s53, s{pWM+1}, 0")
        A(f"s_add_u32 m0, s42, {WU+8192}")
        A(f"s_mov_b32 s{sCNT}, 0")
        A(f"global_load_lds_dwordx4 v{WG_}, s[50:51]")
        A(f"s_mov_b32 m0, {W3}")
        A("s_mov_b32 exec_hi, 0")
        A(f"global_load_lds_dword v{L4}, s[52:53]")
        A("s_mov_b64 exec, -1")
    A("s_mov_b64 exec, -1")
    if "dma2" not in OPT: late_dma()
    C("record p lives in piece p/3: word at 4(p + p/3), node byte at p + p/3 of a separate array")
    for h in range(2):
        A(f"s_mov_b64 exec, {sr(M0_+2*h,2)}")
        A("s_waitcnt lgkmcnt(4)")
        for i in range(4*h, 4*h+4): A(f"v_add_u32 v{BSV+i}, v{BSV+i}, v{RK1+i}")
        for i in range(4*h, 4*h+4): A(f"v_mul_hi_u32 v{RK1+i}, v{BSV+i}, s46")
        for i in range(4*h, 4*h+4):
            A(f"v_add_u32 v{BK+i}, v{RK1+i}, v{BSV+i}")
            A(f"ds_write_b8 v{BK+i}, v{DST+i} offset:{SN}")
    A("s_mov_b64 exec, -1")
    for i in range(8): A(f"v_lshlrev_b32 v{BSV+i}, 2, v{BK+i}")
    if "dma2" in OPT: late_dma()
    stamp(4)
    A("s_mov_b32 s46, 0xffff0000")
    stamp(24)
    for h in (1, 0):
        A(f"s_mov_b64 exec, {sr(M0_+2*h,2)}")
        A(f"s_waitcnt vmcnt({10 if h else 8})")
        for q in range(2*h, 2*h+2):
            A(f"v_lshl_or_b32 v{SRC+2*q}, v{EE+q}, 16, v{SRC+2*q}")
            A(f"ds_write_b32 v{BSV+2*q}, v{SRC+2*q} offset:{STG}")
            A(f"v_and_or_b32 v{SRC+2*q+1}, v{EE+q}, s46, v{SRC+2*q+1}")
            A(f"ds_write_b32 v{BSV+2*q+1}, v{SRC+2*q+1} offset:{STG}")
    A("s_mov_b64 exec, -1")
    A(f"v_lshlrev_b32 v{t+1}, 2, v0")
    A(f"v_add_u32 v{t+1}, {SN}, v{t+1}")
    A(f"v_lshrrev_b32 v{t+2}, 2, v{TLA}")
    A("s_cmp_lg_u32 s3, 0")
    A("s_waitcnt vmcnt(0)")
    A("s_cbranch_scc1 L_PUBD")
    for i in range(4): A(f"v_mul_hi_u32 v{PUB+2*i}, v{BB+i}, s47")
    for i in range(4): A(f"v_mad_u32_u24 v{PUB+2*i}, v{PUB+2*i}, 26, v{BB+i}")
    for i in range(4): A(f"v_lshl_or_b32 v{PUB+2*i}, v{HH+i}, 16, v{PUB+2*i}")
    LB("L_PUB")
    A(f"v_cmp_eq_u32 vcc, 0, v{PUB+1}")
    A("s_cbranch_vccnz L_NONCEW")
    A(f"ds_write_b32 v{ZERO}, v{PUB+1} offset:{NONCE}")
    for i in range(1,4): A(f"v_mov_b32 v{PUB+1+2*i}, v{PUB+1}")
    A(f"buffer_store_dwordx4 {vr(PUB,4)}, v{T16}, {sr(sWS,4)}, s57 offen sc1")
    A(f"buffer_store_dwordx4 {vr(PUB+4,4)}, v{T16}, {sr(sWS,4)}, s57 offen offset:1024 sc1")
    LB("L_PUBD")
    A("s_waitcnt lgkmcnt(0)")
    A("s_barrier")
    stamp(5)
    A(f"ds_read_b32 v{t+5}, v{ZERO} offset:{NONCE}")
    A(f"ds_read_b128 {vr(GA,4)}, v{t+4} offset:{TAB+7*1024}")
    A(f"ds_read2st64_b32 v[118:119], v{t+1} offset0:0 offset1:8")
    for r in range(2): A(f"ds_read_b128 {vr(106+4*r,4)}, v{T16} offset:{STG+8192*r}")
    A(f"ds_read_b32 v120, v{t+2} offset:{SN}")
    A(f"ds_read_b128 v[114:117], v{TLA} offset:{STG}")
    A(f"ds_read_b128 {vr(C4,4)}, v{t+4} offset:{TAB+4*1024}")
    A(f"ds_read_b128 {vr(AG,4)}, v{t+4} offset:{TAB+5*1024}")
    A(f"s_mov_b32 s46, {~TMASK & 0xffffffff:#x}")
    A("s_waitcnt lgkmcnt(7)")
    A(f"v_mul_lo_u32 v{TW}, v{TW}, v{t+5}")
    A(f"v_readfirstlane_b32 s{sTAG}, v{t+5}")
    A(f"v_and_b32 v{TW}, {TMASK:#x}, v{TW}")
    for r in range(2):
        A(f"s_waitcnt lgkmcnt({5-r})")
        A(f"v_and_or_b32 v{109+4*r}, v{118+r}, s46, v{TW}")
        A(f"buffer_store_dwordx4 {vr(106+4*r,4)}, v{T16}, {sr(sWS,4)}, s{[43,55][r]} offen sc1")
    A("s_mov_b32 exec_lo, s56")
    A("s_mov_b32 exec_hi, 0")
    A("s_waitcnt lgkmcnt(2)")
    A(f"v_and_or_b32 v117, v120, s46, v{TW}")
    A(f"buffer_store_dwordx4 v[114:117], v{TLA}, {sr(sWS,4)}, s43 offen sc1")
    A("s_mov_b64 exec, -1")
    stamp(6)
    C("---- A' rows")
    A("s_waitcnt lgkmcnt(0)")
    A(f"v_add_u32 v{XA}, s58, v{C4}")
    A(f"v_xor_b32 v{XA+1}, 64, v{XA}")
    A(f"v_xor_b32 v{WA}, s45, v{C4+1}")
    A(f"v_xor_b32 v{WA+1}, 32, v{WA}")
    A(f"ds_read_b128 {vr(XF,4)}, v{XA}")
    A(f"ds_read_b128 {vr(XF+4,4)}, v{XA+1}")
    AA(wfrags(WF, WA, 0, 512))
    A(f"v_xor_b32 v{AW}, s45, v{XA}")
    A(f"v_add_u32 v{AG}, s59, v{AG}")
    A(f"v_add_u32 v{AR}, s58, v{AR}")
    A(f"v_xor_b32 v{AR}, s45, v{AR}")
    A(f"v_add_u32 v{BWA}, s60, v{BWA}")
    A(f"v_add_u32 v{AGR}, s61, v{AGR0}")
    A(f"v_xor_b32 v{WA2}, s45, v{C4+2}")
    A(f"v_xor_b32 v{WA2+1}, 32, v{WA2}")
    A("s_waitcnt lgkmcnt(0)")
    AA(mm(126, WF))
    AA(wfrags(138, WA, 8192, 512))
    AA(pk("v_pk_mul_f32", 126, 126, sr(sNL,2)))
    for q in range(4): A(f"v_cvt_pk_bf16_f32 v{134+q}, v{126+2*q}, v{127+2*q}")
    A(f"ds_write_b128 v{AW}, v[134:137] offset:{AST-XS}")
    A(f"ds_read_b128 v[118:121], v{AR}")
    C("all-zero pad row (index N): written by the last workgroup")
    A("s_cmpk_eq_u32 s2, 255")
    A("s_waitcnt lgkmcnt(2)")
    AA(mm(122, 138))
    A("s_cselect_b32 exec_lo, -1, 0")
    A("s_mov_b32 exec_hi, 0")
    A(f"s_mov_b32 s44, {N*128}")
    A(f"buffer_store_dword v{ZERO}, v{L4}, {sr(sWS,4)}, s44 offen sc1")
    A("s_lshl_b32 s44, s5, 7")
    A(f"s_mov_b64 exec, {sr(MA_,2)}")
    A("s_waitcnt lgkmcnt(0)")
    A(f"buffer_store_dwordx4 v[118:121], v{AG}, {sr(sWS,4)}, s44 offen sc1")
    A("s_mov_b64 exec, -1")
    OF = 106
    def entry_load(): A(f"buffer_load_dwordx2 {vr(OF+4,2)}, v{ENB}, {sr(sWS,4)}, 0 offen sc1")
    if "ent0" in OPT: entry_load()
    C("---- B', S_B, U (while the stores drain)")
    AA(wfrags(WF, WA, WU-WM, 512))
    A(f"s_add_u32 s{sOUTS}, s44, s59")
    AA(pk("v_pk_mul_f32", 122, 122, sr(sNL,2)))
    for q in range(8): A(f"v_exp_f32 v{210+q}, v{122+q}")
    AA(pk("v_pk_add_f32", 210, 210, "1.0", tail=" op_sel_hi:[1,0]"))
    A("s_waitcnt lgkmcnt(0)")
    AA(mm(U, WF))
    for k, d in ((0, S), (1, S+4), (2, A3), (3, WMK), (6, OUTO)): A(f"ds_read_b128 {vr(d,4)}, v{t+4} offset:{TAB+k*1024}")
    for q in range(0, 4, 2): A(f"v_mov_b64 {vr(130+q,2)}, 0")
    for q in range(4): A(f"ds_read_u16_d16_hi v{130+q}, v{C4+3} offset:{W3 + 64*(q>>1) + 8*(q&1)}")
    for q in range(8): A(f"v_rcp_f32 v{210+q}, v{210+q}")
    A("s_mov_b32 s43, 0xffff0000")
    for q in range(8): A(f"v_and_b32 v{138+q}, s43, v{122+q}")
    AA(pk("v_pk_mul_f32", 210, 122, 210))
    AA(pk("v_pk_add_f32", 122, 122, 138, tail=" neg_lo:[0,1] neg_hi:[0,1]"))
    A(f"v_and_b32 v{t+7}, 15, v0")
    for q in range(8): A(f"v_cvt_pk_bf16_f32 v{122+q}, v{122+q}, v{138+q}")
    A(f"v_cmp_gt_i32 {sr(mON,2)}, s62, v{t+7}")
    A(f"v_cmpx_gt_i32 vcc, s63, v{t+7}")
    for q in range(4):
        A(f"ds_write2_b32 v{BWA}, v{122+2*q}, v{123+2*q} offset0:{8*q} offset1:{8*q+4}")
    for q in range(4):
        A(f"ds_write2_b32 v{BWA}, v{210+2*q}, v{211+2*q} offset0:{oSB//4+8*q} offset1:{oSB//4+8*q+4}")
    A("s_mov_b64 exec, -1")
    if "ent0" not in OPT: entry_load()
    AA(wfrags(WF2, WA2, 0, 128))
    RK, RW, ND = 186, 138, 112
    A(f"s_mov_b32 s{sSAFE}, 0")
    A(f"s_mov_b32 s{sFIRST}, 1")
    A(f"v_mov_b32 v{t+6}, s{sTAG}")
    A(f"v_not_b32 v{t+7}, v{t+6}")
    A("s_lshl_b32 s47, s2, 4")
    A(f"s_add_u32 s47, s47, {FL2:#x}")
    for q in range(6): A(f"v_mov_b32 v{RW+4*q+3}, v{TW}")
    A("s_mov_b32 s46, 0xf0008018")
    stamp(7)
    C("the wave that is last to see its stores acknowledged publishes this workgroup's table flag")
    A("s_mov_b64 exec, 1")
    A("s_waitcnt vmcnt(1)")
    A(f"ds_add_rtn_u32 v{t}, v{ZERO}, v{t} offset:{NONCE+4}")
    A("s_waitcnt lgkmcnt(0)")
    A(f"v_cmpx_eq_u32 vcc, 7, v{t}")
    A(f"buffer_store_dwordx2 {vr(t+6,2)}, off, {sr(sWS,4)}, s47 sc1")
    A("s_mov_b64 exec, -1")
    stamp(26)
    A(f"s_waitcnt vmcnt(1)")
    LB("L_ENT")
    for i in range(4): A(f"ds_bpermute_b32 v{OF+i}, v{ENA}, v{OF+4} offset:{8*i}")
    A(f"v_xor_b32 v{OF+5}, s{sTAG}, v{OF+5}")
    A(f"v_and_or_b32 v{OF+5}, v{OF+4}, s46, v{OF+5}")
    A(f"v_cmp_ne_u32 vcc, 0, v{OF+5}")
    A(f"v_and_b32 v{t+8}, 1, v0")
    A("s_cbranch_vccnz L_ENTR")
    stamp(8)
    note(sCNT, 20)
    A(f"v_mul_u32_u24 v{t+8}, 3, v{t+8}")
    A(f"s_mov_b32 s{sCNT}, 0")
    LB("L_LOADS")
    A(f"s_mov_b32 s46, {REC:#x}")
    for i in range(4):
        lo = OF+i
        A(f"s_waitcnt lgkmcnt({3-i})")
        A(f"v_and_b32 v{t+1}, 7, v{lo}")
        A(f"v_and_b32 v{t+2}, 0x7fe0, v{lo}")
        A(f"v_sub_u32 v{ND+i}, v{KP}, v{t+1}")
        A(f"v_add_u32 v{t+2}, v{t+2}, v{RCA}")
        A(f"v_sub_u32 v{t+1}, v{ND+i}, v{t+8}")
        A(f"v_cmpx_lt_i32_sdwa vcc, v{t+1}, v{lo} src0_sel:DWORD src1_sel:WORD_1")
        if i == 0: stamp(9)
        A(f"buffer_load_dwordx4 {vr(RW+4*i,4)}, v{t+2}, {sr(sWS,4)}, s46 offen sc1")
        A("s_mov_b64 exec, -1")
        if i < 3: A(f"s_add_u32 s46, s46, {CHB}")
    lo = OF+4
    A(f"v_and_b32 v{t+1}, 7, v{lo}")
    A(f"v_add_u32_sdwa v{t+1}, v{t+1}, v{lo} dst_sel:DWORD dst_unused:UNUSED_PAD src0_sel:DWORD src1_sel:WORD_1")
    A(f"s_mov_b32 s{sRARE}, 0")
    A(f"v_cmp_lt_u32 {sr(mMORE,2)}, s{sHI}, v{t+1}")
    A(f"v_cmpx_lt_u32 vcc, s{sLB}, v{t+1}")
    A("s_cbranch_execz L_NOB")
    A(f"s_mov_b32 s{sRARE}, 1")
    A(f"s_mov_b32 s46, {REC+128:#x}")
    A(f"v_and_b32 v{t+2}, 0x7fe0, v{lo}")
    A(f"v_add_u32 v{t+2}, v{t+2}, v{RCB}")
    A(f"v_subrev_u32 v{t+1}, s{sLB}, v{t+1}")
    A(f"buffer_load_dwordx4 {vr(RW+16,4)}, v{t+2}, {sr(sWS,4)}, s46 offen sc1")
    A(f"v_sub_u32 v{t+3}, v{t+1}, v{t+8}")
    for k in range(6): A(f"v_cmp_lt_i32 {mk(12+k)}, {6*(k//3) + k%3}, v{t+3}")
    A(f"v_cmpx_lt_i32 vcc, 6, v{t+1}")
    A(f"buffer_load_dwordx4 {vr(RW+20,4)}, v{t+2}, {sr(sWS,4)}, s46 offen offset:32 sc1")
    LB("L_NOB")
    A("s_mov_b64 exec, -1")
    stamp(10)
    for i in range(4):
        for r in range(3):
            A(f"v_cmp_lt_u32_sdwa {mk(3*i+r)}, v{ND+i}, v{OF+i} src0_sel:DWORD src1_sel:WORD_1")
            if r < 2: A(f"v_add_u32 v{ND+i}, 1, v{ND+i}")
    A(f"s_cmp_eq_u32 s{sFIRST}, 0")
    A("s_cbranch_scc1 L_HIST")
    A(f"s_mov_b32 s{sFIRST}, 0")
    C("---- remaining constants (in the shadow of the record loads)")
    AA(pk("v_pk_mul_f32", 130, 130, sr(sNL,2), n=4))
    A("v_cvt_pk_bf16_f32 v130, v130, v131")
    A("v_cvt_pk_bf16_f32 v131, v132, v133")
    for u in range(2):
        for r in range(4): A(f"v_and_b32 v{W+4*u+r}, v{130+u}, v{WMK+r}")
    A("s_mov_b32 s12, s8")
    A(f"s_or_b32 s13, s9, {128 << 16:#x}")
    A(f"s_mov_b32 s14, {(N+1)*128}")
    A("s_mov_b32 s15, 0x20000")
    A(f"s_mov_b32 s16, s{pOUT}")
    A(f"s_mov_b32 s17, s{pOUT+1}")
    A(f"s_mov_b32 s18, {N*128}")
    A("s_mov_b32 s19, 0x20000")
    A(f"s_bfm_b64 {sr(mLN,2)}, s6, 0")
    A("s_lshl_b32 s44, s3, 4")
    A(f"v_add_u32 v{AGW}, s44, v{AGW}")
    A("s_lshl_b32 s44, s3, 5")
    A(f"v_add_u32 v{CRA}, s44, v{ROWL}")
    A(f"v_and_b32 v{FLA}, 0x1f0, v{T16}")
    A("s_lshl_b32 s44, s3, 9")
    A(f"s_add_u32 s44, s44, {FL2:#x}")
    A(f"v_add_u32 v{FLA}, s44, v{FLA}")
    A(f"s_mul_i32 s44, s3, {8*TP}")
    A(f"v_mul_u32_u24 v{SID}, {TP}, v{GD}")
    A(f"v_add_u32 v{SID}, s44, v{SID}")
    A(f"v_add_u32 v{TOTW}, v{SID}, v{LP}")
    A("s_mul_i32 s44, s7, 392")
    A(f"s_mul_i32 s45, s3, {NPB}")
    A("s_add_u32 s44, s44, s45")
    A(f"v_add_lshl_u32 v{PFA}, v{LANE}, s44, 7")
    for q in range(0, 8, 2): A(f"v_mov_b64 {vr(EA[0]+q,2)}, 0")
    for q in range(0, 8, 2): A(f"v_mov_b64 {vr(AGG+q,2)}, 0")
    A(f"s_mov_b32 s{sI0}, 32")
    A(f"s_mov_b32 s{sI0+1}, 32")
    A("s_mov_b32 s20, 0x11111111")
    A("s_mov_b32 s21, 0x44444444")
    A("s_mov_b32 s22, 0x22222222")
    A("s_mov_b32 s23, 0x88888888")
    A("s_mov_b32 s30, 0x01010101")
    A("s_mov_b32 s31, s30")
    A(f"s_mov_b32 s40, {BIG:#x}")
    A("s_mov_b32 s41, s40")
    prefill_big(124)
    LB("L_HIST")
    for q in range(0, 18, 2): A(f"v_mov_b64 {vr(RK+q,2)}, s[40:41]")
    A(f"v_mov_b32 v{t+5}, 4")
    A(f"s_mov_b64 exec, {sr(mMORE,2)}")
    A(f"ds_write_b32 v{ZERO}, v{t+5} offset:{FLAGS}")
    A("s_mov_b64 exec, -1")
    stamp(11)
    A("s_waitcnt vmcnt(0)")
    for q in range(6): A(f"v_xor_b32 v{RW+4*q+3}, v{RW+4*q+3}, v{TW}")
    A(f"v_or3_b32 v{t+3}, v{RW+3}, v{RW+7}, v{RW+11}")
    A(f"v_or3_b32 v{t+2}, v{RW+15}, v{RW+19}, v{RW+23}")
    A(f"v_or_b32 v{t+3}, v{t+3}, v{t+2}")
    A(f"v_and_b32 v{t+3}, {TMASK:#x}, v{t+3}")
    A(f"v_cmp_ne_u32 vcc, 0, v{t+3}")
    nd = lambda k: (ND + 2*(k//3) + k%3) if k % 3 < 2 else RW + 4*(k//3) + 3
    rw = lambda k: RW + 4*(k//3) + k%3
    def extract(q):
        A(f"v_and_b32 v{nd(3*q)}, 0xff, v{RW+4*q+3}")
        A(f"v_bfe_u32 v{nd(3*q+1)}, v{RW+4*q+3}, 8, 8")
        A(f"v_lshrrev_b32 v{RW+4*q+3}, 16, v{RW+4*q+3}")
    def hist(k):
        A(f"s_mov_b64 exec, {mk(k)}")
        A(f"ds_add_rtn_u32 v{RK+k}, v{nd(k)}, v{t+5} offset:{HIST2}")
    A("s_cbranch_vccnz L_HR")
    for q in range(4): extract(q)
    A(f"s_cmp_eq_u32 s{sRARE}, 0")
    A("s_cbranch_scc1 L_RARE1")
    extract(4); extract(5)
    for k in range(12, 18): hist(k)
    LB("L_RARE1")
    for k in range(12): hist(k)
    A("s_mov_b64 exec, -1")
    note(sCNT, 21); stamp(23); note(sRARE, 25)
    A(f"s_cmp_lg_u32 s{sSAFE}, 0")
    A(f"s_cselect_b32 s44, 1.0, {f2u(2.0**-64):#x}")
    A("s_mov_b32 s45, s44")
    A("s_lshl_b32 s46, s3, 4")
    A("s_waitcnt lgkmcnt(0)")
    A("s_barrier")
    stamp(12)
    CNT, PB, INC, BS = t+6, t+7, t+8, t+9
    A(f"ds_read_b32 v{CNT}, v{L4} offset:{HIST2}")
    A(f"buffer_load_dwordx2 {vr(RAp[1],2)}, v{FLA}, {sr(sWS,4)}, 0 offen sc1")
    PF = int(OPT.get("pf", 24))
    A(f"s_mov_b64 exec, {(1 << PF) - 1:#x}")
    A(f"buffer_load_dword v254, v{PFA}, {sr(sWS,4)}, 0 offen sc1")
    A("s_mov_b64 exec, -1")
    A("s_waitcnt lgkmcnt(0)")
    A(f"v_add_u32 v{PB}, 12, v{CNT}")
    A(f"v_and_b32 v{PB}, -16, v{PB}")
    A(f"v_max_u32 v{PB}, 16, v{PB}")
    A(f"v_cndmask_b32 v{PB}, 0, v{PB}, {sr(mLN,2)}")
    A(f"v_mov_b32 v{INC}, v{PB}")
    scan(INC, [f"v_sub_u32 v{NPAD}, v{PB}, v{CNT}", f"s_mov_b32 s{sREDO}, 0"] + [f"v_mov_b64 {vr(Nn+q,2)}, 0" for q in range(0,8,2)] +
              [f"v_mov_b64 {vr(Dd+q,2)}, s[44:45]" for q in range(0,8,2)] +
              [f"v_cvt_f32_u32 v{NPAD}, v{NPAD}", f"v_mul_f32 v{NPAD}, {f2u(-0.25):#x}, v{NPAD}"])
    A(f"v_sub_u32 v{BS}, v{INC}, v{PB}")
    A(f"v_readlane_b32 s44, v{INC}, 63")
    A(f"ds_write_b32 v{L4}, v{BS} offset:{BASE2}")
    def baserd(k): A(f"ds_read_b32 v{nd(k)}, v{nd(k)} offset:{BASE2}")
    def scat(k):
        A(f"v_add_u32 v{RK+k}, v{nd(k)}, v{RK+k}")
        A(f"ds_write_b32 v{RK+k}, v{rw(k)} offset:{LIST}")
    for k in range(12): baserd(k)
    A("s_cmpk_gt_u32 s44, 16384")
    A("s_cbranch_scc1 L_TOOBIG")
    A(f"v_lshrrev_b32 v{t+1}, 1, v{INC}")
    A(f"v_add_u32 v{t+2}, s46, v{BS}")
    A(f"v_lshrrev_b32 v{t+2}, 1, v{t+2}")
    for k in range(12):
        if k % 2 == 0: A("s_waitcnt lgkmcnt(10)")
        scat(k)
    A(f"s_cmp_eq_u32 s{sRARE}, 0")
    A("s_cbranch_scc1 L_RARE2")
    for k in range(12, 18): baserd(k)
    A("s_waitcnt lgkmcnt(0)")
    for k in range(12, 18): scat(k)
    LB("L_RARE2")
    A(f"s_mov_b64 exec, {sr(mLN,2)}")
    A(f"ds_write_b32 v{t+1}, v{ROWL} offset:{QD-4}")
    LB("L_QD")
    for q in range(3):
        A(f"v_cmpx_lt_u32 vcc, s46, v{PB}")
        A("s_add_u32 s46, s46, 128")
        A(f"ds_write_b32 v{t+2}, v{ROWL} offset:{QD+64*q}")
    A(f"v_cmpx_lt_u32 vcc, s46, v{PB}")
    A(f"v_add_u32 v{t+2}, 192, v{t+2}")
    A("s_cbranch_execnz L_QD")
    A("s_mov_b64 exec, -1")
    A("s_add_u32 s44, s44, 127")
    A("s_lshr_b32 s45, s44, 10")
    A("s_bfe_u32 s44, s44, 0x30007")
    A("s_mul_i32 s46, s45, s3")
    A("s_min_u32 s47, s44, s3")
    A(f"s_add_u32 s{sSTART}, s46, s47")
    A("s_cmp_lt_u32 s3, s44")
    A(f"s_addc_u32 s{sT}, s45, 0")
    A(f"s_not_b32 s45, s{sTAG}")
    A("s_waitcnt vmcnt(1)")
    LB("L_FC")
    A(f"v_xor_b32 v{RAp[1]}, s{sTAG}, v{RAp[1]}")
    A(f"v_xor_b32 v{RAp[1]+1}, s45, v{RAp[1]+1}")
    A(f"v_or_b32 v{RAp[1]}, v{RAp[1]}, v{RAp[1]+1}")
    A(f"v_cmp_ne_u32 vcc, 0, v{RAp[1]}")
    A("s_cbranch_vccnz L_FR")
    note(sCNT, 22)
    LB("L_MAIN")
    A(f"s_lshl_b32 s44, s{sT}, 4")
    A(f"s_lshl_b32 s45, s{sSTART}, 7")
    A(f"v_add_u32 v{t+2}, s45, v{GQ}")
    A(f"v_mad_u32_u24 v{AI}, v{GA}, s44, v{t+2}")
    A(f"v_xor_b32 v{AX}, 2, v{GA}")
    A(f"v_mad_u32_u24 v{AX}, v{AX}, s44, v{t+2}")
    A("s_lshl_b32 s46, s44, 2")
    A(f"v_add_u32 v{AI+1}, s46, v{AI}")
    A(f"v_add_u32 v{AX+1}, s46, v{AX}")
    A("s_lshr_b32 s44, s44, 1")
    A("s_lshr_b32 s45, s45, 1")
    A(f"s_add_u32 s45, s45, {QD}")
    A(f"v_mul_u32_u24 v{QA}, s44, v{GD}")
    A(f"v_add_u32 v{QA}, s45, v{QA}")
    A("s_waitcnt lgkmcnt(0)")
    A("s_barrier")
    A("s_setprio 2")
    stamp(13); stamp(27, real=True)
    def gathers(g_):
        return [f"buffer_load_dwordx4 {vr(G[g_]+8*u+4*s,4)}, {vr(IP[s],2)}, {sr(sA,4)}, 0 idxen offen offset:{64*u}" for u in range(2) for s in range(2)]
    def idx(o):
        return [f"ds_read_u16 v{IP[0]}, v{AI} offset:{LIST+o}", f"ds_read_u16 v{IP[1]}, v{AI+1} offset:{LIST+o}"]
    def eas(b, o):
        ar = [AI, AI+1, AX, AX+1]
        return ["s_mov_b64 exec, s[20:21]"] + [f"ds_read_u16 v{EA[b]+r}, v{ar[r]} offset:{LIST+o+2}" for r in range(4)] + \
               ["s_mov_b64 exec, s[22:23]"] + [f"ds_read_u16_d16_hi v{EA[b]+r}, v{ar[r]} offset:{LIST+o+2}" for r in range(4)] + ["s_mov_b64 exec, -1"]
    def bs(b, areg):
        return [f"ds_read_b128 {vr(Bv[b],4)}, v{areg}", f"ds_read_b128 {vr(Bv[b]+4,4)}, v{areg} offset:128"]
    AA(idx(0))
    A(f"ds_read_u16 v{t}, v{AI} offset:{LIST+16}")
    A(f"ds_read_u16 v{t+1}, v{AI+1} offset:{LIST+16}")
    A(f"ds_read2_b32 {vr(RAp[0],2)}, v{QA} offset0:0 offset1:2")
    A("s_waitcnt lgkmcnt(3)")
    AA(gathers(0))
    A("s_waitcnt lgkmcnt(0)")
    A(f"v_mov_b32 v{IP[0]}, v{t}")
    A(f"v_mov_b32 v{IP[1]}, v{t+1}")
    A(f"v_lshl_add_u64 {vr(RAp[0],2)}, {vr(RAp[0],2)}, 0, {vr(LP,2)}")
    AA(bs(0, RAp[0]) + eas(0, 0))
    AA(gathers(1))
    A(f"v_mov_b32 v{RAp[1]+1}, {BIG:#x}")
    A(f"s_cmp_lg_u32 s{sREDO}, 0")
    A("s_cbranch_scc1 L_NOSH")
    A(f"ds_read_b128 v[154:157], v{CRA} offset:{oSB}")
    A(f"ds_read_b128 v[158:161], v{CRA} offset:{oSB+16}")
    A("s_waitcnt lgkmcnt(0)")
    for q in range(0,8,2): A(f"v_pk_fma_f32 {vr(AGG+q,2)}, {vr(154+q,2)}, {vr(NPAD,2)}, {vr(AGG+q,2)} op_sel_hi:[1,0,1]")
    LB("L_NOSH")
    A(f"s_sub_u32 s{sCNT}, s{sT}, 1")
    A("s_cbranch_scc1 L_WEND")
    def mfmas(b, u):
        d = vr(T[u],16)
        return [f"v_mfma_f32_32x32x16_bf16 {d}, {vr(A3,4)}, {vr(Bv[b]+4*u,4)}, 0",
                f"v_mfma_f32_32x32x16_bf16 {d}, {vr(EA[b],4)}, {vr(W+4*u,4)}, {d}"] + \
               [f"v_mfma_f32_32x32x16_bf16 {d}, {vr(G[b]+8*u+4*s,4)}, {vr(S+4*s,4)}, {d}" for s in range(2)]
    def chain(u, safe):
        o = []
        if safe:
            o += pk("v_pk_add_f32", EX, EX, "1.0", n=16, tail=" op_sel_hi:[1,0]")
            o += [f"v_rcp_f32 v{EX+r}, v{EX+r}" for r in range(16)]
            for q in range(4):
                for p in range(2):
                    n = vr(Nn+4*u+2*p,2)
                    o.append(f"v_pk_fma_f32 {n}, {vr(T[u]+4*q+2*p,2)}, {vr(EX+4*q+2*p,2)}, {n}")
            return o
        for q in range(4):
            for p in range(2):
                n = vr(Nn+4*u+2*p,2); o.append(f"v_pk_fma_f32 {n}, {n}, {vr(EX+4*q+2*p,2)}, {n}")
            for p in range(2):
                n = vr(Nn+4*u+2*p,2); o.append(f"v_pk_fma_f32 {n}, {vr(T[u]+4*q+2*p,2)}, {vr(Dd+4*u+2*p,2)}, {n}")
            for p in range(2):
                d = vr(Dd+4*u+2*p,2); o.append(f"v_pk_fma_f32 {d}, {d}, {vr(EX+4*q+2*p,2)}, {d}")
        return o
    def flush(u, a):
        return [f"ds_write_b128 v{a}, {vr(r+4*u,4)} offset:{o+128*u}" for r, o in ((Nn, oN), (Dd, oD))] + \
               (["s_mov_b64 exec, s[30:31]", f"ds_write_b32 v{a}, v{SID} offset:{oS}", "s_mov_b64 exec, -1"] if u == 0 else [])
    ms = mfmas(0, 0)
    A("s_waitcnt lgkmcnt(0)")
    A(ms[0]); A(ms[1])
    AA(bs(1, RAp[0]+1) + eas(1, 16) + idx(32))
    A(f"ds_read2_b32 {vr(DSC,2)}, v{QA} offset0:4 offset1:1")
    A("s_waitcnt vmcnt(4)")
    stamp(14)
    A(f"s_cmp_lg_u32 s{sSAFE}, 0")
    A(ms[2]); A(ms[3])
    A("s_mov_b64 s[24:25], 0")
    A("s_setprio 1")
    A("s_nop 8")
    A("s_cbranch_scc1 L_INS")
    A("s_branch L_INF")
    def size(x):
        x = x.strip()
        if x.endswith(":"): return 0
        if x.startswith("s_memtime"): return 8
        if x.startswith("v_exp_f32 ") or x.startswith("v_rcp_f32 ") or x.startswith("s_") or x.startswith("v_add_u32 ") or x.startswith("v_cmp_gt_u32 vcc") or x.startswith("v_swap"): return 4
        return 8
    def aligned(body):
        out = []; off = 0
        for x in body:
            if size(x) == 8 and off % 8 and x.startswith("v_"):
                p = out[-1]
                if p.startswith("v_exp_f32 ") or p.startswith("v_rcp_f32 "):
                    out[-1] = p.replace("_f32 ", "_f32_e64 "); off += 4
                elif "nopad" not in OPT:
                    k = len(out)
                    while out[k-1].endswith(":"): k -= 1
                    out.insert(k, "s_nop 0"); off += 4
            out.append(x); off += size(x)
        return out
    PP = int(OPT.get("pp", 24)); FB = "nofb" not in OPT
    def esec(u, ms, pre=[]):
        o = []; k = 0
        if pre is not None:
            o += [f"v_exp_f32 v{EX}, v{T[u]}"] + pre; k = 1
        for r in range(k, 16):
            if (r-k) % 3 == 0 and (r-k) < 12: o.append(ms[(r-k)//3])
            o.append(f"v_exp_f32 v{EX+r}, v{T[u]+r}")
        return o
    def loop(tag, safe):
        L.append(".p2align 6")
        B = [f"L_LOOP{tag}:"]
        for ph in range(2):
            o = 16*ph
            c = chain(1, safe)
            pp = min(PP, len(c))
            B += c[:pp] + ["s_setprio 1"] + c[pp:]
            if ph == 0: B.append(f"L_IN{tag}:")
            B += esec(0, mfmas(ph, 1), [] if pp == len(c) else None)
            B += chain(0, safe)
            B.append("s_waitcnt vmcnt(0) lgkmcnt(0)")
            adr = [f"v_lshl_add_u64 {vr(RAp[ph],2)}, {vr(DSC,2)}, 0, {vr(LP,2)}"]
            if ph == 1:
                B += [f"v_add_u32 v{QA}, 16, v{QA}"] + adr + [f"v_lshl_add_u64 {vr(AI,2)}, {vr(AI,2)}, 0, {sr(sI0,2)}", f"v_lshl_add_u64 {vr(AX,2)}, {vr(AX,2)}, 0, {sr(sI0,2)}"]
                o -= 32
                B += esec(1, mfmas(1-ph, 0), None)
            else:
                B += esec(1, mfmas(1-ph, 0), adr)
            if FB: B.append(f"v_cmp_gt_u32 vcc, 2.0, v{RAp[ph]+1}")
            B += ["s_setprio 0"]
            if "lst" in OPT: B += ["s_memtime s[98:99]  ", f"s_add_u32 m0, s{sCNT}, 32", "s_waitcnt lgkmcnt(0)", "v_writelane_b32 v255, s98, m0"]
            B += [f"s_sub_u32 s{sCNT}, s{sCNT}, 1", f"s_cbranch_scc1 L_X{tag}{ph}"]
            if "nogather" not in OPT: B += gathers(ph)
            if FB: B += ["s_cmp_eq_u64 s[24:25], 0", f"s_cbranch_scc1 L_F1{tag}{ph}"]
            B += flush(1, RAp[1-ph]+1)
            if FB: B += [f"L_F1{tag}{ph}:", "s_mov_b64 s[24:25], vcc"]
            B += bs(ph, RAp[ph]) + eas(ph, o+32) + idx(o+48)
            B.append(f"ds_read2_b32 {vr(DSC,2)}, v{QA} offset0:{o//8+6} offset1:{o//8+3}")
            if FB: B.append(f"s_cbranch_vccz " + (f"L_F0{tag}" if ph == 0 else f"L_LOOP{tag}"))
            B += flush(0, RAp[ph]+1)
            if "lst" in OPT: B += ["s_memtime s[98:99]  ", f"s_add_u32 m0, s{sCNT}, 49", "s_waitcnt lgkmcnt(0)", "v_writelane_b32 v255, s98, m0"]
            if ph == 1: B.append(f"s_branch L_LOOP{tag}")
            elif FB: B.append(f"L_F0{tag}:")
        B += [f"L_X{tag}1:", f"v_swap_b32 v{RAp[0]+1}, v{RAp[1]+1}", "s_nop 0", f"L_X{tag}0:"]
        B += flush(1, RAp[1]+1) + flush(0, RAp[0]+1) + chain(1, safe)
        for x in aligned(B):
            (L.append(x) if x.endswith(":") else A(x))
    loop("F", False)
    LB("L_SEND")
    stamp(15)
    for q in range(8): A(f"v_rcp_f32 v{EX+q}, v{Dd+q}")
    A(f"v_pk_add_f32 v[186:187], {vr(Dd,2)}, {vr(Dd+2,2)}")
    AA(pk("v_pk_mul_f32", EX, Nn, EX))
    A(f"ds_write_b128 v{TOTW}, {vr(EX,4)} offset:{TOT}")
    A(f"ds_write_b128 v{TOTW}, {vr(EX+4,4)} offset:{TOT+128}")
    AA(flush(1, RAp[0]+1))
    A(f"v_pk_add_f32 v[188:189], {vr(Dd+4,2)}, {vr(Dd+6,2)}")
    A(f"v_pk_add_f32 v[190:191], {vr(EX,2)}, {vr(EX+2,2)}")
    A(f"v_pk_add_f32 v[192:193], {vr(EX+4,2)}, {vr(EX+6,2)}")
    A("v_pk_add_f32 v[186:187], v[186:187], v[188:189]")
    A("v_pk_add_f32 v[190:191], v[190:191], v[192:193]")
    A("v_pk_fma_f32 v[186:187], v[190:191], 0, v[186:187] op_sel_hi:[1,0,1]")
    A("v_add_f32 v186, v186, v187")
    A("v_mov_b32 v189, 1")
    A(f"v_cmpx_ngt_f32 vcc, {f2u(2.0**110):#x}, v186")
    A(f"ds_write_b32 v{ZERO}, v189 offset:{FLAGS+4}")
    A("s_mov_b64 exec, -1")
    LB("L_WEND")
    A("s_lshl_b32 s46, s3, 5")
    A(f"s_add_u32 s46, s46, {TOT}")
    A(f"s_mov_b32 s42, {NLN2:#x}")
    A("s_mov_b32 s43, s42")
    A("s_waitcnt lgkmcnt(0)")
    A("s_barrier")
    stamp(16); stamp(28, real=True)
    FN, FD, T0_, T1_ = 186, 194, 202, 210
    cn, ta = t+3, t+7
    A(f"ds_read_b32 v{cn}, v{ROWL} offset:{oS}")
    A(f"ds_read_b128 {vr(FD,4)}, v{CRA} offset:{oD}")
    A(f"ds_read_b128 {vr(FD+4,4)}, v{CRA} offset:{oD+16}")
    A(f"ds_read_b128 {vr(FN,4)}, v{CRA} offset:{oN}")
    A(f"ds_read_b128 {vr(FN+4,4)}, v{CRA} offset:{oN+16}")
    A(f"ds_read_b64 {vr(t+4,2)}, v{ZERO} offset:{FLAGS}")
    A("s_waitcnt lgkmcnt(5)")
    A(f"v_mov_b32_dpp v{ta}, v{cn} wave_shr:1 row_mask:0xf bank_mask:0xf bound_ctrl:1")
    A(f"v_sub_u32 v{cn}, v{cn}, v{ta}")
    A(f"v_add_u32 v{ta}, s46, v{ta}")
    A(f"v_cndmask_b32 v{cn}, 0, v{cn}, {sr(mLN,2)}")
    A(f"v_cmpx_lt_i32 s[44:45], 0, v{cn}")
    A(f"ds_read_b128 {vr(T0_,4)}, v{ta}")
    A(f"ds_read_b128 {vr(T0_+4,4)}, v{ta} offset:16")
    A(f"v_cmpx_lt_i32 vcc, {TP}, v{cn}")
    A(f"ds_read_b128 {vr(T1_,4)}, v{ta} offset:{TP}")
    A(f"ds_read_b128 {vr(T1_+4,4)}, v{ta} offset:{TP+16}")
    A("s_mov_b64 exec, -1")
    A("s_waitcnt lgkmcnt(4)")
    A(f"v_readfirstlane_b32 s47, v{t+5}")
    A(f"v_readfirstlane_b32 s{sMORE}, v{t+4}")
    for q in range(8): A(f"v_rcp_f32 v{FD+q}, v{FD+q}")
    A(f"s_andn2_b32 s47, s47, s{sSAFE}")
    A("s_cbranch_scc1 L_RETRY")
    AA(pk("v_pk_mul_f32", FN, FN, FD))
    AA(pk("v_pk_add_f32", AGG, AGG, FN))
    for q in range(8):
        A(f"v_subrev_f32_dpp v{AGG+q}, v{FN+q}, v{AGG+q} wave_shr:1 row_mask:0xf bank_mask:0xf bound_ctrl:1")
    LB("L_TL")
    A("s_mov_b64 exec, s[44:45]")
    A("s_waitcnt lgkmcnt(0)")
    AA(pk("v_pk_add_f32", AGG, AGG, T0_))
    A("s_mov_b64 exec, vcc")
    AA(pk("v_pk_add_f32", AGG, AGG, T1_))
    A(f"v_cmp_lt_i32 vcc, {2*TP}, v{cn}")
    A("s_mov_b64 exec, -1")
    A(f"s_cmp_lg_u32 s{sMORE}, 0")
    A("s_cbranch_vccnz L_TLM")
    A("s_cbranch_scc1 L_NEXT")
    AA(pk("v_pk_mul_f32", FN, AGG, "s[42:43]"))
    for q in range(4): A(f"v_cvt_pk_bf16_f32 v{FD+q}, v{FN+2*q}, v{FN+2*q+1}")
    A(f"ds_write_b128 v{AGW}, {vr(FD,4)} offset:{AGS}")
    A("s_waitcnt lgkmcnt(0)")
    A("s_barrier")
    stamp(17)
    A(f"ds_read_b128 {vr(T0_,4)}, v{AGR} offset:{AGS}")
    A(f"ds_read_b128 {vr(T0_+4,4)}, v{AGR} offset:{AGS+64}")
    for ks in range(2):
        A(f"s_waitcnt lgkmcnt({1-ks})")
        for cb in range(2):
            A(f"v_mfma_f32_16x16x32_bf16 {vr(U+4*cb,4)}, {vr(WF2+8*cb+4*ks,4)}, {vr(T0_+4*ks,4)}, {vr(U+4*cb,4)}")
    A("s_nop 6")
    AA(pk("v_pk_mul_f32", FN, U, sr(sNL,2)))
    for q in range(8): A(f"v_exp_f32 v{FN+q}, v{FN+q}")
    AA(pk("v_pk_add_f32", FN, FN, "1.0", tail=" op_sel_hi:[1,0]"))
    for q in range(8): A(f"v_rcp_f32 v{FN+q}, v{FN+q}")
    AA(pk("v_pk_mul_f32", FN, U, FN))
    for q in range(4): A(f"v_cvt_pk_bf16_f32 v{FD+q}, v{FN+2*q}, v{FN+2*q+1}")
    A("s_nop 1")
    A(f"v_permlane16_swap_b32 v{FD}, v{FD+2}")
    A(f"v_permlane16_swap_b32 v{FD+1}, v{FD+3}")
    A(f"s_mov_b64 exec, {sr(mON,2)}")
    A(f"buffer_store_dwordx4 {vr(FD,4)}, v{OUTO}, {sr(sOUT,4)}, s{sOUTS} offen {OPT.get('outf','nt').replace('+',' ')}")
    if DIAG:
        stamp(18)
        A("s_waitcnt vmcnt(0)")
        stamp(19)
        stamp(31, real=True)
        A("s_mov_b32 exec_lo, -1")
        A("s_mov_b32 exec_hi, 0")
        A("s_lshl_b32 s44, s2, 3")
        A("s_add_u32 s44, s44, s3")
        A("s_lshl_b32 s44, s44, 7")
        A(f"s_add_u32 s44, s44, {STAMP:#x}")
        A(f"buffer_store_dword v255, v{L4}, {sr(sWS,4)}, s44 offen")
        A("s_not_b64 exec, exec")
        A(f"s_add_u32 s44, s44, {0x40000-128:#x}")
        A(f"buffer_store_dword v255, v{L4}, {sr(sWS,4)}, s44 offen")
    LB("L_END")
    A("s_endpgm")
    C("---- out-of-line paths")
    LB("L_TLM")
    A(f"v_min_i32 v{cn}, {64*TP}, v{cn}")
    A(f"v_add_u32 v{cn}, {-2*TP & 0xffffffff:#x}, v{cn}")
    A(f"v_add_u32 v{ta}, {2*TP}, v{ta}")
    A(f"v_cmpx_lt_i32 s[44:45], 0, v{cn}")
    A(f"ds_read_b128 {vr(T0_,4)}, v{ta}")
    A(f"ds_read_b128 {vr(T0_+4,4)}, v{ta} offset:16")
    A(f"v_cmpx_lt_i32 vcc, {TP}, v{cn}")
    A(f"ds_read_b128 {vr(T1_,4)}, v{ta} offset:{TP}")
    A(f"ds_read_b128 {vr(T1_+4,4)}, v{ta} offset:{TP+16}")
    A("s_branch L_TL")
    LB("L_NONCEW")
    A(f"global_load_dword v{PUB+1}, v{ZERO}, {sr(pDBG,2)} sc1")
    bound()
    A("s_waitcnt vmcnt(0)")
    A("s_branch L_PUB")
    LB("L_PASS")
    A(f"s_mov_b32 s{sCNT}, 0")
    LB("L_ENTR")
    A("s_waitcnt lgkmcnt(0)")
    entry_load()
    bound()
    A("s_waitcnt vmcnt(0)")
    A("s_branch L_ENT")
    LB("L_FR")
    A(f"buffer_load_dwordx2 {vr(RAp[1],2)}, v{FLA}, {sr(sWS,4)}, 0 offen sc1")
    bound()
    A("s_waitcnt vmcnt(0)")
    A("s_branch L_FC")
    LB("L_HR")
    for q in range(6): A(f"v_mov_b32 v{RW+4*q+3}, v{TW}")
    bound()
    A("s_branch L_LOADS")
    LB("L_RETRY")
    A(f"s_mov_b32 s{sSAFE}, 1")
    A(f"s_mov_b32 s{sREDO}, 1")
    for q in range(8):
        A(f"v_mov_b32 v{Nn+q}, 0")
        A(f"v_mov_b32 v{Dd+q}, 1.0")
    A("s_waitcnt vmcnt(0) lgkmcnt(0)")
    A("s_branch L_MAIN")
    LB("L_TOOBIG")
    C("narrow passes: 12 positions of every segment at a time")
    A(f"s_sub_u32 s{sHI}, s{sHI}, 24")
    A(f"s_mov_b32 s{sWID}, 12")
    A(f"s_mov_b32 s{sLB}, {HUGE:#x}")
    A(f"v_cmpx_lt_u32 vcc, 63, v{LP}")
    A(f"v_mov_b32 v{KP}, {HUGE:#x}")
    A("s_mov_b64 exec, -1")
    A("s_branch L_AGAIN")
    LB("L_NEXT")
    A(f"s_add_u32 s{sHI}, s{sHI}, s{sWID}")
    A(f"s_add_u32 s{sLB}, s{sLB}, s{sWID}")
    A(f"v_add_u32 v{KP}, s{sWID}, v{KP}")
    A(f"s_cmp_eq_u32 s{sWID}, 12")
    A("s_cselect_b32 s44, 64, 192")
    A(f"v_add_u32 v{RCA}, s44, v{RCA}")
    A(f"v_add_u32 v{RCB}, s44, v{RCB}")
    LB("L_AGAIN")
    A("s_setprio 0")
    A("s_waitcnt vmcnt(0) lgkmcnt(0)")
    A("s_barrier")
    prefill_small()
    prefill_big(124)
    for q in range(6): A(f"v_mov_b32 v{RW+4*q+3}, v{TW}")
    A("s_mov_b32 s46, 0xf0008018")
    A("s_waitcnt lgkmcnt(0)")
    A("s_barrier")
    A("s_branch L_PASS")
    loop("S", True)
    A("s_branch L_SEND")
    L.append(f".fill ((12288 - (. - {KN})) / 4), 4, 0xbf800000")
    LB("L_TAB")
    L.extend(table())

hdr = open("cdna_kernels/%s.s.ref" % NAME).read().split("; Override")[0]
out = hdr + f"; @launch grid=(256,1,1) block=(512,1,1) lds={LDSZ}\n"
out += '.amdgcn_target "amdgcn-amd-amdhsa--gfx950"\n.text\n'
kernel()
out += "\n".join(L) + "\n"
out += f""".section .rodata,"a"
.p2align 6
.amdhsa_kernel {KN}
  .amdhsa_next_free_vgpr 256
  .amdhsa_next_free_sgpr 102
  .amdhsa_accum_offset 256
  .amdhsa_group_segment_fixed_size 0
  .amdhsa_kernarg_size 72
  .amdhsa_user_sgpr_count 2
  .amdhsa_user_sgpr_kernarg_segment_ptr 1
  .amdhsa_system_sgpr_workgroup_id_x 1
.end_amdhsa_kernel
"""
dst = [a for a in sys.argv[1:] if not a.startswith("--")]
open(dst[0] if dst else f"cdna_kernels/{NAME}.s", "w").write(out)
```

```python
import sys, struct
NAME = "gather_scatter__mpnn_edge_mlp__graph"
KN = NAME + "_kernel"
N, E = 12500, 800000
CH, NPB = 3136, 49
ATAB, FL2, OFFS, REC = 0, 0x18C000, 0x190000, 0x210000
CHB = 16896
WS_END = REC + 256 * CHB
STAMP = 0x900000
LOG2E = 1.4426950408889634
def f2u(x): return struct.unpack("<I", struct.pack("<f", x))[0]
NLOG2E = f2u(-LOG2E); NLN2 = f2u(-0.6931471805599453)
DIAG = "--diag" in sys.argv
OPT = {a.split("=")[0][2:]: (a.split("=")[1] if "=" in a else "1") for a in sys.argv[1:] if a.startswith("--")}
WS_REC = (STAMP + 0x100000) if DIAG else WS_END
BIG = 0x40000000; HUGE = 0x10000000

L = []
def A(s): L.append("    " + s)
def AA(xs):
    for x in xs: A(x)
def LB(s): L.append(s + ":")
def C(s): L.append("    ; " + s)
def vr(b, n=1): return f"v{b}" if n == 1 else f"v[{b}:{b+n-1}]"
def sr(b, n=1): return f"s{b}" if n == 1 else f"s[{b}:{b+n-1}]"
SCANM = ["row_shr:1 row_mask:0xf bank_mask:0xf bound_ctrl:1", "row_shr:2 row_mask:0xf bank_mask:0xf bound_ctrl:1",
         "row_shr:4 row_mask:0xf bank_mask:0xf bound_ctrl:1", "row_shr:8 row_mask:0xf bank_mask:0xf bound_ctrl:1",
         "row_bcast:15 row_mask:0xa bank_mask:0xf", "row_bcast:31 row_mask:0xc bank_mask:0xf"]
def scan(v, fill=None):
    fill = list(fill or [])
    for m in SCANM:
        k = 0
        while k < 2 and fill:
            A(fill.pop(0)); k += 1
        if k < 2: A(f"s_nop {1-k}")
        A(f"v_add_u32_dpp v{v}, v{v}, v{v} {m}")
    AA(fill)
def stamp(k, real=False):
    if not DIAG: return
    A("s_memrealtime s[98:99]" if real else "s_memtime s[98:99]")
    A("s_waitcnt lgkmcnt(0)")
    A(f"v_writelane_b32 v255, s98, {k}")
def note(sreg, k):
    if DIAG: A(f"v_writelane_b32 v255, s{sreg}, {k}")

LIST, QD = 0, 16384
HIST2 = QD + 8256; FLAGS = HIST2 + 256; BASE2 = FLAGS + 16; NONCE = BASE2 + 256; W3 = NONCE + 16
H1 = W3 + 128; BASE1 = H1 + 1024
R2 = H1 + 2048
STG = R2; TOT = R2; TP = 272; AGS = TOT + 64*TP; XP = 144
ROWS, RP = R2 + 16768 + 8192 + 4192, 1168 - 128
NROW = 50; oSB, oN, oD, oS = 256, 512, 768, 1024
XS = (ROWS + NROW*RP + 255) // 256 * 256; AST = XS + 8192; WM = AST + 8192; WU = WM + 16384
LDSZ = WU + 16384
assert H1 % 16 == 0 and ROWS % 16 == 0 and ROWS < 65536 and LDSZ <= 163840, LDSZ
SN = R2 + 16768 + 8192
TAB = R2 + 16768

SID, AGG, LP = 1, 2, 10
RAp = [12, 230]; AI = 14; AX = 16; QA = 25; A3 = 232; IP = [18, 20]; DSC = 22; NPAD = 24; LANE = 25
EA = [26, 30]; Bv = [34, 42]
S, W, Nn, Dd, U, WF2 = 50, 58, 66, 74, 82, 90
G = [106, 122]; T = [138, 154]; EX = 170
OUTO, AGW, ROWL, KP = 236, 237, 238, 239
GA, GQ, GD, TW = 240, 241, 242, 243
TOTW, CRA, AGR, T16, ENA, ENB, RCA, RCB, L4, ZERO = range(244, 254)
FLA, PFA = 228, 229
DST, SRC, EE, BK, RK1, BSV = 106, 114, 122, 126, 138, 146
PUB = 154
WMK = 162
XA, WA, WA2, AW, WG_, TLA = 170, 172, 174, 176, 177, 178
C4 = 180
AG, AR, BWA, AGR0 = 166, 167, 168, 169
XF, WF = 186, 194
HH, BB = 210, 214
t = 218
sWS, sA, sOUT = 8, 12, 16
pX, pE, pSRC, pDST, pWM, pWU, pOUT, pDBG = 20, 22, 24, 26, 28, 30, 32, 34
M0_, M1_, MA_ = 36, 38, 40
mLN, mON = 36, 38
MK = 48
def mk(k): return sr(MK+2*k, 2) if k < 16 else sr(26+2*(k-16), 2)
sLB, sWID, sHI, sSAFE, sT, sREDO, sSTART, sMORE, sCNT, sTAG = range(80, 90)
sNL = 90; sI0 = 92; sRARE = 97; mMORE = 100; sFIRST = 0; sOUTS = 1
TMASK = 0xff030303

def table():
    rows = [[0]*4*64 for _ in range(8)]
    for l in range(64):
        j = l & 7; h = l >> 5; g4 = (l >> 3) & 3; l15 = l & 15; g = l >> 4; r = (l >> 2) & 3; c = l & 3
        v = [0]*32
        for s_ in range(2):
            if g4 == 2*s_ + h: v[4*s_ + (j >> 1)] = 0x3f80 << (16*(j & 1))
        if ((l >> 2) & 1) == h: v[8 + c] = 0x3f803f80
        v[12 + (g4 >> 1) + 2*((g4 & 1) ^ h)] = 0xffffffff
        v[16] = XS + l15*128 + ((g ^ j) << 4)
        v[17] = WM + (8*g + r)*128 + (((c >> 1) ^ ((r & 2) | ((g & 1) << 2))) << 4) + (c & 1)*8
        v[18] = WU + 8192 + (16*(g >> 1) + 2*(g & 1) + 4*r)*128 + (((c >> 1) ^ (((g & 1) << 1) | ((r & 2) << 1))) << 4) + (c & 1)*8
        v[19] = 2*(16*(j >> 2) + (j & 3) + 8*h)
        v[20] = (l >> 2)*128 + c*16
        v[21] = AST + (v[20] ^ (((l >> 2) & 7) << 4))
        v[22] = ROWS + l15*RP + g*4
        v[23] = l15*XP + g*16
        v[24] = l15*128 + (g & 1)*32 + (g >> 1)*16
        v[25] = l*XP
        v[26] = ROWS + l*RP
        v[27] = 3*j
        v[28] = 2*h + ((l >> 2) & 1)
        v[29] = 4*g4
        v[30] = 2*g4 + h
        v[31] = 0x85ebca6b if l & 1 else 0x9e3779b1
        for k in range(32): rows[k >> 2][4*l + (k & 3)] = v[k]
    o = []
    for rw in rows:
        for i in range(0, 256, 8): o.append(".long " + ", ".join(f"{x:#x}" for x in rw[i:i+8]))
    return o

def prefill_small():
    A(f"ds_write_b32 v{L4}, v{ZERO} offset:{HIST2}")
    A(f"ds_write_b32 v{L4}, v{ZERO} offset:{HIST2+16}")
def prefill_big(r):
    A(f"v_mov_b32 v{r}, {N}")
    A(f"v_mov_b32 v{r+1}, {N}")
    A(f"v_mov_b64 {vr(r+2,2)}, {vr(r,2)}")
    A(f"ds_write_b128 v{T16}, {vr(r,4)} offset:{LIST}")
    A(f"ds_write_b128 v{T16}, {vr(r,4)} offset:{LIST+8192}")
    A(f"v_mov_b32 v{r+4}, {ROWS + 49*RP}")
    A(f"v_mov_b32 v{r+5}, {BIG:#x}")
    A(f"v_mov_b64 {vr(r+6,2)}, {vr(r+4,2)}")
    A(f"ds_write_b128 v{T16}, {vr(r+4,4)} offset:{QD}")
    A("s_mov_b64 exec, 15")
    A(f"ds_write_b128 v{IP[0]+1}, {vr(r+4,4)} offset:{QD+8192}")
    A("s_mov_b64 exec, -1")
def bound():
    A(f"s_add_u32 s{sCNT}, s{sCNT}, 1")
    A(f"s_cmp_ge_u32 s{sCNT}, 0x8000")
    A("s_cbranch_scc1 L_END")
def wfrags(dst, areg, off, tstep):
    return [f"ds_read_b64_tr_b16 {vr(dst+8*cb+4*ks+2*tt,2)}, v{areg+cb} offset:{off + 4096*ks + tstep*tt}"
            for cb in range(2) for ks in range(2) for tt in range(2)]
def mm(dst, wf):
    return [f"v_mfma_f32_16x16x32_bf16 {vr(dst+4*cb,4)}, {vr(wf+8*cb+4*ks,4)}, {vr(XF+4*ks,4)}, {'0' if ks == 0 else vr(dst+4*cb,4)}"
            for ks in range(2) for cb in range(2)]
def pk(op, d, a, b, n=8, tail=""):
    f = lambda x, q: vr(x+q,2) if isinstance(x, int) else x
    return [f"{op} {vr(d+q,2)}, {f(a,q)}, {f(b,q)}{tail}" for q in range(0, n, 2)]

def kernel():
    L.append(f".globl {KN}\n.p2align 8\n.type {KN},@function")
    LB(KN)
    A("s_cmpk_ge_u32 s2, 256")
    A("s_cbranch_scc1 L_END")
    A("s_load_dwordx16 s[20:35], s[0:1], 0")
    A("s_load_dwordx2 s[8:9], s[0:1], 64")
    A("s_memrealtime s[46:47]")
    A("s_getpc_b64 s[48:49]")
    LB("L_PC")
    A(f"v_lshrrev_b32 v{t}, 6, v0")
    C("pull the code into L2 early: one 128-B line per wave")
    A("s_and_b32 s50, s2, 0x78")
    A(f"v_add_lshl_u32 v{t+6}, v{t}, s50, 7")
    A(f"v_readfirstlane_b32 s3, v{t}")
    A(f"global_load_dword v254, v{t+6}, s[48:49]")
    C("lane-constant table -> LDS (1 KB per wave)")
    A(f"v_lshlrev_b32 v{T16}, 4, v0")
    A("s_lshl_b32 s51, s3, 10")
    A(f"s_add_u32 m0, s51, {TAB}")
    A("s_add_u32 s48, s48, L_TAB-L_PC")
    A("s_addc_u32 s49, s49, 0")
    A(f"global_load_lds_dwordx4 v{T16}, s[48:49]")
    A(f"v_and_b32 v{LANE}, 63, v0")
    A(f"v_lshlrev_b32 v{t+3}, 2, v0")
    A(f"v_mov_b32 v{ZERO}, 0")
    A(f"ds_write_b32 v{t+3}, v{ZERO} offset:{H1}")
    A(f"s_mul_i32 s42, s2, {CH//4}")
    A(f"v_mad_u32_u24 v{t+1}, v{t}, {NPB}, v{LANE}")
    A("s_mov_b32 exec_hi, 0x1ffff")
    A(f"v_add_lshl_u32 v{t+2}, v{t+1}, s42, 3")
    A(f"v_cmp_gt_u32 vcc, {2*(E - CH//2)}, v{t+2}")
    A(f"v_lshlrev_b32 v{t+1}, 1, v{t+2}")
    A(f"s_mov_b64 {sr(M1_,2)}, vcc")
    A(f"v_add_u32 v{t+1}, {CH}, v{t+1}")
    A(f"v_cmpx_gt_u32 vcc, {2*E}, v{t+2}")
    if DIAG:
        stamp(30, real=True); stamp(29)
    A("s_waitcnt lgkmcnt(0)")
    A(f"global_load_dwordx4 {vr(DST,4)}, v{t+1}, {sr(pDST,2)} offset:{-CH}")
    A(f"s_mov_b64 exec, {sr(M1_,2)}")
    A(f"global_load_dwordx4 {vr(DST+4,4)}, v{t+1}, {sr(pDST,2)} offset:{CH}")
    A("s_barrier")
    A(f"global_load_dwordx4 {vr(SRC+4,4)}, v{t+1}, {sr(pSRC,2)} offset:{CH}")
    A(f"global_load_dwordx2 {vr(EE+2,2)}, v{t+2}, {sr(pE,2)} offset:{CH}")
    A("s_mov_b64 exec, vcc")
    A(f"global_load_dwordx4 {vr(SRC,4)}, v{t+1}, {sr(pSRC,2)} offset:{-CH}")
    A(f"global_load_dwordx2 {vr(EE,2)}, v{t+2}, {sr(pE,2)}")
    A(f"s_mov_b64 {sr(M0_,2)}, vcc")
    C("launch-unique tag: written by WG 0 / wave 0 (lane mask empty everywhere else)")
    A("s_bitset1_b32 s46, 31")
    A("s_or_b32 s43, s2, s3")
    A("s_cselect_b64 exec, 0, 1")
    A(f"v_mov_b32 v{t+5}, s46")
    A(f"global_store_dword v{ZERO}, v{t+5}, {sr(pDBG,2)} sc1")
    A("s_mov_b64 exec, -1")
    stamp(0)
    NX = 0
    if "nowpf" not in OPT:
        C("pull the weights into L2 early: one or two rows per wave")
        A("s_or_b32 s50, s50, s3")
        A("s_bitcmp1_b32 s2, 7")
        A(f"s_cselect_b64 s[48:49], {sr(pWU,2)}, {sr(pWM,2)}")
        A("s_cselect_b64 exec, 1, 3")
        A(f"v_add_lshl_u32 v{t+6}, v{LANE}, s50, 7")
        A(f"global_load_dword v254, v{t+6}, s[48:49]")
        A("s_mov_b64 exec, -1")
        NX += 1
    if "tlb" in OPT:
        C("touch the workspace pages (unused line behind a chunk) so their translations are resident")
        A(f"v_mul_u32_u24 v{t+6}, {36*CHB}, v{t}")
        A(f"v_add_u32 v{t+6}, {REC+CHB-128:#x}, v{t+6}")
        A("s_cmp_eq_u32 s3, 1")
        A("s_cselect_b64 exec, -1, 0")
        A(f"v_mov_b32 v{t+6}, 0x188000")
        A("s_mov_b64 exec, -1")
        A(f"global_load_dword v254, v{t+6}, s[8:9]")
        NX += 1
    A("s_mov_b32 s42, s51")
    A("s_and_b32 s4, s2, 7")
    A("s_lshl_b32 s4, s4, 5")
    A("s_lshr_b32 s7, s2, 3")
    A("s_add_u32 s4, s4, s7")
    A(f"s_mul_i32 s5, s4, {NPB}")
    row = t+9
    A(f"v_lshrrev_b32 v{row}, 3, v0")
    A(f"v_lshlrev_b32 v{L4}, 2, v{LANE}")
    A(f"v_lshlrev_b32 v{t+4}, 4, v{LANE}")
    prefill_small()
    A(f"ds_write_b32 v{ZERO}, v{ZERO} offset:{NONCE+4}")
    A(f"s_mov_b32 s10, {WS_REC:#x}")
    A("s_mov_b32 s11, 0x20000")
    A(f"s_sub_u32 s6, {N}, s5")
    A(f"s_min_u32 s6, s6, {NPB}")
    A(f"v_and_b32 v{LP}, 0x70, v{T16}")
    A("s_lshl_b32 s54, s3, 6")
    A(f"s_add_u32 s54, s54, 16384")
    A(f"v_add_u32 v{TLA}, s54, v{t+4}")
    A(f"s_mul_i32 s43, s2, {CHB}")
    A(f"s_add_u32 s43, s43, {REC:#x}")
    A("s_add_u32 s55, s43, 8192")
    A("s_cmp_lt_u32 s3, 6")
    A("s_cselect_b32 s56, 15, 0")
    A("s_lshl_b32 s57, s2, 11")
    A(f"s_add_u32 s57, s57, {OFFS:#x}")
    A("s_lshr_b32 s47, s4, 2")
    A("s_lshl_b32 s47, s47, 1")
    A("s_and_b32 s46, s4, 1")
    A("s_add_u32 s47, s47, s46")
    A("s_and_b32 s46, s4, 2")
    A("s_lshl_b32 s46, s46, 6")
    A("s_add_u32 s47, s47, s46")
    A("s_lshl_b32 s47, s47, 3")
    A(f"s_add_u32 s47, s47, {OFFS:#x}")
    A(f"v_lshrrev_b32 v{t+8}, 1, v0")
    A(f"v_lshl_add_u32 v{ENB}, v{t+8}, 11, s47")
    A(f"s_movk_i32 s46, {CHB}")
    A(f"v_and_b32 v{t+7}, 16, v{T16}")
    A(f"v_mad_u32_u24 v{RCB}, v{t+8}, s46, v{t+7}")
    A(f"s_mov_b32 s46, {4*CHB}")
    A(f"v_mad_u32_u24 v{RCA}, v{row}, s46, v{LP}")
    A(f"v_and_b32 v{ENA}, 0xe0, v{L4}")
    A(f"v_mov_b32 v{LP+1}, v{LP}")
    A("s_lshr_b32 s44, s3, 1")
    A("s_and_b32 s45, s3, 1")
    A("s_lshl_b32 s45, s45, 6")
    A("s_lshl_b32 s58, s44, 11")
    A("s_add_u32 s59, s58, s45")
    A(f"s_mul_i32 s60, s44, {16*RP}")
    A("s_lshl1_add_u32 s60, s45, s60")
    A(f"s_mul_i32 s61, s44, {16*XP}")
    A("s_lshl_b32 s44, s44, 4")
    A("s_sub_i32 s62, s6, s44")
    A("s_lshl_b32 s63, s62, 2")
    A(f"v_cmp_gt_i32 {sr(MA_,2)}, s63, v{LANE}")
    A(f"s_sub_i32 s63, {NROW}, s44")
    A(f"s_mov_b32 s{sNL}, {NLOG2E:#x}")
    A(f"s_mov_b32 s{sNL+1}, s{sNL}")
    A(f"v_xor_b32 v{t+7}, v{row}, v0")
    A(f"v_and_b32 v{t+7}, 7, v{t+7}")
    A(f"v_add_u32 v{t+8}, s5, v{row}")
    A(f"v_min_u32 v{t+8}, {N-1}, v{t+8}")
    A(f"v_lshlrev_b32 v{t+8}, 3, v{t+8}")
    A(f"s_add_u32 m0, s42, {XS}")
    A(f"v_add_lshl_u32 v{t+8}, v{t+8}, v{t+7}, 4")
    A(f"v_lshrrev_b32 v{t+7}, 1, v{row}")
    A(f"global_load_lds_dwordx4 v{t+8}, {sr(pX,2)}")
    A(f"v_and_b32 v{t+7}, 4, v{t+7}")
    A(f"v_and_or_b32 v{t+7}, v{row}, 2, v{t+7}")
    A(f"s_add_u32 m0, s42, {WM}")
    A(f"v_xor_b32 v{t+7}, v{t+7}, v0")
    A(f"v_lshlrev_b32 v{WG_}, 4, v{t+7}")
    A(f"global_load_lds_dwordx4 v{WG_}, {sr(pWM,2)}")
    A(f"s_mov_b32 s46, {(2**32 + 48)//49}")
    A("s_movk_i32 s47, -49")
    A(f"v_mov_b32 v{t}, 1")
    stamp(1)
    for h in range(2):
        A(f"s_mov_b64 exec, {sr(M0_+2*h,2)}")
        A(f"s_waitcnt vmcnt({8-h+NX})")
        if h == 0: stamp(2)
        for i in range(4*h, 4*h+4): A(f"v_mul_hi_u32 v{BK+i}, v{DST+i}, s46")
        for i in range(4*h, 4*h+4):
            A(f"v_lshlrev_b32 v{BK+i}, 2, v{BK+i}")
            A(f"ds_add_rtn_u32 v{RK1+i}, v{BK+i}, v{t} offset:{H1}")
    A("s_mov_b64 exec, -1")
    for i in range(8): A(f"v_lshlrev_b32 v{DST+i}, 2, v{DST+i}")
    A("s_waitcnt lgkmcnt(0)")
    A("s_barrier")
    stamp(3)
    A(f"ds_read_b128 {vr(HH,4)}, v{t+4} offset:{H1}")
    A(f"s_mov_b32 s{sLB}, 24")
    A(f"s_mov_b32 s{sWID}, 36")
    A(f"s_mov_b32 s{sHI}, 36")
    A("s_mov_b32 s46, 0x55555556")
    A("s_waitcnt lgkmcnt(0)")
    A(f"v_add3_u32 v{t+1}, v{HH}, v{HH+1}, v{HH+2}")
    A(f"v_add_u32 v{t+2}, v{t+1}, v{HH+3}")
    A(f"v_mov_b32 v{t+3}, v{t+2}")
    scan(t+3, [f"v_mad_i32_i24 v{DST+i}, v{BK+i}, s47, v{DST+i}" for i in range(8)] +
              [f"v_and_b32 v{IP[0]+1}, 0x30, v{T16}", f"v_and_b32 v{IP[1]+1}, 0x30, v{T16}", "s_mov_b32 s47, 0x2aaaaaab"])
    A(f"v_sub_u32 v{BB}, v{t+3}, v{t+2}")
    A(f"v_add_u32 v{BB+1}, v{BB}, v{HH}")
    A(f"v_add_u32 v{BB+2}, v{BB+1}, v{HH+1}")
    A(f"v_add_u32 v{BB+3}, v{BB}, v{t+1}")
    A(f"ds_write_b128 v{t+4}, {vr(BB,4)} offset:{BASE1}")
    for h in range(2):
        A(f"s_mov_b64 exec, {sr(M0_+2*h,2)}")
        for i in range(4*h, 4*h+4): A(f"ds_read_b32 v{BSV+i}, v{BK+i} offset:{BASE1}")
    A("s_cmp_eq_u32 s3, 0")
    A("s_cselect_b64 exec, -1, 0")
    A(f"global_load_dword v{PUB+1}, v{ZERO}, {sr(pDBG,2)} sc1")
    def late_dma():
        A(f"s_add_u32 s48, s{pWM}, 8192")
        A(f"s_addc_u32 s49, s{pWM+1}, 0")
        A(f"s_add_u32 m0, s42, {WM+8192}")
        A(f"s_add_u32 s50, s{pWU}, 8192")
        A(f"global_load_lds_dwordx4 v{WG_}, s[48:49]")
        A(f"s_addc_u32 s51, s{pWU+1}, 0")
        A(f"s_add_u32 m0, s42, {WU}")
        A(f"s_add_u32 s52, s{pWM}, 16384")
        A(f"global_load_lds_dwordx4 v{WG_}, {sr(pWU,2)}")
        A(f"s_addc_u32 s53, s{pWM+1}, 0")
        A(f"s_add_u32 m0, s42, {WU+8192}")
        A(f"s_mov_b32 s{sCNT}, 0")
        A(f"global_load_lds_dwordx4 v{WG_}, s[50:51]")
        A(f"s_mov_b32 m0, {W3}")
        A("s_mov_b32 exec_hi, 0")
        A(f"global_load_lds_dword v{L4}, s[52:53]")
        A("s_mov_b64 exec, -1")
    A("s_mov_b64 exec, -1")
    if "dma2" not in OPT: late_dma()
    C("record p lives in piece p/3: word at 4(p + p/3), node byte at p + p/3 of a separate array")
    for h in range(2):
        A(f"s_mov_b64 exec, {sr(M0_+2*h,2)}")
        A("s_waitcnt lgkmcnt(4)")
        for i in range(4*h, 4*h+4): A(f"v_add_u32 v{BSV+i}, v{BSV+i}, v{RK1+i}")
        for i in range(4*h, 4*h+4): A(f"v_mul_hi_u32 v{RK1+i}, v{BSV+i}, s46")
        for i in range(4*h, 4*h+4):
            A(f"v_add_u32 v{BK+i}, v{RK1+i}, v{BSV+i}")
            A(f"ds_write_b8 v{BK+i}, v{DST+i} offset:{SN}")
    A("s_mov_b64 exec, -1")
    for i in range(8): A(f"v_lshlrev_b32 v{BSV+i}, 2, v{BK+i}")
    if "dma2" in OPT: late_dma()
    stamp(4)
    A("s_mov_b32 s46, 0xffff0000")
    stamp(24)
    for h in (1, 0):
        A(f"s_mov_b64 exec, {sr(M0_+2*h,2)}")
        A(f"s_waitcnt vmcnt({(10 if h else 8)+NX})")
        for q in range(2*h, 2*h+2):
            A(f"v_lshl_or_b32 v{SRC+2*q}, v{EE+q}, 16, v{SRC+2*q}")
            A(f"ds_write_b32 v{BSV+2*q}, v{SRC+2*q} offset:{STG}")
            A(f"v_and_or_b32 v{SRC+2*q+1}, v{EE+q}, s46, v{SRC+2*q+1}")
            A(f"ds_write_b32 v{BSV+2*q+1}, v{SRC+2*q+1} offset:{STG}")
    A("s_mov_b64 exec, -1")
    A(f"v_lshlrev_b32 v{t+1}, 2, v0")
    A(f"v_add_u32 v{t+1}, {SN}, v{t+1}")
    A(f"v_lshrrev_b32 v{t+2}, 2, v{TLA}")
    A("s_cmp_lg_u32 s3, 0")
    A("s_waitcnt vmcnt(0)")
    A("s_cbranch_scc1 L_PUBD")
    for i in range(4): A(f"v_mul_hi_u32 v{PUB+2*i}, v{BB+i}, s47")
    for i in range(4): A(f"v_mad_u32_u24 v{PUB+2*i}, v{PUB+2*i}, 26, v{BB+i}")
    for i in range(4): A(f"v_lshl_or_b32 v{PUB+2*i}, v{HH+i}, 16, v{PUB+2*i}")
    LB("L_PUB")
    A(f"v_cmp_eq_u32 vcc, 0, v{PUB+1}")
    A("s_cbranch_vccnz L_NONCEW")
    A(f"ds_write_b32 v{ZERO}, v{PUB+1} offset:{NONCE}")
    for i in range(1,4): A(f"v_mov_b32 v{PUB+1+2*i}, v{PUB+1}")
    A(f"buffer_store_dwordx4 {vr(PUB,4)}, v{T16}, {sr(sWS,4)}, s57 offen sc1")
    A(f"buffer_store_dwordx4 {vr(PUB+4,4)}, v{T16}, {sr(sWS,4)}, s57 offen offset:1024 sc1")
    LB("L_PUBD")
    A("s_waitcnt lgkmcnt(0)")
    A("s_barrier")
    stamp(5)
    A(f"ds_read_b32 v{t+5}, v{ZERO} offset:{NONCE}")
    A(f"ds_read_b128 {vr(GA,4)}, v{t+4} offset:{TAB+7*1024}")
    A(f"ds_read2st64_b32 v[118:119], v{t+1} offset0:0 offset1:8")
    for r in range(2): A(f"ds_read_b128 {vr(106+4*r,4)}, v{T16} offset:{STG+8192*r}")
    A(f"ds_read_b32 v120, v{t+2} offset:{SN}")
    A(f"ds_read_b128 v[114:117], v{TLA} offset:{STG}")
    A(f"ds_read_b128 {vr(C4,4)}, v{t+4} offset:{TAB+4*1024}")
    A(f"ds_read_b128 {vr(AG,4)}, v{t+4} offset:{TAB+5*1024}")
    A(f"s_mov_b32 s46, {~TMASK & 0xffffffff:#x}")
    A("s_waitcnt lgkmcnt(7)")
    A(f"v_mul_lo_u32 v{TW}, v{TW}, v{t+5}")
    A(f"v_readfirstlane_b32 s{sTAG}, v{t+5}")
    A(f"v_and_b32 v{TW}, {TMASK:#x}, v{TW}")
    for r in range(2):
        A(f"s_waitcnt lgkmcnt({5-r})")
        A(f"v_and_or_b32 v{109+4*r}, v{118+r}, s46, v{TW}")
        A(f"buffer_store_dwordx4 {vr(106+4*r,4)}, v{T16}, {sr(sWS,4)}, s{[43,55][r]} offen sc1")
    A("s_mov_b32 exec_lo, s56")
    A("s_mov_b32 exec_hi, 0")
    A("s_waitcnt lgkmcnt(2)")
    A(f"v_and_or_b32 v117, v120, s46, v{TW}")
    A(f"buffer_store_dwordx4 v[114:117], v{TLA}, {sr(sWS,4)}, s43 offen sc1")
    A("s_mov_b64 exec, -1")
    stamp(6)
    C("---- A' rows")
    A("s_waitcnt lgkmcnt(0)")
    A(f"v_add_u32 v{XA}, s58, v{C4}")
    A(f"v_xor_b32 v{XA+1}, 64, v{XA}")
    A(f"v_xor_b32 v{WA}, s45, v{C4+1}")
    A(f"v_xor_b32 v{WA+1}, 32, v{WA}")
    A(f"ds_read_b128 {vr(XF,4)}, v{XA}")
    A(f"ds_read_b128 {vr(XF+4,4)}, v{XA+1}")
    AA(wfrags(WF, WA, 0, 512))
    A(f"v_xor_b32 v{AW}, s45, v{XA}")
    A(f"v_add_u32 v{AG}, s59, v{AG}")
    A(f"v_add_u32 v{AR}, s58, v{AR}")
    A(f"v_xor_b32 v{AR}, s45, v{AR}")
    A(f"v_add_u32 v{BWA}, s60, v{BWA}")
    A(f"v_add_u32 v{AGR}, s61, v{AGR0}")
    A(f"v_xor_b32 v{WA2}, s45, v{C4+2}")
    A(f"v_xor_b32 v{WA2+1}, 32, v{WA2}")
    A("s_waitcnt lgkmcnt(0)")
    AA(mm(126, WF))
    AA(wfrags(138, WA, 8192, 512))
    AA(pk("v_pk_mul_f32", 126, 126, sr(sNL,2)))
    for q in range(4): A(f"v_cvt_pk_bf16_f32 v{134+q}, v{126+2*q}, v{127+2*q}")
    A(f"ds_write_b128 v{AW}, v[134:137] offset:{AST-XS}")
    A(f"ds_read_b128 v[118:121], v{AR}")
    C("all-zero pad row (index N): written by the last workgroup")
    A("s_cmpk_eq_u32 s2, 255")
    A("s_waitcnt lgkmcnt(2)")
    AA(mm(122, 138))
    A("s_cselect_b32 exec_lo, -1, 0")
    A("s_mov_b32 exec_hi, 0")
    A(f"s_mov_b32 s44, {N*128}")
    A(f"buffer_store_dword v{ZERO}, v{L4}, {sr(sWS,4)}, s44 offen sc1")
    A("s_lshl_b32 s44, s5, 7")
    A(f"s_mov_b64 exec, {sr(MA_,2)}")
    A("s_waitcnt lgkmcnt(0)")
    A(f"buffer_store_dwordx4 v[118:121], v{AG}, {sr(sWS,4)}, s44 offen sc1")
    A("s_mov_b64 exec, -1")
    OF = 106
    def entry_load(): A(f"buffer_load_dwordx2 {vr(OF+4,2)}, v{ENB}, {sr(sWS,4)}, 0 offen sc1")
    if "ent0" in OPT: entry_load()
    C("---- B', S_B, U (while the stores drain)")
    AA(wfrags(WF, WA, WU-WM, 512))
    A(f"s_add_u32 s{sOUTS}, s44, s59")
    AA(pk("v_pk_mul_f32", 122, 122, sr(sNL,2)))
    for q in range(8): A(f"v_exp_f32 v{210+q}, v{122+q}")
    AA(pk("v_pk_add_f32", 210, 210, "1.0", tail=" op_sel_hi:[1,0]"))
    A("s_waitcnt lgkmcnt(0)")
    AA(mm(U, WF))
    for k, d in ((0, S), (1, S+4), (2, A3), (3, WMK), (6, OUTO)): A(f"ds_read_b128 {vr(d,4)}, v{t+4} offset:{TAB+k*1024}")
    for q in range(0, 4, 2): A(f"v_mov_b64 {vr(130+q,2)}, 0")
    for q in range(4): A(f"ds_read_u16_d16_hi v{130+q}, v{C4+3} offset:{W3 + 64*(q>>1) + 8*(q&1)}")
    for q in range(8): A(f"v_rcp_f32 v{210+q}, v{210+q}")
    A("s_mov_b32 s43, 0xffff0000")
    for q in range(8): A(f"v_and_b32 v{138+q}, s43, v{122+q}")
    AA(pk("v_pk_mul_f32", 210, 122, 210))
    AA(pk("v_pk_add_f32", 122, 122, 138, tail=" neg_lo:[0,1] neg_hi:[0,1]"))
    A(f"v_and_b32 v{t+7}, 15, v0")
    for q in range(8): A(f"v_cvt_pk_bf16_f32 v{122+q}, v{122+q}, v{138+q}")
    A(f"v_cmp_gt_i32 {sr(mON,2)}, s62, v{t+7}")
    A(f"v_cmpx_gt_i32 vcc, s63, v{t+7}")
    for q in range(4):
        A(f"ds_write2_b32 v{BWA}, v{122+2*q}, v{123+2*q} offset0:{8*q} offset1:{8*q+4}")
    for q in range(4):
        A(f"ds_write2_b32 v{BWA}, v{210+2*q}, v{211+2*q} offset0:{oSB//4+8*q} offset1:{oSB//4+8*q+4}")
    A("s_mov_b64 exec, -1")
    if "ent0" not in OPT: entry_load()
    AA(wfrags(WF2, WA2, 0, 128))
    RK, RW, ND = 186, 138, 112
    A(f"s_mov_b32 s{sSAFE}, 0")
    A(f"s_mov_b32 s{sFIRST}, 1")
    A(f"v_mov_b32 v{t+6}, s{sTAG}")
    A(f"v_not_b32 v{t+7}, v{t+6}")
    A("s_lshl_b32 s47, s2, 4")
    A(f"s_add_u32 s47, s47, {FL2:#x}")
    for q in range(6): A(f"v_mov_b32 v{RW+4*q+3}, v{TW}")
    A("s_mov_b32 s46, 0xf0008018")
    stamp(7)
    C("the wave that is last to see its stores acknowledged publishes this workgroup's table flag")
    A("s_mov_b64 exec, 1")
    A("s_waitcnt vmcnt(1)")
    A(f"ds_add_rtn_u32 v{t}, v{ZERO}, v{t} offset:{NONCE+4}")
    A("s_waitcnt lgkmcnt(0)")
    A(f"v_cmpx_eq_u32 vcc, 7, v{t}")
    A(f"buffer_store_dwordx2 {vr(t+6,2)}, off, {sr(sWS,4)}, s47 sc1")
    A("s_mov_b64 exec, -1")
    stamp(26)
    A(f"s_waitcnt vmcnt(1)")
    LB("L_ENT")
    for i in range(4): A(f"ds_bpermute_b32 v{OF+i}, v{ENA}, v{OF+4} offset:{8*i}")
    A(f"v_xor_b32 v{OF+5}, s{sTAG}, v{OF+5}")
    A(f"v_and_or_b32 v{OF+5}, v{OF+4}, s46, v{OF+5}")
    A(f"v_cmp_ne_u32 vcc, 0, v{OF+5}")
    A(f"v_and_b32 v{t+8}, 1, v0")
    A("s_cbranch_vccnz L_ENTR")
    stamp(8)
    note(sCNT, 20)
    A(f"v_mul_u32_u24 v{t+8}, 3, v{t+8}")
    A(f"s_mov_b32 s{sCNT}, 0")
    LB("L_LOADS")
    A(f"s_mov_b32 s46, {REC:#x}")
    for i in range(4):
        lo = OF+i
        A(f"s_waitcnt lgkmcnt({3-i})")
        A(f"v_and_b32 v{t+1}, 7, v{lo}")
        A(f"v_and_b32 v{t+2}, 0x7fe0, v{lo}")
        A(f"v_sub_u32 v{ND+i}, v{KP}, v{t+1}")
        A(f"v_add_u32 v{t+2}, v{t+2}, v{RCA}")
        A(f"v_sub_u32 v{t+1}, v{ND+i}, v{t+8}")
        A(f"v_cmpx_lt_i32_sdwa vcc, v{t+1}, v{lo} src0_sel:DWORD src1_sel:WORD_1")
        if i == 0: stamp(9)
        A(f"buffer_load_dwordx4 {vr(RW+4*i,4)}, v{t+2}, {sr(sWS,4)}, s46 offen sc1")
        A("s_mov_b64 exec, -1")
        if i < 3: A(f"s_add_u32 s46, s46, {CHB}")
    lo = OF+4
    A(f"v_and_b32 v{t+1}, 7, v{lo}")
    A(f"v_add_u32_sdwa v{t+1}, v{t+1}, v{lo} dst_sel:DWORD dst_unused:UNUSED_PAD src0_sel:DWORD src1_sel:WORD_1")
    A(f"s_mov_b32 s{sRARE}, 0")
    A(f"v_cmp_lt_u32 {sr(mMORE,2)}, s{sHI}, v{t+1}")
    A(f"v_cmpx_lt_u32 vcc, s{sLB}, v{t+1}")
    A("s_cbranch_execz L_NOB")
    A(f"s_mov_b32 s{sRARE}, 1")
    A(f"s_mov_b32 s46, {REC+128:#x}")
    A(f"v_and_b32 v{t+2}, 0x7fe0, v{lo}")
    A(f"v_add_u32 v{t+2}, v{t+2}, v{RCB}")
    A(f"v_subrev_u32 v{t+1}, s{sLB}, v{t+1}")
    A(f"buffer_load_dwordx4 {vr(RW+16,4)}, v{t+2}, {sr(sWS,4)}, s46 offen sc1")
    A(f"v_sub_u32 v{t+3}, v{t+1}, v{t+8}")
    for k in range(6): A(f"v_cmp_lt_i32 {mk(12+k)}, {6*(k//3) + k%3}, v{t+3}")
    A(f"v_cmpx_lt_i32 vcc, 6, v{t+1}")
    A(f"buffer_load_dwordx4 {vr(RW+20,4)}, v{t+2}, {sr(sWS,4)}, s46 offen offset:32 sc1")
    LB("L_NOB")
    A("s_mov_b64 exec, -1")
    stamp(10)
    for i in range(4):
        for r in range(3):
            A(f"v_cmp_lt_u32_sdwa {mk(3*i+r)}, v{ND+i}, v{OF+i} src0_sel:DWORD src1_sel:WORD_1")
            if r < 2: A(f"v_add_u32 v{ND+i}, 1, v{ND+i}")
    A(f"s_cmp_eq_u32 s{sFIRST}, 0")
    A("s_cbranch_scc1 L_HIST")
    A(f"s_mov_b32 s{sFIRST}, 0")
    C("---- remaining constants (in the shadow of the record loads)")
    AA(pk("v_pk_mul_f32", 130, 130, sr(sNL,2), n=4))
    A("v_cvt_pk_bf16_f32 v130, v130, v131")
    A("v_cvt_pk_bf16_f32 v131, v132, v133")
    for u in range(2):
        for r in range(4): A(f"v_and_b32 v{W+4*u+r}, v{130+u}, v{WMK+r}")
    A("s_mov_b32 s12, s8")
    A(f"s_or_b32 s13, s9, {128 << 16:#x}")
    A(f"s_mov_b32 s14, {(N+1)*128}")
    A("s_mov_b32 s15, 0x20000")
    A(f"s_mov_b32 s16, s{pOUT}")
    A(f"s_mov_b32 s17, s{pOUT+1}")
    A(f"s_mov_b32 s18, {N*128}")
    A("s_mov_b32 s19, 0x20000")
    A(f"s_bfm_b64 {sr(mLN,2)}, s6, 0")
    A("s_lshl_b32 s44, s3, 4")
    A(f"v_add_u32 v{AGW}, s44, v{AGW}")
    A("s_lshl_b32 s44, s3, 5")
    A(f"v_add_u32 v{CRA}, s44, v{ROWL}")
    A(f"v_and_b32 v{FLA}, 0x1f0, v{T16}")
    A("s_lshl_b32 s44, s3, 9")
    A(f"s_add_u32 s44, s44, {FL2:#x}")
    A(f"v_add_u32 v{FLA}, s44, v{FLA}")
    A(f"s_mul_i32 s44, s3, {8*TP}")
    A(f"v_mul_u32_u24 v{SID}, {TP}, v{GD}")
    A(f"v_add_u32 v{SID}, s44, v{SID}")
    A(f"v_add_u32 v{TOTW}, v{SID}, v{LP}")
    A("s_mul_i32 s44, s7, 392")
    A(f"s_mul_i32 s45, s3, {NPB}")
    A("s_add_u32 s44, s44, s45")
    A(f"v_add_lshl_u32 v{PFA}, v{LANE}, s44, 7")
    for q in range(0, 8, 2): A(f"v_mov_b64 {vr(EA[0]+q,2)}, 0")
    for q in range(0, 8, 2): A(f"v_mov_b64 {vr(AGG+q,2)}, 0")
    A(f"s_mov_b32 s{sI0}, 32")
    A(f"s_mov_b32 s{sI0+1}, 32")
    A("s_mov_b32 s20, 0x11111111")
    A("s_mov_b32 s21, 0x44444444")
    A("s_mov_b32 s22, 0x22222222")
    A("s_mov_b32 s23, 0x88888888")
    A("s_mov_b32 s30, 0x01010101")
    A("s_mov_b32 s31, s30")
    A(f"s_mov_b32 s40, {BIG:#x}")
    A("s_mov_b32 s41, s40")
    prefill_big(124)
    LB("L_HIST")
    for q in range(0, 18, 2): A(f"v_mov_b64 {vr(RK+q,2)}, s[40:41]")
    A(f"v_mov_b32 v{t+5}, 4")
    A(f"s_mov_b64 exec, {sr(mMORE,2)}")
    A(f"ds_write_b32 v{ZERO}, v{t+5} offset:{FLAGS}")
    A("s_mov_b64 exec, -1")
    stamp(11)
    A("s_waitcnt vmcnt(0)")
    for q in range(6): A(f"v_xor_b32 v{RW+4*q+3}, v{RW+4*q+3}, v{TW}")
    A(f"v_or3_b32 v{t+3}, v{RW+3}, v{RW+7}, v{RW+11}")
    A(f"v_or3_b32 v{t+2}, v{RW+15}, v{RW+19}, v{RW+23}")
    A(f"v_or_b32 v{t+3}, v{t+3}, v{t+2}")
    A(f"v_and_b32 v{t+3}, {TMASK:#x}, v{t+3}")
    A(f"v_cmp_ne_u32 vcc, 0, v{t+3}")
    nd = lambda k: (ND + 2*(k//3) + k%3) if k % 3 < 2 else RW + 4*(k//3) + 3
    rw = lambda k: RW + 4*(k//3) + k%3
    def extract(q):
        A(f"v_and_b32 v{nd(3*q)}, 0xff, v{RW+4*q+3}")
        A(f"v_bfe_u32 v{nd(3*q+1)}, v{RW+4*q+3}, 8, 8")
        A(f"v_lshrrev_b32 v{RW+4*q+3}, 16, v{RW+4*q+3}")
    def hist(k):
        A(f"s_mov_b64 exec, {mk(k)}")
        A(f"ds_add_rtn_u32 v{RK+k}, v{nd(k)}, v{t+5} offset:{HIST2}")
    A("s_cbranch_vccnz L_HR")
    for q in range(4): extract(q)
    A(f"s_cmp_eq_u32 s{sRARE}, 0")
    A("s_cbranch_scc1 L_RARE1")
    extract(4); extract(5)
    for k in range(12, 18): hist(k)
    LB("L_RARE1")
    for k in range(12): hist(k)
    A("s_mov_b64 exec, -1")
    note(sCNT, 21); stamp(23); note(sRARE, 25)
    A(f"s_cmp_lg_u32 s{sSAFE}, 0")
    A(f"s_cselect_b32 s44, 1.0, {f2u(2.0**-64):#x}")
    A("s_mov_b32 s45, s44")
    A("s_lshl_b32 s46, s3, 4")
    A("s_waitcnt lgkmcnt(0)")
    A("s_barrier")
    stamp(12)
    CNT, PB, INC, BS = t+6, t+7, t+8, t+9
    A(f"ds_read_b32 v{CNT}, v{L4} offset:{HIST2}")
    A(f"buffer_load_dwordx2 {vr(RAp[1],2)}, v{FLA}, {sr(sWS,4)}, 0 offen sc1")
    PF = int(OPT.get("pf", 24))
    A(f"s_mov_b64 exec, {(1 << PF) - 1:#x}")
    A(f"buffer_load_dword v254, v{PFA}, {sr(sWS,4)}, 0 offen sc1")
    A("s_mov_b64 exec, -1")
    A("s_waitcnt lgkmcnt(0)")
    A(f"v_add_u32 v{PB}, 12, v{CNT}")
    A(f"v_and_b32 v{PB}, -16, v{PB}")
    A(f"v_max_u32 v{PB}, 16, v{PB}")
    A(f"v_cndmask_b32 v{PB}, 0, v{PB}, {sr(mLN,2)}")
    A(f"v_mov_b32 v{INC}, v{PB}")
    scan(INC, [f"v_sub_u32 v{NPAD}, v{PB}, v{CNT}", f"s_mov_b32 s{sREDO}, 0"] + [f"v_mov_b64 {vr(Nn+q,2)}, 0" for q in range(0,8,2)] +
              [f"v_mov_b64 {vr(Dd+q,2)}, s[44:45]" for q in range(0,8,2)] +
              [f"v_cvt_f32_u32 v{NPAD}, v{NPAD}", f"v_mul_f32 v{NPAD}, {f2u(-0.25):#x}, v{NPAD}"])
    A(f"v_sub_u32 v{BS}, v{INC}, v{PB}")
    A(f"v_readlane_b32 s44, v{INC}, 63")
    A(f"ds_write_b32 v{L4}, v{BS} offset:{BASE2}")
    def baserd(k): A(f"ds_read_b32 v{nd(k)}, v{nd(k)} offset:{BASE2}")
    def scat(k):
        A(f"v_add_u32 v{RK+k}, v{nd(k)}, v{RK+k}")
        A(f"ds_write_b32 v{RK+k}, v{rw(k)} offset:{LIST}")
    for k in range(12): baserd(k)
    A("s_cmpk_gt_u32 s44, 16384")
    A("s_cbranch_scc1 L_TOOBIG")
    A(f"v_lshrrev_b32 v{t+1}, 1, v{INC}")
    A(f"v_add_u32 v{t+2}, s46, v{BS}")
    A(f"v_lshrrev_b32 v{t+2}, 1, v{t+2}")
    for k in range(12):
        if k % 2 == 0: A("s_waitcnt lgkmcnt(10)")
        scat(k)
    A(f"s_cmp_eq_u32 s{sRARE}, 0")
    A("s_cbranch_scc1 L_RARE2")
    for k in range(12, 18): baserd(k)
    A("s_waitcnt lgkmcnt(0)")
    for k in range(12, 18): scat(k)
    LB("L_RARE2")
    A(f"s_mov_b64 exec, {sr(mLN,2)}")
    A(f"ds_write_b32 v{t+1}, v{ROWL} offset:{QD-4}")
    LB("L_QD")
    for q in range(3):
        A(f"v_cmpx_lt_u32 vcc, s46, v{PB}")
        A("s_add_u32 s46, s46, 128")
        A(f"ds_write_b32 v{t+2}, v{ROWL} offset:{QD+64*q}")
    A(f"v_cmpx_lt_u32 vcc, s46, v{PB}")
    A(f"v_add_u32 v{t+2}, 192, v{t+2}")
    A("s_cbranch_execnz L_QD")
    A("s_mov_b64 exec, -1")
    A("s_add_u32 s44, s44, 127")
    A("s_lshr_b32 s45, s44, 10")
    A("s_bfe_u32 s44, s44, 0x30007")
    A("s_mul_i32 s46, s45, s3")
    A("s_min_u32 s47, s44, s3")
    A(f"s_add_u32 s{sSTART}, s46, s47")
    A("s_cmp_lt_u32 s3, s44")
    A(f"s_addc_u32 s{sT}, s45, 0")
    A(f"s_not_b32 s45, s{sTAG}")
    A("s_waitcnt vmcnt(1)")
    LB("L_FC")
    A(f"v_xor_b32 v{RAp[1]}, s{sTAG}, v{RAp[1]}")
    A(f"v_xor_b32 v{RAp[1]+1}, s45, v{RAp[1]+1}")
    A(f"v_or_b32 v{RAp[1]}, v{RAp[1]}, v{RAp[1]+1}")
    A(f"v_cmp_ne_u32 vcc, 0, v{RAp[1]}")
    A("s_cbranch_vccnz L_FR")
    note(sCNT, 22)
    LB("L_MAIN")
    A(f"s_lshl_b32 s44, s{sT}, 4")
    A(f"s_lshl_b32 s45, s{sSTART}, 7")
    A(f"v_add_u32 v{t+2}, s45, v{GQ}")
    A(f"v_mad_u32_u24 v{AI}, v{GA}, s44, v{t+2}")
    A(f"v_xor_b32 v{AX}, 2, v{GA}")
    A(f"v_mad_u32_u24 v{AX}, v{AX}, s44, v{t+2}")
    A("s_lshl_b32 s46, s44, 2")
    A(f"v_add_u32 v{AI+1}, s46, v{AI}")
    A(f"v_add_u32 v{AX+1}, s46, v{AX}")
    A("s_lshr_b32 s44, s44, 1")
    A("s_lshr_b32 s45, s45, 1")
    A(f"s_add_u32 s45, s45, {QD}")
    A(f"v_mul_u32_u24 v{QA}, s44, v{GD}")
    A(f"v_add_u32 v{QA}, s45, v{QA}")
    A("s_waitcnt lgkmcnt(0)")
    A("s_barrier")
    A("s_setprio 2")
    stamp(13); stamp(27, real=True)
    def gathers(g_):
        return [f"buffer_load_dwordx4 {vr(G[g_]+8*u+4*s,4)}, {vr(IP[s],2)}, {sr(sA,4)}, 0 idxen offen offset:{64*u}" for u in range(2) for s in range(2)]
    def idx(o):
        return [f"ds_read_u16 v{IP[0]}, v{AI} offset:{LIST+o}", f"ds_read_u16 v{IP[1]}, v{AI+1} offset:{LIST+o}"]
    def eas(b, o):
        ar = [AI, AI+1, AX, AX+1]
        return ["s_mov_b64 exec, s[20:21]"] + [f"ds_read_u16 v{EA[b]+r}, v{ar[r]} offset:{LIST+o+2}" for r in range(4)] + \
               ["s_mov_b64 exec, s[22:23]"] + [f"ds_read_u16_d16_hi v{EA[b]+r}, v{ar[r]} offset:{LIST+o+2}" for r in range(4)] + ["s_mov_b64 exec, -1"]
    def bs(b, areg):
        return [f"ds_read_b128 {vr(Bv[b],4)}, v{areg}", f"ds_read_b128 {vr(Bv[b]+4,4)}, v{areg} offset:128"]
    AA(idx(0))
    A(f"ds_read_u16 v{t}, v{AI} offset:{LIST+16}")
    A(f"ds_read_u16 v{t+1}, v{AI+1} offset:{LIST+16}")
    A(f"ds_read2_b32 {vr(RAp[0],2)}, v{QA} offset0:0 offset1:2")
    A("s_waitcnt lgkmcnt(3)")
    AA(gathers(0))
    A("s_waitcnt lgkmcnt(0)")
    A(f"v_mov_b32 v{IP[0]}, v{t}")
    A(f"v_mov_b32 v{IP[1]}, v{t+1}")
    A(f"v_lshl_add_u64 {vr(RAp[0],2)}, {vr(RAp[0],2)}, 0, {vr(LP,2)}")
    AA(bs(0, RAp[0]) + eas(0, 0))
    AA(gathers(1))
    A(f"v_mov_b32 v{RAp[1]+1}, {BIG:#x}")
    A(f"s_cmp_lg_u32 s{sREDO}, 0")
    A("s_cbranch_scc1 L_NOSH")
    A(f"ds_read_b128 v[154:157], v{CRA} offset:{oSB}")
    A(f"ds_read_b128 v[158:161], v{CRA} offset:{oSB+16}")
    A("s_waitcnt lgkmcnt(0)")
    for q in range(0,8,2): A(f"v_pk_fma_f32 {vr(AGG+q,2)}, {vr(154+q,2)}, {vr(NPAD,2)}, {vr(AGG+q,2)} op_sel_hi:[1,0,1]")
    LB("L_NOSH")
    A(f"s_sub_u32 s{sCNT}, s{sT}, 1")
    A("s_cbranch_scc1 L_WEND")
    def mfmas(b, u):
        d = vr(T[u],16)
        return [f"v_mfma_f32_32x32x16_bf16 {d}, {vr(A3,4)}, {vr(Bv[b]+4*u,4)}, 0",
                f"v_mfma_f32_32x32x16_bf16 {d}, {vr(EA[b],4)}, {vr(W+4*u,4)}, {d}"] + \
               [f"v_mfma_f32_32x32x16_bf16 {d}, {vr(G[b]+8*u+4*s,4)}, {vr(S+4*s,4)}, {d}" for s in range(2)]
    def chain(u, safe):
        o = []
        if safe:
            o += pk("v_pk_add_f32", EX, EX, "1.0", n=16, tail=" op_sel_hi:[1,0]")
            o += [f"v_rcp_f32 v{EX+r}, v{EX+r}" for r in range(16)]
            for q in range(4):
                for p in range(2):
                    n = vr(Nn+4*u+2*p,2)
                    o.append(f"v_pk_fma_f32 {n}, {vr(T[u]+4*q+2*p,2)}, {vr(EX+4*q+2*p,2)}, {n}")
            return o
        for q in range(4):
            for p in range(2):
                n = vr(Nn+4*u+2*p,2); o.append(f"v_pk_fma_f32 {n}, {n}, {vr(EX+4*q+2*p,2)}, {n}")
            for p in range(2):
                n = vr(Nn+4*u+2*p,2); o.append(f"v_pk_fma_f32 {n}, {vr(T[u]+4*q+2*p,2)}, {vr(Dd+4*u+2*p,2)}, {n}")
            for p in range(2):
                d = vr(Dd+4*u+2*p,2); o.append(f"v_pk_fma_f32 {d}, {d}, {vr(EX+4*q+2*p,2)}, {d}")
        return o
    def flush(u, a):
        return [f"ds_write_b128 v{a}, {vr(r+4*u,4)} offset:{o+128*u}" for r, o in ((Nn, oN), (Dd, oD))] + \
               (["s_mov_b64 exec, s[30:31]", f"ds_write_b32 v{a}, v{SID} offset:{oS}", "s_mov_b64 exec, -1"] if u == 0 else [])
    ms = mfmas(0, 0)
    A("s_waitcnt lgkmcnt(0)")
    A(ms[0]); A(ms[1])
    AA(bs(1, RAp[0]+1) + eas(1, 16) + idx(32))
    A(f"ds_read2_b32 {vr(DSC,2)}, v{QA} offset0:4 offset1:1")
    A("s_waitcnt vmcnt(4)")
    stamp(14)
    A(f"s_cmp_lg_u32 s{sSAFE}, 0")
    A(ms[2]); A(ms[3])
    A("s_mov_b64 s[24:25], 0")
    A("s_setprio 1")
    A("s_nop 8")
    A("s_cbranch_scc1 L_INS")
    A("s_branch L_INF")
    def size(x):
        x = x.strip()
        if x.endswith(":"): return 0
        if x.startswith("s_memtime"): return 8
        if x.startswith("v_exp_f32 ") or x.startswith("v_rcp_f32 ") or x.startswith("s_") or x.startswith("v_add_u32 ") or x.startswith("v_cmp_gt_u32 vcc") or x.startswith("v_swap"): return 4
        return 8
    def aligned(body):
        out = []; off = 0
        for x in body:
            if size(x) == 8 and off % 8 and x.startswith("v_"):
                p = out[-1]
                if p.startswith("v_exp_f32 ") or p.startswith("v_rcp_f32 "):
                    out[-1] = p.replace("_f32 ", "_f32_e64 "); off += 4
                elif "nopad" not in OPT:
                    k = len(out)
                    while out[k-1].endswith(":"): k -= 1
                    out.insert(k, "s_nop 0"); off += 4
            out.append(x); off += size(x)
        return out
    PP = int(OPT.get("pp", 24)); FB = "nofb" not in OPT
    def esec(u, ms, pre=[]):
        o = []; k = 0
        if pre is not None:
            o += [f"v_exp_f32 v{EX}, v{T[u]}"] + pre; k = 1
        for r in range(k, 16):
            if (r-k) % 3 == 0 and (r-k) < 12: o.append(ms[(r-k)//3])
            o.append(f"v_exp_f32 v{EX+r}, v{T[u]+r}")
        return o
    def loop(tag, safe):
        L.append(".p2align 6")
        B = [f"L_LOOP{tag}:"]
        for ph in range(2):
            o = 16*ph
            c = chain(1, safe)
            pp = min(PP, len(c))
            B += c[:pp] + ["s_setprio 1"] + c[pp:]
            if ph == 0: B.append(f"L_IN{tag}:")
            B += esec(0, mfmas(ph, 1), [] if pp == len(c) else None)
            B += chain(0, safe)
            B.append("s_waitcnt vmcnt(0) lgkmcnt(0)")
            adr = [f"v_lshl_add_u64 {vr(RAp[ph],2)}, {vr(DSC,2)}, 0, {vr(LP,2)}"]
            if ph == 1:
                B += [f"v_add_u32 v{QA}, 16, v{QA}"] + adr + [f"v_lshl_add_u64 {vr(AI,2)}, {vr(AI,2)}, 0, {sr(sI0,2)}", f"v_lshl_add_u64 {vr(AX,2)}, {vr(AX,2)}, 0, {sr(sI0,2)}"]
                o -= 32
                B += esec(1, mfmas(1-ph, 0), None)
            else:
                B += esec(1, mfmas(1-ph, 0), adr)
            if FB: B.append(f"v_cmp_gt_u32 vcc, 2.0, v{RAp[ph]+1}")
            B += ["s_setprio 0"]
            if "lst" in OPT: B += ["s_memtime s[98:99]  ", f"s_add_u32 m0, s{sCNT}, 32", "s_waitcnt lgkmcnt(0)", "v_writelane_b32 v255, s98, m0"]
            B += [f"s_sub_u32 s{sCNT}, s{sCNT}, 1", f"s_cbranch_scc1 L_X{tag}{ph}"]
            if "nogather" not in OPT: B += gathers(ph)
            if FB: B += ["s_cmp_eq_u64 s[24:25], 0", f"s_cbranch_scc1 L_F1{tag}{ph}"]
            B += flush(1, RAp[1-ph]+1)
            if FB: B += [f"L_F1{tag}{ph}:", "s_mov_b64 s[24:25], vcc"]
            B += bs(ph, RAp[ph]) + eas(ph, o+32) + idx(o+48)
            B.append(f"ds_read2_b32 {vr(DSC,2)}, v{QA} offset0:{o//8+6} offset1:{o//8+3}")
            if FB: B.append(f"s_cbranch_vccz " + (f"L_F0{tag}" if ph == 0 else f"L_LOOP{tag}"))
            B += flush(0, RAp[ph]+1)
            if "lst" in OPT: B += ["s_memtime s[98:99]  ", f"s_add_u32 m0, s{sCNT}, 49", "s_waitcnt lgkmcnt(0)", "v_writelane_b32 v255, s98, m0"]
            if ph == 1: B.append(f"s_branch L_LOOP{tag}")
            elif FB: B.append(f"L_F0{tag}:")
        B += [f"L_X{tag}1:", f"v_swap_b32 v{RAp[0]+1}, v{RAp[1]+1}", "s_nop 0", f"L_X{tag}0:"]
        B += flush(1, RAp[1]+1) + flush(0, RAp[0]+1) + chain(1, safe)
        for x in aligned(B):
            (L.append(x) if x.endswith(":") else A(x))
    loop("F", False)
    LB("L_SEND")
    stamp(15)
    for q in range(8): A(f"v_rcp_f32 v{EX+q}, v{Dd+q}")
    A(f"v_pk_add_f32 v[186:187], {vr(Dd,2)}, {vr(Dd+2,2)}")
    AA(pk("v_pk_mul_f32", EX, Nn, EX))
    A(f"ds_write_b128 v{TOTW}, {vr(EX,4)} offset:{TOT}")
    A(f"ds_write_b128 v{TOTW}, {vr(EX+4,4)} offset:{TOT+128}")
    AA(flush(1, RAp[0]+1))
    A(f"v_pk_add_f32 v[188:189], {vr(Dd+4,2)}, {vr(Dd+6,2)}")
    A(f"v_pk_add_f32 v[190:191], {vr(EX,2)}, {vr(EX+2,2)}")
    A(f"v_pk_add_f32 v[192:193], {vr(EX+4,2)}, {vr(EX+6,2)}")
    A("v_pk_add_f32 v[186:187], v[186:187], v[188:189]")
    A("v_pk_add_f32 v[190:191], v[190:191], v[192:193]")
    A("v_pk_fma_f32 v[186:187], v[190:191], 0, v[186:187] op_sel_hi:[1,0,1]")
    A("v_add_f32 v186, v186, v187")
    A("v_mov_b32 v189, 1")
    A(f"v_cmpx_ngt_f32 vcc, {f2u(2.0**110):#x}, v186")
    A(f"ds_write_b32 v{ZERO}, v189 offset:{FLAGS+4}")
    A("s_mov_b64 exec, -1")
    LB("L_WEND")
    A("s_lshl_b32 s46, s3, 5")
    A(f"s_add_u32 s46, s46, {TOT}")
    A(f"s_mov_b32 s42, {NLN2:#x}")
    A("s_mov_b32 s43, s42")
    A("s_waitcnt lgkmcnt(0)")
    A("s_barrier")
    stamp(16); stamp(28, real=True)
    FN, FD, T0_, T1_ = 186, 194, 202, 210
    cn, ta = t+3, t+7
    A(f"ds_read_b32 v{cn}, v{ROWL} offset:{oS}")
    A(f"ds_read_b128 {vr(FD,4)}, v{CRA} offset:{oD}")
    A(f"ds_read_b128 {vr(FD+4,4)}, v{CRA} offset:{oD+16}")
    A(f"ds_read_b128 {vr(FN,4)}, v{CRA} offset:{oN}")
    A(f"ds_read_b128 {vr(FN+4,4)}, v{CRA} offset:{oN+16}")
    A(f"ds_read_b64 {vr(t+4,2)}, v{ZERO} offset:{FLAGS}")
    A("s_waitcnt lgkmcnt(5)")
    A(f"v_mov_b32_dpp v{ta}, v{cn} wave_shr:1 row_mask:0xf bank_mask:0xf bound_ctrl:1")
    A(f"v_sub_u32 v{cn}, v{cn}, v{ta}")
    A(f"v_add_u32 v{ta}, s46, v{ta}")
    A(f"v_cndmask_b32 v{cn}, 0, v{cn}, {sr(mLN,2)}")
    A(f"v_cmpx_lt_i32 s[44:45], 0, v{cn}")
    A(f"ds_read_b128 {vr(T0_,4)}, v{ta}")
    A(f"ds_read_b128 {vr(T0_+4,4)}, v{ta} offset:16")
    A(f"v_cmpx_lt_i32 vcc, {TP}, v{cn}")
    A(f"ds_read_b128 {vr(T1_,4)}, v{ta} offset:{TP}")
    A(f"ds_read_b128 {vr(T1_+4,4)}, v{ta} offset:{TP+16}")
    A("s_mov_b64 exec, -1")
    A("s_waitcnt lgkmcnt(4)")
    A(f"v_readfirstlane_b32 s47, v{t+5}")
    A(f"v_readfirstlane_b32 s{sMORE}, v{t+4}")
    for q in range(8): A(f"v_rcp_f32 v{FD+q}, v{FD+q}")
    A(f"s_andn2_b32 s47, s47, s{sSAFE}")
    A("s_cbranch_scc1 L_RETRY")
    AA(pk("v_pk_mul_f32", FN, FN, FD))
    AA(pk("v_pk_add_f32", AGG, AGG, FN))
    for q in range(8):
        A(f"v_subrev_f32_dpp v{AGG+q}, v{FN+q}, v{AGG+q} wave_shr:1 row_mask:0xf bank_mask:0xf bound_ctrl:1")
    LB("L_TL")
    A("s_mov_b64 exec, s[44:45]")
    A("s_waitcnt lgkmcnt(0)")
    AA(pk("v_pk_add_f32", AGG, AGG, T0_))
    A("s_mov_b64 exec, vcc")
    AA(pk("v_pk_add_f32", AGG, AGG, T1_))
    A(f"v_cmp_lt_i32 vcc, {2*TP}, v{cn}")
    A("s_mov_b64 exec, -1")
    A(f"s_cmp_lg_u32 s{sMORE}, 0")
    A("s_cbranch_vccnz L_TLM")
    A("s_cbranch_scc1 L_NEXT")
    AA(pk("v_pk_mul_f32", FN, AGG, "s[42:43]"))
    for q in range(4): A(f"v_cvt_pk_bf16_f32 v{FD+q}, v{FN+2*q}, v{FN+2*q+1}")
    A(f"ds_write_b128 v{AGW}, {vr(FD,4)} offset:{AGS}")
    A("s_waitcnt lgkmcnt(0)")
    A("s_barrier")
    stamp(17)
    A(f"ds_read_b128 {vr(T0_,4)}, v{AGR} offset:{AGS}")
    A(f"ds_read_b128 {vr(T0_+4,4)}, v{AGR} offset:{AGS+64}")
    for ks in range(2):
        A(f"s_waitcnt lgkmcnt({1-ks})")
        for cb in range(2):
            A(f"v_mfma_f32_16x16x32_bf16 {vr(U+4*cb,4)}, {vr(WF2+8*cb+4*ks,4)}, {vr(T0_+4*ks,4)}, {vr(U+4*cb,4)}")
    A("s_nop 6")
    AA(pk("v_pk_mul_f32", FN, U, sr(sNL,2)))
    for q in range(8): A(f"v_exp_f32 v{FN+q}, v{FN+q}")
    AA(pk("v_pk_add_f32", FN, FN, "1.0", tail=" op_sel_hi:[1,0]"))
    for q in range(8): A(f"v_rcp_f32 v{FN+q}, v{FN+q}")
    AA(pk("v_pk_mul_f32", FN, U, FN))
    for q in range(4): A(f"v_cvt_pk_bf16_f32 v{FD+q}, v{FN+2*q}, v{FN+2*q+1}")
    A("s_nop 1")
    A(f"v_permlane16_swap_b32 v{FD}, v{FD+2}")
    A(f"v_permlane16_swap_b32 v{FD+1}, v{FD+3}")
    A(f"s_mov_b64 exec, {sr(mON,2)}")
    A(f"buffer_store_dwordx4 {vr(FD,4)}, v{OUTO}, {sr(sOUT,4)}, s{sOUTS} offen {OPT.get('outf','nt').replace('+',' ')}")
    if DIAG:
        stamp(18)
        A("s_waitcnt vmcnt(0)")
        stamp(19)
        stamp(31, real=True)
        A("s_mov_b32 exec_lo, -1")
        A("s_mov_b32 exec_hi, 0")
        A("s_lshl_b32 s44, s2, 3")
        A("s_add_u32 s44, s44, s3")
        A("s_lshl_b32 s44, s44, 7")
        A(f"s_add_u32 s44, s44, {STAMP:#x}")
        A(f"buffer_store_dword v255, v{L4}, {sr(sWS,4)}, s44 offen")
        A("s_not_b64 exec, exec")
        A(f"s_add_u32 s44, s44, {0x40000-128:#x}")
        A(f"buffer_store_dword v255, v{L4}, {sr(sWS,4)}, s44 offen")
    LB("L_END")
    A("s_endpgm")
    C("---- out-of-line paths")
    LB("L_TLM")
    A(f"v_min_i32 v{cn}, {64*TP}, v{cn}")
    A(f"v_add_u32 v{cn}, {-2*TP & 0xffffffff:#x}, v{cn}")
    A(f"v_add_u32 v{ta}, {2*TP}, v{ta}")
    A(f"v_cmpx_lt_i32 s[44:45], 0, v{cn}")
    A(f"ds_read_b128 {vr(T0_,4)}, v{ta}")
    A(f"ds_read_b128 {vr(T0_+4,4)}, v{ta} offset:16")
    A(f"v_cmpx_lt_i32 vcc, {TP}, v{cn}")
    A(f"ds_read_b128 {vr(T1_,4)}, v{ta} offset:{TP}")
    A(f"ds_read_b128 {vr(T1_+4,4)}, v{ta} offset:{TP+16}")
    A("s_branch L_TL")
    LB("L_NONCEW")
    A(f"global_load_dword v{PUB+1}, v{ZERO}, {sr(pDBG,2)} sc1")
    bound()
    A("s_waitcnt vmcnt(0)")
    A("s_branch L_PUB")
    LB("L_PASS")
    A(f"s_mov_b32 s{sCNT}, 0")
    LB("L_ENTR")
    A("s_waitcnt lgkmcnt(0)")
    entry_load()
    bound()
    A("s_waitcnt vmcnt(0)")
    A("s_branch L_ENT")
    LB("L_FR")
    A(f"buffer_load_dwordx2 {vr(RAp[1],2)}, v{FLA}, {sr(sWS,4)}, 0 offen sc1")
    bound()
    A("s_waitcnt vmcnt(0)")
    A("s_branch L_FC")
    LB("L_HR")
    for q in range(6): A(f"v_mov_b32 v{RW+4*q+3}, v{TW}")
    bound()
    A("s_branch L_LOADS")
    LB("L_RETRY")
    A(f"s_mov_b32 s{sSAFE}, 1")
    A(f"s_mov_b32 s{sREDO}, 1")
    for q in range(8):
        A(f"v_mov_b32 v{Nn+q}, 0")
        A(f"v_mov_b32 v{Dd+q}, 1.0")
    A("s_waitcnt vmcnt(0) lgkmcnt(0)")
    A("s_branch L_MAIN")
    LB("L_TOOBIG")
    C("narrow passes: 12 positions of every segment at a time")
    A(f"s_sub_u32 s{sHI}, s{sHI}, 24")
    A(f"s_mov_b32 s{sWID}, 12")
    A(f"s_mov_b32 s{sLB}, {HUGE:#x}")
    A(f"v_cmpx_lt_u32 vcc, 63, v{LP}")
    A(f"v_mov_b32 v{KP}, {HUGE:#x}")
    A("s_mov_b64 exec, -1")
    A("s_branch L_AGAIN")
    LB("L_NEXT")
    A(f"s_add_u32 s{sHI}, s{sHI}, s{sWID}")
    A(f"s_add_u32 s{sLB}, s{sLB}, s{sWID}")
    A(f"v_add_u32 v{KP}, s{sWID}, v{KP}")
    A(f"s_cmp_eq_u32 s{sWID}, 12")
    A("s_cselect_b32 s44, 64, 192")
    A(f"v_add_u32 v{RCA}, s44, v{RCA}")
    A(f"v_add_u32 v{RCB}, s44, v{RCB}")
    LB("L_AGAIN")
    A("s_setprio 0")
    A("s_waitcnt vmcnt(0) lgkmcnt(0)")
    A("s_barrier")
    prefill_small()
    prefill_big(124)
    for q in range(6): A(f"v_mov_b32 v{RW+4*q+3}, v{TW}")
    A("s_mov_b32 s46, 0xf0008018")
    A("s_waitcnt lgkmcnt(0)")
    A("s_barrier")
    A("s_branch L_PASS")
    loop("S", True)
    A("s_branch L_SEND")
    L.append(f".fill ((12288 - (. - {KN})) / 4), 4, 0xbf800000")
    LB("L_TAB")
    L.extend(table())

hdr = open("cdna_kernels/%s.s.ref" % NAME).read().split("; Override")[0]
out = hdr + f"; @launch grid=(256,1,1) block=(512,1,1) lds={LDSZ}\n"
out += '.amdgcn_target "amdgcn-amd-amdhsa--gfx950"\n.text\n'
kernel()
out += "\n".join(L) + "\n"
out += f""".section .rodata,"a"
.p2align 6
.amdhsa_kernel {KN}
  .amdhsa_next_free_vgpr 256
  .amdhsa_next_free_sgpr 102
  .amdhsa_accum_offset 256
  .amdhsa_group_segment_fixed_size 0
  .amdhsa_kernarg_size 72
  .amdhsa_user_sgpr_count 2
  .amdhsa_user_sgpr_kernarg_segment_ptr 1
  .amdhsa_system_sgpr_workgroup_id_x 1
.end_amdhsa_kernel
"""
dst = [a for a in sys.argv[1:] if not a.startswith("--")]
open(dst[0] if dst else f"cdna_kernels/{NAME}.s", "w").write(out)
```

```python
import sys, struct
NAME = "gather_scatter__mpnn_edge_mlp__graph"
KN = NAME + "_kernel"
N, E = 12500, 800000
CH, NPB = 3136, 49
ATAB, FL2, OFFS, REC = 0, 0x18C000, 0x190000, 0x210000
CHB = 16768
WS_END = REC + 256 * CHB
STAMP = 0x900000
LOG2E = 1.4426950408889634
def f2u(x): return struct.unpack("<I", struct.pack("<f", x))[0]
NLOG2E = f2u(-LOG2E); NLN2 = f2u(-0.6931471805599453)
DIAG = "--diag" in sys.argv
OPT = {a.split("=")[0][2:]: (a.split("=")[1] if "=" in a else "1") for a in sys.argv[1:] if a.startswith("--")}
WS_REC = (STAMP + 0x100000) if DIAG else WS_END
BIG = 0x40000000; HUGE = 0x10000000

L = []
def A(s): L.append("    " + s)
def AA(xs):
    for x in xs: A(x)
def LB(s): L.append(s + ":")
def C(s): L.append("    ; " + s)
def vr(b, n=1): return f"v{b}" if n == 1 else f"v[{b}:{b+n-1}]"
def sr(b, n=1): return f"s{b}" if n == 1 else f"s[{b}:{b+n-1}]"
SCANM = ["row_shr:1 row_mask:0xf bank_mask:0xf bound_ctrl:1", "row_shr:2 row_mask:0xf bank_mask:0xf bound_ctrl:1",
         "row_shr:4 row_mask:0xf bank_mask:0xf bound_ctrl:1", "row_shr:8 row_mask:0xf bank_mask:0xf bound_ctrl:1",
         "row_bcast:15 row_mask:0xa bank_mask:0xf", "row_bcast:31 row_mask:0xc bank_mask:0xf"]
def scan(v, fill=None):
    fill = list(fill or [])
    for m in SCANM:
        k = 0
        while k < 2 and fill:
            A(fill.pop(0)); k += 1
        if k < 2: A(f"s_nop {1-k}")
        A(f"v_add_u32_dpp v{v}, v{v}, v{v} {m}")
    AA(fill)
def stamp(k, real=False):
    if not DIAG: return
    A("s_memrealtime s[98:99]" if real else "s_memtime s[98:99]")
    A("s_waitcnt lgkmcnt(0)")
    A(f"v_writelane_b32 v255, s98, {k}")
def note(sreg, k):
    if DIAG: A(f"v_writelane_b32 v255, s{sreg}, {k}")

LIST, QD = 0, 16384
HIST2 = QD + 8256; FLAGS = HIST2 + 256; BASE2 = FLAGS + 16; NONCE = BASE2 + 256; W3 = NONCE + 16
H1 = W3 + 128; BASE1 = H1 + 1024
R2 = H1 + 2048
STG = R2; TOT = R2; TP = 272; AGS = TOT + 64*TP; XP = 144
ROWS, RP = R2 + 16768 + 8192 + 4192, 1168 - 128
NROW = 50; oSB, oN, oD, oS = 256, 512, 768, 1024
XS = (ROWS + NROW*RP + 255) // 256 * 256; AST = XS + 8192; WM = AST + 8192; WU = WM + 16384
LDSZ = WU + 16384
assert H1 % 16 == 0 and ROWS % 16 == 0 and ROWS < 65536 and LDSZ <= 163840, LDSZ
SN = R2 + 16768 + 8192
TAB = R2 + 16768

SID, AGG, LP = 1, 2, 10
PF_ = [12, 13]; AI = 14; QA = 15; FLV = 16; IP = [18, 20]; DSC = 22; NPAD = 24; LANE = 25
EA = 26; CB = 34
S, SX, W, Nn, Dd, U, WF2 = 50, 54, 58, 66, 74, 82, 90
LP2 = 56
G = [106, 122]; T = [138, 154]; EX = 170
OUTO, AGW, ROWL, KP = 236, 237, 238, 239
GA, GQ, GD, TW = 240, 241, 242, 243
TOTW, CRA, AGR, T16, ENA, ENB, RCA, RCB, L4, ZERO = range(244, 254)
FLA, PFA = 228, 229
DST, SRC, EE, BK, RK1, BSV = 106, 114, 122, 126, 138, 146
PUB = 154
WMK = 162
XA, WA, WA2, AW, WG_, TLA = 170, 172, 174, 176, 177, 178
C4 = 180
AG, AR, BWA, AGR0 = 166, 167, 168, 169
XF, WF = 186, 194
HH, BB = 210, 214
t = 218
sWS, sA, sOUT = 8, 12, 16
pX, pE, pSRC, pDST, pWM, pWU, pOUT, pDBG = 20, 22, 24, 26, 28, 30, 32, 34
M0_, M1_, MA_ = 36, 38, 40
mLN, mON = 36, 38
MK = 48
def mk(k): return sr(MK+2*k, 2) if k < 16 else sr(26+2*(k-16), 2)
sLB, sWID, sHI, sSAFE, sT, sREDO, sSTART, sMORE, sCNT, sTAG = range(80, 90)
sNL = 90; sI0 = 92; sT0 = 94; sR = 95; sTM = 96; sRARE = 97; mMORE = 100; sFIRST = 0; sOUTS = 1
TMASK = 0xff030303

def table():
    rows = [[0]*4*64 for _ in range(8)]
    for l in range(64):
        j = l & 7; h = l >> 5; g4 = (l >> 3) & 3; l15 = l & 15; g = l >> 4; r = (l >> 2) & 3; c = l & 3
        v = [0]*32
        m = l & 31; hp = (m >> 2) & 1; q = m >> 4; jh = (m >> 3) & 1; i = m & 3
        if h == hp: v[2*q + jh] = 0x3f80 << (16*(i & 1))
        v[4] = 0xeeee if i >> 1 else 0x4444
        v[5] = 0xffffffff if h == q else 0
        v[6] = (4*h + c)*32
        v[16] = XS + l15*128 + ((g ^ j) << 4)
        v[17] = WM + (8*g + r)*128 + (((c >> 1) ^ ((r & 2) | ((g & 1) << 2))) << 4) + (c & 1)*8
        v[18] = WU + 8192 + (4*g + r)*128 + (((c >> 1) ^ ((r & 2) | ((g >> 1) << 2))) << 4) + (c & 1)*8
        v[19] = 2*(32*hp + 16*jh + i)
        v[20] = (l >> 2)*128 + c*16
        v[21] = AST + (v[20] ^ (((l >> 2) & 7) << 4))
        v[22] = ROWS + l15*RP + g*32
        v[23] = l15*XP + g*16
        v[24] = l15*128 + (g & 1)*32 + (g >> 1)*16
        v[25] = l*XP
        v[26] = ROWS + l*RP
        v[27] = 3*j
        v[28] = m >> 2
        v[29] = 4*h
        v[30] = (m >> 2)*TP + v[6]
        v[31] = 0x85ebca6b if l & 1 else 0x9e3779b1
        for k in range(32): rows[k >> 2][4*l + (k & 3)] = v[k]
    o = []
    for rw in rows:
        for i in range(0, 256, 8): o.append(".long " + ", ".join(f"{x:#x}" for x in rw[i:i+8]))
    return o

def prefill_small():
    A(f"ds_write_b32 v{L4}, v{ZERO} offset:{HIST2}")
    A(f"ds_write_b32 v{L4}, v{ZERO} offset:{HIST2+16}")
def prefill_big(r):
    A(f"v_mov_b32 v{r}, {N}")
    A(f"v_mov_b32 v{r+1}, {N}")
    A(f"v_mov_b64 {vr(r+2,2)}, {vr(r,2)}")
    A(f"ds_write_b128 v{T16}, {vr(r,4)} offset:{LIST}")
    A(f"ds_write_b128 v{T16}, {vr(r,4)} offset:{LIST+8192}")
    A(f"v_mov_b32 v{r+4}, {ROWS + 49*RP}")
    A(f"v_mov_b32 v{r+5}, {BIG:#x}")
    A(f"v_mov_b64 {vr(r+6,2)}, {vr(r+4,2)}")
    A(f"ds_write_b128 v{T16}, {vr(r+4,4)} offset:{QD}")
    A("s_mov_b64 exec, 15")
    A(f"ds_write_b128 v{IP[0]+1}, {vr(r+4,4)} offset:{QD+8192}")
    A("s_mov_b64 exec, -1")
def bound():
    A(f"s_add_u32 s{sCNT}, s{sCNT}, 1")
    A(f"s_cmp_ge_u32 s{sCNT}, 0x8000")
    A("s_cbranch_scc1 L_END")
def wfrags(dst, areg, off, tstep):
    return [f"ds_read_b64_tr_b16 {vr(dst+8*cb+4*ks+2*tt,2)}, v{areg+cb} offset:{off + 4096*ks + tstep*tt}"
            for cb in range(2) for ks in range(2) for tt in range(2)]
def mm(dst, wf):
    return [f"v_mfma_f32_16x16x32_bf16 {vr(dst+4*cb,4)}, {vr(wf+8*cb+4*ks,4)}, {vr(XF+4*ks,4)}, {'0' if ks == 0 else vr(dst+4*cb,4)}"
            for ks in range(2) for cb in range(2)]
def pk(op, d, a, b, n=8, tail=""):
    f = lambda x, q: vr(x+q,2) if isinstance(x, int) else x
    return [f"{op} {vr(d+q,2)}, {f(a,q)}, {f(b,q)}{tail}" for q in range(0, n, 2)]

def kernel():
    L.append(f".globl {KN}\n.p2align 8\n.type {KN},@function")
    LB(KN)
    A("s_cmpk_ge_u32 s2, 256")
    A("s_cbranch_scc1 L_END")
    A("s_load_dwordx16 s[20:35], s[0:1], 0")
    A("s_load_dwordx2 s[8:9], s[0:1], 64")
    A("s_memrealtime s[46:47]")
    A("s_getpc_b64 s[48:49]")
    LB("L_PC")
    A(f"v_lshrrev_b32 v{t}, 6, v0")
    C("pull the code into L2 early: one 128-B line per wave")
    A("s_and_b32 s50, s2, 0x78")
    A(f"v_add_lshl_u32 v{t+6}, v{t}, s50, 7")
    A(f"v_readfirstlane_b32 s3, v{t}")
    A(f"global_load_dword v254, v{t+6}, s[48:49]")
    C("lane-constant table -> LDS (1 KB per wave)")
    A(f"v_lshlrev_b32 v{T16}, 4, v0")
    A("s_lshl_b32 s51, s3, 10")
    A(f"s_add_u32 m0, s51, {TAB}")
    A("s_add_u32 s48, s48, L_TAB-L_PC")
    A("s_addc_u32 s49, s49, 0")
    A(f"global_load_lds_dwordx4 v{T16}, s[48:49]")
    A(f"v_and_b32 v{LANE}, 63, v0")
    A(f"v_lshlrev_b32 v{t+3}, 2, v0")
    A(f"v_mov_b32 v{ZERO}, 0")
    A(f"ds_write_b32 v{t+3}, v{ZERO} offset:{H1}")
    A(f"s_mul_i32 s42, s2, {CH//4}")
    A(f"v_mad_u32_u24 v{t+1}, v{t}, {NPB}, v{LANE}")
    A("s_mov_b32 exec_hi, 0x1ffff")
    A(f"v_add_lshl_u32 v{t+2}, v{t+1}, s42, 3")
    A(f"v_cmp_gt_u32 vcc, {2*(E - CH//2)}, v{t+2}")
    A(f"v_lshlrev_b32 v{t+1}, 1, v{t+2}")
    A(f"s_mov_b64 {sr(M1_,2)}, vcc")
    A(f"v_add_u32 v{t+1}, {CH}, v{t+1}")
    A(f"v_cmpx_gt_u32 vcc, {2*E}, v{t+2}")
    if DIAG:
        stamp(30, real=True); stamp(29)
    A("s_waitcnt lgkmcnt(0)")
    A(f"global_load_dwordx4 {vr(DST,4)}, v{t+1}, {sr(pDST,2)} offset:{-CH}")
    A(f"s_mov_b64 exec, {sr(M1_,2)}")
    A(f"global_load_dwordx4 {vr(DST+4,4)}, v{t+1}, {sr(pDST,2)} offset:{CH}")
    A("s_barrier")
    A(f"global_load_dwordx4 {vr(SRC+4,4)}, v{t+1}, {sr(pSRC,2)} offset:{CH}")
    A(f"global_load_dwordx2 {vr(EE+2,2)}, v{t+2}, {sr(pE,2)} offset:{CH}")
    A("s_mov_b64 exec, vcc")
    A(f"global_load_dwordx4 {vr(SRC,4)}, v{t+1}, {sr(pSRC,2)} offset:{-CH}")
    A(f"global_load_dwordx2 {vr(EE,2)}, v{t+2}, {sr(pE,2)}")
    A(f"s_mov_b64 {sr(M0_,2)}, vcc")
    C("launch-unique tag: written by WG 0 / wave 0 (lane mask empty everywhere else)")
    A("s_bitset1_b32 s46, 31")
    A("s_or_b32 s43, s2, s3")
    A("s_cselect_b64 exec, 0, 1")
    A(f"v_mov_b32 v{t+5}, s46")
    A(f"global_store_dword v{ZERO}, v{t+5}, {sr(pDBG,2)} sc1")
    A("s_mov_b64 exec, -1")
    stamp(0)
    A("s_mov_b32 s42, s51")
    A("s_and_b32 s4, s2, 7")
    A("s_lshl_b32 s4, s4, 5")
    A("s_lshr_b32 s7, s2, 3")
    A("s_add_u32 s4, s4, s7")
    A(f"s_mul_i32 s5, s4, {NPB}")
    row = t+9
    A(f"v_lshrrev_b32 v{row}, 3, v0")
    A(f"v_lshlrev_b32 v{L4}, 2, v{LANE}")
    A(f"v_lshlrev_b32 v{t+4}, 4, v{LANE}")
    prefill_small()
    A(f"ds_write_b32 v{ZERO}, v{ZERO} offset:{NONCE+4}")
    A(f"s_mov_b32 s10, {WS_REC:#x}")
    A("s_mov_b32 s11, 0x20000")
    A("s_mov_b32 s12, s8")
    A(f"s_or_b32 s13, s9, {128 << 16:#x}")
    A(f"s_mov_b32 s14, {(N+1)*128}")
    A("s_mov_b32 s15, 0x20000")
    A(f"s_mov_b32 s16, s{pOUT}")
    A(f"s_mov_b32 s17, s{pOUT+1}")
    A(f"s_mov_b32 s18, {N*128}")
    A("s_mov_b32 s19, 0x20000")
    A(f"v_and_b32 v{FLA}, 0x1f0, v{T16}")
    A("s_lshl_b32 s44, s3, 9")
    A(f"s_add_u32 s44, s44, {FL2:#x}")
    A(f"v_add_u32 v{FLA}, s44, v{FLA}")
    A("s_mul_i32 s44, s7, 392")
    A(f"s_mul_i32 s45, s3, {NPB}")
    A("s_add_u32 s44, s44, s45")
    A(f"v_add_lshl_u32 v{PFA}, v{LANE}, s44, 7")
    for q in range(0, 4, 2): A(f"v_mov_b64 {vr(EA+q,2)}, 0")
    for q in range(0, 8, 2): A(f"v_mov_b64 {vr(AGG+q,2)}, 0")
    A(f"s_mov_b32 s{sI0}, 32")
    A(f"s_mov_b32 s{sI0+1}, 16")
    A(f"s_sub_u32 s6, {N}, s5")
    A(f"s_min_u32 s6, s6, {NPB}")
    A(f"v_and_b32 v{LP}, 0x70, v{T16}")
    A("s_lshl_b32 s54, s3, 6")
    A(f"s_add_u32 s54, s54, 16384")
    A(f"v_add_u32 v{TLA}, s54, v{t+4}")
    A(f"s_mul_i32 s43, s2, {CHB}")
    A(f"s_add_u32 s43, s43, {REC:#x}")
    A("s_add_u32 s55, s43, 8192")
    A("s_cmp_lt_u32 s3, 6")
    A("s_cselect_b32 s56, 15, 0")
    A("s_lshl_b32 s57, s2, 11")
    A(f"s_add_u32 s57, s57, {OFFS:#x}")
    A("s_lshr_b32 s47, s4, 2")
    A("s_lshl_b32 s47, s47, 1")
    A("s_and_b32 s46, s4, 1")
    A("s_add_u32 s47, s47, s46")
    A("s_and_b32 s46, s4, 2")
    A("s_lshl_b32 s46, s46, 6")
    A("s_add_u32 s47, s47, s46")
    A("s_lshl_b32 s47, s47, 3")
    A(f"s_add_u32 s47, s47, {OFFS:#x}")
    A(f"v_lshrrev_b32 v{t+8}, 1, v0")
    A(f"v_lshl_add_u32 v{ENB}, v{t+8}, 11, s47")
    A(f"s_movk_i32 s46, {CHB}")
    A(f"v_and_b32 v{t+7}, 16, v{T16}")
    A(f"v_mad_u32_u24 v{RCB}, v{t+8}, s46, v{t+7}")
    A(f"s_mov_b32 s46, {4*CHB}")
    A(f"v_mad_u32_u24 v{RCA}, v{row}, s46, v{LP}")
    A(f"v_and_b32 v{ENA}, 0xe0, v{L4}")
    A("s_lshr_b32 s44, s3, 1")
    A("s_and_b32 s45, s3, 1")
    A("s_lshl_b32 s45, s45, 6")
    A("s_lshl_b32 s58, s44, 11")
    A("s_add_u32 s59, s58, s45")
    A(f"s_mul_i32 s60, s44, {16*RP}")
    A("s_lshl1_add_u32 s60, s45, s60")
    A(f"s_mul_i32 s61, s44, {16*XP}")
    A("s_lshl_b32 s44, s44, 4")
    A("s_sub_i32 s62, s6, s44")
    A("s_lshl_b32 s63, s62, 2")
    A(f"v_cmp_gt_i32 {sr(MA_,2)}, s63, v{LANE}")
    A(f"s_sub_i32 s63, {NROW}, s44")
    A(f"s_mov_b32 s{sNL}, {NLOG2E:#x}")
    A(f"s_mov_b32 s{sNL+1}, s{sNL}")
    A(f"v_xor_b32 v{t+7}, v{row}, v0")
    A(f"v_and_b32 v{t+7}, 7, v{t+7}")
    A(f"v_add_u32 v{t+8}, s5, v{row}")
    A(f"v_min_u32 v{t+8}, {N-1}, v{t+8}")
    A(f"v_lshlrev_b32 v{t+8}, 3, v{t+8}")
    A(f"s_add_u32 m0, s42, {XS}")
    A(f"v_add_lshl_u32 v{t+8}, v{t+8}, v{t+7}, 4")
    A(f"v_lshrrev_b32 v{t+7}, 1, v{row}")
    A(f"global_load_lds_dwordx4 v{t+8}, {sr(pX,2)}")
    A(f"v_and_b32 v{t+7}, 4, v{t+7}")
    A(f"v_and_or_b32 v{t+7}, v{row}, 2, v{t+7}")
    A(f"s_add_u32 m0, s42, {WM}")
    A(f"v_xor_b32 v{t+7}, v{t+7}, v0")
    A(f"v_lshlrev_b32 v{WG_}, 4, v{t+7}")
    A(f"global_load_lds_dwordx4 v{WG_}, {sr(pWM,2)}")
    A(f"s_mov_b32 s46, {(2**32 + 48)//49}")
    A("s_movk_i32 s47, -49")
    A(f"v_mov_b32 v{t}, 1")
    stamp(1)
    for h in range(2):
        A(f"s_mov_b64 exec, {sr(M0_+2*h,2)}")
        A(f"s_waitcnt vmcnt({8-h})")
        if h == 0: stamp(2)
        for i in range(4*h, 4*h+4): A(f"v_mul_hi_u32 v{BK+i}, v{DST+i}, s46")
        for i in range(4*h, 4*h+4):
            A(f"v_lshlrev_b32 v{BK+i}, 2, v{BK+i}")
            A(f"ds_add_rtn_u32 v{RK1+i}, v{BK+i}, v{t} offset:{H1}")
    A("s_mov_b64 exec, -1")
    for i in range(8): A(f"v_lshlrev_b32 v{DST+i}, 2, v{DST+i}")
    A("s_waitcnt lgkmcnt(0)")
    A("s_barrier")
    stamp(3)
    A(f"ds_read_b128 {vr(HH,4)}, v{t+4} offset:{H1}")
    A(f"s_mov_b32 s{sLB}, 24")
    A(f"s_mov_b32 s{sWID}, 36")
    A(f"s_mov_b32 s{sHI}, 36")
    A("s_mov_b32 s46, 0x55555556")
    A("s_waitcnt lgkmcnt(0)")
    A(f"v_add3_u32 v{t+1}, v{HH}, v{HH+1}, v{HH+2}")
    A(f"v_add_u32 v{t+2}, v{t+1}, v{HH+3}")
    A(f"v_mov_b32 v{t+3}, v{t+2}")
    scan(t+3, [f"v_mad_i32_i24 v{DST+i}, v{BK+i}, s47, v{DST+i}" for i in range(8)] +
              [f"v_and_b32 v{IP[0]+1}, 0x30, v{T16}", f"v_and_b32 v{IP[1]+1}, 0x30, v{T16}", "s_mov_b32 s47, 0x2aaaaaab"])
    A(f"v_sub_u32 v{BB}, v{t+3}, v{t+2}")
    A(f"v_add_u32 v{BB+1}, v{BB}, v{HH}")
    A(f"v_add_u32 v{BB+2}, v{BB+1}, v{HH+1}")
    A(f"v_add_u32 v{BB+3}, v{BB}, v{t+1}")
    A(f"ds_write_b128 v{t+4}, {vr(BB,4)} offset:{BASE1}")
    for h in range(2):
        A(f"s_mov_b64 exec, {sr(M0_+2*h,2)}")
        for i in range(4*h, 4*h+4): A(f"ds_read_b32 v{BSV+i}, v{BK+i} offset:{BASE1}")
    A("s_cmp_eq_u32 s3, 0")
    A("s_cselect_b64 exec, -1, 0")
    A(f"global_load_dword v{PUB+1}, v{ZERO}, {sr(pDBG,2)} sc1")
    def late_dma():
        A(f"s_add_u32 s48, s{pWM}, 8192")
        A(f"s_addc_u32 s49, s{pWM+1}, 0")
        A(f"s_add_u32 m0, s42, {WM+8192}")
        A(f"s_add_u32 s50, s{pWU}, 8192")
        A(f"global_load_lds_dwordx4 v{WG_}, s[48:49]")
        A(f"s_addc_u32 s51, s{pWU+1}, 0")
        A(f"s_add_u32 m0, s42, {WU}")
        A(f"s_add_u32 s52, s{pWM}, 16384")
        A(f"global_load_lds_dwordx4 v{WG_}, {sr(pWU,2)}")
        A(f"s_addc_u32 s53, s{pWM+1}, 0")
        A(f"s_add_u32 m0, s42, {WU+8192}")
        A(f"s_mov_b32 s{sCNT}, 0")
        A(f"global_load_lds_dwordx4 v{WG_}, s[50:51]")
        A(f"s_mov_b32 m0, {W3}")
        A("s_mov_b32 exec_hi, 0")
        A(f"global_load_lds_dword v{L4}, s[52:53]")
        A("s_mov_b64 exec, -1")
    A("s_mov_b64 exec, -1")
    late_dma()
    C("record p lives in piece p/3: word at 4(p + p/3), node byte at p + p/3 of a separate array")
    for h in range(2):
        A(f"s_mov_b64 exec, {sr(M0_+2*h,2)}")
        A("s_waitcnt lgkmcnt(4)")
        for i in range(4*h, 4*h+4): A(f"v_add_u32 v{BSV+i}, v{BSV+i}, v{RK1+i}")
        for i in range(4*h, 4*h+4): A(f"v_mul_hi_u32 v{RK1+i}, v{BSV+i}, s46")
        for i in range(4*h, 4*h+4):
            A(f"v_add_u32 v{BK+i}, v{RK1+i}, v{BSV+i}")
            A(f"ds_write_b8 v{BK+i}, v{DST+i} offset:{SN}")
    A("s_mov_b64 exec, -1")
    for i in range(8): A(f"v_lshlrev_b32 v{BSV+i}, 2, v{BK+i}")
    stamp(4)
    A("s_mov_b32 s46, 0xffff0000")
    stamp(24)
    for h in (1, 0):
        A(f"s_mov_b64 exec, {sr(M0_+2*h,2)}")
        A(f"s_waitcnt vmcnt({10 if h else 8})")
        for q in range(2*h, 2*h+2):
            A(f"v_lshl_or_b32 v{SRC+2*q}, v{EE+q}, 16, v{SRC+2*q}")
            A(f"ds_write_b32 v{BSV+2*q}, v{SRC+2*q} offset:{STG}")
            A(f"v_and_or_b32 v{SRC+2*q+1}, v{EE+q}, s46, v{SRC+2*q+1}")
            A(f"ds_write_b32 v{BSV+2*q+1}, v{SRC+2*q+1} offset:{STG}")
    A("s_mov_b64 exec, -1")
    A(f"v_lshlrev_b32 v{t+1}, 2, v0")
    A(f"v_add_u32 v{t+1}, {SN}, v{t+1}")
    A(f"v_lshrrev_b32 v{t+2}, 2, v{TLA}")
    A("s_cmp_lg_u32 s3, 0")
    A("s_waitcnt vmcnt(0)")
    A("s_cbranch_scc1 L_PUBD")
    for i in range(4): A(f"v_mul_hi_u32 v{PUB+2*i}, v{BB+i}, s47")
    for i in range(4): A(f"v_mad_u32_u24 v{PUB+2*i}, v{PUB+2*i}, 26, v{BB+i}")
    for i in range(4): A(f"v_lshl_or_b32 v{PUB+2*i}, v{HH+i}, 16, v{PUB+2*i}")
    LB("L_PUB")
    A(f"v_cmp_eq_u32 vcc, 0, v{PUB+1}")
    A("s_cbranch_vccnz L_NONCEW")
    A(f"ds_write_b32 v{ZERO}, v{PUB+1} offset:{NONCE}")
    for i in range(1,4): A(f"v_mov_b32 v{PUB+1+2*i}, v{PUB+1}")
    A(f"buffer_store_dwordx4 {vr(PUB,4)}, v{T16}, {sr(sWS,4)}, s57 offen sc1")
    A(f"buffer_store_dwordx4 {vr(PUB+4,4)}, v{T16}, {sr(sWS,4)}, s57 offen offset:1024 sc1")
    LB("L_PUBD")
    A("s_waitcnt lgkmcnt(0)")
    A("s_barrier")
    stamp(5)
    A(f"ds_read_b32 v{t+5}, v{ZERO} offset:{NONCE}")
    A(f"ds_read_b128 {vr(GA,4)}, v{t+4} offset:{TAB+7*1024}")
    A(f"ds_read2st64_b32 v[118:119], v{t+1} offset0:0 offset1:8")
    for r in range(2): A(f"ds_read_b128 {vr(106+4*r,4)}, v{T16} offset:{STG+8192*r}")
    A(f"ds_read_b32 v120, v{t+2} offset:{SN}")
    A(f"ds_read_b128 v[114:117], v{TLA} offset:{STG}")
    A(f"ds_read_b128 {vr(C4,4)}, v{t+4} offset:{TAB+4*1024}")
    A(f"ds_read_b128 {vr(AG,4)}, v{t+4} offset:{TAB+5*1024}")
    A(f"s_mov_b32 s46, {~TMASK & 0xffffffff:#x}")
    A("s_waitcnt lgkmcnt(7)")
    A(f"v_mul_lo_u32 v{TW}, v{TW}, v{t+5}")
    A(f"v_readfirstlane_b32 s{sTAG}, v{t+5}")
    A(f"v_and_b32 v{TW}, {TMASK:#x}, v{TW}")
    for r in range(2):
        A(f"s_waitcnt lgkmcnt({5-r})")
        A(f"v_and_or_b32 v{109+4*r}, v{118+r}, s46, v{TW}")
        A(f"buffer_store_dwordx4 {vr(106+4*r,4)}, v{T16}, {sr(sWS,4)}, s{[43,55][r]} offen sc1")
    A("s_mov_b32 exec_lo, s56")
    A("s_mov_b32 exec_hi, 0")
    A("s_waitcnt lgkmcnt(2)")
    A(f"v_and_or_b32 v117, v120, s46, v{TW}")
    A(f"buffer_store_dwordx4 v[114:117], v{TLA}, {sr(sWS,4)}, s43 offen sc1")
    A("s_mov_b64 exec, -1")
    stamp(6)
    C("---- A' rows")
    A("s_waitcnt lgkmcnt(0)")
    A(f"v_add_u32 v{XA}, s58, v{C4}")
    A(f"v_xor_b32 v{XA+1}, 64, v{XA}")
    A(f"v_xor_b32 v{WA}, s45, v{C4+1}")
    A(f"v_xor_b32 v{WA+1}, 32, v{WA}")
    A(f"ds_read_b128 {vr(XF,4)}, v{XA}")
    A(f"ds_read_b128 {vr(XF+4,4)}, v{XA+1}")
    AA(wfrags(WF, WA, 0, 512))
    A(f"v_xor_b32 v{AW}, s45, v{XA}")
    A(f"v_add_u32 v{AG}, s59, v{AG}")
    A(f"v_add_u32 v{AR}, s58, v{AR}")
    A(f"v_xor_b32 v{AR}, s45, v{AR}")
    A(f"v_add_u32 v{BWA}, s60, v{BWA}")
    A(f"v_add_u32 v{AGR}, s61, v{AGR0}")
    A(f"v_xor_b32 v{WA2}, s45, v{C4+2}")
    A(f"v_xor_b32 v{WA2+1}, 32, v{WA2}")
    A("s_waitcnt lgkmcnt(0)")
    AA(mm(126, WF))
    AA(wfrags(138, WA, 8192, 512))
    AA(pk("v_pk_mul_f32", 126, 126, sr(sNL,2)))
    for q in range(4): A(f"v_cvt_pk_bf16_f32 v{134+q}, v{126+2*q}, v{127+2*q}")
    A(f"ds_write_b128 v{AW}, v[134:137] offset:{AST-XS}")
    A(f"ds_read_b128 v[118:121], v{AR}")
    C("all-zero pad row (index N): written by the last workgroup")
    A("s_cmpk_eq_u32 s2, 255")
    A("s_waitcnt lgkmcnt(2)")
    AA(mm(122, 138))
    A("s_cselect_b32 exec_lo, -1, 0")
    A("s_mov_b32 exec_hi, 0")
    A(f"s_mov_b32 s44, {N*128}")
    A(f"buffer_store_dword v{ZERO}, v{L4}, {sr(sWS,4)}, s44 offen sc1")
    A("s_lshl_b32 s44, s5, 7")
    A(f"s_mov_b64 exec, {sr(MA_,2)}")
    A("s_waitcnt lgkmcnt(0)")
    A(f"buffer_store_dwordx4 v[118:121], v{AG}, {sr(sWS,4)}, s44 offen sc1")
    A("s_mov_b64 exec, -1")
    OF = 106
    def entry_load(): A(f"buffer_load_dwordx2 {vr(OF+4,2)}, v{ENB}, {sr(sWS,4)}, 0 offen sc1")
    C("---- B', S_B, U (while the stores drain)")
    A(f"s_add_u32 s{sOUTS}, s44, s59")
    AA(pk("v_pk_mul_f32", 122, 122, sr(sNL,2)))
    for q in range(8): A(f"v_exp_f32 v{210+q}, v{122+q}")
    AA(pk("v_pk_add_f32", 210, 210, "1.0", tail=" op_sel_hi:[1,0]"))
    if "ent1" not in OPT: entry_load()
    for k, d in ((0, S), (1, SX), (6, OUTO)): A(f"ds_read_b128 {vr(d,4)}, v{t+4} offset:{TAB+k*1024}")
    for q in range(0, 4, 2): A(f"v_mov_b64 {vr(130+q,2)}, 0")
    for q in range(4): A(f"ds_read_u16_d16_hi v{130+q}, v{C4+3} offset:{W3 + 8*q}")
    for q in range(8): A(f"v_rcp_f32 v{210+q}, v{210+q}")
    A(f"v_and_b32 v{t+7}, 15, v0")
    A(f"v_cmp_gt_i32 {sr(mON,2)}, s62, v{t+7}")
    AA(pk("v_pk_mul_f32", 210, 122, 210))
    A(f"v_cmpx_gt_i32 vcc, s63, v{t+7}")
    A(f"ds_write_b128 v{BWA}, v[122:125]")
    A(f"ds_write_b128 v{BWA}, v[126:129] offset:16")
    A(f"ds_write_b128 v{BWA}, v[210:213] offset:{oSB}")
    A(f"ds_write_b128 v{BWA}, v[214:217] offset:{oSB+16}")
    A("s_mov_b64 exec, -1")
    if "ent1" in OPT: entry_load()
    RK, RW, ND = 186, 138, 112
    A(f"s_mov_b32 s{sSAFE}, 0")
    A(f"s_mov_b32 s{sFIRST}, 1")
    A(f"v_mov_b32 v{t+6}, s{sTAG}")
    A(f"v_not_b32 v{t+7}, v{t+6}")
    A("s_lshl_b32 s47, s2, 4")
    A(f"s_add_u32 s47, s47, {FL2:#x}")
    for q in range(6): A(f"v_mov_b32 v{RW+4*q+3}, v{TW}")
    A("s_mov_b32 s46, 0xf0008018")
    stamp(7)
    C("the wave that is last to see its stores acknowledged publishes this workgroup's table flag")
    A("s_mov_b64 exec, 1")
    A("s_waitcnt vmcnt(1)")
    A(f"ds_add_rtn_u32 v{t}, v{ZERO}, v{t} offset:{NONCE+4}")
    A("s_waitcnt lgkmcnt(0)")
    A(f"v_cmpx_eq_u32 vcc, 7, v{t}")
    A(f"buffer_store_dwordx2 {vr(t+6,2)}, off, {sr(sWS,4)}, s47 sc1")
    A("s_mov_b64 exec, -1")
    stamp(26)
    A(f"s_waitcnt vmcnt(1)")
    LB("L_ENT")
    for i in range(4): A(f"ds_bpermute_b32 v{OF+i}, v{ENA}, v{OF+4} offset:{8*i}")
    A(f"v_xor_b32 v{OF+5}, s{sTAG}, v{OF+5}")
    A(f"v_and_or_b32 v{OF+5}, v{OF+4}, s46, v{OF+5}")
    A(f"v_cmp_ne_u32 vcc, 0, v{OF+5}")
    A(f"v_and_b32 v{t+8}, 1, v0")
    A("s_cbranch_vccnz L_ENTR")
    stamp(8)
    note(sCNT, 20)
    A(f"v_mul_u32_u24 v{t+8}, 3, v{t+8}")
    A(f"s_mov_b32 s{sCNT}, 0")
    LB("L_LOADS")
    A(f"s_mov_b32 s46, {REC:#x}")
    for i in range(4):
        lo = OF+i
        A(f"s_waitcnt lgkmcnt({3-i})")
        A(f"v_and_b32 v{t+1}, 7, v{lo}")
        A(f"v_and_b32 v{t+2}, 0x7fe0, v{lo}")
        A(f"v_sub_u32 v{ND+i}, v{KP}, v{t+1}")
        A(f"v_add_u32 v{t+2}, v{t+2}, v{RCA}")
        A(f"v_sub_u32 v{t+1}, v{ND+i}, v{t+8}")
        A(f"v_cmpx_lt_i32_sdwa vcc, v{t+1}, v{lo} src0_sel:DWORD src1_sel:WORD_1")
        if i == 0: stamp(9)
        A(f"buffer_load_dwordx4 {vr(RW+4*i,4)}, v{t+2}, {sr(sWS,4)}, s46 offen sc1")
        A("s_mov_b64 exec, -1")
        if i < 3: A(f"s_add_u32 s46, s46, {CHB}")
    lo = OF+4
    A(f"v_and_b32 v{t+1}, 7, v{lo}")
    A(f"v_add_u32_sdwa v{t+1}, v{t+1}, v{lo} dst_sel:DWORD dst_unused:UNUSED_PAD src0_sel:DWORD src1_sel:WORD_1")
    A(f"s_mov_b32 s{sRARE}, 0")
    A(f"v_cmp_lt_u32 {sr(mMORE,2)}, s{sHI}, v{t+1}")
    A(f"v_cmpx_lt_u32 vcc, s{sLB}, v{t+1}")
    A("s_cbranch_execz L_NOB")
    A(f"s_mov_b32 s{sRARE}, 1")
    A(f"s_mov_b32 s46, {REC+128:#x}")
    A(f"v_and_b32 v{t+2}, 0x7fe0, v{lo}")
    A(f"v_add_u32 v{t+2}, v{t+2}, v{RCB}")
    A(f"v_subrev_u32 v{t+1}, s{sLB}, v{t+1}")
    A(f"buffer_load_dwordx4 {vr(RW+16,4)}, v{t+2}, {sr(sWS,4)}, s46 offen sc1")
    A(f"v_sub_u32 v{t+3}, v{t+1}, v{t+8}")
    for k in range(6): A(f"v_cmp_lt_i32 {mk(12+k)}, {6*(k//3) + k%3}, v{t+3}")
    A(f"v_cmpx_lt_i32 vcc, 6, v{t+1}")
    A(f"buffer_load_dwordx4 {vr(RW+20,4)}, v{t+2}, {sr(sWS,4)}, s46 offen offset:32 sc1")
    LB("L_NOB")
    A("s_mov_b64 exec, -1")
    stamp(10)
    for i in range(4):
        for r in range(3):
            A(f"v_cmp_lt_u32_sdwa {mk(3*i+r)}, v{ND+i}, v{OF+i} src0_sel:DWORD src1_sel:WORD_1")
            if r < 2: A(f"v_add_u32 v{ND+i}, 1, v{ND+i}")
    A(f"s_cmp_lg_u32 s{sFIRST}, 1")
    A("s_cbranch_scc1 L_HIST")
    A(f"s_mov_b32 s{sFIRST}, 2")
    C("---- remaining constants (in the shadow of the record loads)")
    AA(pk("v_pk_mul_f32", 130, 130, sr(sNL,2), n=4))
    A("v_cvt_pk_bf16_f32 v130, v130, v131")
    A("v_cvt_pk_bf16_f32 v131, v132, v133")
    for u in range(2): A(f"v_and_b32 v{W+u}, v{130+u}, v{SX+1}")
    A(f"s_bfm_b64 {sr(mLN,2)}, s6, 0")
    A("s_lshl_b32 s44, s3, 4")
    A(f"v_add_u32 v{AGW}, s44, v{AGW}")
    A("s_lshl_b32 s44, s3, 5")
    A(f"v_add_u32 v{CRA}, s44, v{ROWL}")
    A(f"s_mul_i32 s44, s3, {8*TP}")
    A(f"v_add_u32 v{TOTW}, s44, v{GD}")
    A("s_mov_b32 s20, 0x11111111")
    A("s_mov_b32 s21, s20")
    A(f"s_mov_b32 s40, {BIG:#x}")
    A("s_mov_b32 s41, s40")
    prefill_big(124)
    LB("L_HIST")
    for q in range(0, 18, 2): A(f"v_mov_b64 {vr(RK+q,2)}, s[40:41]")
    A(f"v_mov_b32 v{t+5}, 4")
    A(f"s_mov_b64 exec, {sr(mMORE,2)}")
    A(f"ds_write_b32 v{ZERO}, v{t+5} offset:{FLAGS}")
    A("s_mov_b64 exec, -1")
    stamp(11)
    A("s_waitcnt vmcnt(0)")
    for q in range(6): A(f"v_xor_b32 v{RW+4*q+3}, v{RW+4*q+3}, v{TW}")
    A(f"v_or3_b32 v{t+3}, v{RW+3}, v{RW+7}, v{RW+11}")
    A(f"v_or3_b32 v{t+2}, v{RW+15}, v{RW+19}, v{RW+23}")
    A(f"v_or_b32 v{t+3}, v{t+3}, v{t+2}")
    A(f"v_and_b32 v{t+3}, {TMASK:#x}, v{t+3}")
    A(f"v_cmp_ne_u32 vcc, 0, v{t+3}")
    nd = lambda k: (ND + 2*(k//3) + k%3) if k % 3 < 2 else RW + 4*(k//3) + 3
    rw = lambda k: RW + 4*(k//3) + k%3
    def extract(q):
        A(f"v_and_b32 v{nd(3*q)}, 0xff, v{RW+4*q+3}")
        A(f"v_bfe_u32 v{nd(3*q+1)}, v{RW+4*q+3}, 8, 8")
        A(f"v_lshrrev_b32 v{RW+4*q+3}, 16, v{RW+4*q+3}")
    def hist(k):
        A(f"s_mov_b64 exec, {mk(k)}")
        A(f"ds_add_rtn_u32 v{RK+k}, v{nd(k)}, v{t+5} offset:{HIST2}")
    A("s_cbranch_vccnz L_HR")
    PA = int(OPT.get("pa", 12)); PB_ = int(OPT.get("pb", 30))
    def pf(a, b):
        m = ((1 << b) - 1) ^ ((1 << a) - 1) if b > a else 0
        A(f"s_mov_b32 exec_lo, {m & 0xffffffff:#x}")
        A(f"s_mov_b32 exec_hi, {m >> 32:#x}")
        A(f"buffer_load_dword v254, v{PFA}, {sr(sWS,4)}, 0 offen sc1")
        A("s_mov_b64 exec, -1")
    if PA: pf(0, PA)
    for q in range(4): extract(q)
    A(f"s_cmp_eq_u32 s{sRARE}, 0")
    A("s_cbranch_scc1 L_RARE1")
    extract(4); extract(5)
    for k in range(12, 18): hist(k)
    LB("L_RARE1")
    for k in range(12): hist(k)
    A("s_mov_b64 exec, -1")
    note(sCNT, 21); stamp(23); note(sRARE, 25)
    A(f"s_cmp_lg_u32 s{sSAFE}, 0")
    A(f"s_cselect_b32 s44, 1.0, {f2u(2.0**-64):#x}")
    A("s_mov_b32 s45, s44")
    A("s_lshl_b32 s46, s3, 4")
    A("s_waitcnt lgkmcnt(0)")
    A("s_barrier")
    stamp(12)
    CNT, PB, INC, BS = t+6, t+7, t+8, t+9
    A(f"ds_read_b32 v{CNT}, v{L4} offset:{HIST2}")
    A(f"buffer_load_dwordx2 {vr(FLV,2)}, v{FLA}, {sr(sWS,4)}, 0 offen sc1")
    pf(PA, PB_)
    A("s_waitcnt lgkmcnt(0)")
    A(f"v_add_u32 v{PB}, 12, v{CNT}")
    A(f"v_and_b32 v{PB}, -16, v{PB}")
    A(f"v_max_u32 v{PB}, 16, v{PB}")
    A(f"v_cndmask_b32 v{PB}, 0, v{PB}, {sr(mLN,2)}")
    A(f"v_mov_b32 v{INC}, v{PB}")
    scan(INC, [f"v_sub_u32 v{NPAD}, v{PB}, v{CNT}", f"s_mov_b32 s{sREDO}, 0"] + [f"v_mov_b64 {vr(Nn+q,2)}, 0" for q in range(0,8,2)] +
              [f"v_mov_b64 {vr(Dd+q,2)}, s[44:45]" for q in range(0,8,2)] +
              [f"v_cvt_f32_u32 v{NPAD}, v{NPAD}", f"v_mul_f32 v{NPAD}, {f2u(-0.25):#x}, v{NPAD}"])
    A(f"v_sub_u32 v{BS}, v{INC}, v{PB}")
    A(f"v_readlane_b32 s44, v{INC}, 63")
    A(f"ds_write_b32 v{L4}, v{BS} offset:{BASE2}")
    def baserd(k): A(f"ds_read_b32 v{nd(k)}, v{nd(k)} offset:{BASE2}")
    def scat(k):
        A(f"v_add_u32 v{RK+k}, v{nd(k)}, v{RK+k}")
        A(f"ds_write_b32 v{RK+k}, v{rw(k)} offset:{LIST}")
    A(f"s_cmp_eq_u32 s{sRARE}, 0")
    A("s_cbranch_scc1 L_RARE2")
    for k in range(12, 18): baserd(k)
    LB("L_RARE2")
    for k in range(12): baserd(k)
    A("s_cmpk_gt_u32 s44, 16384")
    A("s_cbranch_scc1 L_TOOBIG")
    A(f"v_lshrrev_b32 v{t+1}, 1, v{INC}")
    A(f"v_add_u32 v{t+2}, s46, v{BS}")
    A(f"v_lshrrev_b32 v{t+2}, 1, v{t+2}")
    A("s_add_u32 s44, s44, 127")
    A(f"s_lshr_b32 s{sT0}, s44, 10")
    A(f"s_bfe_u32 s{sR}, s44, 0x30007")
    A(f"s_mul_i32 s44, s{sT0}, s3")
    A(f"s_min_u32 s47, s{sR}, s3")
    A(f"s_add_u32 s{sSTART}, s44, s47")
    A(f"s_cmp_lt_u32 s3, s{sR}")
    A(f"s_addc_u32 s{sT}, s{sT0}, 0")
    def streams():
        A(f"s_lshl_b32 s44, s{sT}, 4")
        A(f"s_lshl_b32 s45, s{sSTART}, 7")
        A(f"v_mul_u32_u24 v{QA}, s44, v{GA}")
        A(f"v_add3_u32 v{AI}, v{QA}, v{GQ}, s45")
        A(f"s_add_u32 s45, s45, {2*QD}")
        A(f"v_add_u32 v{QA}, s45, v{QA}")
        A(f"v_lshrrev_b32 v{QA}, 1, v{QA}")
    streams()
    for k in range(12):
        if k % 2 == 0: A("s_waitcnt lgkmcnt(10)")
        scat(k)
    A(f"s_cmp_eq_u32 s{sRARE}, 0")
    A("s_cbranch_scc1 L_RARE3")
    for k in range(12, 18): scat(k)
    LB("L_RARE3")
    A(f"s_mov_b64 exec, {sr(mLN,2)}")
    A(f"ds_write_b32 v{t+1}, v{ROWL} offset:{QD-4}")
    LB("L_QD")
    for q in range(3):
        A(f"v_cmpx_lt_u32 vcc, s46, v{PB}")
        A("s_add_u32 s46, s46, 128")
        A(f"ds_write_b32 v{t+2}, v{ROWL} offset:{QD+64*q}")
    A(f"v_cmpx_lt_u32 vcc, s46, v{PB}")
    A(f"v_add_u32 v{t+2}, 192, v{t+2}")
    A("s_cbranch_execnz L_QD")
    A("s_mov_b64 exec, -1")
    A(f"s_not_b32 s45, s{sTAG}")
    A("s_waitcnt vmcnt(1)")
    LB("L_FC")
    A(f"v_xor_b32 v{FLV}, s{sTAG}, v{FLV}")
    A(f"v_xor_b32 v{FLV+1}, s45, v{FLV+1}")
    A(f"v_or_b32 v{FLV}, v{FLV}, v{FLV+1}")
    A(f"v_cmp_ne_u32 vcc, 0, v{FLV}")
    A("s_cbranch_vccnz L_FR")
    note(sCNT, 22)
    LB("L_MAIN")
    A("s_waitcnt lgkmcnt(0)")
    A("s_barrier")
    A("s_setprio 2")
    stamp(13); stamp(27, real=True)
    def gathers(g_):
        return [f"buffer_load_dwordx4 {vr(G[g_]+8*b+4*u,4)}, {vr(IP[b],2)}, {sr(sA,4)}, 0 idxen offen offset:{64*u}" for u in range(2) for b in range(2)]
    def idx(o):
        return [f"ds_read_u16 v{IP[b]}, v{AI} offset:{LIST+o+8*b}" for b in range(2)]
    def eas(o):
        r = []
        for c in range(4):
            r.append("s_mov_b64 exec, s[20:21]" if c == 0 else "s_lshl_b64 exec, exec, 1")
            r += [f"ds_read_u16{'_d16_hi' if c & 1 else ''} v{EA+2*b+(c>>1)}, v{AI} offset:{LIST+o+8*b+2}" for b in range(2)]
        return r + ["s_mov_b64 exec, -1"]
    def cbs(areg, off):
        return [f"ds_read_b128 {vr(CB+4*k,4)}, v{areg} offset:{off+16*(k&1)}" for k in range(4)]
    AA(idx(0))
    A(f"ds_read_u16 v{t}, v{AI} offset:{LIST+16}")
    A(f"ds_read_u16 v{t+1}, v{AI} offset:{LIST+24}")
    A(f"ds_read_b64 {vr(DSC,2)}, v{QA}")
    A("s_waitcnt lgkmcnt(3)")
    AA(gathers(0))
    A("s_waitcnt lgkmcnt(0)")
    A(f"v_mov_b32 v{IP[0]}, v{t}")
    A(f"v_mov_b32 v{IP[1]}, v{t+1}")
    A(f"v_add_u32 v{DSC}, v{DSC}, v{LP2}")
    A(f"v_add_u32 v{PF_[0]}, v{DSC+1}, v{LP2}")
    if "g1e" in OPT: AA(gathers(1))
    AA(cbs(DSC, 0) + eas(0))
    if "g1e" not in OPT: AA(gathers(1))
    AA(idx(32))
    A(f"s_cmp_lg_u32 s{sREDO}, 0")
    A("s_cbranch_scc1 L_NOSH")
    A(f"ds_read_b128 v[154:157], v{CRA} offset:{oSB}")
    A(f"ds_read_b128 v[158:161], v{CRA} offset:{oSB+16}")
    C("s(n) = stream holding the node's last quad; the node needs the totals of streams s(n-1) .. s(n)-1")
    cn, ta, tb = t+3, t+4, t+5
    A(f"s_add_u32 s44, s{sT0}, 1")
    A(f"v_cvt_f32_u32 v{t}, s44")
    A(f"v_cvt_f32_u32 v{t+1}, s{sT0}")
    A(f"v_lshrrev_b32 v{t+2}, 4, v{INC}")
    A(f"v_rcp_f32 v{t}, v{t}")
    A(f"v_rcp_f32 v{t+1}, v{t+1}")
    A(f"s_lshl_b32 s45, s{sR}, 3")
    A("s_mul_i32 s44, s44, s45")
    A(f"v_cvt_f32_u32 v{cn}, v{t+2}")
    A(f"v_cmp_ge_u32 vcc, s44, v{t+2}")
    A(f"v_subrev_u32 v{t+2}, s44, v{t+2}")
    A(f"v_cvt_f32_i32 v{t+2}, v{t+2}")
    A(f"v_add_f32 v{cn}, -0.5, v{cn}")
    A(f"v_add_f32 v{t+2}, -0.5, v{t+2}")
    A(f"v_mul_f32 v{cn}, v{cn}, v{t}")
    A(f"v_mul_f32 v{t+2}, v{t+2}, v{t+1}")
    A(f"v_cvt_u32_f32 v{cn}, v{cn}")
    A(f"v_cvt_u32_f32 v{t+2}, v{t+2}")
    A(f"v_add_u32 v{t+2}, s45, v{t+2}")
    A(f"v_cndmask_b32 v{cn}, v{t+2}, v{cn}, vcc")
    A(f"v_mul_u32_u24 v{cn}, {TP}, v{cn}")
    A("s_lshl_b32 s46, s3, 5")
    A(f"v_mov_b32 v{t}, {BIG:#x}")
    A(f"v_mov_b32_dpp v{ta}, v{cn} wave_shr:1 row_mask:0xf bank_mask:0xf bound_ctrl:1")
    A(f"v_sub_u32 v{cn}, v{cn}, v{ta}")
    A(f"v_add_u32 v{SID}, s46, v{ta}")
    A(f"v_cmp_lt_i32 s[44:45], 0, v{cn}")
    A(f"v_cmp_lt_i32 vcc, {TP}, v{cn}")
    A("s_nop 0")
    A(f"v_cndmask_b32 v{ta}, v{t}, v{SID}, s[44:45]")
    A(f"v_cndmask_b32 v{tb}, v{t}, v{SID}, vcc")
    A(f"v_cmp_lt_i32 vcc, {2*TP}, v{cn}")
    A("s_waitcnt lgkmcnt(0)")
    for q in range(0,8,2): A(f"v_pk_fma_f32 {vr(AGG+q,2)}, {vr(154+q,2)}, {vr(NPAD,2)}, {vr(AGG+q,2)} op_sel_hi:[1,0,1]")
    A("s_cmp_lg_u64 vcc, 0")
    A(f"s_cselect_b32 s{sTM}, 1, 0")
    A(f"s_cmp_lg_u32 s{sFIRST}, 2")
    A("s_cbranch_scc1 L_NOSH")
    A(f"s_mov_b32 s{sFIRST}, 0")
    A(f"ds_read_b128 {vr(XF,4)}, v{XA}")
    A(f"ds_read_b128 {vr(XF+4,4)}, v{XA+1}")
    AA(wfrags(WF, WA, WU-WM, 512))
    AA(wfrags(WF2, WA2, 0, 2048))
    A("s_waitcnt lgkmcnt(8)")
    AA(mm(U, WF))
    LB("L_NOSH")
    A(f"s_sub_u32 s{sCNT}, s{sT}, 1")
    A("s_cbranch_scc1 L_WEND")
    def mfmas(g_, b):
        d = vr(T[b],16)
        return [f"v_mfma_f32_32x32x8_bf16 {d}, {vr(W,2)}, {vr(EA+2*b,2)}, {vr(CB,16)}",
                f"v_smfmac_f32_32x32x32_bf16 {d}, {vr(S,4)}, {vr(G[g_]+8*b,8)}, v{SX}"]
    def chain(b, safe):
        o = []
        if safe:
            o += pk("v_pk_add_f32", EX, EX, "1.0", n=16, tail=" op_sel_hi:[1,0]")
            o += [f"v_rcp_f32 v{EX+r}, v{EX+r}" for r in range(16)]
            for q in range(2):
                for p in range(4):
                    n = vr(Nn+2*p,2)
                    o.append(f"v_pk_fma_f32 {n}, {vr(T[b]+8*q+2*p,2)}, {vr(EX+8*q+2*p,2)}, {n}")
            return o
        for q in range(2):
            for p in range(4):
                n = vr(Nn+2*p,2); o.append(f"v_pk_fma_f32 {n}, {n}, {vr(EX+8*q+2*p,2)}, {n}")
            for p in range(4):
                n = vr(Nn+2*p,2); o.append(f"v_pk_fma_f32 {n}, {vr(T[b]+8*q+2*p,2)}, {vr(Dd+2*p,2)}, {n}")
            for p in range(4):
                d = vr(Dd+2*p,2); o.append(f"v_pk_fma_f32 {d}, {d}, {vr(EX+8*q+2*p,2)}, {d}")
        return o
    def flush(a):
        return [f"ds_write_b128 v{a}, {vr(r+4*k,4)} offset:{o+16*k}" for r, o in ((Nn, oN), (Dd, oD)) for k in range(2)]
    ms = mfmas(0, 0)
    A("s_waitcnt lgkmcnt(0)")
    A(ms[0])
    A(f"v_cmp_gt_u32 vcc, 2.0, v{PF_[0]}")
    A("s_mov_b64 s[24:25], 0")
    A("s_waitcnt vmcnt(4)")
    stamp(14)
    A(f"s_cmp_lg_u32 s{sSAFE}, 0")
    A(ms[1])
    A("s_setprio 1")
    A("s_nop 9")
    A("s_cbranch_scc1 L_INS")
    A("s_branch L_INF")
    def size(x):
        x = x.strip()
        if x.endswith(":"): return 0
        if x.startswith("s_memtime"): return 8
        if x.startswith("v_exp_f32 ") or x.startswith("v_rcp_f32 ") or x.startswith("s_") or x.startswith("v_add_u32 ") or x.startswith("v_cmp_gt_u32 vcc") or x.startswith("v_mov_b32"): return 4
        return 8
    def aligned(body):
        out = []; off = 0
        for x in body:
            if size(x) == 8 and off % 8 and x.startswith("v_"):
                p = out[-1]
                if p.startswith("v_exp_f32 ") or p.startswith("v_rcp_f32 "):
                    out[-1] = p.replace("_f32 ", "_f32_e64 "); off += 4
                elif "nopad" not in OPT:
                    k = len(out)
                    while out[k-1].endswith(":"): k -= 1
                    out.insert(k, "s_nop 0"); off += 4
            out.append(x); off += size(x)
        return out
    PP = int(OPT.get("pp", 24)); GAP = int(OPT.get("gap", 4))
    def esec(b, ms, lead):
        o = []
        for r in range(16):
            if r == lead: o.append(ms[0])
            if r == lead + GAP: o.append(ms[1])
            o.append(f"v_exp_f32 v{EX+r}, v{T[b]+r}")
        return o
    def loop(tag, safe):
        L.append(".p2align 6")
        B = [f"L_LOOP{tag}:"]
        for ph in range(2):
            o = 16*ph
            B += ["s_setprio 0"]
            if "lst" in OPT: B += ["s_memtime s[98:99]"]
            B += [f"s_cmp_lt_u32 s{sCNT}, 2", f"s_cbranch_scc1 L_GS{tag}{ph}"]
            if "nogather" not in OPT: B += gathers(ph)
            B += idx(o+48) + [f"L_G{tag}{ph}:"]
            B += [f"s_cbranch_vccz L_C{tag}{ph}", "s_mov_b64 exec, vcc"] + cbs(PF_[ph], RP) + [f"L_C{tag}{ph}:"]
            B += eas(o+16)
            B.append(f"ds_read_b32 v{DSC}, v{QA} offset:{o//2+12}")
            B += ["s_cmp_eq_u64 s[24:25], 0", f"s_cbranch_scc1 L_FS{tag}{ph}"] + flush(PF_[1-ph]) + [f"L_F{tag}{ph}:"]
            B += ["s_mov_b64 s[24:25], vcc"]
            if "lst" in OPT:
                B += ["s_waitcnt vmcnt(4) lgkmcnt(0)", "s_memtime s[26:27]", f"s_mov_b32 m0, s{sCNT}", "s_nop 0", "s_movreld_b32 s48, s98", "s_waitcnt lgkmcnt(0)", "s_movreld_b32 s64, s26"]
            B += [f"s_sub_u32 s{sCNT}, s{sCNT}, 1", "s_waitcnt vmcnt(4) lgkmcnt(4)"]
            c = chain(0, safe)
            pp = min(PP, len(c))
            B += c[:pp] + ["s_setprio 1"] + c[pp:]
            B += esec(1, mfmas(1-ph, 0), 1 if pp == len(c) else 0)
            B += chain(1, safe)
            B += [f"s_cbranch_scc1 L_X{tag}{ph}", f"v_add_u32 v{PF_[1-ph]}, v{DSC}, v{LP2}"]
            if ph == 1: B.append(f"v_lshl_add_u64 {vr(AI,2)}, {vr(AI,2)}, 0, {sr(sI0,2)}")
            B.append(f"v_cmp_gt_u32 vcc, 2.0, v{PF_[1-ph]}")
            if ph == 1: B.append(f"L_IN{tag}:")
            B += esec(0, mfmas(1-ph, 1), 1)
        B.append(f"s_branch L_LOOP{tag}")
        for ph in range(2):
            B += [f"L_GS{tag}{ph}:", "s_waitcnt vmcnt(0)", f"s_branch L_G{tag}{ph}", f"L_FS{tag}{ph}:", "s_waitcnt lgkmcnt(0)", f"s_branch L_F{tag}{ph}"]
        B += [f"L_X{tag}1:", f"v_mov_b32 v{PF_[0]}, v{PF_[1]}", f"L_X{tag}0:", "s_setprio 0", "s_cmp_eq_u64 s[24:25], 0", "s_cbranch_scc1 L_SEND"] + flush(PF_[0])
        for x in aligned(B):
            (L.append(x) if x.endswith(":") else A(x))
    loop("F", False)
    LB("L_SEND")
    stamp(15)
    for q in range(8): A(f"v_rcp_f32 v{EX+q}, v{Dd+q}")
    A(f"v_pk_add_f32 v[186:187], {vr(Dd,2)}, {vr(Dd+2,2)}")
    AA(pk("v_pk_mul_f32", EX, Nn, EX))
    A(f"ds_write_b128 v{TOTW}, {vr(EX,4)} offset:{TOT}")
    A(f"ds_write_b128 v{TOTW}, {vr(EX+4,4)} offset:{TOT+16}")
    A(f"v_pk_add_f32 v[188:189], {vr(Dd+4,2)}, {vr(Dd+6,2)}")
    A(f"v_pk_add_f32 v[190:191], {vr(EX,2)}, {vr(EX+2,2)}")
    A(f"v_pk_add_f32 v[192:193], {vr(EX+4,2)}, {vr(EX+6,2)}")
    A("v_pk_add_f32 v[186:187], v[186:187], v[188:189]")
    A("v_pk_add_f32 v[190:191], v[190:191], v[192:193]")
    A("v_pk_fma_f32 v[186:187], v[190:191], 0, v[186:187] op_sel_hi:[1,0,1]")
    A("v_add_f32 v186, v186, v187")
    A("v_mov_b32 v189, 1")
    A(f"v_cmpx_ngt_f32 vcc, {f2u(2.0**110):#x}, v186")
    A(f"ds_write_b32 v{ZERO}, v189 offset:{FLAGS+4}")
    A("s_mov_b64 exec, -1")
    LB("L_WEND")
    A(f"s_mov_b32 s42, {NLN2:#x}")
    A("s_mov_b32 s43, s42")
    A("s_waitcnt lgkmcnt(0)")
    A("s_barrier")
    stamp(16); stamp(28, real=True)
    FN, FD, T0_, T1_ = 186, 194, 202, 210
    A(f"ds_read_b128 {vr(FD,4)}, v{CRA} offset:{oD}")
    A(f"ds_read_b128 {vr(FD+4,4)}, v{CRA} offset:{oD+16}")
    A(f"ds_read_b64 {vr(t+6,2)}, v{ZERO} offset:{FLAGS}")
    A(f"ds_read_b128 {vr(FN,4)}, v{CRA} offset:{oN}")
    A(f"ds_read_b128 {vr(FN+4,4)}, v{CRA} offset:{oN+16}")
    A(f"ds_read_b128 {vr(T0_,4)}, v{ta} offset:{TOT}")
    A(f"ds_read_b128 {vr(T0_+4,4)}, v{ta} offset:{TOT+16}")
    A(f"ds_read_b128 {vr(T1_,4)}, v{tb} offset:{TOT+TP}")
    A(f"ds_read_b128 {vr(T1_+4,4)}, v{tb} offset:{TOT+TP+16}")
    A("s_waitcnt lgkmcnt(8)")
    for q in range(4): A(f"v_rcp_f32 v{FD+q}, v{FD+q}")
    A("s_waitcnt lgkmcnt(6)")
    for q in range(4, 8): A(f"v_rcp_f32 v{FD+q}, v{FD+q}")
    A(f"v_readfirstlane_b32 s47, v{t+7}")
    A(f"v_readfirstlane_b32 s{sMORE}, v{t+6}")
    A("s_waitcnt lgkmcnt(4)")
    AA(pk("v_pk_mul_f32", FN, FN, FD))
    A(f"s_andn2_b32 s47, s47, s{sSAFE}")
    A("s_cbranch_scc1 L_RETRY")
    for q in range(8):
        A(f"v_subrev_f32_dpp v{AGG+q}, v{FN+q}, v{AGG+q} wave_shr:1 row_mask:0xf bank_mask:0xf bound_ctrl:1")
    A(f"s_or_b32 s47, s{sMORE}, s{sTM}")
    A("s_waitcnt lgkmcnt(2)")
    AA(pk("v_pk_add_f32", FN, FN, T0_))
    A("s_waitcnt lgkmcnt(0)")
    AA(pk("v_pk_add_f32", AGG, AGG, T1_))
    AA(pk("v_pk_add_f32", AGG, AGG, FN))
    A("s_cbranch_scc1 L_TLM")
    LB("L_TLD")
    AA(pk("v_pk_mul_f32", FN, AGG, "s[42:43]"))
    for q in range(4): A(f"v_cvt_pk_bf16_f32 v{FD+q}, v{FN+2*q}, v{FN+2*q+1}")
    A(f"ds_write_b128 v{AGW}, {vr(FD,4)} offset:{AGS}")
    A("s_waitcnt lgkmcnt(0)")
    A("s_barrier")
    stamp(17)
    A(f"ds_read_b128 {vr(T0_,4)}, v{AGR} offset:{AGS}")
    A(f"ds_read_b128 {vr(T0_+4,4)}, v{AGR} offset:{AGS+64}")
    for ks in range(2):
        A(f"s_waitcnt lgkmcnt({1-ks})")
        for cb in range(2):
            A(f"v_mfma_f32_16x16x32_bf16 {vr(U+4*cb,4)}, {vr(WF2+8*cb+4*ks,4)}, {vr(T0_+4*ks,4)}, {vr(U+4*cb,4)}")
    A("s_nop 6")
    AA(pk("v_pk_mul_f32", FN, U, sr(sNL,2)))
    for q in range(8): A(f"v_exp_f32 v{FN+q}, v{FN+q}")
    AA(pk("v_pk_add_f32", FN, FN, "1.0", tail=" op_sel_hi:[1,0]"))
    for q in range(8): A(f"v_rcp_f32 v{FN+q}, v{FN+q}")
    AA(pk("v_pk_mul_f32", FN, U, FN))
    for q in range(4): A(f"v_cvt_pk_bf16_f32 v{FD+q}, v{FN+2*q}, v{FN+2*q+1}")
    A("s_nop 1")
    A(f"v_permlane16_swap_b32 v{FD}, v{FD+2}")
    A(f"v_permlane16_swap_b32 v{FD+1}, v{FD+3}")
    A(f"s_mov_b64 exec, {sr(mON,2)}")
    A(f"buffer_store_dwordx4 {vr(FD,4)}, v{OUTO}, {sr(sOUT,4)}, s{sOUTS} offen {OPT.get('outf','nt').replace('+',' ')}")
    if DIAG:
        stamp(18)
        if "lst" in OPT:
            for k in range(32): A(f"v_writelane_b32 v255, s{48+k}, {32+k}")
        A("s_waitcnt vmcnt(0)")
        stamp(19)
        stamp(31, real=True)
        A("s_mov_b32 exec_lo, -1")
        A("s_mov_b32 exec_hi, 0")
        A("s_lshl_b32 s44, s2, 3")
        A("s_add_u32 s44, s44, s3")
        A("s_lshl_b32 s44, s44, 7")
        A(f"s_add_u32 s44, s44, {STAMP:#x}")
        A(f"buffer_store_dword v255, v{L4}, {sr(sWS,4)}, s44 offen")
        A("s_not_b64 exec, exec")
        A(f"s_add_u32 s44, s44, {0x40000-128:#x}")
        A(f"buffer_store_dword v255, v{L4}, {sr(sWS,4)}, s44 offen")
    LB("L_END")
    A("s_endpgm")
    C("---- out-of-line paths")
    LB("L_TLM")
    A(f"v_min_i32 v{cn}, {64*TP}, v{cn}")
    LB("L_TLL")
    A(f"v_cmpx_lt_i32 vcc, {2*TP}, v{cn}")
    A("s_cbranch_execz L_TLE")
    A(f"ds_read_b128 {vr(T0_,4)}, v{SID} offset:{TOT+2*TP}")
    A(f"ds_read_b128 {vr(T0_+4,4)}, v{SID} offset:{TOT+2*TP+16}")
    A(f"v_add_u32 v{cn}, {-TP & 0xffffffff:#x}, v{cn}")
    A(f"v_add_u32 v{SID}, {TP}, v{SID}")
    A("s_waitcnt lgkmcnt(0)")
    AA(pk("v_pk_add_f32", AGG, AGG, T0_))
    A("s_branch L_TLL")
    LB("L_TLE")
    A("s_mov_b64 exec, -1")
    A(f"s_cmp_lg_u32 s{sMORE}, 0")
    A("s_cbranch_scc1 L_NEXT")
    A("s_branch L_TLD")
    LB("L_NONCEW")
    A(f"global_load_dword v{PUB+1}, v{ZERO}, {sr(pDBG,2)} sc1")
    bound()
    A("s_waitcnt vmcnt(0)")
    A("s_branch L_PUB")
    LB("L_PASS")
    A(f"s_mov_b32 s{sCNT}, 0")
    LB("L_ENTR")
    A("s_waitcnt lgkmcnt(0)")
    entry_load()
    bound()
    A("s_waitcnt vmcnt(0)")
    A("s_branch L_ENT")
    LB("L_FR")
    A(f"buffer_load_dwordx2 {vr(FLV,2)}, v{FLA}, {sr(sWS,4)}, 0 offen sc1")
    bound()
    A("s_waitcnt vmcnt(0)")
    A("s_branch L_FC")
    LB("L_HR")
    for q in range(6): A(f"v_mov_b32 v{RW+4*q+3}, v{TW}")
    bound()
    A("s_branch L_LOADS")
    LB("L_RETRY")
    A(f"s_mov_b32 s{sSAFE}, 1")
    A(f"s_mov_b32 s{sREDO}, 1")
    for q in range(8):
        A(f"v_mov_b32 v{Nn+q}, 0")
        A(f"v_mov_b32 v{Dd+q}, 1.0")
    streams()
    A("s_waitcnt vmcnt(0) lgkmcnt(0)")
    A("s_branch L_MAIN")
    LB("L_TOOBIG")
    C("narrow passes: 12 positions of every segment at a time")
    A(f"s_sub_u32 s{sHI}, s{sHI}, 24")
    A(f"s_mov_b32 s{sWID}, 12")
    A(f"s_mov_b32 s{sLB}, {HUGE:#x}")
    A(f"v_cmpx_lt_u32 vcc, 63, v{LP}")
    A(f"v_mov_b32 v{KP}, {HUGE:#x}")
    A("s_mov_b64 exec, -1")
    A("s_branch L_AGAIN")
    LB("L_NEXT")
    A(f"s_add_u32 s{sHI}, s{sHI}, s{sWID}")
    A(f"s_add_u32 s{sLB}, s{sLB}, s{sWID}")
    A(f"v_add_u32 v{KP}, s{sWID}, v{KP}")
    A(f"s_cmp_eq_u32 s{sWID}, 12")
    A("s_cselect_b32 s44, 64, 192")
    A(f"v_add_u32 v{RCA}, s44, v{RCA}")
    A(f"v_add_u32 v{RCB}, s44, v{RCB}")
    LB("L_AGAIN")
    A("s_setprio 0")
    A("s_waitcnt vmcnt(0) lgkmcnt(0)")
    A("s_barrier")
    prefill_small()
    prefill_big(124)
    for q in range(6): A(f"v_mov_b32 v{RW+4*q+3}, v{TW}")
    A("s_mov_b32 s46, 0xf0008018")
    A("s_waitcnt lgkmcnt(0)")
    A("s_barrier")
    A("s_branch L_PASS")
    loop("S", True)
    A("s_branch L_SEND")
    L.append(".p2align 8")
    LB("L_TAB")
    L.extend(table())

hdr = open("cdna_kernels/%s.s.ref" % NAME).read().split("; Override")[0]
out = hdr + f"; @launch grid=(256,1,1) block=(512,1,1) lds={LDSZ}\n"
out += '.amdgcn_target "amdgcn-amd-amdhsa--gfx950"\n.text\n'
kernel()
out += "\n".join(L) + "\n"
out += f""".section .rodata,"a"
.p2align 6
.amdhsa_kernel {KN}
  .amdhsa_next_free_vgpr 256
  .amdhsa_next_free_sgpr 102
  .amdhsa_accum_offset 256
  .amdhsa_group_segment_fixed_size 0
  .amdhsa_kernarg_size 72
  .amdhsa_user_sgpr_count 2
  .amdhsa_user_sgpr_kernarg_segment_ptr 1
  .amdhsa_system_sgpr_workgroup_id_x 1
.end_amdhsa_kernel
"""
dst = [a for a in sys.argv[1:] if not a.startswith("--")]
open(dst[0] if dst else f"cdna_kernels/{NAME}.s", "w").write(out)
```

```python
import sys, struct
NAME = "gather_scatter__mpnn_edge_mlp__graph"
KN = NAME + "_kernel"
N, E = 12500, 800000
CH, NPB = 3136, 49
ATAB, FL2, OFFS, REC = 0, 0x18C000, 0x190000, 0x210000
CHB = 16768
WS_END = REC + 256 * CHB
STAMP = 0x900000
LOG2E = 1.4426950408889634
def f2u(x): return struct.unpack("<I", struct.pack("<f", x))[0]
NLOG2E = f2u(-LOG2E); NLN2 = f2u(-0.6931471805599453)
DIAG = "--diag" in sys.argv
OPT = {a.split("=")[0][2:]: (a.split("=")[1] if "=" in a else "1") for a in sys.argv[1:] if a.startswith("--")}
WS_REC = (STAMP + 0x100000) if DIAG else WS_END
BIG = 0x40000000; HUGE = 0x10000000

L = []
def A(s): L.append("    " + s)
def AA(xs):
    for x in xs: A(x)
def LB(s): L.append(s + ":")
def C(s): L.append("    ; " + s)
def vr(b, n=1): return f"v{b}" if n == 1 else f"v[{b}:{b+n-1}]"
def sr(b, n=1): return f"s{b}" if n == 1 else f"s[{b}:{b+n-1}]"
SCANM = ["row_shr:1 row_mask:0xf bank_mask:0xf bound_ctrl:1", "row_shr:2 row_mask:0xf bank_mask:0xf bound_ctrl:1",
         "row_shr:4 row_mask:0xf bank_mask:0xf bound_ctrl:1", "row_shr:8 row_mask:0xf bank_mask:0xf bound_ctrl:1",
         "row_bcast:15 row_mask:0xa bank_mask:0xf", "row_bcast:31 row_mask:0xc bank_mask:0xf"]
def scan(v, fill=None):
    fill = list(fill or [])
    for m in SCANM:
        k = 0
        while k < 2 and fill:
            A(fill.pop(0)); k += 1
        if k < 2: A(f"s_nop {1-k}")
        A(f"v_add_u32_dpp v{v}, v{v}, v{v} {m}")
    AA(fill)
def stamp(k, real=False):
    if not DIAG: return
    A("s_memrealtime s[98:99]" if real else "s_memtime s[98:99]")
    A("s_waitcnt lgkmcnt(0)")
    A(f"v_writelane_b32 v255, s98, {k}")
def note(sreg, k):
    if DIAG: A(f"v_writelane_b32 v255, s{sreg}, {k}")

LIST, QD = 0, 16384
HIST2 = QD + 8256; FLAGS = HIST2 + 256; BASE2 = FLAGS + 16; NONCE = BASE2 + 256; W3 = NONCE + 16
H1 = W3 + 128; BASE1 = H1 + 1024
R2 = H1 + 2048
STG = R2; TOT = R2; TP = 272; AGS = TOT + 64*TP; XP = 144
ROWS, RP = R2 + 16768 + 8192 + 4192, 1168 - 128
NROW = 50; oSB, oN, oD, oS = 256, 512, 768, 1024
XS = (ROWS + NROW*RP + 255) // 256 * 256; AST = XS + 8192; WM = AST + 8192; WU = WM + 16384
LDSZ = WU + 16384
assert H1 % 16 == 0 and ROWS % 16 == 0 and ROWS < 65536 and LDSZ <= 163840, LDSZ
SN = R2 + 16768 + 8192
TAB = R2 + 16768

SID, AGG, LP = 1, 2, 10
PF_ = [12, 13]; AI = 14; QA = 15; FLV = 16; IP = [18, 20]; DSC = 22; NPAD = 24; LANE = 25
EA = 26; CB = 34
S, SX, W, Nn, Dd, U, WF2 = 50, 54, 58, 66, 74, 82, 90
LP2 = 56
G = [106, 122]; T = [138, 154]; EX = 170
OUTO, AGW, ROWL, KP = 236, 237, 238, 239
GA, GQ, GD, TW = 240, 241, 242, 243
TOTW, CRA, AGR, T16, ENA, ENB, RCA, RCB, L4, ZERO = range(244, 254)
FLA, PFA = 228, 229
DST, SRC, EE, BK, RK1, BSV = 106, 114, 122, 126, 138, 146
PUB = 154
WMK = 162
XA, WA, WA2, AW, WG_, TLA = 170, 172, 174, 176, 60, 178
C4 = 180
AG, AR, BWA, AGR0 = 166, 167, 168, 169
XF, WF = 186, 194
HH, BB = 210, 214
t = 218
sWS, sA, sOUT = 8, 12, 16
pX, pE, pSRC, pDST, pWM, pWU, pOUT, pDBG = 20, 22, 24, 26, 28, 30, 32, 34
M0_, M1_, MA_ = 36, 38, 40
mLN, mON = 36, 38
MK = 48
def mk(k): return sr(MK+2*k, 2) if k < 16 else sr(26+2*(k-16), 2)
sLB, sWID, sHI, sSAFE, sT, sREDO, sSTART, sMORE, sCNT, sTAG = range(80, 90)
sNL = 90; sI0 = 92; sT0 = 94; sR = 95; sTM = 96; sRARE = 97; mMORE = 100; sFIRST = 0; sOUTS = 1
TMASK = 0xff030303

def table():
    rows = [[0]*4*64 for _ in range(8)]
    for l in range(64):
        j = l & 7; h = l >> 5; g4 = (l >> 3) & 3; l15 = l & 15; g = l >> 4; r = (l >> 2) & 3; c = l & 3
        v = [0]*32
        m = l & 31; hp = (m >> 2) & 1; q = m >> 4; jh = (m >> 3) & 1; i = m & 3
        if h == hp: v[2*q + jh] = 0x3f80 << (16*(i & 1))
        v[4] = 0xeeee if i >> 1 else 0x4444
        v[5] = 0xffffffff if h == q else 0
        v[6] = (4*h + c)*32
        v[16] = XS + l15*128 + ((g ^ j) << 4)
        v[17] = WM + (8*g + r)*128 + (((c >> 1) ^ ((r & 2) | ((g & 1) << 2))) << 4) + (c & 1)*8
        v[18] = WU + 8192 + (4*g + r)*128 + (((c >> 1) ^ ((r & 2) | ((g >> 1) << 2))) << 4) + (c & 1)*8
        v[19] = 2*(32*hp + 16*jh + i)
        v[20] = (l >> 2)*128 + c*16
        v[21] = AST + (v[20] ^ (((l >> 2) & 7) << 4))
        v[22] = ROWS + l15*RP + g*32
        v[23] = l15*XP + g*16
        v[24] = l15*128 + (g & 1)*32 + (g >> 1)*16
        v[25] = l*XP
        v[26] = ROWS + l*RP
        v[27] = 3*j
        v[28] = m >> 2
        v[29] = 4*h
        v[30] = (m >> 2)*TP + v[6]
        v[31] = 0x85ebca6b if l & 1 else 0x9e3779b1
        for k in range(32): rows[k >> 2][4*l + (k & 3)] = v[k]
    o = []
    for rw in rows:
        for i in range(0, 256, 8): o.append(".long " + ", ".join(f"{x:#x}" for x in rw[i:i+8]))
    return o

def prefill_small():
    A(f"ds_write_b32 v{L4}, v{ZERO} offset:{HIST2}")
    A(f"ds_write_b32 v{L4}, v{ZERO} offset:{HIST2+16}")
def prefill_big(r):
    A(f"v_mov_b32 v{r}, {N}")
    A(f"v_mov_b32 v{r+1}, {N}")
    A(f"v_mov_b64 {vr(r+2,2)}, {vr(r,2)}")
    A(f"ds_write_b128 v{T16}, {vr(r,4)} offset:{LIST}")
    A(f"ds_write_b128 v{T16}, {vr(r,4)} offset:{LIST+8192}")
    A(f"v_mov_b32 v{r+4}, {ROWS + 49*RP}")
    A(f"v_mov_b32 v{r+5}, {BIG:#x}")
    A(f"v_mov_b64 {vr(r+6,2)}, {vr(r+4,2)}")
    A(f"ds_write_b128 v{T16}, {vr(r+4,4)} offset:{QD}")
    A("s_mov_b64 exec, 15")
    A(f"ds_write_b128 v{IP[0]+1}, {vr(r+4,4)} offset:{QD+8192}")
    A("s_mov_b64 exec, -1")
def bound():
    A(f"s_add_u32 s{sCNT}, s{sCNT}, 1")
    A(f"s_cmp_ge_u32 s{sCNT}, 0x8000")
    A("s_cbranch_scc1 L_END")
def wfrags(dst, areg, off, tstep):
    return [f"ds_read_b64_tr_b16 {vr(dst+8*cb+4*ks+2*tt,2)}, v{areg+cb} offset:{off + 4096*ks + tstep*tt}"
            for cb in range(2) for ks in range(2) for tt in range(2)]
def mm(dst, wf):
    return [f"v_mfma_f32_16x16x32_bf16 {vr(dst+4*cb,4)}, {vr(wf+8*cb+4*ks,4)}, {vr(XF+4*ks,4)}, {'0' if ks == 0 else vr(dst+4*cb,4)}"
            for ks in range(2) for cb in range(2)]
def pk(op, d, a, b, n=8, tail=""):
    f = lambda x, q: vr(x+q,2) if isinstance(x, int) else x
    return [f"{op} {vr(d+q,2)}, {f(a,q)}, {f(b,q)}{tail}" for q in range(0, n, 2)]

def kernel():
    L.append(f".globl {KN}\n.p2align 8\n.type {KN},@function")
    LB(KN)
    A("s_cmpk_ge_u32 s2, 256")
    A("s_cbranch_scc1 L_END")
    A("s_load_dwordx16 s[20:35], s[0:1], 0")
    A("s_load_dwordx2 s[8:9], s[0:1], 64")
    A("s_memrealtime s[46:47]")
    A("s_getpc_b64 s[48:49]")
    LB("L_PC")
    A(f"v_lshrrev_b32 v{t}, 6, v0")
    C("pull the code into L2 early: one 128-B line per wave")
    A("s_and_b32 s50, s2, 0x78")
    A(f"v_add_lshl_u32 v{t+6}, v{t}, s50, 7")
    A(f"v_readfirstlane_b32 s3, v{t}")
    A(f"global_load_dword v254, v{t+6}, s[48:49]")
    C("lane-constant table -> LDS (1 KB per wave)")
    A(f"v_lshlrev_b32 v{T16}, 4, v0")
    A("s_lshl_b32 s51, s3, 10")
    A(f"s_add_u32 m0, s51, {TAB}")
    A("s_add_u32 s48, s48, L_TAB-L_PC")
    A("s_addc_u32 s49, s49, 0")
    A(f"global_load_lds_dwordx4 v{T16}, s[48:49]")
    A(f"v_and_b32 v{LANE}, 63, v0")
    A(f"v_lshlrev_b32 v{t+3}, 2, v0")
    A(f"v_mov_b32 v{ZERO}, 0")
    A(f"ds_write_b32 v{t+3}, v{ZERO} offset:{H1}")
    A(f"s_mul_i32 s42, s2, {CH//4}")
    A(f"v_mad_u32_u24 v{t+1}, v{t}, {NPB}, v{LANE}")
    A("s_mov_b32 exec_hi, 0x1ffff")
    A(f"v_add_lshl_u32 v{t+2}, v{t+1}, s42, 3")
    A(f"v_cmp_gt_u32 vcc, {2*(E - CH//2)}, v{t+2}")
    A(f"v_lshlrev_b32 v{t+1}, 1, v{t+2}")
    A(f"s_mov_b64 {sr(M1_,2)}, vcc")
    A(f"v_add_u32 v{t+1}, {CH}, v{t+1}")
    A(f"v_cmpx_gt_u32 vcc, {2*E}, v{t+2}")
    if DIAG:
        stamp(30, real=True); stamp(29)
    A("s_waitcnt lgkmcnt(0)")
    A(f"global_load_dwordx4 {vr(DST,4)}, v{t+1}, {sr(pDST,2)} offset:{-CH}{' nt' if 'ntd' in OPT else ''}")
    A(f"s_mov_b64 exec, {sr(M1_,2)}")
    A(f"global_load_dwordx4 {vr(DST+4,4)}, v{t+1}, {sr(pDST,2)} offset:{CH}{' nt' if 'ntd' in OPT else ''}")
    EARLY = False
    row = t+9
    def pre():
        A("s_mov_b32 s42, s51")
        A("s_and_b32 s4, s2, 7")
        A("s_lshl_b32 s4, s4, 5")
        A("s_lshr_b32 s7, s2, 3")
        A("s_add_u32 s4, s4, s7")
        A(f"s_mul_i32 s5, s4, {NPB}")
        A(f"v_lshrrev_b32 v{row}, 3, v0")
    def xw():
        A(f"v_xor_b32 v{t+7}, v{row}, v0")
        A(f"v_and_b32 v{t+7}, 7, v{t+7}")
        A(f"v_add_u32 v{t+8}, s5, v{row}")
        A(f"v_min_u32 v{t+8}, {N-1}, v{t+8}")
        A(f"v_lshlrev_b32 v{t+8}, 3, v{t+8}")
        A(f"s_add_u32 m0, s42, {XS}")
        A(f"v_add_lshl_u32 v{t+8}, v{t+8}, v{t+7}, 4")
        A(f"v_lshrrev_b32 v{t+7}, 1, v{row}")
        A(f"global_load_lds_dwordx4 v{t+8}, {sr(pX,2)}")
        A(f"v_and_b32 v{t+7}, 4, v{t+7}")
        A(f"v_and_or_b32 v{t+7}, v{row}, 2, v{t+7}")
        A(f"s_add_u32 m0, s42, {WM}")
        A(f"v_xor_b32 v{t+7}, v{t+7}, v0")
        A(f"v_lshlrev_b32 v{WG_}, 4, v{t+7}")
        A(f"global_load_lds_dwordx4 v{WG_}, {sr(pWM,2)}")
    def se():
        A(f"global_load_dwordx4 {vr(SRC+4,4)}, v{t+1}, {sr(pSRC,2)} offset:{CH}{' nt' if 'nts' in OPT else ''}")
        A(f"global_load_dwordx2 {vr(EE+2,2)}, v{t+2}, {sr(pE,2)} offset:{CH}{' nt' if 'nts' in OPT else ''}")
        A("s_mov_b64 exec, vcc")
        A(f"global_load_dwordx4 {vr(SRC,4)}, v{t+1}, {sr(pSRC,2)} offset:{-CH}{' nt' if 'nts' in OPT else ''}")
        A(f"global_load_dwordx2 {vr(EE,2)}, v{t+2}, {sr(pE,2)}{' nt' if 'nts' in OPT else ''}")
    def nl():
        A("s_cmp_eq_u32 s3, 0")
        A("s_cselect_b64 exec, -1, 0")
        A(f"global_load_dword v{PUB+1}, v{ZERO}, {sr(pDBG,2)} sc1")
        A("s_mov_b64 exec, -1")
    def w2():
        A(f"s_add_u32 s48, s{pWM}, 8192")
        A(f"s_addc_u32 s49, s{pWM+1}, 0")
        A(f"s_add_u32 m0, s42, {WM+8192}")
        A(f"s_add_u32 s52, s{pWM}, 16384")
        A(f"global_load_lds_dwordx4 v{WG_}, s[48:49]")
        A(f"s_addc_u32 s53, s{pWM+1}, 0")
        A(f"s_mov_b32 m0, {W3}")
        A("s_mov_b32 exec_hi, 0")
        A(f"global_load_lds_dword v{L4}, s[52:53]")
    if EARLY:
        A("s_mov_b64 exec, -1")
        A(f"v_lshlrev_b32 v{L4}, 2, v{LANE}")
        pre(); xw(); w2()
    A("s_barrier")
    if not EARLY: se()
    A(f"s_mov_b64 {sr(M0_,2)}, vcc")
    C("launch-unique tag: written by WG 0 / wave 0 (lane mask empty everywhere else)")
    A("s_bitset1_b32 s46, 31")
    A("s_or_b32 s43, s2, s3")
    A("s_cselect_b64 exec, 0, 1")
    A(f"v_mov_b32 v{t+5}, s46")
    A(f"global_store_dword v{ZERO}, v{t+5}, {sr(pDBG,2)} sc1")
    A("s_mov_b64 exec, -1")
    stamp(0)
    C("pull w_upd into L2 early (one row per wave); it is staged into LDS later")
    A(f"global_load_dword v254, v{t+6}, {sr(pWU,2)}")
    if not EARLY: pre()
    A(f"v_lshlrev_b32 v{L4}, 2, v{LANE}")
    A(f"v_lshlrev_b32 v{t+4}, 4, v{LANE}")
    prefill_small()
    A(f"ds_write_b32 v{ZERO}, v{ZERO} offset:{NONCE+4}")
    A(f"s_mov_b32 s10, {WS_REC:#x}")
    A("s_mov_b32 s11, 0x20000")
    A("s_mov_b32 s12, s8")
    A(f"s_or_b32 s13, s9, {128 << 16:#x}")
    A(f"s_mov_b32 s14, {(N+1)*128}")
    A("s_mov_b32 s15, 0x20000")
    A(f"s_mov_b32 s16, s{pOUT}")
    A(f"s_mov_b32 s17, s{pOUT+1}")
    A(f"s_mov_b32 s18, {N*128}")
    A("s_mov_b32 s19, 0x20000")
    A(f"v_and_b32 v{FLA}, 0x1f0, v{T16}")
    A("s_lshl_b32 s44, s3, 9")
    A(f"s_add_u32 s44, s44, {FL2:#x}")
    A(f"v_add_u32 v{FLA}, s44, v{FLA}")
    A("s_mul_i32 s44, s7, 392")
    A(f"s_mul_i32 s45, s3, {NPB}")
    A("s_add_u32 s44, s44, s45")
    A(f"v_add_lshl_u32 v{PFA}, v{LANE}, s44, 7")
    for q in range(0, 4, 2): A(f"v_mov_b64 {vr(EA+q,2)}, 0")
    for q in range(0, 8, 2): A(f"v_mov_b64 {vr(AGG+q,2)}, 0")
    A(f"s_mov_b32 s{sI0}, 32")
    A(f"s_mov_b32 s{sI0+1}, 16")
    A(f"s_sub_u32 s6, {N}, s5")
    A(f"s_min_u32 s6, s6, {NPB}")
    A(f"v_and_b32 v{LP}, 0x70, v{T16}")
    A("s_lshl_b32 s54, s3, 6")
    A(f"s_add_u32 s54, s54, 16384")
    A(f"v_add_u32 v{TLA}, s54, v{t+4}")
    A(f"s_mul_i32 s43, s2, {CHB}")
    A(f"s_add_u32 s43, s43, {REC:#x}")
    A("s_add_u32 s55, s43, 8192")
    A("s_cmp_lt_u32 s3, 6")
    A("s_cselect_b32 s56, 15, 0")
    A("s_lshl_b32 s57, s2, 11")
    A(f"s_add_u32 s57, s57, {OFFS:#x}")
    A("s_lshr_b32 s47, s4, 2")
    A("s_lshl_b32 s47, s47, 1")
    A("s_and_b32 s46, s4, 1")
    A("s_add_u32 s47, s47, s46")
    A("s_and_b32 s46, s4, 2")
    A("s_lshl_b32 s46, s46, 6")
    A("s_add_u32 s47, s47, s46")
    A("s_lshl_b32 s47, s47, 3")
    A(f"s_add_u32 s47, s47, {OFFS:#x}")
    A(f"v_lshrrev_b32 v{t+8}, 1, v0")
    A(f"v_lshl_add_u32 v{ENB}, v{t+8}, 11, s47")
    A(f"s_movk_i32 s46, {CHB}")
    A(f"v_and_b32 v{t+7}, 16, v{T16}")
    A(f"v_mad_u32_u24 v{RCB}, v{t+8}, s46, v{t+7}")
    A(f"s_mov_b32 s46, {4*CHB}")
    A(f"v_mad_u32_u24 v{RCA}, v{row}, s46, v{LP}")
    A(f"v_and_b32 v{ENA}, 0xe0, v{L4}")
    A("s_lshr_b32 s44, s3, 1")
    A("s_and_b32 s45, s3, 1")
    A("s_lshl_b32 s45, s45, 6")
    A("s_lshl_b32 s58, s44, 11")
    A("s_add_u32 s59, s58, s45")
    A(f"s_mul_i32 s60, s44, {16*RP}")
    A("s_lshl1_add_u32 s60, s45, s60")
    A(f"s_mul_i32 s61, s44, {16*XP}")
    A("s_lshl_b32 s44, s44, 4")
    A("s_sub_i32 s62, s6, s44")
    A("s_lshl_b32 s63, s62, 2")
    A(f"v_cmp_gt_i32 {sr(MA_,2)}, s63, v{LANE}")
    A(f"s_sub_i32 s63, {NROW}, s44")
    A(f"s_mov_b32 s{sNL}, {NLOG2E:#x}")
    A(f"s_mov_b32 s{sNL+1}, s{sNL}")
    C("all-zero pad row (index N): written by the last workgroup")
    A("s_cmpk_eq_u32 s2, 255")
    A("s_cselect_b32 exec_lo, -1, 0")
    A("s_mov_b32 exec_hi, 0")
    A(f"s_mov_b32 s44, {N*128}")
    A(f"buffer_store_dword v{ZERO}, v{L4}, {sr(sWS,4)}, s44 offen sc1")
    A("s_mov_b64 exec, -1")
    A("s_lshl_b32 s44, s5, 7")
    A(f"s_add_u32 s{sOUTS}, s44, s59")
    if not EARLY: xw()
    else:
        A(f"s_mov_b64 exec, {sr(M1_,2)}")
        se()
        A("s_mov_b64 exec, -1")
    A(f"s_mov_b32 s46, {(2**32 + 48)//49}")
    A("s_movk_i32 s47, -49")
    A(f"v_mov_b32 v{t}, 1")
    stamp(1)
    for h in range(2):
        A(f"s_mov_b64 exec, {sr(M0_+2*h,2)}")
        A(f"s_waitcnt vmcnt({10-h})")
        if h == 0: stamp(2)
        for i in range(4*h, 4*h+4): A(f"v_mul_hi_u32 v{BK+i}, v{DST+i}, s46")
        for i in range(4*h, 4*h+4):
            A(f"v_lshlrev_b32 v{BK+i}, 2, v{BK+i}")
            A(f"ds_add_rtn_u32 v{RK1+i}, v{BK+i}, v{t} offset:{H1}")
    A("s_mov_b64 exec, -1")
    for i in range(8): A(f"v_lshlrev_b32 v{DST+i}, 2, v{DST+i}")
    if EARLY: nl()
    A("s_waitcnt vmcnt(9) lgkmcnt(0)" if EARLY else "s_waitcnt lgkmcnt(0)")
    A("s_barrier")
    stamp(3)
    AP = 82
    def a_addr():
        A(f"v_add_u32 v{XA}, s58, v{C4}")
        A(f"v_xor_b32 v{XA+1}, 64, v{XA}")
        A(f"v_xor_b32 v{WA}, s45, v{C4+1}")
        A(f"v_xor_b32 v{WA+1}, 32, v{WA}")
    def a_reads():
        A(f"ds_read_b128 {vr(XF,4)}, v{XA}")
        A(f"ds_read_b128 {vr(XF+4,4)}, v{XA+1}")
        AA(wfrags(WF, WA, 0, 512))
    def a_addr2():
        A(f"v_xor_b32 v{AW}, s45, v{XA}")
        A(f"v_add_u32 v{AR}, s58, v{AR}")
        A(f"v_xor_b32 v{AR}, s45, v{AR}")
        A(f"v_add_u32 v{BWA}, s60, v{BWA}")
        A(f"v_add_u32 v{AGR}, s61, v{AGR0}")
        A(f"v_xor_b32 v{WA2}, s45, v{C4+2}")
        A(f"v_xor_b32 v{WA2+1}, 32, v{WA2}")
    def a_pack():
        AA(pk("v_pk_mul_f32", AP, AP, sr(sNL,2)))
        for q in range(4): A(f"v_cvt_pk_bf16_f32 v{AP+8+q}, v{AP+2*q}, v{AP+2*q+1}")
        A(f"ds_write_b128 v{AW}, {vr(AP+8,4)} offset:{AST-XS}")
        A(f"ds_read_b128 {vr(AP+12,4)}, v{AR}")
    def a_store():
        A(f"s_mov_b64 exec, {sr(MA_,2)}")
        A(f"buffer_store_dwordx4 {vr(AP+12,4)}, v{AG}, {sr(sWS,4)}, s{sOUTS} offen sc1")
        A("s_mov_b64 exec, -1")
    if EARLY: A(f"ds_read_b128 {vr(C4,4)}, v{t+4} offset:{TAB+4*1024}")
    A(f"ds_read_b128 {vr(HH,4)}, v{t+4} offset:{H1}")
    if not EARLY: A(f"ds_read_b128 {vr(C4,4)}, v{t+4} offset:{TAB+4*1024}")
    A(f"ds_read_b128 {vr(AG,4)}, v{t+4} offset:{TAB+5*1024}")
    A(f"s_mov_b32 s{sLB}, 24")
    A(f"s_mov_b32 s{sWID}, 36")
    A(f"s_mov_b32 s{sHI}, 36")
    A("s_mov_b32 s46, 0x55555556")
    A("s_waitcnt lgkmcnt(2)")
    if EARLY:
        a_addr(); a_reads()
        A("s_waitcnt lgkmcnt(10)")
    A(f"v_add3_u32 v{t+1}, v{HH}, v{HH+1}, v{HH+2}")
    A(f"v_add_u32 v{t+2}, v{t+1}, v{HH+3}")
    A(f"v_mov_b32 v{t+3}, v{t+2}")
    scan(t+3, [f"v_mad_i32_i24 v{DST+i}, v{BK+i}, s47, v{DST+i}" for i in range(8)] +
              [f"v_and_b32 v{IP[0]+1}, 0x30, v{T16}", f"v_and_b32 v{IP[1]+1}, 0x30, v{T16}", "s_mov_b32 s47, 0x2aaaaaab"])
    if EARLY:
        A("s_waitcnt lgkmcnt(0)")
        AA(mm(AP, WF))
    A(f"v_sub_u32 v{BB}, v{t+3}, v{t+2}")
    A(f"v_add_u32 v{BB+1}, v{BB}, v{HH}")
    A(f"v_add_u32 v{BB+2}, v{BB+1}, v{HH+1}")
    A(f"v_add_u32 v{BB+3}, v{BB}, v{t+1}")
    A(f"ds_write_b128 v{t+4}, {vr(BB,4)} offset:{BASE1}")
    if EARLY:
        a_addr2(); a_pack()
    for h in range(2):
        A(f"s_mov_b64 exec, {sr(M0_+2*h,2)}")
        for i in range(4*h, 4*h+4): A(f"ds_read_b32 v{BSV+i}, v{BK+i} offset:{BASE1}")
    if not EARLY:
        nl(); w2()
    A(f"s_mov_b32 s{sCNT}, 0")
    if EARLY:
        A("s_waitcnt lgkmcnt(8)")
        a_store()
    C("record p lives in piece p/3: word at 4(p + p/3), node byte at p + p/3 of a separate array")
    for h in range(2):
        A(f"s_mov_b64 exec, {sr(M0_+2*h,2)}")
        A("s_waitcnt lgkmcnt(4)")
        for i in range(4*h, 4*h+4): A(f"v_add_u32 v{BSV+i}, v{BSV+i}, v{RK1+i}")
        for i in range(4*h, 4*h+4): A(f"v_mul_hi_u32 v{RK1+i}, v{BSV+i}, s46")
        for i in range(4*h, 4*h+4):
            A(f"v_add_u32 v{BK+i}, v{RK1+i}, v{BSV+i}")
            A(f"ds_write_b8 v{BK+i}, v{DST+i} offset:{SN}")
    A("s_mov_b64 exec, -1")
    for i in range(8): A(f"v_lshlrev_b32 v{BSV+i}, 2, v{BK+i}")
    stamp(4)
    A("s_mov_b32 s46, 0xffff0000")
    stamp(24)
    for h in (1, 0):
        A(f"s_mov_b64 exec, {sr(M0_+2*h,2)}")
        A(f"s_waitcnt vmcnt({10 if h else 8})")
        for q in range(2*h, 2*h+2):
            A(f"v_lshl_or_b32 v{SRC+2*q}, v{EE+q}, 16, v{SRC+2*q}")
            A(f"ds_write_b32 v{BSV+2*q}, v{SRC+2*q} offset:{STG}")
            A(f"v_and_or_b32 v{SRC+2*q+1}, v{EE+q}, s46, v{SRC+2*q+1}")
            A(f"ds_write_b32 v{BSV+2*q+1}, v{SRC+2*q+1} offset:{STG}")
    A("s_mov_b64 exec, -1")
    A(f"v_lshlrev_b32 v{t+1}, 2, v0")
    A(f"v_add_u32 v{t+1}, {SN}, v{t+1}")
    A(f"v_lshrrev_b32 v{t+2}, 2, v{TLA}")
    A("s_cmp_lg_u32 s3, 0")
    A(f"s_waitcnt vmcnt({1 if EARLY else 0})")
    A("s_cbranch_scc1 L_PUBD")
    for i in range(4): A(f"v_mul_hi_u32 v{PUB+2*i}, v{BB+i}, s47")
    for i in range(4): A(f"v_mad_u32_u24 v{PUB+2*i}, v{PUB+2*i}, 26, v{BB+i}")
    for i in range(4): A(f"v_lshl_or_b32 v{PUB+2*i}, v{HH+i}, 16, v{PUB+2*i}")
    LB("L_PUB")
    A(f"v_cmp_eq_u32 vcc, 0, v{PUB+1}")
    A("s_cbranch_vccnz L_NONCEW")
    A(f"ds_write_b32 v{ZERO}, v{PUB+1} offset:{NONCE}")
    for i in range(1,4): A(f"v_mov_b32 v{PUB+1+2*i}, v{PUB+1}")
    A(f"buffer_store_dwordx4 {vr(PUB,4)}, v{T16}, {sr(sWS,4)}, s57 offen sc1")
    A(f"buffer_store_dwordx4 {vr(PUB+4,4)}, v{T16}, {sr(sWS,4)}, s57 offen offset:1024 sc1")
    LB("L_PUBD")
    A("s_waitcnt lgkmcnt(0)")
    A("s_barrier")
    stamp(5)
    A(f"ds_read_b32 v{t+5}, v{ZERO} offset:{NONCE}")
    A(f"ds_read_b128 {vr(GA,4)}, v{t+4} offset:{TAB+7*1024}")
    A(f"ds_read2st64_b32 v[118:119], v{t+1} offset0:0 offset1:8")
    for r in range(2): A(f"ds_read_b128 {vr(106+4*r,4)}, v{T16} offset:{STG+8192*r}")
    A(f"ds_read_b32 v120, v{t+2} offset:{SN}")
    A(f"ds_read_b128 v[114:117], v{TLA} offset:{STG}")
    A(f"s_mov_b32 s46, {~TMASK & 0xffffffff:#x}")
    A("s_waitcnt lgkmcnt(5)")
    A(f"v_mul_lo_u32 v{TW}, v{TW}, v{t+5}")
    A(f"v_readfirstlane_b32 s{sTAG}, v{t+5}")
    A(f"v_and_b32 v{TW}, {TMASK:#x}, v{TW}")
    for r in range(2):
        A(f"s_waitcnt lgkmcnt({3-r})")
        A(f"v_and_or_b32 v{109+4*r}, v{118+r}, s46, v{TW}")
        A(f"buffer_store_dwordx4 {vr(106+4*r,4)}, v{T16}, {sr(sWS,4)}, s{[43,55][r]} offen sc1")
    A("s_mov_b32 exec_lo, s56")
    A("s_mov_b32 exec_hi, 0")
    A("s_waitcnt lgkmcnt(0)")
    A(f"v_and_or_b32 v117, v120, s46, v{TW}")
    A(f"buffer_store_dwordx4 v[114:117], v{TLA}, {sr(sWS,4)}, s43 offen sc1")
    A("s_mov_b64 exec, -1")
    stamp(6)
    if not EARLY:
        a_addr(); a_reads(); a_addr2()
        A("s_waitcnt lgkmcnt(0)")
        AA(mm(AP, WF))
    AA(wfrags(138, WA, 8192, 512))
    if not EARLY:
        a_pack()
        A("s_waitcnt lgkmcnt(2)")
    else:
        for k, d in ((0, S), (1, SX), (6, OUTO)): A(f"ds_read_b128 {vr(d,4)}, v{t+4} offset:{TAB+k*1024}")
        A("s_waitcnt lgkmcnt(3)")
    AA(mm(122, 138))
    if not EARLY:
        A("s_waitcnt lgkmcnt(0)")
        a_store()
        for k, d in ((0, S), (1, SX), (6, OUTO)): A(f"ds_read_b128 {vr(d,4)}, v{t+4} offset:{TAB+k*1024}")
    def wu():
        A(f"s_add_u32 m0, s42, {WU}")
        A(f"s_add_u32 s22, s{pWU}, 8192")
        A(f"s_addc_u32 s23, s{pWU+1}, 0")
        A(f"global_load_lds_dwordx4 v{WG_}, {sr(pWU,2)}")
        A("s_add_u32 m0, m0, 8192")
        A("s_nop 0")
        A(f"global_load_lds_dwordx4 v{WG_}, s[22:23]")
    WUP = OPT.get("wu", "1")
    if WUP == "1": wu()
    for q in range(0, 4, 2): A(f"v_mov_b64 {vr(130+q,2)}, 0")
    for q in range(4): A(f"ds_read_u16_d16_hi v{130+q}, v{C4+3} offset:{W3 + 8*q}")
    A(f"v_and_b32 v{t+7}, 15, v0")
    A(f"v_cmp_gt_i32 {sr(mON,2)}, s62, v{t+7}")
    OF = 106
    def entry_load(): A(f"buffer_load_dwordx2 {vr(OF+4,2)}, v{ENB}, {sr(sWS,4)}, 0 offen sc1")
    C("---- B', S_B, U (while the stores drain)")
    AA(pk("v_pk_mul_f32", 122, 122, sr(sNL,2)))
    for q in range(8): A(f"v_exp_f32 v{210+q}, v{122+q}")
    AA(pk("v_pk_add_f32", 210, 210, "1.0", tail=" op_sel_hi:[1,0]"))
    if "entm" in OPT: entry_load()
    for q in range(8): A(f"v_rcp_f32 v{210+q}, v{210+q}")
    AA(pk("v_pk_mul_f32", 210, 122, 210))
    A(f"v_cmpx_gt_i32 vcc, s63, v{t+7}")
    A(f"ds_write_b128 v{BWA}, v[122:125]")
    A(f"ds_write_b128 v{BWA}, v[126:129] offset:16")
    A(f"ds_write_b128 v{BWA}, v[210:213] offset:{oSB}")
    A(f"ds_write_b128 v{BWA}, v[214:217] offset:{oSB+16}")
    A("s_mov_b64 exec, -1")
    if "entm" not in OPT: entry_load()
    RK, RW, ND = 186, 138, 112
    A(f"s_mov_b32 s{sSAFE}, 0")
    A(f"s_mov_b32 s{sFIRST}, 1")
    A(f"v_mov_b32 v{t+6}, s{sTAG}")
    A(f"v_not_b32 v{t+7}, v{t+6}")
    A("s_lshl_b32 s47, s2, 4")
    A(f"s_add_u32 s47, s47, {FL2:#x}")
    for q in range(6): A(f"v_mov_b32 v{RW+4*q+3}, v{TW}")
    A("s_mov_b32 s46, 0xf0008018")
    stamp(7)
    C("the wave that is last to see its stores acknowledged publishes this workgroup's table flag")
    A("s_mov_b64 exec, 1")
    A(f"s_waitcnt vmcnt({3 if WUP == '1' else 1})")
    A(f"ds_add_rtn_u32 v{t}, v{ZERO}, v{t} offset:{NONCE+4}")
    A("s_waitcnt lgkmcnt(0)")
    A(f"v_cmpx_eq_u32 vcc, 7, v{t}")
    A(f"buffer_store_dwordx2 {vr(t+6,2)}, off, {sr(sWS,4)}, s47 sc1")
    A("s_mov_b64 exec, -1")
    stamp(26)
    A(f"s_waitcnt vmcnt(1)")
    LB("L_ENT")
    for i in range(4): A(f"ds_bpermute_b32 v{OF+i}, v{ENA}, v{OF+4} offset:{8*i}")
    A(f"v_xor_b32 v{OF+5}, s{sTAG}, v{OF+5}")
    A(f"v_and_or_b32 v{OF+5}, v{OF+4}, s46, v{OF+5}")
    A(f"v_cmp_ne_u32 vcc, 0, v{OF+5}")
    A(f"v_and_b32 v{t+8}, 1, v0")
    A("s_cbranch_vccnz L_ENTR")
    stamp(8)
    note(sCNT, 20)
    A(f"v_mul_u32_u24 v{t+8}, 3, v{t+8}")
    A(f"s_mov_b32 s{sCNT}, 0")
    LB("L_LOADS")
    A(f"s_mov_b32 s46, {REC:#x}")
    for i in range(4):
        lo = OF+i
        A(f"s_waitcnt lgkmcnt({3-i})")
        A(f"v_and_b32 v{t+1}, 7, v{lo}")
        A(f"v_and_b32 v{t+2}, 0x7fe0, v{lo}")
        A(f"v_sub_u32 v{ND+i}, v{KP}, v{t+1}")
        A(f"v_add_u32 v{t+2}, v{t+2}, v{RCA}")
        A(f"v_sub_u32 v{t+1}, v{ND+i}, v{t+8}")
        A(f"v_cmpx_lt_i32_sdwa vcc, v{t+1}, v{lo} src0_sel:DWORD src1_sel:WORD_1")
        if i == 0: stamp(9)
        A(f"buffer_load_dwordx4 {vr(RW+4*i,4)}, v{t+2}, {sr(sWS,4)}, s46 offen sc1")
        A("s_mov_b64 exec, -1")
        if i < 3: A(f"s_add_u32 s46, s46, {CHB}")
    lo = OF+4
    A(f"v_and_b32 v{t+1}, 7, v{lo}")
    A(f"v_add_u32_sdwa v{t+1}, v{t+1}, v{lo} dst_sel:DWORD dst_unused:UNUSED_PAD src0_sel:DWORD src1_sel:WORD_1")
    A(f"s_mov_b32 s{sRARE}, 0")
    A(f"v_cmp_lt_u32 {sr(mMORE,2)}, s{sHI}, v{t+1}")
    A(f"v_cmpx_lt_u32 vcc, s{sLB}, v{t+1}")
    A("s_cbranch_execz L_NOB")
    A(f"s_mov_b32 s{sRARE}, 1")
    A(f"s_mov_b32 s46, {REC+128:#x}")
    A(f"v_and_b32 v{t+2}, 0x7fe0, v{lo}")
    A(f"v_add_u32 v{t+2}, v{t+2}, v{RCB}")
    A(f"v_subrev_u32 v{t+1}, s{sLB}, v{t+1}")
    A(f"buffer_load_dwordx4 {vr(RW+16,4)}, v{t+2}, {sr(sWS,4)}, s46 offen sc1")
    A(f"v_sub_u32 v{t+3}, v{t+1}, v{t+8}")
    for k in range(6): A(f"v_cmp_lt_i32 {mk(12+k)}, {6*(k//3) + k%3}, v{t+3}")
    A(f"v_cmpx_lt_i32 vcc, 6, v{t+1}")
    A(f"buffer_load_dwordx4 {vr(RW+20,4)}, v{t+2}, {sr(sWS,4)}, s46 offen offset:32 sc1")
    LB("L_NOB")
    A("s_mov_b64 exec, -1")
    stamp(10)
    for i in range(4):
        for r in range(3):
            A(f"v_cmp_lt_u32_sdwa {mk(3*i+r)}, v{ND+i}, v{OF+i} src0_sel:DWORD src1_sel:WORD_1")
            if r < 2: A(f"v_add_u32 v{ND+i}, 1, v{ND+i}")
    A(f"s_cmp_lg_u32 s{sFIRST}, 1")
    A("s_cbranch_scc1 L_HIST")
    A(f"s_mov_b32 s{sFIRST}, 2")
    C("---- remaining constants (in the shadow of the record loads)")
    AA(pk("v_pk_mul_f32", 130, 130, sr(sNL,2), n=4))
    A("v_cvt_pk_bf16_f32 v130, v130, v131")
    A("v_cvt_pk_bf16_f32 v131, v132, v133")
    for u in range(2): A(f"v_and_b32 v{W+u}, v{130+u}, v{SX+1}")
    A(f"s_bfm_b64 {sr(mLN,2)}, s6, 0")
    A("s_lshl_b32 s44, s3, 4")
    A(f"v_add_u32 v{AGW}, s44, v{AGW}")
    A("s_lshl_b32 s44, s3, 5")
    A(f"v_add_u32 v{CRA}, s44, v{ROWL}")
    A(f"s_mul_i32 s44, s3, {8*TP}")
    A(f"v_add_u32 v{TOTW}, s44, v{GD}")
    A("s_mov_b32 s20, 0x11111111")
    A("s_mov_b32 s21, s20")
    A(f"s_mov_b32 s40, {BIG:#x}")
    A("s_mov_b32 s41, s40")
    prefill_big(124)
    LB("L_HIST")
    for q in range(0, 18, 2): A(f"v_mov_b64 {vr(RK+q,2)}, s[40:41]")
    A(f"v_mov_b32 v{t+5}, 4")
    A(f"s_mov_b64 exec, {sr(mMORE,2)}")
    A(f"ds_write_b32 v{ZERO}, v{t+5} offset:{FLAGS}")
    A("s_mov_b64 exec, -1")
    stamp(11)
    A("s_waitcnt vmcnt(0)")
    for q in range(6): A(f"v_xor_b32 v{RW+4*q+3}, v{RW+4*q+3}, v{TW}")
    A(f"v_or3_b32 v{t+3}, v{RW+3}, v{RW+7}, v{RW+11}")
    A(f"v_or3_b32 v{t+2}, v{RW+15}, v{RW+19}, v{RW+23}")
    A(f"v_or_b32 v{t+3}, v{t+3}, v{t+2}")
    A(f"v_and_b32 v{t+3}, {TMASK:#x}, v{t+3}")
    A(f"v_cmp_ne_u32 vcc, 0, v{t+3}")
    nd = lambda k: (ND + 2*(k//3) + k%3) if k % 3 < 2 else RW + 4*(k//3) + 3
    rw = lambda k: RW + 4*(k//3) + k%3
    def extract(q):
        A(f"v_and_b32 v{nd(3*q)}, 0xff, v{RW+4*q+3}")
        A(f"v_bfe_u32 v{nd(3*q+1)}, v{RW+4*q+3}, 8, 8")
        A(f"v_lshrrev_b32 v{RW+4*q+3}, 16, v{RW+4*q+3}")
    def hist(k):
        A(f"s_mov_b64 exec, {mk(k)}")
        A(f"ds_add_rtn_u32 v{RK+k}, v{nd(k)}, v{t+5} offset:{HIST2}")
    A("s_cbranch_vccnz L_HR")
    PA = int(OPT.get("pa", 12)); PB_ = int(OPT.get("pb", 30))
    def pf(a, b):
        m = ((1 << b) - 1) ^ ((1 << a) - 1) if b > a else 0
        A(f"s_mov_b32 exec_lo, {m & 0xffffffff:#x}")
        A(f"s_mov_b32 exec_hi, {m >> 32:#x}")
        A(f"buffer_load_dword v254, v{PFA}, {sr(sWS,4)}, 0 offen sc1")
        A("s_mov_b64 exec, -1")
    if WUP == "2":
        A("s_lshl_b32 s42, s3, 10")
        wu()
    if PA: pf(0, PA)
    for q in range(4): extract(q)
    A(f"s_cmp_eq_u32 s{sRARE}, 0")
    A("s_cbranch_scc1 L_RARE1")
    extract(4); extract(5)
    for k in range(12, 18): hist(k)
    LB("L_RARE1")
    for k in range(12): hist(k)
    A("s_mov_b64 exec, -1")
    note(sCNT, 21); stamp(23); note(sRARE, 25)
    A(f"s_cmp_lg_u32 s{sSAFE}, 0")
    A(f"s_cselect_b32 s44, 1.0, {f2u(2.0**-64):#x}")
    A("s_mov_b32 s45, s44")
    A("s_lshl_b32 s46, s3, 4")
    A("s_waitcnt lgkmcnt(0)")
    A("s_barrier")
    stamp(12)
    CNT, PB, INC, BS = t+6, t+7, t+8, t+9
    A(f"ds_read_b32 v{CNT}, v{L4} offset:{HIST2}")
    A(f"buffer_load_dwordx2 {vr(FLV,2)}, v{FLA}, {sr(sWS,4)}, 0 offen sc1")
    pf(PA, PB_)
    A("s_waitcnt lgkmcnt(0)")
    A(f"v_add_u32 v{PB}, 12, v{CNT}")
    A(f"v_and_b32 v{PB}, -16, v{PB}")
    A(f"v_max_u32 v{PB}, 16, v{PB}")
    A(f"v_cndmask_b32 v{PB}, 0, v{PB}, {sr(mLN,2)}")
    A(f"v_mov_b32 v{INC}, v{PB}")
    scan(INC, [f"v_sub_u32 v{NPAD}, v{PB}, v{CNT}", f"s_mov_b32 s{sREDO}, 0"] + [f"v_mov_b64 {vr(Nn+q,2)}, 0" for q in range(0,8,2)] +
              [f"v_mov_b64 {vr(Dd+q,2)}, s[44:45]" for q in range(0,8,2)] +
              [f"v_cvt_f32_u32 v{NPAD}, v{NPAD}", f"v_mul_f32 v{NPAD}, {f2u(-0.25):#x}, v{NPAD}"])
    A(f"v_sub_u32 v{BS}, v{INC}, v{PB}")
    A(f"v_readlane_b32 s44, v{INC}, 63")
    A(f"ds_write_b32 v{L4}, v{BS} offset:{BASE2}")
    def baserd(k): A(f"ds_read_b32 v{nd(k)}, v{nd(k)} offset:{BASE2}")
    def scat(k):
        A(f"v_add_u32 v{RK+k}, v{nd(k)}, v{RK+k}")
        A(f"ds_write_b32 v{RK+k}, v{rw(k)} offset:{LIST}")
    A(f"s_cmp_eq_u32 s{sRARE}, 0")
    A("s_cbranch_scc1 L_RARE2")
    for k in range(12, 18): baserd(k)
    LB("L_RARE2")
    for k in range(12): baserd(k)
    A("s_cmpk_gt_u32 s44, 16384")
    A("s_cbranch_scc1 L_TOOBIG")
    A(f"v_lshrrev_b32 v{t+1}, 1, v{INC}")
    A(f"v_add_u32 v{t+2}, s46, v{BS}")
    A(f"v_lshrrev_b32 v{t+2}, 1, v{t+2}")
    A("s_add_u32 s44, s44, 127")
    A(f"s_lshr_b32 s{sT0}, s44, 10")
    A(f"s_bfe_u32 s{sR}, s44, 0x30007")
    A(f"s_mul_i32 s44, s{sT0}, s3")
    A(f"s_min_u32 s47, s{sR}, s3")
    A(f"s_add_u32 s{sSTART}, s44, s47")
    A(f"s_cmp_lt_u32 s3, s{sR}")
    A(f"s_addc_u32 s{sT}, s{sT0}, 0")
    def streams():
        A(f"s_lshl_b32 s44, s{sT}, 4")
        A(f"s_lshl_b32 s45, s{sSTART}, 7")
        A(f"v_mul_u32_u24 v{QA}, s44, v{GA}")
        A(f"v_add3_u32 v{AI}, v{QA}, v{GQ}, s45")
        A(f"s_add_u32 s45, s45, {2*QD}")
        A(f"v_add_u32 v{QA}, s45, v{QA}")
        A(f"v_lshrrev_b32 v{QA}, 1, v{QA}")
    streams()
    for k in range(12):
        if k % 2 == 0: A("s_waitcnt lgkmcnt(10)")
        scat(k)
    A(f"s_cmp_eq_u32 s{sRARE}, 0")
    A("s_cbranch_scc1 L_RARE3")
    for k in range(12, 18): scat(k)
    LB("L_RARE3")
    A(f"s_mov_b64 exec, {sr(mLN,2)}")
    A(f"ds_write_b32 v{t+1}, v{ROWL} offset:{QD-4}")
    LB("L_QD")
    for q in range(3):
        A(f"v_cmpx_lt_u32 vcc, s46, v{PB}")
        A("s_add_u32 s46, s46, 128")
        A(f"ds_write_b32 v{t+2}, v{ROWL} offset:{QD+64*q}")
    A(f"v_cmpx_lt_u32 vcc, s46, v{PB}")
    A(f"v_add_u32 v{t+2}, 192, v{t+2}")
    A("s_cbranch_execnz L_QD")
    A("s_mov_b64 exec, -1")
    A(f"s_not_b32 s45, s{sTAG}")
    A("s_waitcnt vmcnt(1)")
    LB("L_FC")
    A(f"v_xor_b32 v{FLV}, s{sTAG}, v{FLV}")
    A(f"v_xor_b32 v{FLV+1}, s45, v{FLV+1}")
    A(f"v_or_b32 v{FLV}, v{FLV}, v{FLV+1}")
    A(f"v_cmp_ne_u32 vcc, 0, v{FLV}")
    A("s_cbranch_vccnz L_FR")
    note(sCNT, 22)
    LB("L_MAIN")
    A("s_waitcnt lgkmcnt(0)")
    A("s_barrier")
    A("s_setprio 2")
    stamp(13); stamp(27, real=True)
    def gathers(g_):
        return [f"buffer_load_dwordx4 {vr(G[g_]+8*b+4*u,4)}, {vr(IP[b],2)}, {sr(sA,4)}, 0 idxen offen offset:{64*u}" for u in range(2) for b in range(2)]
    def idx(o):
        return [f"ds_read_u16 v{IP[b]}, v{AI} offset:{LIST+o+8*b}" for b in range(2)]
    def eas(o):
        r = []
        for c in range(4):
            r.append("s_mov_b64 exec, s[20:21]" if c == 0 else "s_lshl_b64 exec, exec, 1")
            r += [f"ds_read_u16{'_d16_hi' if c & 1 else ''} v{EA+2*b+(c>>1)}, v{AI} offset:{LIST+o+8*b+2}" for b in range(2)]
        return r + ["s_mov_b64 exec, -1"]
    def cbs(areg, off):
        return [f"ds_read_b128 {vr(CB+4*k,4)}, v{areg} offset:{off+16*(k&1)}" for k in range(4)]
    AA(idx(0))
    A(f"ds_read_u16 v{t}, v{AI} offset:{LIST+16}")
    A(f"ds_read_u16 v{t+1}, v{AI} offset:{LIST+24}")
    A(f"ds_read_b64 {vr(DSC,2)}, v{QA}")
    A("s_waitcnt lgkmcnt(3)")
    AA(gathers(0))
    A("s_waitcnt lgkmcnt(0)")
    A(f"v_mov_b32 v{IP[0]}, v{t}")
    A(f"v_mov_b32 v{IP[1]}, v{t+1}")
    A(f"v_add_u32 v{DSC}, v{DSC}, v{LP2}")
    A(f"v_add_u32 v{PF_[0]}, v{DSC+1}, v{LP2}")
    if "g1e" in OPT: AA(gathers(1))
    AA(cbs(DSC, 0) + eas(0))
    if "g1e" not in OPT: AA(gathers(1))
    AA(idx(32))
    A(f"s_cmp_lg_u32 s{sREDO}, 0")
    A("s_cbranch_scc1 L_NOSH")
    A(f"ds_read_b128 v[154:157], v{CRA} offset:{oSB}")
    A(f"ds_read_b128 v[158:161], v{CRA} offset:{oSB+16}")
    C("s(n) = stream holding the node's last quad; the node needs the totals of streams s(n-1) .. s(n)-1")
    cn, ta, tb = t+3, t+4, t+5
    A(f"s_add_u32 s44, s{sT0}, 1")
    A(f"v_cvt_f32_u32 v{t}, s44")
    A(f"v_cvt_f32_u32 v{t+1}, s{sT0}")
    A(f"v_lshrrev_b32 v{t+2}, 4, v{INC}")
    A(f"v_rcp_f32 v{t}, v{t}")
    A(f"v_rcp_f32 v{t+1}, v{t+1}")
    A(f"s_lshl_b32 s45, s{sR}, 3")
    A("s_mul_i32 s44, s44, s45")
    A(f"v_cvt_f32_u32 v{cn}, v{t+2}")
    A(f"v_cmp_ge_u32 vcc, s44, v{t+2}")
    A(f"v_subrev_u32 v{t+2}, s44, v{t+2}")
    A(f"v_cvt_f32_i32 v{t+2}, v{t+2}")
    A(f"v_add_f32 v{cn}, -0.5, v{cn}")
    A(f"v_add_f32 v{t+2}, -0.5, v{t+2}")
    A(f"v_mul_f32 v{cn}, v{cn}, v{t}")
    A(f"v_mul_f32 v{t+2}, v{t+2}, v{t+1}")
    A(f"v_cvt_u32_f32 v{cn}, v{cn}")
    A(f"v_cvt_u32_f32 v{t+2}, v{t+2}")
    A(f"v_add_u32 v{t+2}, s45, v{t+2}")
    A(f"v_cndmask_b32 v{cn}, v{t+2}, v{cn}, vcc")
    A(f"v_mul_u32_u24 v{cn}, {TP}, v{cn}")
    A("s_lshl_b32 s46, s3, 5")
    A(f"v_mov_b32 v{t}, {BIG:#x}")
    A(f"v_mov_b32_dpp v{ta}, v{cn} wave_shr:1 row_mask:0xf bank_mask:0xf bound_ctrl:1")
    A(f"v_sub_u32 v{cn}, v{cn}, v{ta}")
    A(f"v_add_u32 v{SID}, s46, v{ta}")
    A(f"v_cmp_lt_i32 s[44:45], 0, v{cn}")
    A(f"v_cmp_lt_i32 vcc, {TP}, v{cn}")
    A("s_nop 0")
    A(f"v_cndmask_b32 v{ta}, v{t}, v{SID}, s[44:45]")
    A(f"v_cndmask_b32 v{tb}, v{t}, v{SID}, vcc")
    A(f"v_cmp_lt_i32 vcc, {2*TP}, v{cn}")
    A("s_waitcnt lgkmcnt(0)")
    for q in range(0,8,2): A(f"v_pk_fma_f32 {vr(AGG+q,2)}, {vr(154+q,2)}, {vr(NPAD,2)}, {vr(AGG+q,2)} op_sel_hi:[1,0,1]")
    A("s_cmp_lg_u64 vcc, 0")
    A(f"s_cselect_b32 s{sTM}, 1, 0")
    A(f"s_cmp_lg_u32 s{sFIRST}, 2")
    A("s_cbranch_scc1 L_NOSH")
    A(f"s_mov_b32 s{sFIRST}, 0")
    A(f"ds_read_b128 {vr(XF,4)}, v{XA}")
    A(f"ds_read_b128 {vr(XF+4,4)}, v{XA+1}")
    AA(wfrags(WF, WA, WU-WM, 512))
    AA(wfrags(WF2, WA2, 0, 2048))
    A("s_waitcnt lgkmcnt(8)")
    AA(mm(U, WF))
    LB("L_NOSH")
    A(f"s_sub_u32 s{sCNT}, s{sT}, 1")
    A("s_cbranch_scc1 L_WEND")
    def mfmas(g_, b):
        d = vr(T[b],16)
        return [f"v_mfma_f32_32x32x8_bf16 {d}, {vr(W,2)}, {vr(EA+2*b,2)}, {vr(CB,16)}",
                f"v_smfmac_f32_32x32x32_bf16 {d}, {vr(S,4)}, {vr(G[g_]+8*b,8)}, v{SX}"]
    def chain(b, safe):
        o = []
        if safe:
            o += pk("v_pk_add_f32", EX, EX, "1.0", n=16, tail=" op_sel_hi:[1,0]")
            o += [f"v_rcp_f32 v{EX+r}, v{EX+r}" for r in range(16)]
            for q in range(2):
                for p in range(4):
                    n = vr(Nn+2*p,2)
                    o.append(f"v_pk_fma_f32 {n}, {vr(T[b]+8*q+2*p,2)}, {vr(EX+8*q+2*p,2)}, {n}")
            return o
        for q in range(2):
            for p in range(4):
                n = vr(Nn+2*p,2); o.append(f"v_pk_fma_f32 {n}, {n}, {vr(EX+8*q+2*p,2)}, {n}")
            for p in range(4):
                n = vr(Nn+2*p,2); o.append(f"v_pk_fma_f32 {n}, {vr(T[b]+8*q+2*p,2)}, {vr(Dd+2*p,2)}, {n}")
            for p in range(4):
                d = vr(Dd+2*p,2); o.append(f"v_pk_fma_f32 {d}, {d}, {vr(EX+8*q+2*p,2)}, {d}")
        return o
    def flush(a):
        return [f"ds_write_b128 v{a}, {vr(r+4*k,4)} offset:{o+16*k}" for r, o in ((Nn, oN), (Dd, oD)) for k in range(2)]
    ms = mfmas(0, 0)
    A("s_waitcnt lgkmcnt(0)")
    A(ms[0])
    A(f"v_cmp_gt_u32 vcc, 2.0, v{PF_[0]}")
    A("s_mov_b64 s[24:25], 0")
    A("s_waitcnt vmcnt(4)")
    stamp(14)
    A(f"s_cmp_lg_u32 s{sSAFE}, 0")
    A(ms[1])
    A("s_setprio 1")
    A("s_nop 9")
    A("s_cbranch_scc1 L_INS")
    A("s_branch L_INF")
    def size(x):
        x = x.strip()
        if x.endswith(":"): return 0
        if x.startswith("s_memtime"): return 8
        if x.startswith("v_exp_f32 ") or x.startswith("v_rcp_f32 ") or x.startswith("s_") or x.startswith("v_add_u32 ") or x.startswith("v_cmp_gt_u32 vcc") or x.startswith("v_mov_b32"): return 4
        return 8
    def aligned(body):
        out = []; off = 0
        for x in body:
            if size(x) == 8 and off % 8 and x.startswith("v_"):
                p = out[-1]
                if p.startswith("v_exp_f32 ") or p.startswith("v_rcp_f32 "):
                    out[-1] = p.replace("_f32 ", "_f32_e64 "); off += 4
                elif "nopad" not in OPT:
                    k = len(out)
                    while out[k-1].endswith(":"): k -= 1
                    out.insert(k, "s_nop 0"); off += 4
            out.append(x); off += size(x)
        return out
    PP = int(OPT.get("pp", 24)); GAP = int(OPT.get("gap", 4))
    def esec(b, ms, lead):
        o = []
        for r in range(16):
            if r == lead: o.append(ms[0])
            if r == lead + GAP: o.append(ms[1])
            o.append(f"v_exp_f32 v{EX+r}, v{T[b]+r}")
        return o
    def loop(tag, safe):
        L.append(".p2align 6")
        B = [f"L_LOOP{tag}:"]
        for ph in range(2):
            o = 16*ph
            B += ["s_setprio 0"]
            if "lst" in OPT: B += ["s_memtime s[98:99]"]
            B += [f"s_cmp_lt_u32 s{sCNT}, 2", f"s_cbranch_scc1 L_GS{tag}{ph}"]
            if "nogather" not in OPT: B += gathers(ph)
            B += idx(o+48) + [f"L_G{tag}{ph}:"]
            B += [f"s_cbranch_vccz L_C{tag}{ph}", "s_mov_b64 exec, vcc"] + cbs(PF_[ph], RP) + [f"L_C{tag}{ph}:"]
            B += eas(o+16)
            B.append(f"ds_read_b32 v{DSC}, v{QA} offset:{o//2+12}")
            B += ["s_cmp_eq_u64 s[24:25], 0", f"s_cbranch_scc1 L_FS{tag}{ph}"] + flush(PF_[1-ph]) + [f"L_F{tag}{ph}:"]
            B += ["s_mov_b64 s[24:25], vcc"]
            if "lst" in OPT:
                B += ["s_waitcnt vmcnt(4) lgkmcnt(0)", "s_memtime s[26:27]", f"s_mov_b32 m0, s{sCNT}", "s_nop 0", "s_movreld_b32 s48, s98", "s_waitcnt lgkmcnt(0)", "s_movreld_b32 s64, s26"]
            B += [f"s_sub_u32 s{sCNT}, s{sCNT}, 1", "s_waitcnt vmcnt(4) lgkmcnt(4)"]
            c = chain(0, safe)
            pp = min(PP, len(c))
            B += c[:pp] + ["s_setprio 1"] + c[pp:]
            B += esec(1, mfmas(1-ph, 0), 1 if pp == len(c) else 0)
            B += chain(1, safe)
            B += [f"s_cbranch_scc1 L_X{tag}{ph}", f"v_add_u32 v{PF_[1-ph]}, v{DSC}, v{LP2}"]
            if ph == 1: B.append(f"v_lshl_add_u64 {vr(AI,2)}, {vr(AI,2)}, 0, {sr(sI0,2)}")
            B.append(f"v_cmp_gt_u32 vcc, 2.0, v{PF_[1-ph]}")
            if ph == 1: B.append(f"L_IN{tag}:")
            B += esec(0, mfmas(1-ph, 1), 1)
        B.append(f"s_branch L_LOOP{tag}")
        for ph in range(2):
            B += [f"L_GS{tag}{ph}:", "s_waitcnt vmcnt(0)", f"s_branch L_G{tag}{ph}", f"L_FS{tag}{ph}:", "s_waitcnt lgkmcnt(0)", f"s_branch L_F{tag}{ph}"]
        B += [f"L_X{tag}1:", f"v_mov_b32 v{PF_[0]}, v{PF_[1]}", f"L_X{tag}0:", "s_setprio 0", "s_cmp_eq_u64 s[24:25], 0", "s_cbranch_scc1 L_SEND"] + flush(PF_[0])
        for x in aligned(B):
            (L.append(x) if x.endswith(":") else A(x))
    loop("F", False)
    LB("L_SEND")
    stamp(15); note(sT, 24)
    for q in range(8): A(f"v_rcp_f32 v{EX+q}, v{Dd+q}")
    A(f"v_pk_add_f32 v[186:187], {vr(Dd,2)}, {vr(Dd+2,2)}")
    AA(pk("v_pk_mul_f32", EX, Nn, EX))
    A(f"ds_write_b128 v{TOTW}, {vr(EX,4)} offset:{TOT}")
    A(f"ds_write_b128 v{TOTW}, {vr(EX+4,4)} offset:{TOT+16}")
    A(f"v_pk_add_f32 v[188:189], {vr(Dd+4,2)}, {vr(Dd+6,2)}")
    A(f"v_pk_add_f32 v[190:191], {vr(EX,2)}, {vr(EX+2,2)}")
    A(f"v_pk_add_f32 v[192:193], {vr(EX+4,2)}, {vr(EX+6,2)}")
    A("v_pk_add_f32 v[186:187], v[186:187], v[188:189]")
    A("v_pk_add_f32 v[190:191], v[190:191], v[192:193]")
    A("v_pk_fma_f32 v[186:187], v[190:191], 0, v[186:187] op_sel_hi:[1,0,1]")
    A("v_add_f32 v186, v186, v187")
    A("v_mov_b32 v189, 1")
    A(f"v_cmpx_ngt_f32 vcc, {f2u(2.0**110):#x}, v186")
    A(f"ds_write_b32 v{ZERO}, v189 offset:{FLAGS+4}")
    A("s_mov_b64 exec, -1")
    LB("L_WEND")
    A(f"s_mov_b32 s42, {NLN2:#x}")
    A("s_mov_b32 s43, s42")
    A("s_waitcnt lgkmcnt(0)")
    A("s_barrier")
    stamp(16); stamp(28, real=True)
    FN, FD, T0_, T1_ = 186, 194, 202, 210
    A(f"ds_read_b128 {vr(FD,4)}, v{CRA} offset:{oD}")
    A(f"ds_read_b128 {vr(FD+4,4)}, v{CRA} offset:{oD+16}")
    A(f"ds_read_b64 {vr(t+6,2)}, v{ZERO} offset:{FLAGS}")
    A(f"ds_read_b128 {vr(FN,4)}, v{CRA} offset:{oN}")
    A(f"ds_read_b128 {vr(FN+4,4)}, v{CRA} offset:{oN+16}")
    A(f"ds_read_b128 {vr(T0_,4)}, v{ta} offset:{TOT}")
    A(f"ds_read_b128 {vr(T0_+4,4)}, v{ta} offset:{TOT+16}")
    A(f"ds_read_b128 {vr(T1_,4)}, v{tb} offset:{TOT+TP}")
    A(f"ds_read_b128 {vr(T1_+4,4)}, v{tb} offset:{TOT+TP+16}")
    A("s_waitcnt lgkmcnt(8)")
    for q in range(4): A(f"v_rcp_f32 v{FD+q}, v{FD+q}")
    A("s_waitcnt lgkmcnt(6)")
    for q in range(4, 8): A(f"v_rcp_f32 v{FD+q}, v{FD+q}")
    A(f"v_readfirstlane_b32 s47, v{t+7}")
    A(f"v_readfirstlane_b32 s{sMORE}, v{t+6}")
    A("s_waitcnt lgkmcnt(4)")
    AA(pk("v_pk_mul_f32", FN, FN, FD))
    A(f"s_andn2_b32 s47, s47, s{sSAFE}")
    A("s_cbranch_scc1 L_RETRY")
    for q in range(8):
        A(f"v_subrev_f32_dpp v{AGG+q}, v{FN+q}, v{AGG+q} wave_shr:1 row_mask:0xf bank_mask:0xf bound_ctrl:1")
    A(f"s_or_b32 s47, s{sMORE}, s{sTM}")
    A("s_waitcnt lgkmcnt(2)")
    AA(pk("v_pk_add_f32", FN, FN, T0_))
    A("s_waitcnt lgkmcnt(0)")
    AA(pk("v_pk_add_f32", AGG, AGG, T1_))
    AA(pk("v_pk_add_f32", AGG, AGG, FN))
    A("s_cbranch_scc1 L_TLM")
    LB("L_TLD")
    AA(pk("v_pk_mul_f32", FN, AGG, "s[42:43]"))
    for q in range(4): A(f"v_cvt_pk_bf16_f32 v{FD+q}, v{FN+2*q}, v{FN+2*q+1}")
    A(f"ds_write_b128 v{AGW}, {vr(FD,4)} offset:{AGS}")
    A("s_waitcnt lgkmcnt(0)")
    A("s_barrier")
    stamp(17)
    A(f"ds_read_b128 {vr(T0_,4)}, v{AGR} offset:{AGS}")
    A(f"ds_read_b128 {vr(T0_+4,4)}, v{AGR} offset:{AGS+64}")
    for ks in range(2):
        A(f"s_waitcnt lgkmcnt({1-ks})")
        for cb in range(2):
            A(f"v_mfma_f32_16x16x32_bf16 {vr(U+4*cb,4)}, {vr(WF2+8*cb+4*ks,4)}, {vr(T0_+4*ks,4)}, {vr(U+4*cb,4)}")
    A("s_nop 6")
    AA(pk("v_pk_mul_f32", FN, U, sr(sNL,2)))
    for q in range(8): A(f"v_exp_f32 v{FN+q}, v{FN+q}")
    AA(pk("v_pk_add_f32", FN, FN, "1.0", tail=" op_sel_hi:[1,0]"))
    for q in range(8): A(f"v_rcp_f32 v{FN+q}, v{FN+q}")
    AA(pk("v_pk_mul_f32", FN, U, FN))
    for q in range(4): A(f"v_cvt_pk_bf16_f32 v{FD+q}, v{FN+2*q}, v{FN+2*q+1}")
    A("s_nop 1")
    A(f"v_permlane16_swap_b32 v{FD}, v{FD+2}")
    A(f"v_permlane16_swap_b32 v{FD+1}, v{FD+3}")
    A(f"s_mov_b64 exec, {sr(mON,2)}")
    A(f"buffer_store_dwordx4 {vr(FD,4)}, v{OUTO}, {sr(sOUT,4)}, s{sOUTS} offen {OPT.get('outf','nt').replace('+',' ')}")
    if DIAG:
        stamp(18)
        if "lst" in OPT:
            for k in range(32): A(f"v_writelane_b32 v255, s{48+k}, {32+k}")
        A("s_waitcnt vmcnt(0)")
        stamp(19)
        stamp(31, real=True)
        A("s_mov_b32 exec_lo, -1")
        A("s_mov_b32 exec_hi, 0")
        A("s_lshl_b32 s44, s2, 3")
        A("s_add_u32 s44, s44, s3")
        A("s_lshl_b32 s44, s44, 7")
        A(f"s_add_u32 s44, s44, {STAMP:#x}")
        A(f"buffer_store_dword v255, v{L4}, {sr(sWS,4)}, s44 offen")
        A("s_not_b64 exec, exec")
        A(f"s_add_u32 s44, s44, {0x40000-128:#x}")
        A(f"buffer_store_dword v255, v{L4}, {sr(sWS,4)}, s44 offen")
    LB("L_END")
    A("s_endpgm")
    C("---- out-of-line paths")
    LB("L_TLM")
    A(f"v_min_i32 v{cn}, {64*TP}, v{cn}")
    LB("L_TLL")
    A(f"v_cmpx_lt_i32 vcc, {2*TP}, v{cn}")
    A("s_cbranch_execz L_TLE")
    A(f"ds_read_b128 {vr(T0_,4)}, v{SID} offset:{TOT+2*TP}")
    A(f"ds_read_b128 {vr(T0_+4,4)}, v{SID} offset:{TOT+2*TP+16}")
    A(f"v_add_u32 v{cn}, {-TP & 0xffffffff:#x}, v{cn}")
    A(f"v_add_u32 v{SID}, {TP}, v{SID}")
    A("s_waitcnt lgkmcnt(0)")
    AA(pk("v_pk_add_f32", AGG, AGG, T0_))
    A("s_branch L_TLL")
    LB("L_TLE")
    A("s_mov_b64 exec, -1")
    A(f"s_cmp_lg_u32 s{sMORE}, 0")
    A("s_cbranch_scc1 L_NEXT")
    A("s_branch L_TLD")
    LB("L_NONCEW")
    A(f"global_load_dword v{PUB+1}, v{ZERO}, {sr(pDBG,2)} sc1")
    bound()
    A("s_waitcnt vmcnt(0)")
    A("s_branch L_PUB")
    LB("L_PASS")
    A(f"s_mov_b32 s{sCNT}, 0")
    LB("L_ENTR")
    A("s_waitcnt lgkmcnt(0)")
    entry_load()
    bound()
    A("s_waitcnt vmcnt(0)")
    A("s_branch L_ENT")
    LB("L_FR")
    A(f"buffer_load_dwordx2 {vr(FLV,2)}, v{FLA}, {sr(sWS,4)}, 0 offen sc1")
    bound()
    A("s_waitcnt vmcnt(0)")
    A("s_branch L_FC")
    LB("L_HR")
    for q in range(6): A(f"v_mov_b32 v{RW+4*q+3}, v{TW}")
    bound()
    A("s_branch L_LOADS")
    LB("L_RETRY")
    A(f"s_mov_b32 s{sSAFE}, 1")
    A(f"s_mov_b32 s{sREDO}, 1")
    for q in range(8):
        A(f"v_mov_b32 v{Nn+q}, 0")
        A(f"v_mov_b32 v{Dd+q}, 1.0")
    streams()
    A("s_waitcnt vmcnt(0) lgkmcnt(0)")
    A("s_branch L_MAIN")
    LB("L_TOOBIG")
    C("narrow passes: 12 positions of every segment at a time")
    A(f"s_sub_u32 s{sHI}, s{sHI}, 24")
    A(f"s_mov_b32 s{sWID}, 12")
    A(f"s_mov_b32 s{sLB}, {HUGE:#x}")
    A(f"v_cmpx_lt_u32 vcc, 63, v{LP}")
    A(f"v_mov_b32 v{KP}, {HUGE:#x}")
    A("s_mov_b64 exec, -1")
    A("s_branch L_AGAIN")
    LB("L_NEXT")
    A(f"s_add_u32 s{sHI}, s{sHI}, s{sWID}")
    A(f"s_add_u32 s{sLB}, s{sLB}, s{sWID}")
    A(f"v_add_u32 v{KP}, s{sWID}, v{KP}")
    A(f"s_cmp_eq_u32 s{sWID}, 12")
    A("s_cselect_b32 s44, 64, 192")
    A(f"v_add_u32 v{RCA}, s44, v{RCA}")
    A(f"v_add_u32 v{RCB}, s44, v{RCB}")
    LB("L_AGAIN")
    A("s_setprio 0")
    A("s_waitcnt vmcnt(0) lgkmcnt(0)")
    A("s_barrier")
    prefill_small()
    prefill_big(124)
    for q in range(6): A(f"v_mov_b32 v{RW+4*q+3}, v{TW}")
    A("s_mov_b32 s46, 0xf0008018")
    A("s_waitcnt lgkmcnt(0)")
    A("s_barrier")
    A("s_branch L_PASS")
    loop("S", True)
    A("s_branch L_SEND")
    L.append(".p2align 8")
    LB("L_TAB")
    L.extend(table())

hdr = open("cdna_kernels/%s.s.ref" % NAME).read().split("; Override")[0]
out = hdr + f"; @launch grid=(256,1,1) block=(512,1,1) lds={LDSZ}\n"
out += '.amdgcn_target "amdgcn-amd-amdhsa--gfx950"\n.text\n'
kernel()
out += "\n".join(L) + "\n"
out += f""".section .rodata,"a"
.p2align 6
.amdhsa_kernel {KN}
  .amdhsa_next_free_vgpr 256
  .amdhsa_next_free_sgpr 102
  .amdhsa_accum_offset 256
  .amdhsa_group_segment_fixed_size 0
  .amdhsa_kernarg_size 72
  .amdhsa_user_sgpr_count 2
  .amdhsa_user_sgpr_kernarg_segment_ptr 1
  .amdhsa_system_sgpr_workgroup_id_x 1
.end_amdhsa_kernel
"""
dst = [a for a in sys.argv[1:] if not a.startswith("--")]
open(dst[0] if dst else f"cdna_kernels/{NAME}.s", "w").write(out)
```

```python
import sys, struct
NAME = "gather_scatter__mpnn_edge_mlp__graph"
KN = NAME + "_kernel"
N, E = 12500, 800000
CH, NPB = 3136, 49
ATAB, FL2, OFFS, REC = 0, 0x18C000, 0x190000, 0x210000
CHB = 16768
WS_END = REC + 256 * CHB
STAMP = 0x900000
LOG2E = 1.4426950408889634
def f2u(x): return struct.unpack("<I", struct.pack("<f", x))[0]
NLOG2E = f2u(-LOG2E); NLN2 = f2u(-0.6931471805599453)
DIAG = "--diag" in sys.argv
OPT = {a.split("=")[0][2:]: (a.split("=")[1] if "=" in a else "1") for a in sys.argv[1:] if a.startswith("--")}
WS_REC = (STAMP + 0x100000) if DIAG else WS_END
BIG = 0x40000000; HUGE = 0x10000000

L = []
def A(s): L.append("    " + s)
def AA(xs):
    for x in xs: A(x)
def LB(s): L.append(s + ":")
def C(s): L.append("    ; " + s)
def vr(b, n=1): return f"v{b}" if n == 1 else f"v[{b}:{b+n-1}]"
def sr(b, n=1): return f"s{b}" if n == 1 else f"s[{b}:{b+n-1}]"
SCANM = ["row_shr:1 row_mask:0xf bank_mask:0xf bound_ctrl:1", "row_shr:2 row_mask:0xf bank_mask:0xf bound_ctrl:1",
         "row_shr:4 row_mask:0xf bank_mask:0xf bound_ctrl:1", "row_shr:8 row_mask:0xf bank_mask:0xf bound_ctrl:1",
         "row_bcast:15 row_mask:0xa bank_mask:0xf", "row_bcast:31 row_mask:0xc bank_mask:0xf"]
def scan(v, fill=None):
    fill = list(fill or [])
    for m in SCANM:
        k = 0
        while k < 2 and fill:
            A(fill.pop(0)); k += 1
        if k < 2: A(f"s_nop {1-k}")
        A(f"v_add_u32_dpp v{v}, v{v}, v{v} {m}")
    AA(fill)
def stamp(k, real=False):
    if not DIAG: return
    A("s_memrealtime s[98:99]" if real else "s_memtime s[98:99]")
    A("s_waitcnt lgkmcnt(0)")
    A(f"v_writelane_b32 v255, s98, {k}")
def note(sreg, k):
    if DIAG: A(f"v_writelane_b32 v255, s{sreg}, {k}")

QD = 0
PADQ = QD + 8320
HIST2 = PADQ + 16; FLAGS = HIST2 + 256; BASE2 = FLAGS + 16; NONCE = BASE2 + 256; W3 = NONCE + 16
H1 = W3 + 128; BASE1 = H1 + 1024
R2 = H1 + 2048
STG = R2; TOT = R2; TP = 272; AGS = TOT + 64*TP; XP = 144
ROWS, RP = R2 + 16768 + 8192 + 4192, 1168 - 128
NROW = 50; oSB, oN, oD, oS = 256, 512, 768, 1024
XS = (ROWS + NROW*RP + 255) // 256 * 256; AST = XS + 8192; WM = AST + 8192; WU = WM + 16384
CAPB = 448; LB_ = WU + 16384
LDSZ = LB_ + 49*CAPB
assert H1 % 16 == 0 and ROWS % 16 == 0 and ROWS < 65536 and LDSZ <= 163840, LDSZ
SN = R2 + 16768 + 8192
TAB = R2 + 16768

SID, AGG, LP = 1, 2, 10
PF_ = [12, 14]; QA = 61; HINIT = 63; LBASE = 64; FLV = 16; IP = [18, 20]; DSC = 22; NPAD = 24; LANE = 25
EA = 26; CB = 34
S, SX, W, Nn, Dd, U, WF2 = 50, 54, 58, 66, 74, 82, 90
LP2 = 56
G = [106, 122]; T = [138, 154]; EX = 170
OUTO, AGW, ROWL, KP = 236, 237, 238, 239
GA, TWB, GD, TW = 240, 241, 242, 243
TOTW, CRA, AGR, T16, ENA, ENB, RCA, RCB, L4, ZERO = range(244, 254)
FLA, PFA = 228, 229
DST, SRC, EE, BK, RK1, BSV = 106, 114, 122, 126, 138, 146
PUB = 154
WMK = 162
XA, WA, WA2, AW, WG_, TLA = 170, 172, 174, 176, 60, 178
C4 = 180
AG, AR, BWA, AGR0 = 166, 167, 168, 169
XF, WF = 186, 194
HH, BB = 210, 214
t = 218
sWS, sA, sOUT = 8, 12, 16
pX, pE, pSRC, pDST, pWM, pWU, pOUT, pDBG = 20, 22, 24, 26, 28, 30, 32, 34
M0_, M1_, MA_ = 36, 38, 40
mLN, mON = 36, 38
MK = 48
def mk(k): return sr(MK+2*k, 2) if k < 16 else sr(26+2*(k-16), 2)
sLB, sWID, sHI, sSAFE, sT, sREDO, sSTART, sMORE, sCNT, sTAG = range(80, 90)
sNL = 90; sI0 = 92; sT0 = 94; sR = 95; sTM = 96; sRARE = 97; mMORE = 100; sFIRST = 0; sOUTS = 1
TMASK = 0xff030303

def table():
    rows = [[0]*4*64 for _ in range(8)]
    for l in range(64):
        j = l & 7; h = l >> 5; g4 = (l >> 3) & 3; l15 = l & 15; g = l >> 4; r = (l >> 2) & 3; c = l & 3
        v = [0]*32
        m = l & 31; hp = (m >> 2) & 1; q = m >> 4; jh = (m >> 3) & 1; i = m & 3
        if h == hp: v[2*q + jh] = 0x3f80 << (16*(i & 1))
        v[4] = 0xeeee if i >> 1 else 0x4444
        v[5] = 0xffffffff if h == q else 0
        v[6] = 4*h
        v[7] = (4*h + c)*32
        v[16] = XS + l15*128 + ((g ^ j) << 4)
        v[17] = WM + (8*g + r)*128 + (((c >> 1) ^ ((r & 2) | ((g & 1) << 2))) << 4) + (c & 1)*8
        v[18] = WU + 8192 + (4*g + r)*128 + (((c >> 1) ^ ((r & 2) | ((g >> 1) << 2))) << 4) + (c & 1)*8
        v[19] = 2*(32*hp + 16*jh + i)
        v[20] = (l >> 2)*128 + c*16
        v[21] = AST + (v[20] ^ (((l >> 2) & 7) << 4))
        v[22] = ROWS + l15*RP + g*32
        v[23] = l15*XP + g*16
        v[24] = l15*128 + (g & 1)*32 + (g >> 1)*16
        v[25] = l*XP
        v[26] = ROWS + l*RP
        v[27] = 3*j
        v[28] = m >> 2
        v[29] = 0x85ebca6b if l & 4 else 0x9e3779b1
        v[30] = (m >> 2)*TP + v[7]
        v[31] = 0x85ebca6b if l & 1 else 0x9e3779b1
        for k in range(32): rows[k >> 2][4*l + (k & 3)] = v[k]
    o = []
    for rw in rows:
        for i in range(0, 256, 8): o.append(".long " + ", ".join(f"{x:#x}" for x in rw[i:i+8]))
    return o

def prefill_small():
    A(f"ds_write_b32 v{L4}, v{ZERO} offset:{HIST2+16}")
    A(f"ds_write_b32 v{L4}, v{HINIT} offset:{HIST2}")
def bound():
    A(f"s_add_u32 s{sCNT}, s{sCNT}, 1")
    A(f"s_cmp_ge_u32 s{sCNT}, 0x8000")
    A("s_cbranch_scc1 L_END")
def wfrags(dst, areg, off, tstep):
    return [f"ds_read_b64_tr_b16 {vr(dst+8*cb+4*ks+2*tt,2)}, v{areg+cb} offset:{off + 4096*ks + tstep*tt}"
            for cb in range(2) for ks in range(2) for tt in range(2)]
def mm(dst, wf):
    return [f"v_mfma_f32_16x16x32_bf16 {vr(dst+4*cb,4)}, {vr(wf+8*cb+4*ks,4)}, {vr(XF+4*ks,4)}, {'0' if ks == 0 else vr(dst+4*cb,4)}"
            for ks in range(2) for cb in range(2)]
def pk(op, d, a, b, n=8, tail=""):
    f = lambda x, q: vr(x+q,2) if isinstance(x, int) else x
    return [f"{op} {vr(d+q,2)}, {f(a,q)}, {f(b,q)}{tail}" for q in range(0, n, 2)]

def kernel():
    L.append(f".globl {KN}\n.p2align 8\n.type {KN},@function")
    LB(KN)
    A("s_cmpk_ge_u32 s2, 256")
    A("s_cbranch_scc1 L_END")
    A("s_load_dwordx16 s[20:35], s[0:1], 0")
    A("s_load_dwordx2 s[8:9], s[0:1], 64")
    A("s_memrealtime s[46:47]")
    A("s_getpc_b64 s[48:49]")
    LB("L_PC")
    A(f"v_lshrrev_b32 v{t}, 6, v0")
    C("pull the code into L2 early: one 128-B line per wave")
    A("s_and_b32 s50, s2, 0x78")
    A(f"v_add_lshl_u32 v{t+6}, v{t}, s50, 7")
    A(f"v_readfirstlane_b32 s3, v{t}")
    A(f"global_load_dword v254, v{t+6}, s[48:49]")
    C("lane-constant table -> LDS (1 KB per wave)")
    A(f"v_lshlrev_b32 v{T16}, 4, v0")
    A("s_lshl_b32 s51, s3, 10")
    A(f"s_add_u32 m0, s51, {TAB}")
    A("s_add_u32 s48, s48, L_TAB-L_PC")
    A("s_addc_u32 s49, s49, 0")
    A(f"global_load_lds_dwordx4 v{T16}, s[48:49]")
    A(f"v_and_b32 v{LANE}, 63, v0")
    A(f"v_lshlrev_b32 v{t+3}, 2, v0")
    A(f"v_mov_b32 v{ZERO}, 0")
    A(f"ds_write_b32 v{t+3}, v{ZERO} offset:{H1}")
    A(f"s_mul_i32 s42, s2, {CH//4}")
    A(f"v_mad_u32_u24 v{t+1}, v{t}, {NPB}, v{LANE}")
    A("s_mov_b32 exec_hi, 0x1ffff")
    A(f"v_add_lshl_u32 v{t+2}, v{t+1}, s42, 3")
    A(f"v_cmp_gt_u32 vcc, {2*(E - CH//2)}, v{t+2}")
    A(f"v_lshlrev_b32 v{t+1}, 1, v{t+2}")
    A(f"s_mov_b64 {sr(M1_,2)}, vcc")
    A(f"v_add_u32 v{t+1}, {CH}, v{t+1}")
    A(f"v_cmpx_gt_u32 vcc, {2*E}, v{t+2}")
    if DIAG:
        stamp(30, real=True); stamp(29)
    A("s_waitcnt lgkmcnt(0)")
    A(f"global_load_dwordx4 {vr(DST,4)}, v{t+1}, {sr(pDST,2)} offset:{-CH}{' nt' if 'ntd' in OPT else ''}")
    A(f"s_mov_b64 exec, {sr(M1_,2)}")
    A(f"global_load_dwordx4 {vr(DST+4,4)}, v{t+1}, {sr(pDST,2)} offset:{CH}{' nt' if 'ntd' in OPT else ''}")
    EARLY = False
    row = t+9
    def pre():
        A("s_mov_b32 s42, s51")
        A("s_and_b32 s4, s2, 7")
        A("s_lshl_b32 s4, s4, 5")
        A("s_lshr_b32 s7, s2, 3")
        A("s_add_u32 s4, s4, s7")
        A(f"s_mul_i32 s5, s4, {NPB}")
        A(f"v_lshrrev_b32 v{row}, 3, v0")
    def xw():
        A(f"v_xor_b32 v{t+7}, v{row}, v0")
        A(f"v_and_b32 v{t+7}, 7, v{t+7}")
        A(f"v_add_u32 v{t+8}, s5, v{row}")
        A(f"v_min_u32 v{t+8}, {N-1}, v{t+8}")
        A(f"v_lshlrev_b32 v{t+8}, 3, v{t+8}")
        A(f"s_add_u32 m0, s42, {XS}")
        A(f"v_add_lshl_u32 v{t+8}, v{t+8}, v{t+7}, 4")
        A(f"v_lshrrev_b32 v{t+7}, 1, v{row}")
        A(f"global_load_lds_dwordx4 v{t+8}, {sr(pX,2)}")
        A(f"v_and_b32 v{t+7}, 4, v{t+7}")
        A(f"v_and_or_b32 v{t+7}, v{row}, 2, v{t+7}")
        A(f"s_add_u32 m0, s42, {WM}")
        A(f"v_xor_b32 v{t+7}, v{t+7}, v0")
        A(f"v_lshlrev_b32 v{WG_}, 4, v{t+7}")
        A(f"global_load_lds_dwordx4 v{WG_}, {sr(pWM,2)}")
    def se():
        A(f"global_load_dwordx4 {vr(SRC+4,4)}, v{t+1}, {sr(pSRC,2)} offset:{CH}{' nt' if 'nts' in OPT else ''}")
        A(f"global_load_dwordx2 {vr(EE+2,2)}, v{t+2}, {sr(pE,2)} offset:{CH}{' nt' if 'nts' in OPT else ''}")
        A("s_mov_b64 exec, vcc")
        A(f"global_load_dwordx4 {vr(SRC,4)}, v{t+1}, {sr(pSRC,2)} offset:{-CH}{' nt' if 'nts' in OPT else ''}")
        A(f"global_load_dwordx2 {vr(EE,2)}, v{t+2}, {sr(pE,2)}{' nt' if 'nts' in OPT else ''}")
    def nl():
        A("s_cmp_eq_u32 s3, 0")
        A("s_cselect_b64 exec, -1, 0")
        A(f"global_load_dword v{PUB+1}, v{ZERO}, {sr(pDBG,2)} sc1")
        A("s_mov_b64 exec, -1")
    def w2():
        A(f"s_add_u32 s48, s{pWM}, 8192")
        A(f"s_addc_u32 s49, s{pWM+1}, 0")
        A(f"s_add_u32 m0, s42, {WM+8192}")
        A(f"s_add_u32 s52, s{pWM}, 16384")
        A(f"global_load_lds_dwordx4 v{WG_}, s[48:49]")
        A(f"s_addc_u32 s53, s{pWM+1}, 0")
        A(f"s_mov_b32 m0, {W3}")
        A("s_mov_b32 exec_hi, 0")
        A(f"global_load_lds_dword v{L4}, s[52:53]")
    if EARLY:
        A("s_mov_b64 exec, -1")
        A(f"v_lshlrev_b32 v{L4}, 2, v{LANE}")
        pre(); xw(); w2()
    A("s_barrier")
    if not EARLY: se()
    A(f"s_mov_b64 {sr(M0_,2)}, vcc")
    C("launch-unique tag: written by WG 0 / wave 0 (lane mask empty everywhere else)")
    A("s_bitset1_b32 s46, 31")
    A("s_or_b32 s43, s2, s3")
    A("s_cselect_b64 exec, 0, 1")
    A(f"v_mov_b32 v{t+5}, s46")
    A(f"global_store_dword v{ZERO}, v{t+5}, {sr(pDBG,2)} sc1")
    A("s_mov_b64 exec, -1")
    stamp(0)
    C("pull w_upd into L2 early (one row per wave); it is staged into LDS later")
    A(f"global_load_dword v254, v{t+6}, {sr(pWU,2)}")
    if not EARLY: pre()
    A(f"v_lshlrev_b32 v{L4}, 2, v{LANE}")
    A(f"v_lshlrev_b32 v{t+4}, 4, v{LANE}")
    A(f"v_mul_u32_u24 v{HINIT}, {CAPB}, v{LANE}")
    A(f"v_add_u32 v{HINIT}, {LB_}, v{HINIT}")
    A(f"v_mov_b32 v62, {N}")
    A("s_cmp_eq_u32 s3, 0")
    A("s_cselect_b64 exec, -1, 0")
    A(f"ds_write_b32 v{L4}, v62 offset:{PADQ}")
    prefill_small()
    A(f"ds_write_b32 v{ZERO}, v{ZERO} offset:{NONCE+4}")
    A("s_mov_b64 exec, -1")
    A(f"s_mov_b32 s10, {WS_REC:#x}")
    A("s_mov_b32 s11, 0x20000")
    A("s_lshl_b32 s54, s3, 6")
    A(f"s_add_u32 s54, s54, 16384")
    A(f"v_add_u32 v{TLA}, s54, v{t+4}")
    A(f"s_mul_i32 s43, s2, {CHB}")
    A(f"s_add_u32 s43, s43, {REC:#x}")
    A("s_add_u32 s55, s43, 8192")
    A("s_cmp_lt_u32 s3, 6")
    A("s_cselect_b32 s56, 15, 0")
    A("s_lshl_b32 s57, s2, 11")
    A(f"s_add_u32 s57, s57, {OFFS:#x}")
    XL = OPT.get("xl", "1")
    if XL == "0": xw()
    A(f"s_mov_b32 s46, {(2**32 + 48)//49}")
    A("s_movk_i32 s47, -49")
    A(f"v_mov_b32 v{t}, 1")
    stamp(1)
    for h in range(2):
        A(f"s_mov_b64 exec, {sr(M0_+2*h,2)}")
        A(f"s_waitcnt vmcnt({(9 if XL == '0' else 7)-h})")
        if h == 0: stamp(2)
        for i in range(4*h, 4*h+4): A(f"v_mul_hi_u32 v{BK+i}, v{DST+i}, s46")
        for i in range(4*h, 4*h+4):
            A(f"v_lshlrev_b32 v{BK+i}, 2, v{BK+i}")
            A(f"ds_add_rtn_u32 v{RK1+i}, v{BK+i}, v{t} offset:{H1}")
    A("s_mov_b64 exec, -1")
    if XL == "1": xw()
    for i in range(8): A(f"v_lshlrev_b32 v{DST+i}, 2, v{DST+i}")
    A(f"s_sub_u32 s6, {N}, s5")
    A(f"s_min_u32 s6, s6, {NPB}")
    A(f"v_and_b32 v{LP}, 0x70, v{T16}")
    A("s_lshr_b32 s44, s3, 1")
    A("s_and_b32 s45, s3, 1")
    A("s_lshl_b32 s45, s45, 6")
    A("s_lshl_b32 s58, s44, 11")
    A("s_add_u32 s59, s58, s45")
    A(f"s_mul_i32 s60, s44, {16*RP}")
    A("s_lshl1_add_u32 s60, s45, s60")
    A(f"s_mul_i32 s61, s44, {16*XP}")
    A("s_lshl_b32 s44, s44, 4")
    A("s_sub_i32 s62, s6, s44")
    A("s_lshl_b32 s63, s62, 2")
    A(f"v_cmp_gt_i32 {sr(MA_,2)}, s63, v{LANE}")
    A(f"s_sub_i32 s63, {NROW}, s44")
    A(f"s_mov_b32 s{sNL}, {NLOG2E:#x}")
    A(f"s_mov_b32 s{sNL+1}, s{sNL}")
    A("s_lshl_b32 s44, s5, 7")
    A(f"s_add_u32 s{sOUTS}, s44, s59")
    if EARLY: nl()
    A("s_waitcnt vmcnt(9) lgkmcnt(0)" if EARLY else "s_waitcnt lgkmcnt(0)")
    A("s_barrier")
    stamp(3)
    AP = 82
    def a_addr():
        A(f"v_add_u32 v{XA}, s58, v{C4}")
        A(f"v_xor_b32 v{XA+1}, 64, v{XA}")
        A(f"v_xor_b32 v{WA}, s45, v{C4+1}")
        A(f"v_xor_b32 v{WA+1}, 32, v{WA}")
    def a_reads():
        A(f"ds_read_b128 {vr(XF,4)}, v{XA}")
        A(f"ds_read_b128 {vr(XF+4,4)}, v{XA+1}")
        AA(wfrags(WF, WA, 0, 512))
    def a_addr2():
        A(f"v_xor_b32 v{AW}, s45, v{XA}")
        A(f"v_add_u32 v{AR}, s58, v{AR}")
        A(f"v_xor_b32 v{AR}, s45, v{AR}")
        A(f"v_add_u32 v{BWA}, s60, v{BWA}")
        A(f"v_add_u32 v{AGR}, s61, v{AGR0}")
        A(f"v_xor_b32 v{WA2}, s45, v{C4+2}")
        A(f"v_xor_b32 v{WA2+1}, 32, v{WA2}")
    def a_pack():
        AA(pk("v_pk_mul_f32", AP, AP, sr(sNL,2)))
        for q in range(4): A(f"v_cvt_pk_bf16_f32 v{AP+8+q}, v{AP+2*q}, v{AP+2*q+1}")
        A(f"ds_write_b128 v{AW}, {vr(AP+8,4)} offset:{AST-XS}")
        if "full" in OPT:
            A(f"v_add_u32 v{AR}, {AST}, v{T16}")
            A(f"v_lshrrev_b32 v{AG}, 3, v0")
            A(f"v_cmp_gt_u32 {sr(MA_,2)}, s6, v{AG}")
            A(f"v_and_b32 v{AG}, 7, v{AG}")
            A(f"v_xor_b32 v{AG}, v{AG}, v0")
            A(f"v_lshlrev_b32 v{AG}, 4, v{AG}")
            A("s_lshl_b32 s44, s5, 7")
            A("s_waitcnt lgkmcnt(0)")
            A("s_barrier")
        A(f"ds_read_b128 {vr(AP+12,4)}, v{AR}")
    def a_store():
        A(f"s_mov_b64 exec, {sr(MA_,2)}")
        A(f"buffer_store_dwordx4 {vr(AP+12,4)}, v{AG}, {sr(sWS,4)}, s{44 if 'full' in OPT else sOUTS} offen sc1")
        A("s_mov_b64 exec, -1")
    if EARLY: A(f"ds_read_b128 {vr(C4,4)}, v{t+4} offset:{TAB+4*1024}")
    A(f"ds_read_b128 {vr(HH,4)}, v{t+4} offset:{H1}")
    if not EARLY: A(f"ds_read_b128 {vr(C4,4)}, v{t+4} offset:{TAB+4*1024}")
    A(f"ds_read_b128 {vr(AG,4)}, v{t+4} offset:{TAB+5*1024}")
    A(f"s_mov_b32 s{sLB}, 24")
    A(f"s_mov_b32 s{sWID}, 36")
    A(f"s_mov_b32 s{sHI}, 36")
    A("s_mov_b32 s46, 0x55555556")
    A("s_waitcnt lgkmcnt(2)")
    if EARLY:
        a_addr(); a_reads()
        A("s_waitcnt lgkmcnt(10)")
    A(f"v_add3_u32 v{t+1}, v{HH}, v{HH+1}, v{HH+2}")
    A(f"v_add_u32 v{t+2}, v{t+1}, v{HH+3}")
    A(f"v_mov_b32 v{t+3}, v{t+2}")
    scan(t+3, [f"v_mad_i32_i24 v{DST+i}, v{BK+i}, s47, v{DST+i}" for i in range(8)] +
              [f"v_and_b32 v{IP[0]+1}, 0x30, v{T16}", f"v_and_b32 v{IP[1]+1}, 0x30, v{T16}", "s_mov_b32 s47, 0x2aaaaaab"])
    if EARLY:
        A("s_waitcnt lgkmcnt(0)")
        AA(mm(AP, WF))
    A(f"v_sub_u32 v{BB}, v{t+3}, v{t+2}")
    A(f"v_add_u32 v{BB+1}, v{BB}, v{HH}")
    A(f"v_add_u32 v{BB+2}, v{BB+1}, v{HH+1}")
    A(f"v_add_u32 v{BB+3}, v{BB}, v{t+1}")
    A(f"ds_write_b128 v{t+4}, {vr(BB,4)} offset:{BASE1}")
    if EARLY:
        a_addr2(); a_pack()
    for h in range(2):
        A(f"s_mov_b64 exec, {sr(M0_+2*h,2)}")
        for i in range(4*h, 4*h+4): A(f"ds_read_b32 v{BSV+i}, v{BK+i} offset:{BASE1}")
    if not EARLY:
        nl()
        if XL == "2": xw()
        w2()
    A(f"s_mov_b32 s{sCNT}, 0")
    if EARLY:
        A("s_waitcnt lgkmcnt(8)")
        a_store()
    C("record p lives in piece p/3: word at 4(p + p/3), node byte at p + p/3 of a separate array")
    for h in range(2):
        A(f"s_mov_b64 exec, {sr(M0_+2*h,2)}")
        A("s_waitcnt lgkmcnt(4)")
        for i in range(4*h, 4*h+4): A(f"v_add_u32 v{BSV+i}, v{BSV+i}, v{RK1+i}")
        for i in range(4*h, 4*h+4): A(f"v_mul_hi_u32 v{RK1+i}, v{BSV+i}, s46")
        for i in range(4*h, 4*h+4):
            A(f"v_add_u32 v{BK+i}, v{RK1+i}, v{BSV+i}")
            A(f"ds_write_b8 v{BK+i}, v{DST+i} offset:{SN}")
    A("s_mov_b64 exec, -1")
    for i in range(8): A(f"v_lshlrev_b32 v{BSV+i}, 2, v{BK+i}")
    A("s_cmp_lg_u32 s3, 0")
    A("s_cbranch_scc1 L_NOPC")
    for i in range(4): A(f"v_mul_hi_u32 v{PUB+2*i}, v{BB+i}, s47")
    for i in range(4): A(f"v_mad_i32_i24 v{BB+i}, v{PUB+2*i}, -6, v{BB+i}")
    for i in range(4): A(f"v_mul_u32_u24 v{BB+i}, 9, v{BB+i}")
    for i in range(4): A(f"v_lshl_add_u32 v{BB+i}, v{HH+i}, 3, v{BB+i}")
    for i in range(4): A(f"v_lshl_add_u32 v{BB+i}, v{BB+i}, 11, v{PUB+2*i}")
    for i in range(4): A(f"v_lshlrev_b32 v{PUB+2*i}, 5, v{BB+i}")
    LB("L_NOPC")
    stamp(4)
    A("s_mov_b32 s46, 0xffff0000")
    stamp(24)
    for h in (1, 0):
        A(f"s_mov_b64 exec, {sr(M0_+2*h,2)}")
        A(f"s_waitcnt vmcnt({9 if h else 7})")
        for q in range(2*h, 2*h+2):
            A(f"v_lshl_or_b32 v{SRC+2*q}, v{EE+q}, 16, v{SRC+2*q}")
            A(f"ds_write_b32 v{BSV+2*q}, v{SRC+2*q} offset:{STG}")
            A(f"v_and_or_b32 v{SRC+2*q+1}, v{EE+q}, s46, v{SRC+2*q+1}")
            A(f"ds_write_b32 v{BSV+2*q+1}, v{SRC+2*q+1} offset:{STG}")
    A("s_mov_b64 exec, -1")
    A(f"v_lshlrev_b32 v{t+1}, 2, v0")
    A(f"v_add_u32 v{t+1}, {SN}, v{t+1}")
    A(f"v_lshrrev_b32 v{t+2}, 2, v{TLA}")
    A("s_cmp_lg_u32 s3, 0")
    A(f"s_waitcnt vmcnt({1 if EARLY else 0})")
    A("s_cbranch_scc1 L_PUBD")
    LB("L_PUB")
    A(f"v_cmp_eq_u32 vcc, 0, v{PUB+1}")
    A("s_cbranch_vccnz L_NONCEW")
    A(f"ds_write_b32 v{ZERO}, v{PUB+1} offset:{NONCE}")
    for i in range(1,4): A(f"v_mov_b32 v{PUB+1+2*i}, v{PUB+1}")
    A(f"buffer_store_dwordx4 {vr(PUB,4)}, v{T16}, {sr(sWS,4)}, s57 offen sc1")
    A(f"buffer_store_dwordx4 {vr(PUB+4,4)}, v{T16}, {sr(sWS,4)}, s57 offen offset:1024 sc1")
    LB("L_PUBD")
    A("s_waitcnt lgkmcnt(0)")
    A("s_barrier")
    stamp(5)
    A(f"ds_read_b32 v{t+5}, v{ZERO} offset:{NONCE}")
    A(f"ds_read_b128 {vr(GA,4)}, v{t+4} offset:{TAB+7*1024}")
    A(f"ds_read2st64_b32 v[118:119], v{t+1} offset0:0 offset1:8")
    for r in range(2): A(f"ds_read_b128 {vr(106+4*r,4)}, v{T16} offset:{STG+8192*r}")
    A(f"ds_read_b32 v120, v{t+2} offset:{SN}")
    A(f"ds_read_b128 v[114:117], v{TLA} offset:{STG}")
    A(f"s_mov_b32 s46, {~TMASK & 0xffffffff:#x}")
    A("s_waitcnt lgkmcnt(5)")
    A(f"v_mul_lo_u32 v{TW}, v{TW}, v{t+5}")
    A(f"v_readfirstlane_b32 s{sTAG}, v{t+5}")
    A(f"v_and_b32 v{TW}, {TMASK:#x}, v{TW}")
    twb = [f"v_mul_lo_u32 v{TWB}, v{TWB}, v{t+5}", f"v_and_b32 v{TWB}, {TMASK:#x}, v{TWB}"]
    for r in range(2):
        A(f"s_waitcnt lgkmcnt({3-r})")
        A(f"v_and_or_b32 v{109+4*r}, v{118+r}, s46, v{TW}")
        A(f"buffer_store_dwordx4 {vr(106+4*r,4)}, v{T16}, {sr(sWS,4)}, s{[43,55][r]} offen sc1")
    A("s_mov_b32 exec_lo, s56")
    A("s_mov_b32 exec_hi, 0")
    A("s_waitcnt lgkmcnt(0)")
    A(f"v_and_or_b32 v117, v120, s46, v{TW}")
    A(f"buffer_store_dwordx4 v[114:117], v{TLA}, {sr(sWS,4)}, s43 offen sc1")
    A("s_mov_b64 exec, -1")
    stamp(6)
    if not EARLY:
        a_addr(); a_reads(); a_addr2()
        A("s_lshr_b32 s47, s4, 2")
        A("s_lshl_b32 s47, s47, 1")
        A("s_and_b32 s46, s4, 1")
        A("s_add_u32 s47, s47, s46")
        A("s_and_b32 s46, s4, 2")
        A("s_lshl_b32 s46, s46, 6")
        A("s_add_u32 s47, s47, s46")
        A("s_lshl_b32 s47, s47, 3")
        A(f"s_add_u32 s47, s47, {OFFS:#x}")
        AA(twb)
        A(f"v_and_b32 v{t+8}, 3, v0")
        A(f"v_lshl_add_u32 v{t+8}, v{row}, 2, v{t+8}")
        A(f"v_lshl_add_u32 v{ENB}, v{t+8}, 11, s47")
        A(f"s_movk_i32 s46, {CHB}")
        A(f"v_and_b32 v{t+7}, 16, v{L4}")
        A(f"v_mad_u32_u24 v{RCB}, v{t+8}, s46, v{t+7}")
        A(f"s_mov_b32 s46, {4*CHB}")
        A(f"v_mad_u32_u24 v{RCA}, v{row}, s46, v{LP}")
        A(f"v_and_b32 v{ENA}, 6, v0")
        A(f"v_mad_u32_u24 v{ENA}, v{ENA}, 24, 7")
        C("all-zero pad row (index N): written by the last workgroup")
        A("s_cmpk_eq_u32 s2, 255")
        A("s_cselect_b32 exec_lo, -1, 0")
        A("s_mov_b32 exec_hi, 0")
        A(f"s_mov_b32 s44, {N*128}")
        A(f"buffer_store_dword v{ZERO}, v{L4}, {sr(sWS,4)}, s44 offen sc1")
        A("s_mov_b64 exec, -1")
        A("s_waitcnt lgkmcnt(0)")
        AA(mm(AP, WF))
    AA(wfrags(138, WA, 8192, 512))
    if not EARLY:
        a_pack()
        A("s_waitcnt lgkmcnt(2)")
    else:
        for k, d in ((0, S), (1, SX), (6, OUTO)): A(f"ds_read_b128 {vr(d,4)}, v{t+4} offset:{TAB+k*1024}")
        A("s_waitcnt lgkmcnt(3)")
    AA(mm(122, 138))
    if not EARLY:
        A("s_waitcnt lgkmcnt(0)")
        a_store()
        for k, d in ((0, S), (1, SX), (6, OUTO)): A(f"ds_read_b128 {vr(d,4)}, v{t+4} offset:{TAB+k*1024}")
    def wu():
        A(f"s_add_u32 m0, s42, {WU}")
        A(f"s_add_u32 s22, s{pWU}, 8192")
        A(f"s_addc_u32 s23, s{pWU+1}, 0")
        A(f"global_load_lds_dwordx4 v{WG_}, {sr(pWU,2)}")
        A("s_add_u32 m0, m0, 8192")
        A("s_nop 0")
        A(f"global_load_lds_dwordx4 v{WG_}, s[22:23]")
    WUP = OPT.get("wu", "1")
    if WUP == "1": wu()
    for q in range(0, 4, 2): A(f"v_mov_b64 {vr(130+q,2)}, 0")
    for q in range(4): A(f"ds_read_u16_d16_hi v{130+q}, v{C4+3} offset:{W3 + 8*q}")
    A(f"v_and_b32 v{t+7}, 15, v0")
    A(f"v_cmp_gt_i32 {sr(mON,2)}, s62, v{t+7}")
    OF = 106
    def entry_load():
        A(f"v_mov_b32 v{OF+5}, s{sTAG}")
        A("s_mov_b32 exec_lo, 0x0f0f0f0f")
        A("s_mov_b32 exec_hi, exec_lo")
        A(f"buffer_load_dwordx2 {vr(OF+4,2)}, v{ENB}, {sr(sWS,4)}, 0 offen sc1")
        A("s_mov_b64 exec, -1")
    C("---- B', S_B, U (while the stores drain)")
    AA(pk("v_pk_mul_f32", 122, 122, sr(sNL,2)))
    for q in range(8): A(f"v_exp_f32 v{210+q}, v{122+q}")
    AA(pk("v_pk_add_f32", 210, 210, "1.0", tail=" op_sel_hi:[1,0]"))
    if "entm" in OPT: entry_load()
    for q in range(8): A(f"v_rcp_f32 v{210+q}, v{210+q}")
    AA(pk("v_pk_mul_f32", 210, 122, 210))
    A(f"v_cmpx_gt_i32 vcc, s63, v{t+7}")
    A(f"ds_write_b128 v{BWA}, v[122:125]")
    A(f"ds_write_b128 v{BWA}, v[126:129] offset:16")
    A(f"ds_write_b128 v{BWA}, v[210:213] offset:{oSB}")
    A(f"ds_write_b128 v{BWA}, v[214:217] offset:{oSB+16}")
    A("s_mov_b64 exec, -1")
    if "entm" not in OPT: entry_load()
    RK, RW, ND = 186, 138, 112
    A("s_mov_b32 s12, s8")
    A(f"s_or_b32 s13, s9, {128 << 16:#x}")
    A(f"s_mov_b32 s14, {(N+1)*128}")
    A("s_mov_b32 s15, 0x20000")
    A(f"s_mov_b32 s16, s{pOUT}")
    A(f"s_mov_b32 s17, s{pOUT+1}")
    A(f"s_mov_b32 s18, {N*128}")
    A("s_mov_b32 s19, 0x20000")
    A(f"v_and_b32 v{FLA}, 0x1f0, v{T16}")
    A("s_lshl_b32 s44, s3, 9")
    A(f"s_add_u32 s44, s44, {FL2:#x}")
    A(f"v_add_u32 v{FLA}, s44, v{FLA}")
    A("s_mul_i32 s44, s7, 392")
    A(f"s_mul_i32 s45, s3, {NPB}")
    A("s_add_u32 s44, s44, s45")
    A(f"v_add_lshl_u32 v{PFA}, v{LANE}, s44, 7")
    for q in range(0, 4, 2): A(f"v_mov_b64 {vr(EA+q,2)}, 0")
    for q in range(0, 8, 2): A(f"v_mov_b64 {vr(AGG+q,2)}, 0")
    A(f"s_movk_i32 s{sI0}, 128")
    A(f"s_mov_b32 s{sI0+1}, 0xff000000")
    A(f"s_mov_b32 s{sSAFE}, 0")
    A(f"s_mov_b32 s{sFIRST}, 1")
    A(f"v_mov_b32 v{t+6}, s{sTAG}")
    A(f"v_not_b32 v{t+7}, v{t+6}")
    A("s_lshl_b32 s47, s2, 4")
    A(f"s_add_u32 s47, s47, {FL2:#x}")
    for q in range(6): A(f"v_mov_b32 v{RW+4*q+3}, v{TW if q < 4 else TWB}")
    A("s_mov_b32 s46, 0x8000801f")
    stamp(7)
    C("the wave that is last to see its stores acknowledged publishes this workgroup's table flag")
    A("s_mov_b64 exec, 1")
    A(f"s_waitcnt vmcnt({3 if WUP == '1' else 1})")
    A(f"ds_add_rtn_u32 v{t}, v{ZERO}, v{t} offset:{NONCE+4}")
    A("s_waitcnt lgkmcnt(0)")
    A(f"v_cmpx_eq_u32 vcc, 7, v{t}")
    A(f"buffer_store_dwordx2 {vr(t+6,2)}, off, {sr(sWS,4)}, s47 sc1")
    A("s_mov_b64 exec, -1")
    stamp(26)
    A(f"s_waitcnt vmcnt(1)")
    LB("L_ENT")
    A("s_nop 1")
    A(f"v_mov_b32_dpp v{OF+4}, v{OF+4} row_shr:4 row_mask:0xf bank_mask:0xa")
    A(f"v_xor_b32 v{OF+5}, s{sTAG}, v{OF+5}")
    A(f"v_and_or_b32 v{OF+5}, v{OF+4}, s46, v{OF+5}")
    A(f"v_cmp_ne_u32 vcc, 0, v{OF+5}")
    for i in range(4): A(f"v_mov_b32_dpp v{OF+i}, v{OF+4} quad_perm:[{i},{i},{i},{i}] row_mask:0xf bank_mask:0xf")
    A("s_cbranch_vccnz L_ENTR")
    stamp(8)
    note(sCNT, 20)
    A(f"s_mov_b32 s{sCNT}, 0")
    LB("L_LOADS")
    A(f"s_mov_b32 s46, {REC:#x}")
    for i in range(4):
        lo = OF+i
        A(f"v_add_u32_sdwa v{t+2}, v{lo}, v{RCA} dst_sel:DWORD dst_unused:UNUSED_PAD src0_sel:WORD_0 src1_sel:DWORD")
        A(f"v_cmpx_lt_u32_sdwa vcc, v{ENA}, v{lo} src0_sel:DWORD src1_sel:WORD_1")
        if i == 0: stamp(9)
        A(f"buffer_load_dwordx4 {vr(RW+4*i,4)}, v{t+2}, {sr(sWS,4)}, s46 offen sc1")
        A("s_mov_b64 exec, -1")
        if i < 3: A(f"s_add_u32 s46, s46, {CHB}")
    lo = OF+4
    A(f"v_lshrrev_b32 v{t+1}, 19, v{lo}")
    A(f"s_mov_b32 s{sRARE}, 0")
    A(f"v_cmp_lt_u32 {sr(mMORE,2)}, s{sHI}, v{t+1}")
    A(f"v_cmpx_lt_u32 vcc, s{sLB}, v{t+1}")
    A("s_cbranch_execz L_NOB")
    A(f"s_mov_b32 s46, {REC+128:#x}")
    A(f"v_add_u32_sdwa v{t+2}, v{lo}, v{RCB} dst_sel:DWORD dst_unused:UNUSED_PAD src0_sel:WORD_0 src1_sel:DWORD")
    A(f"v_subrev_u32 v{t+1}, s{sLB}, v{t+1}")
    A(f"buffer_load_dwordx4 {vr(RW+16,4)}, v{t+2}, {sr(sWS,4)}, s46 offen sc1")
    A(f"v_bfe_u32 v{t+3}, v0, 2, 1")
    A(f"v_mad_i32_i24 v{t+3}, v{t+3}, -3, v{t+1}")
    for k in range(6): A(f"v_cmp_lt_i32 {mk(12+k)}, {6*(k//3) + k%3}, v{t+3}")
    A(f"v_cmpx_lt_i32 vcc, 6, v{t+1}")
    A(f"buffer_load_dwordx4 {vr(RW+20,4)}, v{t+2}, {sr(sWS,4)}, s46 offen offset:32 sc1")
    A("s_cmp_lg_u64 vcc, 0")
    A(f"s_cselect_b32 s{sRARE}, 2, 1")
    LB("L_NOB")
    A("s_mov_b64 exec, -1")
    stamp(10)
    PA = int(OPT.get("pa", 12)); PB_ = int(OPT.get("pb", 24))
    def pf(a, b, who=None):
        m = ((1 << b) - 1) ^ ((1 << a) - 1) if b > a else 0
        if who:
            A(f"s_cmp_{who}_u32 s3, 4")
            A(f"s_cselect_b32 exec_lo, {m & 0xffffffff:#x}, 0")
            A(f"s_cselect_b32 exec_hi, {m >> 32:#x}, 0")
        else:
            A(f"s_mov_b32 exec_lo, {m & 0xffffffff:#x}")
            A(f"s_mov_b32 exec_hi, {m >> 32:#x}")
        A(f"buffer_load_dword v254, v{PFA}, {sr(sWS,4)}, 0 offen sc1")
        A("s_mov_b64 exec, -1")
    P0 = int(OPT.get("p0", 0)); P0W = OPT.get("p0w", "0")
    SPL = "spl" in OPT
    if P0 and P0W == "0": pf(0, P0, "ge" if SPL else None)
    for i in range(4):
        A(f"v_bfe_u32 v{t+1}, v{OF+i}, 16, 3")
        A(f"v_lshrrev_b32 v{t+2}, 19, v{OF+i}")
        A(f"v_sub_u32 v{t+3}, v{KP}, v{t+1}")
        A(f"v_sub_u32 v{t+2}, v{t+2}, v{t+1}")
        for r in range(3):
            A(f"v_cmp_lt_u32 {mk(3*i+r)}, v{t+3}, v{t+2}")
            if r < 2: A(f"v_add_u32 v{t+3}, 1, v{t+3}")
    A(f"s_cmp_lg_u32 s{sFIRST}, 1")
    A("s_cbranch_scc1 L_HIST")
    A(f"s_mov_b32 s{sFIRST}, 2")
    C("---- remaining constants (in the shadow of the record loads)")
    AA(pk("v_pk_mul_f32", 130, 130, sr(sNL,2), n=4))
    A("v_cvt_pk_bf16_f32 v130, v130, v131")
    A("v_cvt_pk_bf16_f32 v131, v132, v133")
    for u in range(2): A(f"v_and_b32 v{W+u}, v{130+u}, v{SX+1}")
    A(f"s_bfm_b64 {sr(mLN,2)}, s6, 0")
    A("s_lshl_b32 s44, s3, 4")
    A(f"v_add_u32 v{AGW}, s44, v{AGW}")
    A("s_lshl_b32 s44, s3, 5")
    A(f"v_add_u32 v{CRA}, s44, v{ROWL}")
    A(f"s_mul_i32 s44, s3, {8*TP}")
    A(f"v_add_u32 v{TOTW}, s44, v{GD}")
    A("s_mov_b32 s20, 0x11111111")
    A("s_mov_b32 s21, s20")
    A("s_mov_b32 s30, 0x200000")
    A(f"s_mov_b32 s40, {BIG:#x}")
    A("s_mov_b32 s41, s40")
    LB("L_HIST")
    for q in range(0, 18, 2): A(f"v_mov_b64 {vr(RK+q,2)}, s[40:41]")
    A(f"v_mov_b32 v{t+5}, 4")
    A(f"s_mov_b64 exec, {sr(mMORE,2)}")
    A(f"ds_write_b32 v{ZERO}, v{t+5} offset:{FLAGS}")
    A("s_mov_b64 exec, -1")
    if P0 and P0W == "1": pf(0, P0)
    stamp(11)
    A(f"s_waitcnt vmcnt({1 if P0 else 0})")
    for q in range(6): A(f"v_xor_b32 v{RW+4*q+3}, v{RW+4*q+3}, v{TW if q < 4 else TWB}")
    A(f"v_or3_b32 v{t+3}, v{RW+3}, v{RW+7}, v{RW+11}")
    A(f"v_or3_b32 v{t+2}, v{RW+15}, v{RW+19}, v{RW+23}")
    A(f"v_or_b32 v{t+3}, v{t+3}, v{t+2}")
    A(f"v_and_b32 v{t+3}, {TMASK:#x}, v{t+3}")
    A(f"v_cmp_ne_u32 vcc, 0, v{t+3}")
    nd = lambda k: (ND + 2*(k//3) + k%3) if k % 3 < 2 else RW + 4*(k//3) + 3
    rw = lambda k: RW + 4*(k//3) + k%3
    def extract(q):
        A(f"v_and_b32 v{nd(3*q)}, 0xff, v{RW+4*q+3}")
        A(f"v_bfe_u32 v{nd(3*q+1)}, v{RW+4*q+3}, 8, 8")
        A(f"v_lshrrev_b32 v{RW+4*q+3}, 16, v{RW+4*q+3}")
    def hist(k):
        A(f"s_mov_b64 exec, {mk(k)}")
        A(f"ds_add_rtn_u32 v{RK+k}, v{nd(k)}, v{t+5} offset:{HIST2}")
    A("s_cbranch_vccnz L_HR")
    if WUP == "2":
        A("s_lshl_b32 s42, s3, 10")
        wu()
    FP = OPT.get("fp", "b")
    def flag(): A(f"buffer_load_dwordx2 {vr(FLV,2)}, v{FLA}, {sr(sWS,4)}, 0 offen sc1")
    if FP == "a": flag()
    if SPL:
        P0 = 0
        if PA: pf(0, PA, "lt")
    elif PA > P0: pf(P0, PA)
    A(f"s_cmp_eq_u32 s{sRARE}, 2")
    A("s_cbranch_scc1 L_RAREX")
    LB("L_RAREXD")
    for q in range(4): extract(q)
    A(f"s_cmp_eq_u32 s{sRARE}, 0")
    A("s_cbranch_scc1 L_RARE1")
    extract(4)
    for k in range(12, 15): hist(k)
    LB("L_RARE1")
    for k in range(12): hist(k)
    A("s_mov_b64 exec, -1")
    A("s_cbranch_scc1 L_RARE2")
    A("s_waitcnt lgkmcnt(12)")
    for k in range(12, 15): A(f"ds_write_b32 v{RK+k}, v{rw(k)}")
    LB("L_RARE2")
    for k in range(12):
        if k % 3 == 0: A("s_waitcnt lgkmcnt(9)")
        A(f"ds_write_b32 v{RK+k}, v{rw(k)}")
    if FP == "h": flag()
    note(sCNT, 21); stamp(23); note(sRARE, 25)
    A(f"s_cmp_lg_u32 s{sSAFE}, 0")
    A(f"s_cselect_b32 s44, 1.0, {f2u(2.0**-64):#x}")
    A("s_mov_b32 s45, s44")
    A("s_lshl_b32 s46, s3, 4")
    A("s_waitcnt lgkmcnt(0)")
    A("s_barrier")
    stamp(12)
    CNT, PB, INC, BS = t+6, t+7, t+8, t+9
    A(f"ds_read_b32 v{CNT}, v{L4} offset:{HIST2}")
    if FP == "b": flag()
    if PB_ > PA: pf(PA, PB_, "lt" if SPL else None)
    A(f"v_mov_b32 v{LBASE}, v{HINIT}")
    A("s_waitcnt lgkmcnt(0)")
    A(f"v_sub_u32 v{CNT}, v{CNT}, v{HINIT}")
    A(f"v_add_u32 v{PB}, 12, v{CNT}")
    A(f"v_and_b32 v{PB}, -16, v{PB}")
    A(f"v_max_u32 v{PB}, 16, v{PB}")
    A(f"v_cndmask_b32 v{PB}, 0, v{PB}, {sr(mLN,2)}")
    A(f"v_mov_b32 v{INC}, v{PB}")
    scan(INC, [f"v_sub_u32 v{t}, v{PB}, v{CNT}", f"v_cmp_lt_u32 vcc, {CAPB}, v{CNT}"] + [f"v_mov_b64 {vr(Nn+q,2)}, 0" for q in range(0,8,2)] +
              [f"v_mov_b64 {vr(Dd+q,2)}, s[44:45]" for q in range(0,8,2)] +
              [f"v_cvt_f32_u32 v{NPAD}, v{t}", f"v_mul_f32 v{NPAD}, {f2u(-0.25):#x}, v{NPAD}"])
    A(f"v_sub_u32 v{BS}, v{INC}, v{PB}")
    A(f"v_readlane_b32 s44, v{INC}, 63")
    A(f"s_mov_b32 s{sREDO}, 0")
    A("s_lshl_b32 s47, s3, 2")
    A("s_cmpk_gt_u32 s44, 16384")
    A("s_cbranch_scc1 L_TOOBIG")
    A("s_cbranch_vccnz L_DENSE")
    LB("L_DENSED")
    C("pad entries, quad descriptors")
    A(f"v_add3_u32 v{t+1}, v{LBASE}, v{CNT}, s47")
    A(f"v_add_u32 v{t+2}, s46, v{LBASE}")
    A(f"v_subrev_u32 v{t+3}, s46, v{PB}")
    A(f"v_add_u32 v{t+3}, -16, v{t+3}")
    A(f"v_lshl_add_u32 v{t+3}, v{t+3}, 17, v{ROWL}")
    A(f"v_add_u32 v{t+4}, s46, v{BS}")
    A(f"v_lshrrev_b32 v{t+4}, 1, v{t+4}")
    A(f"v_cmpx_lt_u32 vcc, s47, v{t}")
    A(f"ds_write_b32 v{t+1}, v62")
    A("s_mov_b64 exec, 0xffff")
    A("s_lshr_b32 s47, s44, 1")
    A(f"v_lshl_add_u32 v{t+1}, v{L4}, 1, s47")
    A(f"v_mov_b32 v{DSC}, {PADQ}")
    A(f"v_mov_b32 v{DSC+1}, {BIG + ROWS + 49*RP:#x}")
    A(f"ds_write_b64 v{t+1}, {vr(DSC,2)} offset:{QD}")
    A("s_mov_b64 exec, -1")
    LB("L_QD")
    for q in range(3):
        A(f"v_cmpx_lt_u32 vcc, s46, v{PB}")
        A("s_add_u32 s46, s46, 128")
        A(f"ds_write_b64 v{t+4}, {vr(t+2,2)} offset:{QD+64*q}")
        A(f"v_lshl_add_u64 {vr(t+2,2)}, {vr(t+2,2)}, 0, {sr(sI0,2)}")
    A(f"v_cmpx_lt_u32 vcc, s46, v{PB}")
    A(f"v_add_u32 v{t+4}, 192, v{t+4}")
    A("s_cbranch_execnz L_QD")
    A("s_mov_b64 exec, -1")
    A("s_add_u32 s44, s44, 127")
    A(f"s_lshr_b32 s{sT0}, s44, 10")
    A(f"s_bfe_u32 s{sR}, s44, 0x30007")
    A(f"s_mul_i32 s44, s{sT0}, s3")
    A(f"s_min_u32 s47, s{sR}, s3")
    A(f"s_add_u32 s{sSTART}, s44, s47")
    A(f"s_cmp_lt_u32 s3, s{sR}")
    A(f"s_addc_u32 s{sT}, s{sT0}, 0")
    def streams():
        A(f"s_lshl_b32 s44, s{sT}, 3")
        A(f"s_lshl_b32 s45, s{sSTART}, 6")
        A(f"v_mul_u32_u24 v{QA}, s44, v{GA}")
        A(f"v_add_u32 v{QA}, s45, v{QA}")
    streams()
    A(f"s_not_b32 s45, s{sTAG}")
    A(f"s_waitcnt vmcnt({(1 if PB_ > PA else 0) + (1 if FP == 'a' and PA > P0 else 0)})")
    LB("L_FC")
    A(f"v_xor_b32 v{FLV}, s{sTAG}, v{FLV}")
    A(f"v_xor_b32 v{FLV+1}, s45, v{FLV+1}")
    A(f"v_or_b32 v{FLV}, v{FLV}, v{FLV+1}")
    A(f"v_cmp_ne_u32 vcc, 0, v{FLV}")
    A("s_cbranch_vccnz L_FR")
    note(sCNT, 22)
    LB("L_MAIN")
    A("s_waitcnt lgkmcnt(0)")
    A("s_barrier")
    A("s_setprio 2")
    stamp(13); stamp(27, real=True)
    def gathers(g_):
        return [f"buffer_load_dwordx4 {vr(G[g_]+8*b+4*u,4)}, {vr(IP[b],2)}, {sr(sA,4)}, 0 idxen offen offset:{64*u}" for u in range(2) for b in range(2)]
    def idx(a):
        return [f"ds_read_u16 v{IP[b]}, v{a} offset:{8*b}" for b in range(2)]
    def eas(a):
        r = []
        for c in range(4):
            r.append("s_mov_b64 exec, s[20:21]" if c == 0 else "s_lshl_b64 exec, exec, 1")
            r += [f"ds_read_u16{'_d16_hi' if c & 1 else ''} v{EA+2*b+(c>>1)}, v{a} offset:{8*b+2}" for b in range(2)]
        return r + ["s_mov_b64 exec, -1"]
    def cbs(areg, off):
        return [f"ds_read_b128 {vr(CB+4*k,4)}, v{areg} offset:{off+16*(k&1)}" for k in range(4)]
    A(f"ds_read2_b32 {vr(FLV,2)}, v{QA} offset0:0 offset1:2")
    A(f"ds_read2_b32 {vr(DSC,2)}, v{QA} offset0:4 offset1:1")
    A("s_waitcnt lgkmcnt(1)")
    A(f"v_add_u32 v{FLV}, v{FLV}, v{LP2}")
    A(f"v_add_u32 v{PF_[1]}, v{FLV+1}, v{LP2}")
    AA(idx(FLV))
    A(f"ds_read_u16 v{t}, v{PF_[1]}")
    A(f"ds_read_u16 v{t+1}, v{PF_[1]} offset:8")
    A("s_waitcnt lgkmcnt(2)")
    AA(gathers(0))
    A(f"v_lshl_add_u64 {vr(PF_[0],2)}, {vr(DSC,2)}, 0, {vr(LP2,2)}")
    A(f"v_and_b32 v{DSC}, 0x1fffff, v{PF_[0]+1}")
    A("s_waitcnt lgkmcnt(0)")
    A(f"v_mov_b32 v{IP[0]}, v{t}")
    A(f"v_mov_b32 v{IP[1]}, v{t+1}")
    AA(cbs(DSC, 0) + eas(FLV))
    AA(gathers(1))
    A(f"s_cmp_lg_u32 s{sREDO}, 0")
    A("s_cbranch_scc1 L_NOSH")
    A(f"ds_read_b128 v[154:157], v{CRA} offset:{oSB}")
    A(f"ds_read_b128 v[158:161], v{CRA} offset:{oSB+16}")
    C("s(n) = stream holding the node's last quad; the node needs the totals of streams s(n-1) .. s(n)-1")
    cn, ta, tb = t+3, t+4, t+5
    A(f"s_add_u32 s44, s{sT0}, 1")
    A(f"v_cvt_f32_u32 v{t}, s44")
    A(f"v_cvt_f32_u32 v{t+1}, s{sT0}")
    A(f"v_lshrrev_b32 v{t+2}, 4, v{INC}")
    A(f"v_rcp_f32 v{t}, v{t}")
    A(f"v_rcp_f32 v{t+1}, v{t+1}")
    A(f"s_lshl_b32 s45, s{sR}, 3")
    A("s_mul_i32 s44, s44, s45")
    A(f"v_cvt_f32_u32 v{cn}, v{t+2}")
    A(f"v_cmp_ge_u32 vcc, s44, v{t+2}")
    A(f"v_subrev_u32 v{t+2}, s44, v{t+2}")
    A(f"v_cvt_f32_i32 v{t+2}, v{t+2}")
    A(f"v_add_f32 v{cn}, -0.5, v{cn}")
    A(f"v_add_f32 v{t+2}, -0.5, v{t+2}")
    A(f"v_mul_f32 v{cn}, v{cn}, v{t}")
    A(f"v_mul_f32 v{t+2}, v{t+2}, v{t+1}")
    A(f"v_cvt_u32_f32 v{cn}, v{cn}")
    A(f"v_cvt_u32_f32 v{t+2}, v{t+2}")
    A(f"v_add_u32 v{t+2}, s45, v{t+2}")
    A(f"v_cndmask_b32 v{cn}, v{t+2}, v{cn}, vcc")
    A(f"v_mul_u32_u24 v{cn}, {TP}, v{cn}")
    A("s_lshl_b32 s46, s3, 5")
    A(f"v_mov_b32 v{t}, {BIG:#x}")
    A(f"v_mov_b32_dpp v{ta}, v{cn} wave_shr:1 row_mask:0xf bank_mask:0xf bound_ctrl:1")
    A(f"v_sub_u32 v{cn}, v{cn}, v{ta}")
    A(f"v_add_u32 v{SID}, s46, v{ta}")
    A(f"v_cmp_lt_i32 s[44:45], 0, v{cn}")
    A(f"v_cmp_lt_i32 vcc, {TP}, v{cn}")
    A("s_nop 0")
    A(f"v_cndmask_b32 v{ta}, v{t}, v{SID}, s[44:45]")
    A(f"v_cndmask_b32 v{tb}, v{t}, v{SID}, vcc")
    A(f"v_cmp_lt_i32 vcc, {2*TP}, v{cn}")
    A("s_waitcnt lgkmcnt(0)")
    for q in range(0,8,2): A(f"v_pk_fma_f32 {vr(AGG+q,2)}, {vr(154+q,2)}, {vr(NPAD,2)}, {vr(AGG+q,2)} op_sel_hi:[1,0,1]")
    A("s_cmp_lg_u64 vcc, 0")
    A(f"s_cselect_b32 s{sTM}, 1, 0")
    A(f"s_cmp_lg_u32 s{sFIRST}, 2")
    A("s_cbranch_scc1 L_NOSH")
    A(f"s_mov_b32 s{sFIRST}, 0")
    A(f"ds_read_b128 {vr(XF,4)}, v{XA}")
    A(f"ds_read_b128 {vr(XF+4,4)}, v{XA+1}")
    AA(wfrags(WF, WA, WU-WM, 512))
    AA(wfrags(WF2, WA2, 0, 2048))
    A("s_waitcnt lgkmcnt(8)")
    AA(mm(U, WF))
    LB("L_NOSH")
    A(f"s_sub_u32 s{sCNT}, s{sT}, 1")
    A("s_cbranch_scc1 L_WEND")
    def mfmas(g_, b):
        d = vr(T[b],16)
        return [f"v_mfma_f32_32x32x8_bf16 {d}, {vr(W,2)}, {vr(EA+2*b,2)}, {vr(CB,16)}",
                f"v_smfmac_f32_32x32x32_bf16 {d}, {vr(S,4)}, {vr(G[g_]+8*b,8)}, v{SX}"]
    def chain(b, safe):
        o = []
        if safe:
            o += pk("v_pk_add_f32", EX, EX, "1.0", n=16, tail=" op_sel_hi:[1,0]")
            o += [f"v_rcp_f32 v{EX+r}, v{EX+r}" for r in range(16)]
            for q in range(2):
                for p in range(4):
                    n = vr(Nn+2*p,2)
                    o.append(f"v_pk_fma_f32 {n}, {vr(T[b]+8*q+2*p,2)}, {vr(EX+8*q+2*p,2)}, {n}")
            return o
        for q in range(2):
            for p in range(4):
                n = vr(Nn+2*p,2); o.append(f"v_pk_fma_f32 {n}, {n}, {vr(EX+8*q+2*p,2)}, {n}")
            for p in range(4):
                n = vr(Nn+2*p,2); o.append(f"v_pk_fma_f32 {n}, {vr(T[b]+8*q+2*p,2)}, {vr(Dd+2*p,2)}, {n}")
            for p in range(4):
                d = vr(Dd+2*p,2); o.append(f"v_pk_fma_f32 {d}, {d}, {vr(EX+8*q+2*p,2)}, {d}")
        return o
    def flush(a):
        return [f"ds_write_b128 v{a}, {vr(r+4*k,4)} offset:{o+16*k}" for r, o in ((Nn, oN), (Dd, oD)) for k in range(2)]
    ms = mfmas(0, 0)
    A("s_waitcnt lgkmcnt(0)")
    A(ms[0])
    A(f"v_cmp_gt_u32 vcc, s30, v{PF_[0]+1}")
    A("s_mov_b64 s[24:25], 0")
    A("s_waitcnt vmcnt(4)")
    stamp(14)
    A(f"s_cmp_lg_u32 s{sSAFE}, 0")
    A(ms[1])
    A("s_setprio 1")
    A("s_nop 9")
    A("s_cbranch_scc1 L_INS")
    A("s_branch L_INF")
    def size(x):
        x = x.strip()
        if x.endswith(":"): return 0
        if x.startswith("s_memtime"): return 8
        if x.startswith("v_exp_f32 ") or x.startswith("v_rcp_f32 ") or x.startswith("s_") or x.startswith("v_add_u32 ") or x.startswith("v_cmp_gt_u32 vcc") or x.startswith("v_mov_b32"): return 4
        return 8
    def aligned(body):
        out = []; off = 0
        for x in body:
            if size(x) == 8 and off % 8 and x.startswith("v_"):
                p = out[-1]
                if p.startswith("v_exp_f32 ") or p.startswith("v_rcp_f32 "):
                    out[-1] = p.replace("_f32 ", "_f32_e64 "); off += 4
                elif "nopad" not in OPT:
                    k = len(out)
                    while out[k-1].endswith(":"): k -= 1
                    out.insert(k, "s_nop 0"); off += 4
            out.append(x); off += size(x)
        return out
    PP = int(OPT.get("pp", 24)); GAP = int(OPT.get("gap", 4))
    def esec(b, ms, lead):
        o = []
        for r in range(16):
            if r == lead: o.append(ms[0])
            if r == lead + GAP: o.append(ms[1])
            o.append(f"v_exp_f32 v{EX+r}, v{T[b]+r}")
        return o
    def loop(tag, safe):
        L.append(".p2align 6")
        B = [f"L_LOOP{tag}:"]
        for ph in range(2):
            o = 16*ph
            B += ["s_setprio 0"]
            if "lst" in OPT: B += ["s_memtime s[98:99]"]
            MO = OPT.get("mo", "0")
            cb = [f"s_cbranch_vccz L_C{tag}{ph}", "s_mov_b64 exec, vcc"] + cbs(PF_[ph]+1, RP) + (["s_mov_b64 exec, -1"] if MO == "1" else []) + [f"L_C{tag}{ph}:"]
            ee = eas(PF_[1-ph]) + [f"ds_read2_b32 {vr(DSC,2)}, v{QA} offset0:{2*ph+6} offset1:{2*ph+3}"]
            gg = [f"s_cmp_lt_u32 s{sCNT}, 2", f"s_cbranch_scc1 L_GS{tag}{ph}", "s_waitcnt lgkmcnt(9)"] + gathers(ph) + [f"L_G{tag}{ph}:"]
            ff = ["s_cmp_eq_u64 s[24:25], 0", f"s_cbranch_scc1 L_FS{tag}{ph}"] + flush(PF_[1-ph]+1) + [f"L_F{tag}{ph}:"]
            if MO == "0": B += idx(PF_[ph]) + cb + ee + gg + ff
            if MO == "1": B += idx(PF_[ph]) + ee + gg + cb + ff
            if MO == "2": B += idx(PF_[ph]) + cb + ee + ff + gg
            B += ["s_mov_b64 s[24:25], vcc"]
            if "lst" in OPT:
                B += ["s_waitcnt vmcnt(4) lgkmcnt(0)", "s_memtime s[26:27]", f"s_mov_b32 m0, s{sCNT}", "s_nop 0", "s_movreld_b32 s48, s98", "s_waitcnt lgkmcnt(0)", "s_movreld_b32 s64, s26"]
            B += [f"s_sub_u32 s{sCNT}, s{sCNT}, 1", "s_waitcnt vmcnt(4) lgkmcnt(4)"]
            c = chain(0, safe)
            pp = min(PP, len(c))
            B += c[:pp] + ["s_setprio 1"] + c[pp:]
            B += esec(1, mfmas(1-ph, 0), 1 if pp == len(c) else 0)
            B += chain(1, safe)
            B += [f"s_cbranch_scc1 L_X{tag}{ph}", f"v_cmp_gt_u32 vcc, s30, v{DSC+1}", f"v_lshl_add_u64 {vr(PF_[1-ph],2)}, {vr(DSC,2)}, 0, {vr(LP2,2)}"]
            if ph == 1: B.append(f"v_add_u32 v{QA}, 16, v{QA}")
            if ph == 1: B.append(f"L_IN{tag}:")
            B += esec(0, mfmas(1-ph, 1), 1)
        B.append(f"s_branch L_LOOP{tag}")
        for ph in range(2):
            B += [f"L_GS{tag}{ph}:", "s_waitcnt vmcnt(0)", f"s_branch L_G{tag}{ph}", f"L_FS{tag}{ph}:", "s_waitcnt lgkmcnt(0)", f"s_branch L_F{tag}{ph}"]
        B += [f"L_X{tag}1:", f"v_mov_b32 v{PF_[0]+1}, v{PF_[1]+1}", f"L_X{tag}0:", "s_setprio 0", "s_cmp_eq_u64 s[24:25], 0", "s_cbranch_scc1 L_SEND"] + flush(PF_[0]+1)
        for x in aligned(B):
            (L.append(x) if x.endswith(":") else A(x))
    loop("F", False)
    LB("L_SEND")
    stamp(15); note(sT, 24)
    for q in range(8): A(f"v_rcp_f32 v{EX+q}, v{Dd+q}")
    A(f"v_pk_add_f32 v[186:187], {vr(Dd,2)}, {vr(Dd+2,2)}")
    AA(pk("v_pk_mul_f32", EX, Nn, EX))
    A(f"ds_write_b128 v{TOTW}, {vr(EX,4)} offset:{TOT}")
    A(f"ds_write_b128 v{TOTW}, {vr(EX+4,4)} offset:{TOT+16}")
    A(f"v_pk_add_f32 v[188:189], {vr(Dd+4,2)}, {vr(Dd+6,2)}")
    A(f"v_pk_add_f32 v[190:191], {vr(EX,2)}, {vr(EX+2,2)}")
    A(f"v_pk_add_f32 v[192:193], {vr(EX+4,2)}, {vr(EX+6,2)}")
    A("v_pk_add_f32 v[186:187], v[186:187], v[188:189]")
    A("v_pk_add_f32 v[190:191], v[190:191], v[192:193]")
    A("v_pk_fma_f32 v[186:187], v[190:191], 0, v[186:187] op_sel_hi:[1,0,1]")
    A("v_add_f32 v186, v186, v187")
    A("v_mov_b32 v189, 1")
    A(f"v_cmpx_ngt_f32 vcc, {f2u(2.0**110):#x}, v186")
    A(f"ds_write_b32 v{ZERO}, v189 offset:{FLAGS+4}")
    A("s_mov_b64 exec, -1")
    LB("L_WEND")
    A(f"s_mov_b32 s42, {NLN2:#x}")
    A("s_mov_b32 s43, s42")
    A("s_waitcnt lgkmcnt(0)")
    A("s_barrier")
    stamp(16); stamp(28, real=True)
    FN, FD, T0_, T1_ = 186, 194, 202, 210
    A(f"ds_read_b128 {vr(FD,4)}, v{CRA} offset:{oD}")
    A(f"ds_read_b128 {vr(FD+4,4)}, v{CRA} offset:{oD+16}")
    A(f"ds_read_b64 {vr(t+6,2)}, v{ZERO} offset:{FLAGS}")
    A(f"ds_read_b128 {vr(FN,4)}, v{CRA} offset:{oN}")
    A(f"ds_read_b128 {vr(FN+4,4)}, v{CRA} offset:{oN+16}")
    A(f"ds_read_b128 {vr(T0_,4)}, v{ta} offset:{TOT}")
    A(f"ds_read_b128 {vr(T0_+4,4)}, v{ta} offset:{TOT+16}")
    A(f"ds_read_b128 {vr(T1_,4)}, v{tb} offset:{TOT+TP}")
    A(f"ds_read_b128 {vr(T1_+4,4)}, v{tb} offset:{TOT+TP+16}")
    A("s_waitcnt lgkmcnt(8)")
    for q in range(4): A(f"v_rcp_f32 v{FD+q}, v{FD+q}")
    A("s_waitcnt lgkmcnt(6)")
    for q in range(4, 8): A(f"v_rcp_f32 v{FD+q}, v{FD+q}")
    A(f"v_readfirstlane_b32 s47, v{t+7}")
    A(f"v_readfirstlane_b32 s{sMORE}, v{t+6}")
    A("s_waitcnt lgkmcnt(4)")
    AA(pk("v_pk_mul_f32", FN, FN, FD))
    A(f"s_andn2_b32 s47, s47, s{sSAFE}")
    A("s_cbranch_scc1 L_RETRY")
    for q in range(8):
        A(f"v_subrev_f32_dpp v{AGG+q}, v{FN+q}, v{AGG+q} wave_shr:1 row_mask:0xf bank_mask:0xf bound_ctrl:1")
    A(f"s_or_b32 s47, s{sMORE}, s{sTM}")
    A("s_waitcnt lgkmcnt(2)")
    AA(pk("v_pk_add_f32", FN, FN, T0_))
    A("s_waitcnt lgkmcnt(0)")
    AA(pk("v_pk_add_f32", AGG, AGG, T1_))
    AA(pk("v_pk_add_f32", AGG, AGG, FN))
    A("s_cbranch_scc1 L_TLM")
    LB("L_TLD")
    AA(pk("v_pk_mul_f32", FN, AGG, "s[42:43]"))
    for q in range(4): A(f"v_cvt_pk_bf16_f32 v{FD+q}, v{FN+2*q}, v{FN+2*q+1}")
    A(f"ds_write_b128 v{AGW}, {vr(FD,4)} offset:{AGS}")
    A("s_waitcnt lgkmcnt(0)")
    A("s_barrier")
    stamp(17)
    A(f"ds_read_b128 {vr(T0_,4)}, v{AGR} offset:{AGS}")
    A(f"ds_read_b128 {vr(T0_+4,4)}, v{AGR} offset:{AGS+64}")
    for ks in range(2):
        A(f"s_waitcnt lgkmcnt({1-ks})")
        for cb in range(2):
            A(f"v_mfma_f32_16x16x32_bf16 {vr(U+4*cb,4)}, {vr(WF2+8*cb+4*ks,4)}, {vr(T0_+4*ks,4)}, {vr(U+4*cb,4)}")
    A("s_nop 6")
    AA(pk("v_pk_mul_f32", FN, U, sr(sNL,2)))
    for q in range(8): A(f"v_exp_f32 v{FN+q}, v{FN+q}")
    AA(pk("v_pk_add_f32", FN, FN, "1.0", tail=" op_sel_hi:[1,0]"))
    for q in range(8): A(f"v_rcp_f32 v{FN+q}, v{FN+q}")
    AA(pk("v_pk_mul_f32", FN, U, FN))
    for q in range(4): A(f"v_cvt_pk_bf16_f32 v{FD+q}, v{FN+2*q}, v{FN+2*q+1}")
    A("s_nop 1")
    A(f"v_permlane16_swap_b32 v{FD}, v{FD+2}")
    A(f"v_permlane16_swap_b32 v{FD+1}, v{FD+3}")
    A(f"s_mov_b64 exec, {sr(mON,2)}")
    A(f"buffer_store_dwordx4 {vr(FD,4)}, v{OUTO}, {sr(sOUT,4)}, s{sOUTS} offen {OPT.get('outf','nt').replace('+',' ')}")
    if DIAG:
        stamp(18)
        if "lst" in OPT:
            for k in range(32): A(f"v_writelane_b32 v255, s{48+k}, {32+k}")
        A("s_waitcnt vmcnt(0)")
        stamp(19)
        stamp(31, real=True)
        A("s_mov_b32 exec_lo, -1")
        A("s_mov_b32 exec_hi, 0")
        A("s_lshl_b32 s44, s2, 3")
        A("s_add_u32 s44, s44, s3")
        A("s_lshl_b32 s44, s44, 7")
        A(f"s_add_u32 s44, s44, {STAMP:#x}")
        A(f"buffer_store_dword v255, v{L4}, {sr(sWS,4)}, s44 offen")
        A("s_not_b64 exec, exec")
        A(f"s_add_u32 s44, s44, {0x40000-128:#x}")
        A(f"buffer_store_dword v255, v{L4}, {sr(sWS,4)}, s44 offen")
    LB("L_END")
    A("s_endpgm")
    C("---- out-of-line paths")
    LB("L_TLM")
    A(f"v_min_i32 v{cn}, {64*TP}, v{cn}")
    LB("L_TLL")
    A(f"v_cmpx_lt_i32 vcc, {2*TP}, v{cn}")
    A("s_cbranch_execz L_TLE")
    A(f"ds_read_b128 {vr(T0_,4)}, v{SID} offset:{TOT+2*TP}")
    A(f"ds_read_b128 {vr(T0_+4,4)}, v{SID} offset:{TOT+2*TP+16}")
    A(f"v_add_u32 v{cn}, {-TP & 0xffffffff:#x}, v{cn}")
    A(f"v_add_u32 v{SID}, {TP}, v{SID}")
    A("s_waitcnt lgkmcnt(0)")
    AA(pk("v_pk_add_f32", AGG, AGG, T0_))
    A("s_branch L_TLL")
    LB("L_TLE")
    A("s_mov_b64 exec, -1")
    A(f"s_cmp_lg_u32 s{sMORE}, 0")
    A("s_cbranch_scc1 L_NEXT")
    A("s_branch L_TLD")
    LB("L_RAREX")
    extract(5)
    for k in range(15, 18): hist(k)
    A("s_mov_b64 exec, -1")
    A("s_waitcnt lgkmcnt(0)")
    for k in range(15, 18): A(f"ds_write_b32 v{RK+k}, v{rw(k)}")
    A("s_branch L_RAREXD")
    LB("L_DENSE")
    C("a node has more edges than its fixed list holds: lay the lists out back to back instead")
    A(f"v_add_u32 v{LBASE}, {LB_}, v{BS}")
    A(f"v_sub_u32 v{t+1}, v{LBASE}, v{HINIT}")
    A(f"ds_write_b32 v{L4}, v{t+1} offset:{BASE2}")
    for lvl, grp in enumerate((range(12), range(12, 15), range(15, 18))):
        for k in grp: A(f"ds_read_b32 v{nd(k)}, v{nd(k)} offset:{BASE2}")
        A("s_waitcnt lgkmcnt(0)")
        for k in grp:
            A(f"v_add_u32 v{RK+k}, v{nd(k)}, v{RK+k}")
            A(f"ds_write_b32 v{RK+k}, v{rw(k)}")
        if lvl < 2:
            A(f"s_cmp_eq_u32 s{sRARE}, {lvl}")
            A("s_cbranch_scc1 L_DENSED")
    A("s_branch L_DENSED")
    LB("L_NONCEW")
    A(f"global_load_dword v{PUB+1}, v{ZERO}, {sr(pDBG,2)} sc1")
    bound()
    A("s_waitcnt vmcnt(0)")
    A("s_branch L_PUB")
    LB("L_PASS")
    A(f"s_mov_b32 s{sCNT}, 0")
    LB("L_ENTR")
    A("s_waitcnt lgkmcnt(0)")
    entry_load()
    bound()
    A("s_waitcnt vmcnt(0)")
    A("s_branch L_ENT")
    LB("L_FR")
    A(f"buffer_load_dwordx2 {vr(FLV,2)}, v{FLA}, {sr(sWS,4)}, 0 offen sc1")
    bound()
    A("s_waitcnt vmcnt(0)")
    A("s_branch L_FC")
    LB("L_HR")
    for q in range(6): A(f"v_mov_b32 v{RW+4*q+3}, v{TW if q < 4 else TWB}")
    bound()
    A("s_branch L_LOADS")
    LB("L_RETRY")
    A(f"s_mov_b32 s{sSAFE}, 1")
    A(f"s_mov_b32 s{sREDO}, 1")
    for q in range(8):
        A(f"v_mov_b32 v{Nn+q}, 0")
        A(f"v_mov_b32 v{Dd+q}, 1.0")
    streams()
    A("s_waitcnt vmcnt(0) lgkmcnt(0)")
    A("s_branch L_MAIN")
    LB("L_TOOBIG")
    C("narrow passes: 12 positions of every segment at a time")
    A(f"s_sub_u32 s{sHI}, s{sHI}, 24")
    A(f"s_mov_b32 s{sWID}, 12")
    A(f"s_mov_b32 s{sLB}, {HUGE:#x}")
    A(f"v_cmpx_lt_u32 vcc, 63, v{LP}")
    A(f"v_mov_b32 v{KP}, {HUGE:#x}")
    A(f"v_mov_b32 v{ENA}, {HUGE:#x}")
    A("s_mov_b64 exec, -1")
    A("s_branch L_AGAIN")
    LB("L_NEXT")
    A(f"s_add_u32 s{sHI}, s{sHI}, s{sWID}")
    A(f"s_add_u32 s{sLB}, s{sLB}, s{sWID}")
    A(f"v_add_u32 v{KP}, s{sWID}, v{KP}")
    A(f"s_lshl_b32 s44, s{sWID}, 3")
    A(f"v_add_u32 v{ENA}, s44, v{ENA}")
    A(f"s_cmp_eq_u32 s{sWID}, 12")
    A("s_cselect_b32 s44, 64, 192")
    A(f"v_add_u32 v{RCA}, s44, v{RCA}")
    A(f"v_add_u32 v{RCB}, s44, v{RCB}")
    LB("L_AGAIN")
    A("s_setprio 0")
    A("s_waitcnt vmcnt(0) lgkmcnt(0)")
    A("s_barrier")
    A("s_cmp_eq_u32 s3, 0")
    A("s_cselect_b64 exec, -1, 0")
    prefill_small()
    A("s_mov_b64 exec, -1")
    for q in range(6): A(f"v_mov_b32 v{RW+4*q+3}, v{TW if q < 4 else TWB}")
    A("s_mov_b32 s46, 0x8000801f")
    A("s_waitcnt lgkmcnt(0)")
    A("s_barrier")
    A("s_branch L_PASS")
    loop("S", True)
    A("s_branch L_SEND")
    L.append(".p2align 8")
    LB("L_TAB")
    L.extend(table())

hdr = open("cdna_kernels/%s.s.ref" % NAME).read().split("; Override")[0]
out = hdr + f"; @launch grid=(256,1,1) block=(512,1,1) lds={LDSZ}\n"
out += '.amdgcn_target "amdgcn-amd-amdhsa--gfx950"\n.text\n'
kernel()
out += "\n".join(L) + "\n"
out += f""".section .rodata,"a"
.p2align 6
.amdhsa_kernel {KN}
  .amdhsa_next_free_vgpr 256
  .amdhsa_next_free_sgpr 102
  .amdhsa_accum_offset 256
  .amdhsa_group_segment_fixed_size 0
  .amdhsa_kernarg_size 72
  .amdhsa_user_sgpr_count 2
  .amdhsa_user_sgpr_kernarg_segment_ptr 1
  .amdhsa_system_sgpr_workgroup_id_x 1
.end_amdhsa_kernel
"""
dst = [a for a in sys.argv[1:] if not a.startswith("--")]
open(dst[0] if dst else f"cdna_kernels/{NAME}.s", "w").write(out)
```

```python
import sys
KN="gather_scatter__mpnn_edge_mlp__graph_kernel"
STAMP=0x900000
def make(src, dst, mode, ia, ib, mult, when='cold'):
    s=open(src).read()
    i=s.index('; @launch grid'); i2=s.index('.amdgcn_target'); j=s.index('.section .rodata')
    line=s[i:i2].replace('@launch grid','@launch kernel='+KN+' grid')
    ld=""
    for k in range(4):
        ld+=f"    global_load_dword v{8+k}, v1, s[4:5] offset:{4*ia}\n    global_load_dword v{12+k}, v1, s[4:5] offset:{4*ib}\n    v_add_u32 v1, 0x10000, v1\n"
    if mode in('maxd','avgd','sumd'):
        red="".join(f"    v_sub_u32 v{12+k}, v{12+k}, v{8+k}\n    v_mov_b32 v{8+k}, 0\n" for k in range(4))
    elif mode=='sumv': red="".join(f"    v_mov_b32 v{8+k}, 0\n" for k in range(4))
    else: red=""
    op = "add" if mode in ('avgd','sumd','sumv') else "max"
    body=f""".globl probe_kernel
.p2align 8
.type probe_kernel,@function
probe_kernel:
    s_cmp_lg_u32 s2, 0
    s_cbranch_scc1 PR_END
    s_load_dwordx2 s[4:5], s[0:1], 64
    v_lshlrev_b32 v1, 10, v0
    v_add_u32 v1, {STAMP:#x}, v1
    v_mov_b32 v2, 0x4000000
    v_mov_b32 v3, 0x13572468
    s_waitcnt lgkmcnt(0)
    global_load_dword v4, v2, s[4:5]
{ld}    s_waitcnt vmcnt(0)
    v_readfirstlane_b32 s16, v4
    global_store_dword v2, v3, s[4:5]
{red}    v_min_u32 v8, v8, v9
    v_min_u32 v10, v10, v11
    v_min_u32 v8, v8, v10
    v_{op}_u32 v12, v12, v13
    v_{op}_u32 v14, v14, v15
    v_{op}_u32 v12, v12, v14
    s_mov_b32 s10, -1
    s_mov_b32 s11, 0
    s_mov_b32 s6, 0
PR_R:
    s_nop 4
    v_readlane_b32 s7, v8, s6
    v_readlane_b32 s8, v12, s6
    s_min_u32 s10, s10, s7
    s_{op}_u32 s11, s11, s8
    s_add_u32 s6, s6, 1
    s_cmp_lt_u32 s6, 63
    s_cbranch_scc1 PR_R
    s_sub_u32 s10, s11, s10
    s_lshr_b32 s10, s10, {8 if mode=='avgd' else 0}
    s_min_u32 s10, s10, 60000
    s_mul_i32 s10, s10, {mult}
    s_add_u32 s10, s10, 1000
    s_cmp_eq_u32 s16, 0x13572468
    s_cselect_b32 s10, {'0, s10' if when=='cold' else 's10, 0'}
    s_memrealtime s[12:13]
    s_waitcnt lgkmcnt(0)
PR_L:
    s_memrealtime s[14:15]
    s_waitcnt lgkmcnt(0)
    s_sub_u32 s14, s14, s12
    s_cmp_lt_u32 s14, s10
    s_cbranch_scc1 PR_L
PR_END:
    s_endpgm
"""
    d=""".p2align 6
.amdhsa_kernel probe_kernel
  .amdhsa_next_free_vgpr 16
  .amdhsa_next_free_sgpr 24
  .amdhsa_accum_offset 16
  .amdhsa_group_segment_fixed_size 0
  .amdhsa_kernarg_size 72
  .amdhsa_user_sgpr_count 2
  .amdhsa_user_sgpr_kernarg_segment_ptr 1
  .amdhsa_system_sgpr_workgroup_id_x 1
.end_amdhsa_kernel
"""
    v=s[:i]+line+"; @launch kernel=probe_kernel grid=(1,1,1) block=(64,1,1) lds=0\n"+s[i2:j]+body+s[j:]+d
    open(dst,'w').write(v)
if __name__=="__main__":
    src=sys.argv[1]
    for n,spec in enumerate(sys.argv[2:]):
        mode,ia,ib,mult,when=spec.split(',')
        make(src,f'q{n}.s',mode,int(ia),int(ib),int(mult),when)
```

```python
import sys, struct
NAME = "gather_scatter__mpnn_edge_mlp__graph"
KN = NAME + "_kernel"
N, E = 12500, 800000
CH, NPB = 3136, 49
ATAB, FL2, OFFS, REC = 0, 0x18C000, 0x190000, 0x210000
CHB = 16768
WS_END = REC + 256 * CHB
STAMP = 0x900000
LOG2E = 1.4426950408889634
def f2u(x): return struct.unpack("<I", struct.pack("<f", x))[0]
NLOG2E = f2u(-LOG2E); NLN2 = f2u(-0.6931471805599453)
DIAG = "--diag" in sys.argv
OPT = {a.split("=")[0][2:]: (a.split("=")[1] if "=" in a else "1") for a in sys.argv[1:] if a.startswith("--")}
WS_REC = (STAMP + 0x100000) if DIAG else WS_END
BIG = 0x40000000; HUGE = 0x10000000

L = []
def A(s): L.append("    " + s)
def AA(xs):
    for x in xs: A(x)
def LB(s): L.append(s + ":")
def C(s): L.append("    ; " + s)
def vr(b, n=1): return f"v{b}" if n == 1 else f"v[{b}:{b+n-1}]"
def sr(b, n=1): return f"s{b}" if n == 1 else f"s[{b}:{b+n-1}]"
SCANM = ["row_shr:1 row_mask:0xf bank_mask:0xf bound_ctrl:1", "row_shr:2 row_mask:0xf bank_mask:0xf bound_ctrl:1",
         "row_shr:4 row_mask:0xf bank_mask:0xf bound_ctrl:1", "row_shr:8 row_mask:0xf bank_mask:0xf bound_ctrl:1",
         "row_bcast:15 row_mask:0xa bank_mask:0xf", "row_bcast:31 row_mask:0xc bank_mask:0xf"]
def scan(v, fill=None):
    fill = list(fill or [])
    for m in SCANM:
        k = 0
        while k < 2 and fill:
            A(fill.pop(0)); k += 1
        if k < 2: A(f"s_nop {1-k}")
        A(f"v_add_u32_dpp v{v}, v{v}, v{v} {m}")
    AA(fill)
def stamp(k, real=False):
    if not DIAG: return
    A("s_memrealtime s[98:99]" if real else "s_memtime s[98:99]")
    A("s_waitcnt lgkmcnt(0)")
    A(f"v_writelane_b32 v255, s98, {k}")
def note(sreg, k):
    if DIAG: A(f"v_writelane_b32 v255, s{sreg}, {k}")

QD = 0
PADQ = QD + 8320
HIST2 = PADQ + 16; FLAGS = HIST2 + 256; BASE2 = FLAGS + 16; NONCE = BASE2 + 256; W3 = NONCE + 16
H1 = W3 + 128; BASE1 = H1 + 1024
R2 = H1 + 2048
STG = R2; TOT = R2; TP = 272; AGS = TOT + 64*TP; XP = 144
ROWS, RP = R2 + 16768 + 8192 + 4192, 1168 - 128
NROW = 50; oSB, oN, oD, oS = 256, 512, 768, 1024
XS = (ROWS + NROW*RP + 255) // 256 * 256; AST = XS + 8192; WM = AST + 8192; WU = WM + 16384
CAPB = 448; LB_ = WU + 16384
LDSZ = LB_ + 49*CAPB
assert H1 % 16 == 0 and ROWS % 16 == 0 and ROWS < 65536 and LDSZ <= 163840, LDSZ
SN = R2 + 16768 + 8192
TAB = R2 + 16768

SID, AGG, LP = 1, 2, 10
PF_ = [12, 14]; QA = 61; HINIT = 63; LBASE = 64; FLV = 16; IP = [18, 20]; DSC = 22; NPAD = 24; LANE = 25
EA = 26; CB = 34
S, SX, W, Nn, Dd, U, WF2 = 50, 54, 58, 66, 74, 82, 90
LP2 = 56
G = [106, 122]; T = [138, 154]; EX = 170
OUTO, AGW, ROWL, KP = 236, 237, 238, 239
ROWM = ROWL
GA, TWB, GD, TW = 240, 241, 242, 243
TOTW, CRA, AGR, T16, ENA, ENB, RCA, RCB, L4, ZERO = range(244, 254)
FLA, PFA = 228, 229
DST, SRC, EE, BK, RK1, BSV = 106, 114, 122, 126, 138, 146
PUB = 154
WMK = 162
XA, WA, WA2, AW, WG_, TLA = 170, 172, 174, 176, 60, 178
C4 = 180
AG, AR, BWA, AGR0 = 166, 167, 168, 169
XF, WF = 186, 194
HH, BB = 210, 214
t = 218
sWS, sA, sOUT = 8, 12, 16
pX, pE, pSRC, pDST, pWM, pWU, pOUT, pDBG = 20, 22, 24, 26, 28, 30, 32, 34
M0_, M1_, MA_ = 36, 38, 40
mLN, mON = 36, 38
MK = 48
def mk(k): return sr(MK+2*k, 2) if k < 16 else sr(26+2*(k-16), 2)
sLB, sWID, sHI, sSAFE, sT, sREDO, sSTART, sMORE, sCNT, sTAG = range(80, 90)
sNL = 90; sI0 = 92; sT0 = 94; sR = 95; sTM = 96; sRARE = 97; mMORE = 100; sFIRST = 0; sOUTS = 1
TMASK = 0xff030303

def table():
    rows = [[0]*4*64 for _ in range(8)]
    for l in range(64):
        j = l & 7; h = l >> 5; g4 = (l >> 3) & 3; l15 = l & 15; g = l >> 4; r = (l >> 2) & 3; c = l & 3
        v = [0]*32
        m = l & 31; hp = (m >> 2) & 1; q = m >> 4; jh = (m >> 3) & 1; i = m & 3
        if h == hp: v[2*q + jh] = 0x3f80 << (16*(i & 1))
        v[4] = 0xeeee if i >> 1 else 0x4444
        v[5] = 0xffffffff if h == q else 0
        v[6] = 4*h
        v[7] = (4*h + c)*16
        v[16] = XS + l15*128 + ((g ^ j) << 4)
        v[17] = WM + (8*g + r)*128 + (((c >> 1) ^ ((r & 2) | ((g & 1) << 2))) << 4) + (c & 1)*8
        v[18] = WU + 8192 + (4*g + r)*128 + (((c >> 1) ^ ((r & 2) | ((g >> 1) << 2))) << 4) + (c & 1)*8
        v[19] = 2*(32*hp + 16*jh + i)
        v[20] = (l >> 2)*128 + c*16
        v[21] = AST + (v[20] ^ (((l >> 2) & 7) << 4))
        v[22] = ROWS + l15*RP + g*16
        v[23] = l15*XP + g*16
        v[24] = l15*128 + (g & 1)*32 + (g >> 1)*16
        v[25] = l*XP
        v[26] = ROWS + l*RP
        v[27] = 3*j
        v[28] = m >> 2
        v[29] = 0x85ebca6b if l & 4 else 0x9e3779b1
        v[30] = (m >> 2)*TP + v[7]
        v[31] = 0x85ebca6b if l & 1 else 0x9e3779b1
        for k in range(32): rows[k >> 2][4*l + (k & 3)] = v[k]
    o = []
    for rw in rows:
        for i in range(0, 256, 8): o.append(".long " + ", ".join(f"{x:#x}" for x in rw[i:i+8]))
    return o

def prefill_small():
    A(f"ds_write_b32 v{L4}, v{ZERO} offset:{HIST2+16}")
    A(f"ds_write_b32 v{L4}, v{HINIT} offset:{HIST2}")
def bound():
    A(f"s_add_u32 s{sCNT}, s{sCNT}, 1")
    A(f"s_cmp_ge_u32 s{sCNT}, 0x8000")
    A("s_cbranch_scc1 L_END")
def wfrags(dst, areg, off, tstep):
    return [f"ds_read_b64_tr_b16 {vr(dst+8*cb+4*ks+2*tt,2)}, v{areg+cb} offset:{off + 4096*ks + tstep*tt}"
            for cb in range(2) for ks in range(2) for tt in range(2)]
def mm(dst, wf):
    return [f"v_mfma_f32_16x16x32_bf16 {vr(dst+4*cb,4)}, {vr(wf+8*cb+4*ks,4)}, {vr(XF+4*ks,4)}, {'0' if ks == 0 else vr(dst+4*cb,4)}"
            for ks in range(2) for cb in range(2)]
def pk(op, d, a, b, n=8, tail=""):
    f = lambda x, q: vr(x+q,2) if isinstance(x, int) else x
    return [f"{op} {vr(d+q,2)}, {f(a,q)}, {f(b,q)}{tail}" for q in range(0, n, 2)]

def kernel():
    L.append(f".globl {KN}\n.p2align 8\n.type {KN},@function")
    LB(KN)
    A("s_cmpk_ge_u32 s2, 256")
    A("s_cbranch_scc1 L_END")
    A("s_load_dwordx16 s[20:35], s[0:1], 0")
    A("s_load_dwordx2 s[8:9], s[0:1], 64")
    A("s_memrealtime s[46:47]")
    A("s_getpc_b64 s[48:49]")
    LB("L_PC")
    A(f"v_lshrrev_b32 v{t}, 6, v0")
    C("pull the code into L2 early: one 128-B line per wave")
    A("s_and_b32 s50, s2, 0x78")
    A(f"v_add_lshl_u32 v{t+6}, v{t}, s50, 7")
    A(f"v_readfirstlane_b32 s3, v{t}")
    A(f"global_load_dword v254, v{t+6}, s[48:49]")
    C("lane-constant table -> LDS (1 KB per wave)")
    A(f"v_lshlrev_b32 v{T16}, 4, v0")
    A("s_lshl_b32 s51, s3, 10")
    A(f"s_add_u32 m0, s51, {TAB}")
    A("s_add_u32 s48, s48, L_TAB-L_PC")
    A("s_addc_u32 s49, s49, 0")
    A(f"global_load_lds_dwordx4 v{T16}, s[48:49]")
    A(f"v_and_b32 v{LANE}, 63, v0")
    A(f"v_lshlrev_b32 v{t+3}, 2, v0")
    A(f"v_mov_b32 v{ZERO}, 0")
    A(f"ds_write_b32 v{t+3}, v{ZERO} offset:{H1}")
    A(f"s_mul_i32 s42, s2, {CH//4}")
    A(f"v_mad_u32_u24 v{t+1}, v{t}, {NPB}, v{LANE}")
    A("s_mov_b32 exec_hi, 0x1ffff")
    A(f"v_add_lshl_u32 v{t+2}, v{t+1}, s42, 3")
    A(f"v_cmp_gt_u32 vcc, {2*(E - CH//2)}, v{t+2}")
    A(f"v_lshlrev_b32 v{t+1}, 1, v{t+2}")
    A(f"s_mov_b64 {sr(M1_,2)}, vcc")
    A(f"v_add_u32 v{t+1}, {CH}, v{t+1}")
    A(f"v_cmpx_gt_u32 vcc, {2*E}, v{t+2}")
    if DIAG:
        stamp(30, real=True); stamp(29)
    A("s_waitcnt lgkmcnt(0)")
    A(f"global_load_dwordx4 {vr(DST,4)}, v{t+1}, {sr(pDST,2)} offset:{-CH}{' nt' if 'ntd' in OPT else ''}")
    A(f"s_mov_b64 exec, {sr(M1_,2)}")
    A(f"global_load_dwordx4 {vr(DST+4,4)}, v{t+1}, {sr(pDST,2)} offset:{CH}{' nt' if 'ntd' in OPT else ''}")
    EARLY = False
    row = t+9
    def pre():
        A("s_mov_b32 s42, s51")
        A("s_and_b32 s4, s2, 7")
        A("s_lshl_b32 s4, s4, 5")
        A("s_lshr_b32 s7, s2, 3")
        A("s_add_u32 s4, s4, s7")
        A(f"s_mul_i32 s5, s4, {NPB}")
        A(f"v_lshrrev_b32 v{row}, 3, v0")
    def xw():
        A(f"v_xor_b32 v{t+7}, v{row}, v0")
        A(f"v_and_b32 v{t+7}, 7, v{t+7}")
        A(f"v_add_u32 v{t+8}, s5, v{row}")
        A(f"v_min_u32 v{t+8}, {N-1}, v{t+8}")
        A(f"v_lshlrev_b32 v{t+8}, 3, v{t+8}")
        A(f"s_add_u32 m0, s42, {XS}")
        A(f"v_add_lshl_u32 v{t+8}, v{t+8}, v{t+7}, 4")
        A(f"v_lshrrev_b32 v{t+7}, 1, v{row}")
        A(f"global_load_lds_dwordx4 v{t+8}, {sr(pX,2)}")
        A(f"v_and_b32 v{t+7}, 4, v{t+7}")
        A(f"v_and_or_b32 v{t+7}, v{row}, 2, v{t+7}")
        A(f"s_add_u32 m0, s42, {WM}")
        A(f"v_xor_b32 v{t+7}, v{t+7}, v0")
        A(f"v_lshlrev_b32 v{WG_}, 4, v{t+7}")
        A(f"global_load_lds_dwordx4 v{WG_}, {sr(pWM,2)}")
    def se():
        A(f"global_load_dwordx4 {vr(SRC+4,4)}, v{t+1}, {sr(pSRC,2)} offset:{CH}{' nt' if 'nts' in OPT else ''}")
        A(f"global_load_dwordx2 {vr(EE+2,2)}, v{t+2}, {sr(pE,2)} offset:{CH}{' nt' if 'nts' in OPT else ''}")
        A("s_mov_b64 exec, vcc")
        A(f"global_load_dwordx4 {vr(SRC,4)}, v{t+1}, {sr(pSRC,2)} offset:{-CH}{' nt' if 'nts' in OPT else ''}")
        A(f"global_load_dwordx2 {vr(EE,2)}, v{t+2}, {sr(pE,2)}{' nt' if 'nts' in OPT else ''}")
    def nl():
        A("s_cmp_eq_u32 s3, 0")
        A("s_cselect_b64 exec, -1, 0")
        A(f"global_load_dword v{PUB+1}, v{ZERO}, {sr(pDBG,2)} sc1")
        A("s_mov_b64 exec, -1")
    def wu():
        A(f"s_add_u32 m0, s42, {WU}")
        A(f"s_add_u32 s50, s{pWU}, 8192")
        A(f"s_addc_u32 s51, s{pWU+1}, 0")
        A(f"global_load_lds_dwordx4 v{WG_}, {sr(pWU,2)}")
        A("s_add_u32 m0, m0, 8192")
        A("s_nop 0")
        A(f"global_load_lds_dwordx4 v{WG_}, s[50:51]")
    WUP = OPT.get("wu", "1")
    def w2():
        A(f"s_add_u32 s48, s{pWM}, 8192")
        A(f"s_addc_u32 s49, s{pWM+1}, 0")
        A(f"s_add_u32 m0, s42, {WM+8192}")
        A(f"s_add_u32 s52, s{pWM}, 16384")
        A(f"global_load_lds_dwordx4 v{WG_}, s[48:49]")
        A(f"s_addc_u32 s53, s{pWM+1}, 0")
        A(f"s_mov_b32 m0, {W3}")
        A("s_mov_b32 exec_hi, 0")
        A(f"global_load_lds_dword v{L4}, s[52:53]")
    if EARLY:
        A("s_mov_b64 exec, -1")
        A(f"v_lshlrev_b32 v{L4}, 2, v{LANE}")
        pre(); xw(); w2()
    A("s_barrier")
    if not EARLY: se()
    A(f"s_mov_b64 {sr(M0_,2)}, vcc")
    C("launch-unique tag: written by WG 0 / wave 0 (lane mask empty everywhere else)")
    A("s_bitset1_b32 s46, 31")
    A("s_or_b32 s43, s2, s3")
    A("s_cselect_b64 exec, 0, 1")
    A(f"v_mov_b32 v{t+5}, s46")
    A(f"global_store_dword v{ZERO}, v{t+5}, {sr(pDBG,2)} sc1")
    A("s_mov_b64 exec, -1")
    C("pull w_upd into L2 early (one row per wave); it is staged into LDS later")
    if "nowpf2" not in OPT:
        A("s_bitcmp1_b32 s2, 7")
        A(f"s_cselect_b64 s[48:49], {sr(pWU,2)}, {sr(pWM,2)}")
        A("s_cselect_b32 s50, 0, 128")
        A(f"v_add_u32 v{t+6}, s50, v{t+6}")
        A(f"global_load_dword v254, v{t+6}, s[48:49]")
    else: A(f"global_load_dword v254, v{t+6}, {sr(pWU,2)}")
    if not EARLY: pre()
    A(f"v_lshlrev_b32 v{L4}, 2, v{LANE}")
    A(f"v_lshlrev_b32 v{t+4}, 4, v{LANE}")
    A(f"v_mul_u32_u24 v{HINIT}, {CAPB}, v{LANE}")
    A(f"v_add_u32 v{HINIT}, {LB_}, v{HINIT}")
    A(f"v_mov_b32 v62, {N}")
    A("s_cmp_eq_u32 s3, 0")
    A("s_cselect_b64 exec, -1, 0")
    A(f"ds_write_b32 v{L4}, v62 offset:{PADQ}")
    prefill_small()
    A(f"ds_write_b32 v{ZERO}, v{ZERO} offset:{NONCE+4}")
    A("s_mov_b64 exec, -1")
    A(f"s_mov_b32 s10, {WS_REC:#x}")
    A("s_mov_b32 s11, 0x20000")
    A("s_lshl_b32 s54, s3, 6")
    A(f"s_add_u32 s54, s54, 16384")
    A(f"v_add_u32 v{TLA}, s54, v{t+4}")
    A(f"s_mul_i32 s43, s2, {CHB}")
    A(f"s_add_u32 s43, s43, {REC:#x}")
    A("s_add_u32 s55, s43, 8192")
    A("s_cmp_lt_u32 s3, 6")
    A("s_cselect_b32 s56, 15, 0")
    A("s_lshl_b32 s57, s2, 11")
    A(f"s_add_u32 s57, s57, {OFFS:#x}")
    XL = OPT.get("xl", "1")
    if XL == "0": xw()
    A(f"s_mov_b32 s46, {(2**32 + 48)//49}")
    A("s_movk_i32 s47, -49")
    A(f"v_mov_b32 v{t}, 1")
    for h in range(2):
        A(f"s_mov_b64 exec, {sr(M0_+2*h,2)}")
        A(f"s_waitcnt vmcnt({(9 if XL == '0' else 7)-h})")
        if h == 0: stamp(2)
        for i in range(4*h, 4*h+4): A(f"v_mul_hi_u32 v{BK+i}, v{DST+i}, s46")
        for i in range(4*h, 4*h+4):
            A(f"v_lshlrev_b32 v{BK+i}, 2, v{BK+i}")
            A(f"ds_add_rtn_u32 v{RK1+i}, v{BK+i}, v{t} offset:{H1}")
    A("s_mov_b64 exec, -1")
    if XL == "1": xw()
    for i in range(8): A(f"v_lshlrev_b32 v{DST+i}, 2, v{DST+i}")
    A(f"s_sub_u32 s6, {N}, s5")
    A(f"s_min_u32 s6, s6, {NPB}")
    A(f"v_and_b32 v{LP}, 0x70, v{T16}")
    A("s_lshr_b32 s44, s3, 1")
    A("s_and_b32 s45, s3, 1")
    A("s_lshl_b32 s45, s45, 6")
    A("s_lshl_b32 s58, s44, 11")
    A("s_add_u32 s59, s58, s45")
    A(f"s_mul_i32 s60, s44, {16*RP}")
    A("s_add_u32 s60, s45, s60")
    A(f"s_mul_i32 s61, s44, {16*XP}")
    A("s_lshl_b32 s44, s44, 4")
    A("s_sub_i32 s62, s6, s44")
    A("s_lshl_b32 s63, s62, 2")
    A(f"v_cmp_gt_i32 {sr(MA_,2)}, s63, v{LANE}")
    A(f"s_sub_i32 s63, {NROW}, s44")
    A(f"s_mov_b32 s{sNL}, {NLOG2E:#x}")
    A(f"s_mov_b32 s{sNL+1}, s{sNL}")
    A("s_lshl_b32 s44, s5, 7")
    A(f"s_add_u32 s{sOUTS}, s44, s59")
    if EARLY: nl()
    A("s_waitcnt vmcnt(9) lgkmcnt(0)" if EARLY else "s_waitcnt lgkmcnt(0)")
    A("s_barrier")
    stamp(3)
    AP = 82
    def a_addr():
        A(f"v_add_u32 v{XA}, s58, v{C4}")
        A(f"v_xor_b32 v{XA+1}, 64, v{XA}")
        A(f"v_xor_b32 v{WA}, s45, v{C4+1}")
        A(f"v_xor_b32 v{WA+1}, 32, v{WA}")
    def a_reads():
        A(f"ds_read_b128 {vr(XF,4)}, v{XA}")
        A(f"ds_read_b128 {vr(XF+4,4)}, v{XA+1}")
        AA(wfrags(WF, WA, 0, 512))
    def a_addr2():
        A(f"v_xor_b32 v{AW}, s45, v{XA}")
        A(f"v_add_u32 v{AR}, s58, v{AR}")
        A(f"v_xor_b32 v{AR}, s45, v{AR}")
        A(f"v_add_u32 v{BWA}, s60, v{BWA}")
        A(f"v_add_u32 v{AGR}, s61, v{AGR0}")
        A(f"v_xor_b32 v{WA2}, s45, v{C4+2}")
        A(f"v_xor_b32 v{WA2+1}, 32, v{WA2}")
    def a_pack():
        AA(pk("v_pk_mul_f32", AP, AP, sr(sNL,2)))
        for q in range(4): A(f"v_cvt_pk_bf16_f32 v{AP+8+q}, v{AP+2*q}, v{AP+2*q+1}")
        A(f"ds_write_b128 v{AW}, {vr(AP+8,4)} offset:{AST-XS}")
        if "full" in OPT:
            A(f"v_add_u32 v{AR}, {AST}, v{T16}")
            A(f"v_lshrrev_b32 v{AG}, 3, v0")
            A(f"v_cmp_gt_u32 {sr(MA_,2)}, s6, v{AG}")
            A(f"v_and_b32 v{AG}, 7, v{AG}")
            A(f"v_xor_b32 v{AG}, v{AG}, v0")
            A(f"v_lshlrev_b32 v{AG}, 4, v{AG}")
            A("s_lshl_b32 s44, s5, 7")
            A("s_waitcnt lgkmcnt(0)")
            A("s_barrier")
        A(f"ds_read_b128 {vr(AP+12,4)}, v{AR}")
    def a_store():
        A(f"s_mov_b64 exec, {sr(MA_,2)}")
        A(f"buffer_store_dwordx4 {vr(AP+12,4)}, v{AG}, {sr(sWS,4)}, s{44 if 'full' in OPT else sOUTS} offen sc1")
        A("s_mov_b64 exec, -1")
    if EARLY: A(f"ds_read_b128 {vr(C4,4)}, v{t+4} offset:{TAB+4*1024}")
    A(f"ds_read_b128 {vr(HH,4)}, v{t+4} offset:{H1}")
    if not EARLY: A(f"ds_read_b128 {vr(C4,4)}, v{t+4} offset:{TAB+4*1024}")
    A(f"ds_read_b128 {vr(AG,4)}, v{t+4} offset:{TAB+5*1024}")
    A(f"s_mov_b32 s{sLB}, 24")
    A(f"s_mov_b32 s{sWID}, 36")
    A(f"s_mov_b32 s{sHI}, 36")
    A("s_mov_b32 s46, 0x55555556")
    A("s_waitcnt lgkmcnt(2)")
    if EARLY:
        a_addr(); a_reads()
        A("s_waitcnt lgkmcnt(10)")
    A(f"v_add3_u32 v{t+1}, v{HH}, v{HH+1}, v{HH+2}")
    A(f"v_add_u32 v{t+2}, v{t+1}, v{HH+3}")
    A(f"v_mov_b32 v{t+3}, v{t+2}")
    scan(t+3, [f"v_mad_i32_i24 v{DST+i}, v{BK+i}, s47, v{DST+i}" for i in range(8)] +
              [f"v_and_b32 v{IP[0]+1}, 0x30, v{T16}", f"v_and_b32 v{IP[1]+1}, 0x30, v{T16}", "s_mov_b32 s47, 0x2aaaaaab"])
    if EARLY:
        A("s_waitcnt lgkmcnt(0)")
        AA(mm(AP, WF))
    A(f"v_sub_u32 v{BB}, v{t+3}, v{t+2}")
    A(f"v_add_u32 v{BB+1}, v{BB}, v{HH}")
    A(f"v_add_u32 v{BB+2}, v{BB+1}, v{HH+1}")
    A(f"v_add_u32 v{BB+3}, v{BB}, v{t+1}")
    A(f"ds_write_b128 v{t+4}, {vr(BB,4)} offset:{BASE1}")
    if EARLY:
        a_addr2(); a_pack()
    for h in range(2):
        A(f"s_mov_b64 exec, {sr(M0_+2*h,2)}")
        for i in range(4*h, 4*h+4): A(f"ds_read_b32 v{BSV+i}, v{BK+i} offset:{BASE1}")
    if not EARLY:
        nl()
        if WUP == "0": wu()
        if "dma2" not in OPT: w2()
    A(f"s_mov_b32 s{sCNT}, 0")
    if EARLY:
        A("s_waitcnt lgkmcnt(8)")
        a_store()
    C("record p lives in piece p/3: word at 4(p + p/3), node byte at p + p/3 of a separate array")
    for h in range(2):
        A(f"s_mov_b64 exec, {sr(M0_+2*h,2)}")
        A("s_waitcnt lgkmcnt(4)")
        for i in range(4*h, 4*h+4): A(f"v_add_u32 v{BSV+i}, v{BSV+i}, v{RK1+i}")
        for i in range(4*h, 4*h+4): A(f"v_mul_hi_u32 v{RK1+i}, v{BSV+i}, s46")
        for i in range(4*h, 4*h+4):
            A(f"v_add_u32 v{BK+i}, v{RK1+i}, v{BSV+i}")
            A(f"ds_write_b8 v{BK+i}, v{DST+i} offset:{SN}")
    A("s_mov_b64 exec, -1")
    for i in range(8): A(f"v_lshlrev_b32 v{BSV+i}, 2, v{BK+i}")
    if "dma2" in OPT:
        w2()
        A("s_mov_b64 exec, -1")
    A("s_cmp_lg_u32 s3, 0")
    A("s_cbranch_scc1 L_NOPC")
    for i in range(4): A(f"v_mul_hi_u32 v{PUB+2*i}, v{BB+i}, s47")
    for i in range(4): A(f"v_mad_i32_i24 v{BB+i}, v{PUB+2*i}, -6, v{BB+i}")
    for i in range(4): A(f"v_mul_u32_u24 v{BB+i}, 9, v{BB+i}")
    for i in range(4): A(f"v_lshl_add_u32 v{BB+i}, v{HH+i}, 3, v{BB+i}")
    for i in range(4): A(f"v_lshl_add_u32 v{BB+i}, v{BB+i}, 11, v{PUB+2*i}")
    for i in range(4): A(f"v_lshlrev_b32 v{PUB+2*i}, 5, v{BB+i}")
    LB("L_NOPC")
    stamp(4)
    A("s_mov_b32 s46, 0xffff0000")
    stamp(24)
    for h in (1, 0):
        A(f"s_mov_b64 exec, {sr(M0_+2*h,2)}")
        A(f"s_waitcnt vmcnt({(9 if h else 7) + (2 if WUP == '0' else 0)})")
        stamp(1-h)
        for q in range(2*h, 2*h+2):
            A(f"v_lshl_or_b32 v{SRC+2*q}, v{EE+q}, 16, v{SRC+2*q}")
            A(f"ds_write_b32 v{BSV+2*q}, v{SRC+2*q} offset:{STG}")
            A(f"v_and_or_b32 v{SRC+2*q+1}, v{EE+q}, s46, v{SRC+2*q+1}")
            A(f"ds_write_b32 v{BSV+2*q+1}, v{SRC+2*q+1} offset:{STG}")
    A("s_mov_b64 exec, -1")
    A(f"v_lshlrev_b32 v{t+1}, 2, v0")
    A(f"v_add_u32 v{t+1}, {SN}, v{t+1}")
    A(f"v_lshrrev_b32 v{t+2}, 2, v{TLA}")
    A("s_cmp_lg_u32 s3, 0")
    A(f"s_waitcnt vmcnt({1 if EARLY else 0})")
    stamp(9)
    A("s_cbranch_scc1 L_PUBD")
    LB("L_PUB")
    A(f"v_cmp_eq_u32 vcc, 0, v{PUB+1}")
    A("s_cbranch_vccnz L_NONCEW")
    A(f"ds_write_b32 v{ZERO}, v{PUB+1} offset:{NONCE}")
    for i in range(1,4): A(f"v_mov_b32 v{PUB+1+2*i}, v{PUB+1}")
    A(f"buffer_store_dwordx4 {vr(PUB,4)}, v{T16}, {sr(sWS,4)}, s57 offen sc1")
    A(f"buffer_store_dwordx4 {vr(PUB+4,4)}, v{T16}, {sr(sWS,4)}, s57 offen offset:1024 sc1")
    LB("L_PUBD")
    A("s_waitcnt lgkmcnt(0)")
    A("s_barrier")
    stamp(5)
    A(f"ds_read_b32 v{t+5}, v{ZERO} offset:{NONCE}")
    A(f"ds_read_b128 {vr(GA,4)}, v{t+4} offset:{TAB+7*1024}")
    A(f"ds_read2st64_b32 v[118:119], v{t+1} offset0:0 offset1:8")
    for r in range(2): A(f"ds_read_b128 {vr(106+4*r,4)}, v{T16} offset:{STG+8192*r}")
    A(f"ds_read_b32 v120, v{t+2} offset:{SN}")
    A(f"ds_read_b128 v[114:117], v{TLA} offset:{STG}")
    A(f"s_mov_b32 s46, {~TMASK & 0xffffffff:#x}")
    A("s_waitcnt lgkmcnt(5)")
    A(f"v_mul_lo_u32 v{TW}, v{TW}, v{t+5}")
    A(f"v_readfirstlane_b32 s{sTAG}, v{t+5}")
    A(f"v_and_b32 v{TW}, {TMASK:#x}, v{TW}")
    twb = [f"v_mul_lo_u32 v{TWB}, v{TWB}, v{t+5}", f"v_and_b32 v{TWB}, {TMASK:#x}, v{TWB}"]
    for r in range(2):
        A(f"s_waitcnt lgkmcnt({3-r})")
        A(f"v_and_or_b32 v{109+4*r}, v{118+r}, s46, v{TW}")
        A(f"buffer_store_dwordx4 {vr(106+4*r,4)}, v{T16}, {sr(sWS,4)}, s{[43,55][r]} offen sc1")
    A("s_mov_b32 exec_lo, s56")
    A("s_mov_b32 exec_hi, 0")
    A("s_waitcnt lgkmcnt(0)")
    A(f"v_and_or_b32 v117, v120, s46, v{TW}")
    A(f"buffer_store_dwordx4 v[114:117], v{TLA}, {sr(sWS,4)}, s43 offen sc1")
    A("s_mov_b64 exec, -1")
    stamp(6)
    if not EARLY:
        a_addr(); a_reads(); a_addr2()
        A("s_lshr_b32 s47, s4, 2")
        A("s_lshl_b32 s47, s47, 1")
        A("s_and_b32 s46, s4, 1")
        A("s_add_u32 s47, s47, s46")
        A("s_and_b32 s46, s4, 2")
        A("s_lshl_b32 s46, s46, 6")
        A("s_add_u32 s47, s47, s46")
        A("s_lshl_b32 s47, s47, 3")
        A(f"s_add_u32 s47, s47, {OFFS:#x}")
        AA(twb)
        A(f"v_and_b32 v{t+8}, 3, v0")
        A(f"v_lshl_add_u32 v{t+8}, v{row}, 2, v{t+8}")
        A(f"v_lshl_add_u32 v{ENB}, v{t+8}, 11, s47")
        A(f"s_movk_i32 s46, {CHB}")
        A(f"v_and_b32 v{t+7}, 16, v{L4}")
        A(f"v_mad_u32_u24 v{RCB}, v{t+8}, s46, v{t+7}")
        A(f"s_mov_b32 s46, {4*CHB}")
        A(f"v_mad_u32_u24 v{RCA}, v{row}, s46, v{LP}")
        A(f"v_and_b32 v{ENA}, 6, v0")
        A(f"v_mad_u32_u24 v{ENA}, v{ENA}, 24, 7")
        C("all-zero pad row (index N): written by the last workgroup")
        A("s_cmpk_eq_u32 s2, 255")
        A("s_cselect_b32 exec_lo, -1, 0")
        A("s_mov_b32 exec_hi, 0")
        A(f"s_mov_b32 s44, {N*128}")
        A(f"buffer_store_dword v{ZERO}, v{L4}, {sr(sWS,4)}, s44 offen sc1")
        A("s_mov_b64 exec, -1")
        A("s_waitcnt lgkmcnt(0)")
        AA(mm(AP, WF))
    AA(wfrags(138, WA, 8192, 512))
    if not EARLY:
        a_pack()
        A("s_waitcnt lgkmcnt(2)")
    else:
        for k, d in ((0, S), (1, SX), (6, OUTO)): A(f"ds_read_b128 {vr(d,4)}, v{t+4} offset:{TAB+k*1024}")
        A("s_waitcnt lgkmcnt(3)")
    AA(mm(122, 138))
    if not EARLY:
        A("s_waitcnt lgkmcnt(0)")
        a_store()
        for k, d in ((0, S), (1, SX), (6, OUTO)): A(f"ds_read_b128 {vr(d,4)}, v{t+4} offset:{TAB+k*1024}")
    if WUP == "1": wu()
    for q in range(0, 4, 2): A(f"v_mov_b64 {vr(130+q,2)}, 0")
    for q in range(4): A(f"ds_read_u16_d16_hi v{130+q}, v{C4+3} offset:{W3 + 8*q}")
    A(f"v_and_b32 v{t+7}, 15, v0")
    A(f"v_cmp_gt_i32 {sr(mON,2)}, s62, v{t+7}")
    OF = 106
    def entry_load():
        A(f"v_mov_b32 v{OF+5}, s{sTAG}")
        A("s_mov_b32 exec_lo, 0x0f0f0f0f")
        A("s_mov_b32 exec_hi, exec_lo")
        A(f"buffer_load_dwordx2 {vr(OF+4,2)}, v{ENB}, {sr(sWS,4)}, 0 offen sc1")
        A("s_mov_b64 exec, -1")
    C("---- B', S_B, U (while the stores drain)")
    AA(pk("v_pk_mul_f32", 122, 122, sr(sNL,2)))
    for q in range(8): A(f"v_exp_f32 v{210+q}, v{122+q}")
    AA(pk("v_pk_add_f32", 210, 210, "1.0", tail=" op_sel_hi:[1,0]"))
    if "entm" in OPT: entry_load()
    for q in range(8): A(f"v_rcp_f32 v{210+q}, v{210+q}")
    AA(pk("v_pk_mul_f32", 210, 122, 210))
    A(f"v_cmpx_gt_i32 vcc, s63, v{t+7}")
    A(f"ds_write_b128 v{BWA}, v[122:125]")
    A(f"ds_write_b128 v{BWA}, v[126:129] offset:128")
    A(f"ds_write_b128 v{BWA}, v[210:213] offset:{oSB}")
    A(f"ds_write_b128 v{BWA}, v[214:217] offset:{oSB+128}")
    A("s_mov_b64 exec, -1")
    if "entm" not in OPT: entry_load()
    UP = OPT.get("up", "2")
    if WUP == "0" and UP == "1":
        AA(wfrags(WF, WA, WU-WM, 512))
        AA(wfrags(WF2, WA2, 0, 2048))
    RK, RW, ND = 186, 138, 112
    A("s_mov_b32 s12, s8")
    A(f"s_or_b32 s13, s9, {128 << 16:#x}")
    A(f"s_mov_b32 s14, {(N+1)*128}")
    A("s_mov_b32 s15, 0x20000")
    A(f"s_mov_b32 s16, s{pOUT}")
    A(f"s_mov_b32 s17, s{pOUT+1}")
    A(f"s_mov_b32 s18, {N*128}")
    A("s_mov_b32 s19, 0x20000")
    A(f"v_and_b32 v{FLA}, 0x1f0, v{T16}")
    A("s_lshl_b32 s44, s3, 9")
    A(f"s_add_u32 s44, s44, {FL2:#x}")
    A(f"v_add_u32 v{FLA}, s44, v{FLA}")
    A("s_mul_i32 s44, s7, 392")
    A(f"s_mul_i32 s45, s3, {NPB}")
    A("s_add_u32 s44, s44, s45")
    A(f"v_add_lshl_u32 v{PFA}, v{LANE}, s44, 7")
    for q in range(0, 4, 2): A(f"v_mov_b64 {vr(EA+q,2)}, 0")
    for q in range(0, 8, 2): A(f"v_mov_b64 {vr(AGG+q,2)}, 0")
    A(f"s_movk_i32 s{sI0}, 128")
    A(f"s_mov_b32 s{sI0+1}, 0xff000000")
    A(f"s_mov_b32 s{sSAFE}, 0")
    A(f"s_mov_b32 s{sFIRST}, 1")
    A(f"v_mov_b32 v{t+6}, s{sTAG}")
    A(f"v_not_b32 v{t+7}, v{t+6}")
    A("s_lshl_b32 s47, s2, 4")
    A(f"s_add_u32 s47, s47, {FL2:#x}")
    for q in range(6): A(f"v_mov_b32 v{RW+4*q+3}, v{TW if q < 4 else TWB}")
    A("s_mov_b32 s46, 0x8000801f")
    stamp(7)
    C("the wave that is last to see its stores acknowledged publishes this workgroup's table flag")
    A("s_mov_b64 exec, 1")
    A(f"s_waitcnt vmcnt({3 if WUP == '1' else 1})")
    A(f"ds_add_rtn_u32 v{t}, v{ZERO}, v{t} offset:{NONCE+4}")
    A("s_waitcnt lgkmcnt(0)")
    A(f"v_cmpx_eq_u32 vcc, 7, v{t}")
    A(f"buffer_store_dwordx2 {vr(t+6,2)}, off, {sr(sWS,4)}, s47 sc1")
    A("s_mov_b64 exec, -1")
    stamp(26)
    A(f"s_waitcnt vmcnt(1)")
    LB("L_ENT")
    A("s_nop 1")
    A(f"v_mov_b32_dpp v{OF+4}, v{OF+4} row_shr:4 row_mask:0xf bank_mask:0xa")
    A(f"v_xor_b32 v{OF+5}, s{sTAG}, v{OF+5}")
    A(f"v_and_or_b32 v{OF+5}, v{OF+4}, s46, v{OF+5}")
    A(f"v_cmp_ne_u32 vcc, 0, v{OF+5}")
    for i in range(4): A(f"v_mov_b32_dpp v{OF+i}, v{OF+4} quad_perm:[{i},{i},{i},{i}] row_mask:0xf bank_mask:0xf")
    A("s_cbranch_vccnz L_ENTR")
    stamp(8)
    note(sCNT, 20)
    A(f"s_mov_b32 s{sCNT}, 0")
    LB("L_LOADS")
    A(f"s_mov_b32 s46, {REC:#x}")
    for i in range(4):
        lo = OF+i
        A(f"v_add_u32_sdwa v{t+2}, v{lo}, v{RCA} dst_sel:DWORD dst_unused:UNUSED_PAD src0_sel:WORD_0 src1_sel:DWORD")
        A(f"v_cmpx_lt_u32_sdwa vcc, v{ENA}, v{lo} src0_sel:DWORD src1_sel:WORD_1")
        A(f"buffer_load_dwordx4 {vr(RW+4*i,4)}, v{t+2}, {sr(sWS,4)}, s46 offen sc1")
        A("s_mov_b64 exec, -1")
        if i < 3: A(f"s_add_u32 s46, s46, {CHB}")
    lo = OF+4
    A(f"v_lshrrev_b32 v{t+1}, 19, v{lo}")
    A(f"s_mov_b32 s{sRARE}, 0")
    A(f"v_cmp_lt_u32 {sr(mMORE,2)}, s{sHI}, v{t+1}")
    A(f"v_cmpx_lt_u32 vcc, s{sLB}, v{t+1}")
    A("s_cbranch_execz L_NOB")
    A(f"s_mov_b32 s46, {REC+128:#x}")
    A(f"v_add_u32_sdwa v{t+2}, v{lo}, v{RCB} dst_sel:DWORD dst_unused:UNUSED_PAD src0_sel:WORD_0 src1_sel:DWORD")
    A(f"v_subrev_u32 v{t+1}, s{sLB}, v{t+1}")
    A(f"buffer_load_dwordx4 {vr(RW+16,4)}, v{t+2}, {sr(sWS,4)}, s46 offen sc1")
    A(f"v_bfe_u32 v{t+3}, v0, 2, 1")
    A(f"v_mad_i32_i24 v{t+3}, v{t+3}, -3, v{t+1}")
    for k in range(6): A(f"v_cmp_lt_i32 {mk(12+k)}, {6*(k//3) + k%3}, v{t+3}")
    A(f"v_cmpx_lt_i32 vcc, 6, v{t+1}")
    A(f"buffer_load_dwordx4 {vr(RW+20,4)}, v{t+2}, {sr(sWS,4)}, s46 offen offset:32 sc1")
    A("s_cmp_lg_u64 vcc, 0")
    A(f"s_cselect_b32 s{sRARE}, 2, 1")
    LB("L_NOB")
    A("s_mov_b64 exec, -1")
    PA = int(OPT.get("pa", 12)); PB_ = int(OPT.get("pb", 24))
    def pf(a, b, who=None):
        m = ((1 << b) - 1) ^ ((1 << a) - 1) if b > a else 0
        if who:
            A(f"s_cmp_{who}_u32 s3, 4")
            A(f"s_cselect_b32 exec_lo, {m & 0xffffffff:#x}, 0")
            A(f"s_cselect_b32 exec_hi, {m >> 32:#x}, 0")
        else:
            A(f"s_mov_b32 exec_lo, {m & 0xffffffff:#x}")
            A(f"s_mov_b32 exec_hi, {m >> 32:#x}")
        A(f"buffer_load_dword v254, v{PFA}, {sr(sWS,4)}, 0 offen sc1")
        A("s_mov_b64 exec, -1")
    P0 = int(OPT.get("p0", 0)); P0W = OPT.get("p0w", "0")
    SPL = "spl" in OPT
    if P0 and P0W == "0": pf(0, P0, "ge" if SPL else None)
    for i in range(4):
        A(f"v_bfe_u32 v{t+1}, v{OF+i}, 16, 3")
        A(f"v_lshrrev_b32 v{t+2}, 19, v{OF+i}")
        A(f"v_sub_u32 v{t+3}, v{KP}, v{t+1}")
        A(f"v_sub_u32 v{t+2}, v{t+2}, v{t+1}")
        for r in range(3):
            A(f"v_cmp_lt_u32 {mk(3*i+r)}, v{t+3}, v{t+2}")
            if r < 2: A(f"v_add_u32 v{t+3}, 1, v{t+3}")
    A(f"s_cmp_lg_u32 s{sFIRST}, 1")
    A("s_cbranch_scc1 L_HIST")
    A(f"s_mov_b32 s{sFIRST}, 2")
    C("---- remaining constants (in the shadow of the record loads)")
    if WUP == "0" and UP == "2":
        AA(wfrags(WF, WA, WU-WM, 512))
        AA(wfrags(WF2, WA2, 0, 2048))
    AA(pk("v_pk_mul_f32", 130, 130, sr(sNL,2), n=4))
    A("v_cvt_pk_bf16_f32 v130, v130, v131")
    A("v_cvt_pk_bf16_f32 v131, v132, v133")
    for u in range(2): A(f"v_and_b32 v{W+u}, v{130+u}, v{SX+1}")
    A(f"s_bfm_b64 {sr(mLN,2)}, s6, 0")
    A("s_lshl_b32 s44, s3, 4")
    A(f"v_add_u32 v{AGW}, s44, v{AGW}")
    A(f"v_add_u32 v{CRA}, s44, v{ROWL}")
    A(f"v_add_u32 v{ROWM}, {-(16 << 17) & 0xffffffff:#x}, v{ROWL}")
    A(f"s_mul_i32 s44, s3, {8*TP}")
    A(f"v_add_u32 v{TOTW}, s44, v{GD}")
    A("s_mov_b32 s20, 0x11111111")
    A("s_mov_b32 s21, s20")
    A("s_mov_b32 s30, 0x200000")
    A(f"s_mov_b32 s40, {BIG:#x}")
    A("s_mov_b32 s41, s40")
    if WUP == "0":
        A("s_waitcnt lgkmcnt(8)")
        AA(mm(U, WF))
    LB("L_HIST")
    for q in range(0, 18, 2): A(f"v_mov_b64 {vr(RK+q,2)}, s[40:41]")
    A(f"v_mov_b32 v{t+5}, 4")
    A(f"s_mov_b64 exec, {sr(mMORE,2)}")
    A(f"ds_write_b32 v{ZERO}, v{t+5} offset:{FLAGS}")
    A("s_mov_b64 exec, -1")
    if P0 and P0W == "1": pf(0, P0)
    stamp(11)
    A(f"s_waitcnt vmcnt({1 if P0 else 0})")
    for q in range(6): A(f"v_xor_b32 v{RW+4*q+3}, v{RW+4*q+3}, v{TW if q < 4 else TWB}")
    A(f"v_or3_b32 v{t+3}, v{RW+3}, v{RW+7}, v{RW+11}")
    A(f"v_or3_b32 v{t+2}, v{RW+15}, v{RW+19}, v{RW+23}")
    A(f"v_or_b32 v{t+3}, v{t+3}, v{t+2}")
    A(f"v_and_b32 v{t+3}, {TMASK:#x}, v{t+3}")
    A(f"v_cmp_ne_u32 vcc, 0, v{t+3}")
    nd = lambda k: (ND + 2*(k//3) + k%3) if k % 3 < 2 else RW + 4*(k//3) + 3
    rw = lambda k: RW + 4*(k//3) + k%3
    def extract(q):
        A(f"v_and_b32 v{nd(3*q)}, 0xff, v{RW+4*q+3}")
        A(f"v_bfe_u32 v{nd(3*q+1)}, v{RW+4*q+3}, 8, 8")
        A(f"v_lshrrev_b32 v{RW+4*q+3}, 16, v{RW+4*q+3}")
    def hist(k):
        A(f"s_mov_b64 exec, {mk(k)}")
        A(f"ds_add_rtn_u32 v{RK+k}, v{nd(k)}, v{t+5} offset:{HIST2}")
    A("s_cbranch_vccnz L_HR")
    if WUP == "2":
        A("s_lshl_b32 s42, s3, 10")
        wu()
    FP = OPT.get("fp", "b")
    def flag(): A(f"buffer_load_dwordx2 {vr(FLV,2)}, v{FLA}, {sr(sWS,4)}, 0 offen sc1")
    if FP == "a": flag()
    if SPL:
        P0 = 0
        if PA: pf(0, PA, "lt")
    elif PA > P0: pf(P0, PA)
    A(f"s_cmp_eq_u32 s{sRARE}, 2")
    A("s_cbranch_scc1 L_RAREX")
    LB("L_RAREXD")
    for q in range(4): extract(q)
    A(f"s_cmp_eq_u32 s{sRARE}, 0")
    A("s_cbranch_scc1 L_RARE1")
    extract(4)
    for k in range(12, 15): hist(k)
    LB("L_RARE1")
    for k in range(12): hist(k)
    A("s_mov_b64 exec, -1")
    A("s_cbranch_scc1 L_RARE2")
    A("s_waitcnt lgkmcnt(12)")
    for k in range(12, 15): A(f"ds_write_b32 v{RK+k}, v{rw(k)}")
    LB("L_RARE2")
    for k in range(12):
        if k % 3 == 0: A("s_waitcnt lgkmcnt(9)")
        A(f"ds_write_b32 v{RK+k}, v{rw(k)}")
    if FP == "h": flag()
    note(sCNT, 21); stamp(23); note(sRARE, 25)
    A(f"s_cmp_lg_u32 s{sSAFE}, 0")
    A(f"s_cselect_b32 s44, 1.0, {f2u(2.0**-64):#x}")
    A("s_mov_b32 s45, s44")
    A("s_lshl_b32 s46, s3, 4")
    A("s_waitcnt lgkmcnt(0)")
    A("s_barrier")
    stamp(12)
    CNT, PB, INC, BS = t+6, t+7, t+8, t+9
    A(f"ds_read_b32 v{CNT}, v{L4} offset:{HIST2}")
    if FP == "b": flag()
    if PB_ > PA: pf(PA, PB_, "lt" if SPL else None)
    A(f"v_mov_b32 v{LBASE}, v{HINIT}")
    A("s_waitcnt lgkmcnt(0)")
    A(f"v_sub_u32 v{CNT}, v{CNT}, v{HINIT}")
    A(f"v_add_u32 v{PB}, 12, v{CNT}")
    A(f"v_and_b32 v{PB}, -16, v{PB}")
    A(f"v_max_u32 v{PB}, 16, v{PB}")
    A(f"v_cndmask_b32 v{PB}, 0, v{PB}, {sr(mLN,2)}")
    A(f"v_mov_b32 v{INC}, v{PB}")
    scan(INC, [f"v_sub_u32 v{t}, v{PB}, v{CNT}", f"v_cmp_lt_u32 vcc, {CAPB}, v{CNT}"] + [f"v_mov_b64 {vr(Nn+q,2)}, 0" for q in range(0,8,2)] +
              [f"v_mov_b64 {vr(Dd+q,2)}, s[44:45]" for q in range(0,8,2)] +
              [f"v_cvt_f32_u32 v{NPAD}, v{t}", f"v_mul_f32 v{NPAD}, {f2u(-0.25):#x}, v{NPAD}"])
    A(f"v_sub_u32 v{BS}, v{INC}, v{PB}")
    A(f"v_readlane_b32 s44, v{INC}, 63")
    A(f"s_mov_b32 s{sREDO}, 0")
    A("s_lshl_b32 s47, s3, 2")
    A("s_cmpk_gt_u32 s44, 16384")
    A("s_cbranch_scc1 L_TOOBIG")
    A("s_cbranch_vccnz L_DENSE")
    LB("L_DENSED")
    C("quad descriptors, pad entries")
    A(f"v_add_u32 v{t+2}, s46, v{LBASE}")
    A(f"v_subrev_u32 v{t+3}, s46, v{PB}")
    A(f"v_add_u32 v{t+4}, s46, v{BS}")
    A(f"v_lshl_add_u32 v{t+3}, v{t+3}, 17, v{ROWM}")
    A(f"v_lshrrev_b32 v{t+4}, 1, v{t+4}")
    LB("L_QD")
    for q in range(3):
        A(f"v_cmpx_lt_u32 vcc, s46, v{PB}")
        A("s_add_u32 s46, s46, 128")
        A(f"ds_write_b64 v{t+4}, {vr(t+2,2)} offset:{QD+64*q}")
        A(f"v_lshl_add_u64 {vr(t+2,2)}, {vr(t+2,2)}, 0, {sr(sI0,2)}")
    A(f"v_cmpx_lt_u32 vcc, s46, v{PB}")
    A(f"v_add_u32 v{t+4}, 192, v{t+4}")
    A("s_cbranch_execnz L_QD")
    A("s_mov_b64 exec, -1")
    A(f"v_add3_u32 v{t+1}, v{LBASE}, v{CNT}, s47")
    A(f"v_cmpx_lt_u32 vcc, s47, v{t}")
    A(f"ds_write_b32 v{t+1}, v62")
    A("s_cmp_lg_u32 s3, 7")
    A("s_cbranch_scc1 L_NOTL")
    A("s_mov_b64 exec, 0xffff")
    A("s_lshr_b32 s47, s44, 1")
    A(f"v_lshl_add_u32 v{t+1}, v{L4}, 1, s47")
    A(f"v_mov_b32 v{DSC}, {PADQ}")
    A(f"v_mov_b32 v{DSC+1}, {BIG + ROWS + 49*RP:#x}")
    A(f"ds_write_b64 v{t+1}, {vr(DSC,2)} offset:{QD}")
    LB("L_NOTL")
    A("s_mov_b64 exec, -1")
    A("s_add_u32 s44, s44, 127")
    A(f"s_lshr_b32 s{sT0}, s44, 10")
    A(f"s_bfe_u32 s{sR}, s44, 0x30007")
    A(f"s_mul_i32 s44, s{sT0}, s3")
    A(f"s_min_u32 s47, s{sR}, s3")
    A(f"s_add_u32 s{sSTART}, s44, s47")
    A(f"s_cmp_lt_u32 s3, s{sR}")
    A(f"s_addc_u32 s{sT}, s{sT0}, 0")
    def streams():
        A(f"s_lshl_b32 s44, s{sT}, 3")
        A(f"s_lshl_b32 s45, s{sSTART}, 6")
        A(f"v_mul_u32_u24 v{QA}, s44, v{GA}")
        A(f"v_add_u32 v{QA}, s45, v{QA}")
    streams()
    LB("L_MAIN")
    A("s_waitcnt lgkmcnt(0)")
    A("s_barrier")
    stamp(10)
    def gathers(g_):
        return [f"buffer_load_dwordx4 {vr(G[g_]+8*b+4*u,4)}, {vr(IP[b],2)}, {sr(sA,4)}, 0 idxen offen offset:{64*u}" for u in range(2) for b in range(2)]
    def idx(a):
        return [f"ds_read_u16 v{IP[b]}, v{a} offset:{8*b}" for b in range(2)]
    def eas(a):
        r = []
        for c in range(4):
            r.append("s_mov_b64 exec, s[20:21]" if c == 0 else "s_lshl_b64 exec, exec, 1")
            r += [f"ds_read_u16{'_d16_hi' if c & 1 else ''} v{EA+2*b+(c>>1)}, v{a} offset:{8*b+2}" for b in range(2)]
        return r + ["s_mov_b64 exec, -1"]
    def cbs(areg, off):
        return [f"ds_read_b128 {vr(CB+4*k,4)}, v{areg} offset:{off+128*(k&1)}" for k in range(4)]
    LA0 = 30; IQ = [32, 232]
    A(f"ds_read2_b32 {vr(LA0,2)}, v{QA} offset0:0 offset1:2")
    A(f"ds_read2_b32 {vr(DSC,2)}, v{QA} offset0:4 offset1:1")
    A(f"v_mov_b32 v{IQ[0]+1}, v{IP[0]+1}")
    A(f"v_mov_b32 v{IQ[1]+1}, v{IP[0]+1}")
    A("s_waitcnt lgkmcnt(1)")
    A(f"v_add_u32 v{LA0}, v{LA0}, v{LP2}")
    A(f"v_add_u32 v{PF_[1]}, v{LA0+1}, v{LP2}")
    AA(idx(LA0))
    A(f"ds_read_u16 v{IQ[0]}, v{PF_[1]}")
    A(f"ds_read_u16 v{IQ[1]}, v{PF_[1]} offset:8")
    A("s_waitcnt lgkmcnt(4)")
    A(f"v_lshl_add_u64 {vr(PF_[0],2)}, {vr(DSC,2)}, 0, {vr(LP2,2)}")
    A(f"v_and_b32 v{DSC}, 0x1fffff, v{PF_[0]+1}")
    PRE = int(OPT.get("pre", 0))
    if PRE >= 1: AA(cbs(DSC, 0)[:2] + eas(LA0))
    A(f"s_cmp_lg_u32 s{sREDO}, 0")
    A("s_cbranch_scc1 L_NOFC")
    A(f"s_not_b32 s45, s{sTAG}")
    A(f"s_waitcnt vmcnt({(1 if PB_ > PA else 0) + (1 if FP == 'a' and PA > P0 else 0)})")
    LB("L_FC")
    A(f"v_xor_b32 v{FLV}, s{sTAG}, v{FLV}")
    A(f"v_xor_b32 v{FLV+1}, s45, v{FLV+1}")
    A(f"v_or_b32 v{FLV}, v{FLV}, v{FLV+1}")
    A(f"v_cmp_ne_u32 vcc, 0, v{FLV}")
    A("s_cbranch_vccnz L_FR")
    note(sCNT, 22)
    LB("L_NOFC")
    A(f"s_waitcnt lgkmcnt({10 if PRE >= 1 else 0})")
    A("s_barrier")
    A("s_setprio 2")
    stamp(13); stamp(27, real=True)
    g1 = [x.replace(vr(IP[0],2), vr(IQ[0],2)).replace(vr(IP[1],2), vr(IQ[1],2)) for x in gathers(1)]
    AA(gathers(0))
    if PRE < 1: AA(cbs(DSC, 0)[:2] + eas(LA0))
    G1 = OPT.get("g1", "2")
    if G1 == "0": AA(g1)
    A(f"s_cmp_lg_u32 s{sREDO}, 0")
    A("s_cbranch_scc1 " + ("L_G1" if G1 == "1" else "L_NOSH"))
    A(f"ds_read_b128 v[154:157], v{CRA} offset:{oSB}")
    A(f"ds_read_b128 v[158:161], v{CRA} offset:{oSB+128}")
    C("s(n) = stream holding the node's last quad; the node needs the totals of streams s(n-1) .. s(n)-1")
    cn, ta, tb = t+3, t+4, t+5
    A(f"s_add_u32 s44, s{sT0}, 1")
    A(f"v_cvt_f32_u32 v{t}, s44")
    A(f"v_cvt_f32_u32 v{t+1}, s{sT0}")
    A(f"v_lshrrev_b32 v{t+2}, 4, v{INC}")
    A(f"v_rcp_f32 v{t}, v{t}")
    A(f"v_rcp_f32 v{t+1}, v{t+1}")
    A(f"s_lshl_b32 s45, s{sR}, 3")
    A("s_mul_i32 s44, s44, s45")
    A(f"v_cvt_f32_u32 v{cn}, v{t+2}")
    A(f"v_cmp_ge_u32 vcc, s44, v{t+2}")
    A(f"v_subrev_u32 v{t+2}, s44, v{t+2}")
    A(f"v_cvt_f32_i32 v{t+2}, v{t+2}")
    A(f"v_add_f32 v{cn}, -0.5, v{cn}")
    A(f"v_add_f32 v{t+2}, -0.5, v{t+2}")
    A(f"v_mul_f32 v{cn}, v{cn}, v{t}")
    A(f"v_mul_f32 v{t+2}, v{t+2}, v{t+1}")
    A(f"v_cvt_u32_f32 v{cn}, v{cn}")
    A(f"v_cvt_u32_f32 v{t+2}, v{t+2}")
    A(f"v_add_u32 v{t+2}, s45, v{t+2}")
    A(f"v_cndmask_b32 v{cn}, v{t+2}, v{cn}, vcc")
    A(f"v_mul_u32_u24 v{cn}, {TP}, v{cn}")
    A("s_lshl_b32 s46, s3, 4")
    A(f"v_mov_b32 v{t}, {BIG:#x}")
    A(f"v_mov_b32_dpp v{ta}, v{cn} wave_shr:1 row_mask:0xf bank_mask:0xf bound_ctrl:1")
    A(f"v_sub_u32 v{cn}, v{cn}, v{ta}")
    A(f"v_add_u32 v{SID}, s46, v{ta}")
    A(f"v_cmp_lt_i32 s[44:45], 0, v{cn}")
    A(f"v_cmp_lt_i32 vcc, {TP}, v{cn}")
    A("s_nop 0")
    A(f"v_cndmask_b32 v{ta}, v{t}, v{SID}, s[44:45]")
    A(f"v_cndmask_b32 v{tb}, v{t}, v{SID}, vcc")
    A(f"v_cmp_lt_i32 vcc, {2*TP}, v{cn}")
    A("s_waitcnt lgkmcnt(0)")
    for q in range(0,8,2): A(f"v_pk_fma_f32 {vr(AGG+q,2)}, {vr(154+q,2)}, {vr(NPAD,2)}, {vr(AGG+q,2)} op_sel_hi:[1,0,1]")
    A("s_cmp_lg_u64 vcc, 0")
    A(f"s_cselect_b32 s{sTM}, 1, 0")
    if G1 == "1":
        LB("L_G1")
        AA(g1)
    if WUP != "0":
        A(f"s_cmp_lg_u32 s{sFIRST}, 2")
        A("s_cbranch_scc1 L_NOSH")
        A(f"s_mov_b32 s{sFIRST}, 0")
        A(f"ds_read_b128 {vr(XF,4)}, v{XA}")
        A(f"ds_read_b128 {vr(XF+4,4)}, v{XA+1}")
        AA(wfrags(WF, WA, WU-WM, 512))
        AA(wfrags(WF2, WA2, 0, 2048))
        A("s_waitcnt lgkmcnt(8)")
        AA(mm(U, WF))
    LB("L_NOSH")
    if G1 == "2": AA(g1)
    A(f"s_sub_u32 s{sCNT}, s{sT}, 1")
    A("s_cbranch_scc1 L_WEND")
    def mfmas(g_, b):
        d = vr(T[b],16)
        return [f"v_mfma_f32_32x32x8_bf16 {d}, {vr(W,2)}, {vr(EA+2*b,2)}, {vr(CB,16)}",
                f"v_smfmac_f32_32x32x32_bf16 {d}, {vr(S,4)}, {vr(G[g_]+8*b,8)}, v{SX}"]
    def chain(b, safe):
        o = []
        if safe:
            o += pk("v_pk_add_f32", EX, EX, "1.0", n=16, tail=" op_sel_hi:[1,0]")
            o += [f"v_rcp_f32 v{EX+r}, v{EX+r}" for r in range(16)]
            for q in range(2):
                for p in range(4):
                    n = vr(Nn+2*p,2)
                    o.append(f"v_pk_fma_f32 {n}, {vr(T[b]+8*q+2*p,2)}, {vr(EX+8*q+2*p,2)}, {n}")
            return o
        for q in range(2):
            for p in range(4):
                n = vr(Nn+2*p,2); o.append(f"v_pk_fma_f32 {n}, {n}, {vr(EX+8*q+2*p,2)}, {n}")
            for p in range(4):
                n = vr(Nn+2*p,2); o.append(f"v_pk_fma_f32 {n}, {vr(T[b]+8*q+2*p,2)}, {vr(Dd+2*p,2)}, {n}")
            for p in range(4):
                d = vr(Dd+2*p,2); o.append(f"v_pk_fma_f32 {d}, {d}, {vr(EX+8*q+2*p,2)}, {d}")
        return o
    def flush(a):
        return [f"ds_write_b128 v{a}, {vr(r+4*k,4)} offset:{o+128*k}" for r, o in ((Nn, oN), (Dd, oD)) for k in range(2)]
    ms = mfmas(0, 0)
    A("s_waitcnt lgkmcnt(0)")
    for q in range(0, 8, 2): A(f"v_mov_b64 {vr(CB+8+q,2)}, {vr(CB+q,2)}")
    A(f"v_cmp_gt_u32 vcc, s30, v{PF_[0]+1}")
    A("s_mov_b64 s[24:25], 0")
    A(ms[0])
    A("s_waitcnt vmcnt(4)")
    stamp(14)
    A(f"s_cmp_lg_u32 s{sSAFE}, 0")
    A(ms[1])
    A("s_setprio 1")
    A("s_nop 9")
    A("s_cbranch_scc1 L_INS")
    A("s_branch L_INF")
    def size(x):
        x = x.strip()
        if x.endswith(":"): return 0
        if x.startswith("s_memtime"): return 8
        if x.startswith("v_exp_f32 ") or x.startswith("v_rcp_f32 ") or x.startswith("s_") or x.startswith("v_add_u32 ") or x.startswith("v_cmp_gt_u32 vcc") or x.startswith("v_mov_b32"): return 4
        return 8
    def aligned(body):
        out = []; off = 0
        for x in body:
            if size(x) == 8 and off % 8 and x.startswith("v_"):
                p = out[-1]
                if p.startswith("v_exp_f32 ") or p.startswith("v_rcp_f32 "):
                    out[-1] = p.replace("_f32 ", "_f32_e64 "); off += 4
                elif "nopad" not in OPT:
                    k = len(out)
                    while out[k-1].endswith(":"): k -= 1
                    out.insert(k, "s_nop 0"); off += 4
            out.append(x); off += size(x)
        return out
    PP = int(OPT.get("pp", 24)); GAP = int(OPT.get("gap", 4))
    def esec(b, ms, lead):
        o = []
        for r in range(16):
            if r == lead: o.append(ms[0])
            if r == lead + GAP: o.append(ms[1])
            o.append(f"v_exp_f32 v{EX+r}, v{T[b]+r}")
        return o
    def loop(tag, safe):
        L.append(".p2align 6")
        B = [f"L_LOOP{tag}:"]
        for ph in range(2):
            o = 16*ph
            B += ["s_setprio 0"]
            if "lst" in OPT: B += ["s_memtime s[98:99]"]
            MO = OPT.get("mo", "0")
            cb = [f"s_cbranch_vccz L_C{tag}{ph}", "s_mov_b64 exec, vcc"] + cbs(PF_[ph]+1, RP) + (["s_mov_b64 exec, -1"] if MO == "1" else []) + [f"L_C{tag}{ph}:"]
            ee = eas(PF_[1-ph]) + [f"ds_read2_b32 {vr(DSC,2)}, v{QA} offset0:{2*ph+6} offset1:{2*ph+3}"]
            gg = [f"s_cmp_lt_u32 s{sCNT}, 2", f"s_cbranch_scc1 L_GS{tag}{ph}", "s_waitcnt lgkmcnt(9)"] + gathers(ph) + [f"L_G{tag}{ph}:"]
            ff = ["s_cmp_eq_u64 s[24:25], 0", f"s_cbranch_scc1 L_FS{tag}{ph}"] + flush(PF_[1-ph]+1) + [f"L_F{tag}{ph}:"]
            if MO == "0": B += idx(PF_[ph]) + cb + ee + gg + ff
            if MO == "1": B += idx(PF_[ph]) + ee + gg + cb + ff
            if MO == "2": B += idx(PF_[ph]) + cb + ee + ff + gg
            B += ["s_mov_b64 s[24:25], vcc"]
            if "lst" in OPT:
                B += ["s_waitcnt vmcnt(4) lgkmcnt(0)", "s_memtime s[26:27]", f"s_mov_b32 m0, s{sCNT}", "s_nop 0", "s_movreld_b32 s48, s98", "s_waitcnt lgkmcnt(0)", "s_movreld_b32 s64, s26"]
            B += [f"s_sub_u32 s{sCNT}, s{sCNT}, 1", "s_waitcnt vmcnt(4) lgkmcnt(4)"]
            c = chain(0, safe)
            pp = min(PP, len(c))
            B += c[:pp] + ["s_setprio 1"] + c[pp:]
            B += esec(1, mfmas(1-ph, 0), 1 if pp == len(c) else 0)
            B += chain(1, safe)
            B += [f"s_cbranch_scc1 L_X{tag}{ph}", f"v_cmp_gt_u32 vcc, s30, v{DSC+1}", f"v_lshl_add_u64 {vr(PF_[1-ph],2)}, {vr(DSC,2)}, 0, {vr(LP2,2)}"]
            if ph == 1: B.append(f"v_add_u32 v{QA}, 16, v{QA}")
            if ph == 1: B.append(f"L_IN{tag}:")
            B += esec(0, mfmas(1-ph, 1), 1)
        B.append(f"s_branch L_LOOP{tag}")
        for ph in range(2):
            B += [f"L_GS{tag}{ph}:", "s_waitcnt vmcnt(0)", f"s_branch L_G{tag}{ph}", f"L_FS{tag}{ph}:", "s_waitcnt lgkmcnt(0)", f"s_branch L_F{tag}{ph}"]
        B += [f"L_X{tag}1:", f"v_mov_b32 v{PF_[0]+1}, v{PF_[1]+1}", f"L_X{tag}0:", "s_setprio 0", "s_cmp_eq_u64 s[24:25], 0", "s_cbranch_scc1 L_SEND"] + flush(PF_[0]+1)
        for x in aligned(B):
            (L.append(x) if x.endswith(":") else A(x))
    loop("F", False)
    LB("L_SEND")
    stamp(15); note(sT, 24)
    for q in range(8): A(f"v_rcp_f32 v{EX+q}, v{Dd+q}")
    A(f"v_pk_add_f32 v[186:187], {vr(Dd,2)}, {vr(Dd+2,2)}")
    AA(pk("v_pk_mul_f32", EX, Nn, EX))
    A(f"ds_write_b128 v{TOTW}, {vr(EX,4)} offset:{TOT}")
    A(f"ds_write_b128 v{TOTW}, {vr(EX+4,4)} offset:{TOT+128}")
    A(f"v_pk_add_f32 v[188:189], {vr(Dd+4,2)}, {vr(Dd+6,2)}")
    A(f"v_pk_add_f32 v[190:191], {vr(EX,2)}, {vr(EX+2,2)}")
    A(f"v_pk_add_f32 v[192:193], {vr(EX+4,2)}, {vr(EX+6,2)}")
    A("v_pk_add_f32 v[186:187], v[186:187], v[188:189]")
    A("v_pk_add_f32 v[190:191], v[190:191], v[192:193]")
    A("v_pk_fma_f32 v[186:187], v[190:191], 0, v[186:187] op_sel_hi:[1,0,1]")
    A("v_add_f32 v186, v186, v187")
    A("v_mov_b32 v189, 1")
    A(f"v_cmpx_ngt_f32 vcc, {f2u(2.0**110):#x}, v186")
    A(f"ds_write_b32 v{ZERO}, v189 offset:{FLAGS+4}")
    A("s_mov_b64 exec, -1")
    LB("L_WEND")
    A(f"s_mov_b32 s42, {NLN2:#x}")
    A("s_mov_b32 s43, s42")
    A("s_waitcnt lgkmcnt(0)")
    A("s_barrier")
    stamp(16); stamp(28, real=True)
    FN, FD, T0_, T1_ = 186, 194, 202, 210
    A(f"ds_read_b128 {vr(FD,4)}, v{CRA} offset:{oD}")
    A(f"ds_read_b128 {vr(FD+4,4)}, v{CRA} offset:{oD+128}")
    A(f"ds_read_b64 {vr(t+6,2)}, v{ZERO} offset:{FLAGS}")
    A(f"ds_read_b128 {vr(FN,4)}, v{CRA} offset:{oN}")
    A(f"ds_read_b128 {vr(FN+4,4)}, v{CRA} offset:{oN+128}")
    A(f"ds_read_b128 {vr(T0_,4)}, v{ta} offset:{TOT}")
    A(f"ds_read_b128 {vr(T0_+4,4)}, v{ta} offset:{TOT+128}")
    A(f"ds_read_b128 {vr(T1_,4)}, v{tb} offset:{TOT+TP}")
    A(f"ds_read_b128 {vr(T1_+4,4)}, v{tb} offset:{TOT+TP+128}")
    A("s_waitcnt lgkmcnt(8)")
    for q in range(4): A(f"v_rcp_f32 v{FD+q}, v{FD+q}")
    A("s_waitcnt lgkmcnt(6)")
    for q in range(4, 8): A(f"v_rcp_f32 v{FD+q}, v{FD+q}")
    A(f"v_readfirstlane_b32 s47, v{t+7}")
    A(f"v_readfirstlane_b32 s{sMORE}, v{t+6}")
    A("s_waitcnt lgkmcnt(4)")
    AA(pk("v_pk_mul_f32", FN, FN, FD))
    A(f"s_andn2_b32 s47, s47, s{sSAFE}")
    A("s_cbranch_scc1 L_RETRY")
    for q in range(8):
        A(f"v_subrev_f32_dpp v{AGG+q}, v{FN+q}, v{AGG+q} wave_shr:1 row_mask:0xf bank_mask:0xf bound_ctrl:1")
    A(f"s_or_b32 s47, s{sMORE}, s{sTM}")
    A("s_waitcnt lgkmcnt(2)")
    AA(pk("v_pk_add_f32", FN, FN, T0_))
    A("s_waitcnt lgkmcnt(0)")
    AA(pk("v_pk_add_f32", AGG, AGG, T1_))
    AA(pk("v_pk_add_f32", AGG, AGG, FN))
    A("s_cbranch_scc1 L_TLM")
    LB("L_TLD")
    AA(pk("v_pk_mul_f32", FN, AGG, "s[42:43]"))
    for q in range(4): A(f"v_cvt_pk_bf16_f32 v{FD+q}, v{FN+2*q}, v{FN+2*q+1}")
    A(f"ds_write_b128 v{AGW}, {vr(FD,4)} offset:{AGS}")
    A("s_waitcnt lgkmcnt(0)")
    A("s_barrier")
    stamp(17)
    A(f"ds_read_b128 {vr(T0_,4)}, v{AGR} offset:{AGS}")
    A(f"ds_read_b128 {vr(T0_+4,4)}, v{AGR} offset:{AGS+64}")
    for ks in range(2):
        A(f"s_waitcnt lgkmcnt({1-ks})")
        for cb in range(2):
            A(f"v_mfma_f32_16x16x32_bf16 {vr(U+4*cb,4)}, {vr(WF2+8*cb+4*ks,4)}, {vr(T0_+4*ks,4)}, {vr(U+4*cb,4)}")
    A("s_nop 6")
    AA(pk("v_pk_mul_f32", FN, U, sr(sNL,2)))
    for q in range(8): A(f"v_exp_f32 v{FN+q}, v{FN+q}")
    AA(pk("v_pk_add_f32", FN, FN, "1.0", tail=" op_sel_hi:[1,0]"))
    for q in range(8): A(f"v_rcp_f32 v{FN+q}, v{FN+q}")
    AA(pk("v_pk_mul_f32", FN, U, FN))
    for q in range(4): A(f"v_cvt_pk_bf16_f32 v{FD+q}, v{FN+2*q}, v{FN+2*q+1}")
    A("s_nop 1")
    A(f"v_permlane16_swap_b32 v{FD}, v{FD+2}")
    A(f"v_permlane16_swap_b32 v{FD+1}, v{FD+3}")
    A(f"s_mov_b64 exec, {sr(mON,2)}")
    A(f"buffer_store_dwordx4 {vr(FD,4)}, v{OUTO}, {sr(sOUT,4)}, s{sOUTS} offen {OPT.get('outf','nt').replace('+',' ')}")
    if DIAG:
        stamp(18)
        if "lst" in OPT:
            for k in range(32): A(f"v_writelane_b32 v255, s{48+k}, {32+k}")
        A("s_waitcnt vmcnt(0)")
        stamp(19)
        stamp(31, real=True)
        A("s_mov_b32 exec_lo, -1")
        A("s_mov_b32 exec_hi, 0")
        A("s_lshl_b32 s44, s2, 3")
        A("s_add_u32 s44, s44, s3")
        A("s_lshl_b32 s44, s44, 7")
        A(f"s_add_u32 s44, s44, {STAMP:#x}")
        A(f"buffer_store_dword v255, v{L4}, {sr(sWS,4)}, s44 offen")
        A("s_not_b64 exec, exec")
        A(f"s_add_u32 s44, s44, {0x40000-128:#x}")
        A(f"buffer_store_dword v255, v{L4}, {sr(sWS,4)}, s44 offen")
    LB("L_END")
    A("s_endpgm")
    C("---- out-of-line paths")
    LB("L_TLM")
    A(f"v_min_i32 v{cn}, {64*TP}, v{cn}")
    LB("L_TLL")
    A(f"v_cmpx_lt_i32 vcc, {2*TP}, v{cn}")
    A("s_cbranch_execz L_TLE")
    A(f"ds_read_b128 {vr(T0_,4)}, v{SID} offset:{TOT+2*TP}")
    A(f"ds_read_b128 {vr(T0_+4,4)}, v{SID} offset:{TOT+2*TP+128}")
    A(f"v_add_u32 v{cn}, {-TP & 0xffffffff:#x}, v{cn}")
    A(f"v_add_u32 v{SID}, {TP}, v{SID}")
    A("s_waitcnt lgkmcnt(0)")
    AA(pk("v_pk_add_f32", AGG, AGG, T0_))
    A("s_branch L_TLL")
    LB("L_TLE")
    A("s_mov_b64 exec, -1")
    A(f"s_cmp_lg_u32 s{sMORE}, 0")
    A("s_cbranch_scc1 L_NEXT")
    A("s_branch L_TLD")
    LB("L_RAREX")
    extract(5)
    for k in range(15, 18): hist(k)
    A("s_mov_b64 exec, -1")
    A("s_waitcnt lgkmcnt(0)")
    for k in range(15, 18): A(f"ds_write_b32 v{RK+k}, v{rw(k)}")
    A("s_branch L_RAREXD")
    LB("L_DENSE")
    C("a node has more edges than its fixed list holds: lay the lists out back to back instead")
    A(f"v_add_u32 v{LBASE}, {LB_}, v{BS}")
    A(f"v_sub_u32 v{t+1}, v{LBASE}, v{HINIT}")
    A(f"ds_write_b32 v{L4}, v{t+1} offset:{BASE2}")
    for lvl, grp in enumerate((range(12), range(12, 15), range(15, 18))):
        for k in grp: A(f"ds_read_b32 v{nd(k)}, v{nd(k)} offset:{BASE2}")
        A("s_waitcnt lgkmcnt(0)")
        for k in grp:
            A(f"v_add_u32 v{RK+k}, v{nd(k)}, v{RK+k}")
            A(f"ds_write_b32 v{RK+k}, v{rw(k)}")
        if lvl < 2:
            A(f"s_cmp_eq_u32 s{sRARE}, {lvl}")
            A("s_cbranch_scc1 L_DENSED")
    A("s_branch L_DENSED")
    LB("L_NONCEW")
    A(f"global_load_dword v{PUB+1}, v{ZERO}, {sr(pDBG,2)} sc1")
    bound()
    A("s_waitcnt vmcnt(0)")
    A("s_branch L_PUB")
    LB("L_PASS")
    A(f"s_mov_b32 s{sCNT}, 0")
    LB("L_ENTR")
    A("s_waitcnt lgkmcnt(0)")
    entry_load()
    bound()
    A("s_waitcnt vmcnt(0)")
    A("s_branch L_ENT")
    LB("L_FR")
    A(f"buffer_load_dwordx2 {vr(FLV,2)}, v{FLA}, {sr(sWS,4)}, 0 offen sc1")
    bound()
    A("s_waitcnt vmcnt(0)")
    A("s_branch L_FC")
    LB("L_HR")
    for q in range(6): A(f"v_mov_b32 v{RW+4*q+3}, v{TW if q < 4 else TWB}")
    bound()
    A("s_branch L_LOADS")
    LB("L_RETRY")
    A(f"s_mov_b32 s{sSAFE}, 1")
    A(f"s_mov_b32 s{sREDO}, 1")
    for q in range(8):
        A(f"v_mov_b32 v{Nn+q}, 0")
        A(f"v_mov_b32 v{Dd+q}, 1.0")
    streams()
    A("s_waitcnt vmcnt(0) lgkmcnt(0)")
    A("s_branch L_MAIN")
    LB("L_TOOBIG")
    C("narrow passes: 12 positions of every segment at a time")
    A(f"s_sub_u32 s{sHI}, s{sHI}, 24")
    A(f"s_mov_b32 s{sWID}, 12")
    A(f"s_mov_b32 s{sLB}, {HUGE:#x}")
    A(f"v_cmpx_lt_u32 vcc, 63, v{LP}")
    A(f"v_mov_b32 v{KP}, {HUGE:#x}")
    A(f"v_mov_b32 v{ENA}, {HUGE:#x}")
    A("s_mov_b64 exec, -1")
    A("s_branch L_AGAIN")
    LB("L_NEXT")
    A(f"s_add_u32 s{sHI}, s{sHI}, s{sWID}")
    A(f"s_add_u32 s{sLB}, s{sLB}, s{sWID}")
    A(f"v_add_u32 v{KP}, s{sWID}, v{KP}")
    A(f"s_lshl_b32 s44, s{sWID}, 3")
    A(f"v_add_u32 v{ENA}, s44, v{ENA}")
    A(f"s_cmp_eq_u32 s{sWID}, 12")
    A("s_cselect_b32 s44, 64, 192")
    A(f"v_add_u32 v{RCA}, s44, v{RCA}")
    A(f"v_add_u32 v{RCB}, s44, v{RCB}")
    LB("L_AGAIN")
    A("s_setprio 0")
    A("s_waitcnt vmcnt(0) lgkmcnt(0)")
    A("s_barrier")
    A("s_cmp_eq_u32 s3, 0")
    A("s_cselect_b64 exec, -1, 0")
    prefill_small()
    A("s_mov_b64 exec, -1")
    for q in range(6): A(f"v_mov_b32 v{RW+4*q+3}, v{TW if q < 4 else TWB}")
    A("s_mov_b32 s46, 0x8000801f")
    A("s_waitcnt lgkmcnt(0)")
    A("s_barrier")
    A("s_branch L_PASS")
    loop("S", True)
    A("s_branch L_SEND")
    L.append(".p2align 8")
    LB("L_TAB")
    L.extend(table())

hdr = open("cdna_kernels/%s.s.ref" % NAME).read().split("; Override")[0]
out = hdr + f"; @launch grid=(256,1,1) block=(512,1,1) lds={LDSZ}\n"
out += '.amdgcn_target "amdgcn-amd-amdhsa--gfx950"\n.text\n'
kernel()
out += "\n".join(L) + "\n"
out += f""".section .rodata,"a"
.p2align 6
.amdhsa_kernel {KN}
  .amdhsa_next_free_vgpr 256
  .amdhsa_next_free_sgpr 102
  .amdhsa_accum_offset 256
  .amdhsa_group_segment_fixed_size 0
  .amdhsa_kernarg_size 72
  .amdhsa_user_sgpr_count 2
  .amdhsa_user_sgpr_kernarg_segment_ptr 1
  .amdhsa_system_sgpr_workgroup_id_x 1
.end_amdhsa_kernel
"""
dst = [a for a in sys.argv[1:] if not a.startswith("--")]
open(dst[0] if dst else f"cdna_kernels/{NAME}.s", "w").write(out)
```
